```python
import torch

def _softmax(x, axis=-1):
    return torch.softmax(x, dim=axis)
def _gelu(x):
    return torch.nn.functional.gelu(x, approximate="tanh")
def _silu(x):
    return torch.nn.functional.silu(x)
def _sigmoid(x):
    return torch.sigmoid(x)
def _layernorm(x, axis=-1, eps=1e-5):
    m = x.mean(dim=axis, keepdim=True)
    v = x.var(dim=axis, keepdim=True, unbiased=False)
    return (x - m) / torch.sqrt(v + eps)
def _scatter_add(tgt, idx, src, axis=0):
    return tgt.clone().index_add_(axis, idx, src)
def _segment_sum(src, seg, n):
    out = torch.zeros((n,) + src.shape[1:], dtype=src.dtype)
    return out.index_add_(0, seg, src)
def _pad(x, pw):
    flat = tuple(v for pair in reversed(pw) for v in pair)
    return torch.nn.functional.pad(x, flat)

kernel_name = 'sequential_preLN__sliding_block_cached__mixer_channel_mlp__decode'

def setup_inputs():

    _w = (lambda a: (lambda t: t.to(torch.bfloat16) if t.is_floating_point() else t)(torch.as_tensor(a)))
    def _A_setup():
        B, Sq, D = 4, 1, 448
        Hq, Hkv, Sk, Dh = 16, 8, 4096, 256
        assert Hq % Hkv == 0, (Hq, Hkv)
        return {
            "x": _w((lambda *s: torch.randn(*s, dtype=torch.bfloat16) * 0.05)(B, Sq, D)),
            "k_cache": _w((lambda *s: torch.randn(*s, dtype=torch.bfloat16) * 3.2)(B, Hkv, Sk, Dh)),
            "v_cache": _w((lambda *s: torch.randn(*s, dtype=torch.bfloat16) * 0.4)(B, Hkv, Sk, Dh)),
            "wq": _w((lambda *s: torch.randn(*s, dtype=torch.bfloat16) * 3.2)(D, Hq * Dh) * (D ** -0.5)),
            "wo": _w((lambda *s: torch.randn(*s, dtype=torch.bfloat16) * 0.4)(Hq * Dh, D) * ((Hq * Dh) ** -0.5)),
        }
    _A_in = _A_setup()

    def _B_setup():
        B, S, D, F = 4, 1, 448, 1792
        return {
            "x": _w((lambda *s: torch.randn(*s, dtype=torch.bfloat16) * 0.05)(B, S, D)),
            "w1": _w((lambda *s: torch.randn(*s, dtype=torch.bfloat16) * 3.2)(D, F) * (D ** -0.5)),
            "b1": _w((lambda *s: torch.randn(*s, dtype=torch.bfloat16) * 1.6)(F)),
            "w2": _w((lambda *s: torch.randn(*s, dtype=torch.bfloat16) * 0.1)(F, D) * (F ** -0.5)),
            "b2": _w((lambda *s: torch.randn(*s, dtype=torch.bfloat16) * 0.2)(D)),
        }
    _B_in = _B_setup()

    return {
        "A_x": _A_in["x"],
        "A_k_cache": _A_in["k_cache"],
        "A_v_cache": _A_in["v_cache"],
        "A_wq": _A_in["wq"],
        "A_wo": _A_in["wo"],
        "B_x": _B_in["x"],
        "B_w1": _B_in["w1"],
        "B_b1": _B_in["b1"],
        "B_w2": _B_in["w2"],
        "B_b2": _B_in["b2"],
    }

def reference(A_x, A_k_cache, A_v_cache, A_wq, A_wo, B_x, B_w1, B_b1, B_w2, B_b2):
    def _A_ref(x, k_cache, v_cache, wq, wo):
        B, Sq, D = x.shape
        Hq, Dh = 16, 256
        Hkv, Sk = k_cache.shape[1], k_cache.shape[2]
        W = min(4096, max(256, Sk // 4))
        rep = Hq // Hkv
        q = (lambda x, *d: x.permute(*d))((x @ wq).reshape(B, Sq, Hq, Dh), 0, 2, 1, 3)
        k = (lambda x, n, axis: torch.repeat_interleave(x, n, dim=axis))(k_cache[:, :, Sk - W:, :], rep, axis=1)
        v = (lambda x, n, axis: torch.repeat_interleave(x, n, dim=axis))(v_cache[:, :, Sk - W:, :], rep, axis=1)
        scores = torch.einsum("bhqd,bhkd->bhqk", q, k) * (Dh ** -0.5)
        p = _softmax(scores, axis=-1)
        o = torch.einsum("bhqk,bhkd->bhqd", p, v)
        return (lambda x, *d: x.permute(*d))(o, 0, 2, 1, 3).reshape(B, Sq, Hq * Dh) @ wo

    def _B_ref(x, w1, b1, w2, b2):
        y = _layernorm(x, axis=-1)
        h = _gelu(torch.einsum("bsd,df->bsf", y, w1) + b1)
        return torch.einsum("bsf,fd->bsd", h, w2) + b2

    x = A_x
    h = x + _A_ref(_layernorm(x, axis=-1), A_k_cache, A_v_cache, A_wq, A_wo)
    h2 = h + _B_ref(_layernorm(h, axis=-1), B_w1, B_b1, B_w2, B_b2)
    return h2
```

```python
import sys, struct
NAME = "sequential_preLN__sliding_block_cached__mixer_channel_mlp__decode"

def f2u(x): return struct.unpack("<I", struct.pack("<f", x))[0]

QP   = 0x00000
HACC = 0x40000
OACC = 0x44000
STAT = 0x64000
PART = 0x65000
PROF = 0x100000
WQL = 4096; KL = 20480; VL = KL + 65536
XN = 0
QB = XN + 1024
SP = QB + 1024
ZR = SP + 512
FL = ZR + 512
LDS_TOTAL = VL + 65536
RED = WQL
YL = WQL
H1L = WQL + 4096
F_WQ, F_KL, F_S, F_VI, F_Q, F_P, F_F, F_CLR, F_FAC = 0, 16, 32, 48, 64, 68, 72, 76, 80

class G:
    def __init__(self, W=6, prof=False, nt="nt", ntw="nt"):
        self.L = []; self.W = W; self.prof = prof; self.nt = nt; self.ntw = ntw; self.uid = 0
    def a(self, s):
        for line in s.split("\n"):
            line = line.strip()
            if line: self.L.append(("" if line.endswith(":") else "    ") + line)
    def c(self, s): self.L.append("    ; " + s)
    def lab(self, p="L"):
        self.uid += 1; return f"{p}_{self.uid}"
    def stamp(self, i):
        if self.prof:
            self.a(f"s_memrealtime s[90:91]\ns_waitcnt lgkmcnt(0)\nv_writelane_b32 v167, s90, {i}")
    def srd(self, r, karg, size):
        self.a(f"s_load_dwordx2 s[{r}:{r+1}], s[0:1], {karg}\ns_mov_b32 s{r+2}, {size}\ns_mov_b32 s{r+3}, 0x20000")
    def setflag(self, off, vaddr="v2"):
        self.a(f"ds_write_b32 {vaddr}, v4 offset:{off}")
    def waitflag(self, off, vaddr="v3", n=1, t="v8"):
        l = self.lab("WF"); d = self.lab("WD")
        ti = int(t[1:])
        self.a(f"{l}:")
        if n == 1:
            self.a(f"ds_read_b32 {t}, {vaddr} offset:{off}\ns_waitcnt lgkmcnt(0)")
        else:
            self.a(f"ds_read_b128 v[{ti}:{ti+3}], {vaddr} offset:{off}\ns_waitcnt lgkmcnt(0)")
            self.a(f"v_and_b32 {t}, {t}, v{ti+1}\nv_and_b32 v{ti+2}, v{ti+2}, v{ti+3}\nv_and_b32 {t}, {t}, v{ti+2}")
        self.a(f"v_cmp_ne_u32 vcc, 0, {t}\ns_cbranch_vccnz {d}")
        self.a(f"s_sleep 1\ns_sub_u32 s88, s88, 1\ns_cbranch_scc0 {l}\ns_branch L_exit\n{d}:")
    def retry(self, l):
        d = self.lab("RD")
        self.a(f"s_cbranch_vccz {d}\ns_sub_u32 s88, s88, 1\ns_cbranch_scc0 {l}\ns_branch L_exit\n{d}:")

    def build(self):
        a, c = self.a, self.c
        W = self.W; nt = (" " + self.nt) if self.nt else ""; ntw = (" " + self.ntw) if self.ntw else ""
        self.L.append(f"; @launch grid=(256,1,1) block=(576,1,1) lds={LDS_TOTAL}")
        self.L.append('.amdgcn_target "amdgcn-amd-amdhsa--gfx950"\n.text')
        self.L.append(f".globl {NAME}_kernel\n.p2align 12\n.fill 832, 4, 0xbf810000\n.p2align 8\n.type {NAME}_kernel,@function\n{NAME}_kernel:")
        if self.prof: a("s_memrealtime s[92:93]")
        a("s_cmp_ge_u32 s2, 256\ns_cbranch_scc1 L_end")
        self.srd(12, 24, 448*8192)
        self.srd(4, 8, 0x4000000)
        self.srd(8, 16, 0x4000000)
        self.srd(16, 96, 0x200000)
        self.srd(20, 0, 3584)
        a("v_lshrrev_b32 v1, 6, v0\nv_and_b32 v0, 63, v0\ns_mov_b32 s88, 0x40000\nv_readfirstlane_b32 s3, v1")
        a("s_and_b32 s48, s2, 7\ns_lshr_b32 s49, s2, 3")
        c("v5 = swizzled 16B chunk offset inside a 128B row; v6 = row (l>>3); v7 = g4")
        a("""v_and_b32 v5, 7, v0
        v_lshrrev_b32 v7, 4, v0
        v_lshlrev_b32 v5, 4, v5
        v_lshlrev_b32 v6, 5, v7
        v_xor_b32 v5, v5, v6
        v_lshrrev_b32 v6, 3, v0
        s_and_b32 s50, s3, 3""")
        a(f"v_mov_b32 v3, {FL}\ns_lshl_b32 s51, s50, 2\nv_add_u32 v2, s51, v3\nv_mov_b32 v4, 1")
        if self.prof: a("v_mov_b32 v167, 0")
        a("s_cmp_ge_u32 s3, 4\ns_cbranch_scc1 L_notL")
        self.lwave()
        self.swave_head()
        self.awave()
        self.swave()
        self.role_wo()
        self.role_mlp()
        self.role_fin()
        a("L_exit:")
        if self.prof:
            a(f"""s_waitcnt lgkmcnt(0)
            s_mov_b64 exec, -1
            v_writelane_b32 v167, s92, 0
            s_memrealtime s[90:91]
            s_waitcnt lgkmcnt(0)
            v_writelane_b32 v167, s90, 63
            v_writelane_b32 v167, s88, 62
            s_lshl_b32 s90, s2, 4
            s_add_u32 s90, s90, s3
            s_lshl_b32 s90, s90, 8
            s_add_u32 s90, s90, {PROF}
            v_lshlrev_b32 v166, 2, v0
            buffer_store_dword v167, v166, s[16:19], s90 offen""")
        a("L_end:\ns_endpgm")
        self.L.append(f""".section .rodata,"a"
.p2align 6
.amdhsa_kernel {NAME}_kernel
  .amdhsa_next_free_vgpr 168
  .amdhsa_next_free_sgpr 96
  .amdhsa_accum_offset 168
  .amdhsa_group_segment_fixed_size 0
  .amdhsa_kernarg_size 104
  .amdhsa_user_sgpr_count 2
  .amdhsa_user_sgpr_kernarg_segment_ptr 1
  .amdhsa_system_sgpr_workgroup_id_x 1
.end_amdhsa_kernel""")
        return "\n".join(self.L) + "\n"

    def tr_addr(self, r, sbase, tmp):
        a = self.a
        a(f"""v_lshrrev_b32 v{tmp}, 2, v0
        v_lshlrev_b32 v{r}, 7, v{tmp}
        v_and_b32 v{tmp+1}, 3, v0
        v_lshl_add_u32 v{r}, v{tmp+1}, 3, v{r}
        v_bfe_u32 v{tmp}, v0, 3, 2
        v_lshl_add_u32 v{r}, v{tmp}, 5, v{r}
        v_add_u32 v{r}, {sbase}, v{r}
        v_xor_b32 v{r+1}, 32, v{r}
        v_xor_b32 v{r+2}, 64, v{r}
        v_xor_b32 v{r+3}, 0x60, v{r}""")

    def lwave(self):
        a, c = self.a, self.c; W = self.W; nt = (" " + self.nt) if self.nt else ""
        c("================= L-wave: stream wq tile, K, V into LDS; PV =================")
        a(f"""v_lshl_add_u32 v10, v6, 13, v5
        v_lshl_add_u32 v11, v6, 9, v5
        v_lshrrev_b32 v12, 5, v0
        v_xor_b32 v12, v12, v0
        v_lshlrev_b32 v12, 4, v12
        s_lshr_b32 s52, s49, 3
        s_lshl_b32 s52, s52, 2
        s_add_u32 s52, s52, s50
        s_lshl_b32 s52, s52, 18
        s_lshl_b32 s53, s48, 10
        s_add_u32 s52, s52, s53
        s_and_b32 s53, s49, 7
        s_lshl_b32 s53, s53, 7
        s_add_u32 s52, s52, s53
        s_and_b32 s53, s2, 31
        s_lshl_b32 s53, s53, 21
        s_lshr_b32 s54, s2, 5
        s_lshl_b32 s54, s54, 16
        s_add_u32 s53, s53, s54
        s_add_u32 s53, s53, {3072*512}
        s_lshl_b32 s55, s50, 14
        s_add_u32 s54, s53, s55
        s_lshl_b32 s56, s50, 7
        s_add_u32 s53, s53, s56
        s_lshl_b32 s56, s50, 12
        s_add_u32 m0, s56, {WQL}
        s_waitcnt lgkmcnt(0)""")
        n = 0
        def after(n):
            if n == W:
                a("s_barrier")
            if n >= W and n < 36:
                a(f"s_waitcnt vmcnt({W-1})")
                landed = n - (W - 1)
                if landed == 4: self.setflag(F_WQ); self.stamp(1)
                if landed == 20: self.setflag(F_KL); self.stamp(2)
        for p in range(4):
            a(f"buffer_load_dwordx4 v10, s[12:15], s52 offen offset:{p*1024}{nt} lds")
            if p < 3: a(f"s_add_u32 s52, s52, {65536-1024}")
            n += 1; after(n)
        for p in range(16):
            if p % 4 == 0:
                a(f"s_add_u32 m0, s55, {KL + p*1024}")
                if p: a("s_add_u32 s54, s54, 4096")
            x = ((2*p) & 15) << 4
            a(f"v_xor_b32 v13, {x}, v12")
            a(f"buffer_load_dwordx4 v13, s[4:7], s54 offen offset:{(p%4)*1024}{nt} lds")
            n += 1; after(n)
        for p in range(16):
            if p % 4 == 0:
                a(f"s_add_u32 m0, s55, {VL + p*1024}")
            if p: a(f"s_add_u32 s53, s53, {3072 if p % 4 else 7168}")
            else: a("s_nop 0")
            a(f"buffer_load_dwordx4 v11, s[8:11], s53 offen offset:{(p%4)*1024}{nt} lds")
            n += 1; after(n)
        self.setflag(F_VI); self.stamp(3)
        c("PV: address prep")
        a(f"s_add_u32 s55, s55, {VL}")
        self.tr_addr(12, "s55", 16)
        a(f"""v_and_b32 v20, 1, v0
        v_lshlrev_b32 v20, 6, v20
        v_lshl_add_u32 v20, v7, 4, v20
        v_add_u32 v20, {SP}, v20
        v_mov_b32 v21, {ZR}
        v_and_b32 v22, 14, v0""")
        for i in range(4):
            a(f"v_cmp_eq_u32 vcc, {4*i}, v22\ns_nop 1\nv_cndmask_b32 v{16+i}, v21, v20, vcc")
        a(f"""v_and_b32 v22, 3, v0
        v_cmp_eq_u32 vcc, 2, v22
        v_mov_b32 v23, 1.0
        v_lshlrev_b32 v28, 2, v0
        v_cndmask_b32 v24, 0, v23, vcc
        v_and_b32 v22, 1, v0
        v_lshl_add_u32 v22, v22, 2, v3
        v_mov_b32 v25, v24
        v_mov_b32 v26, v24
        v_mov_b32 v27, v24
        s_and_b32 s56, s49, 3
        s_lshl_b32 s57, s48, 2
        s_add_u32 s56, s56, s57
        s_lshl_b32 s56, s56, 12
        s_lshl_b32 s57, s50, 10
        s_add_u32 s56, s56, s57
        s_add_u32 s56, s56, {OACC}""")
        self.waitflag(F_P)
        self.stamp(4)
        for ks in range(4):
            for i in range(4):
                r = 64 + (ks*4 + i)*4
                a(f"ds_read_b128 v[{r}:{r+3}], v{16+i} offset:{ks*128}")
        for ks in range(4):
            if ks == 3:
                self.waitflag(F_F)
                a(f"ds_read_b32 v29, v22 offset:{F_FAC}")
                self.stamp(5)
            for half in range(2):
                rem = 16 - (4*ks + 2*half + 2)
                if rem < W: a(f"s_waitcnt vmcnt({rem})")
                for i in range(4):
                    r = 32 + (ks & 1)*16 + i*4 + half*2
                    a(f"ds_read_b64_tr_b16 v[{r}:{r+1}], v{12+i} offset:{ks*4096 + half*2048}")
            for i in range(4):
                a(f"s_waitcnt lgkmcnt({3-i})")
                ra = 32 + (ks & 1)*16 + i*4; rb = 64 + (ks*4 + i)*4
                cin = "0" if (ks == 0 and i == 0) else "v[128:131]"
                a(f"v_mfma_f32_16x16x32_bf16 v[128:131], v[{ra}:{ra+3}], v[{rb}:{rb+3}], {cin}")
        a("s_mov_b32 exec_lo, 0x33333333\ns_mov_b32 exec_hi, 0x33333333\ns_nop 5")
        for r in range(4): a(f"v_mul_f32 v{24+r}, v{128+r}, v29")
        a("s_mov_b64 exec, -1")
        for r in range(4): a(f"buffer_atomic_add_f32 v{24+r}, v28, s[16:19], s56 offen offset:{r*256}")
        self.stamp(6)
        a("s_cmp_ge_u32 s49, 14\ns_cbranch_scc1 L_exit\ns_barrier\ns_branch L_exit")

    def swave_head(self):
        a, c = self.a, self.c
        a("L_notL:\ns_cmp_eq_u32 s3, 8\ns_cbranch_scc1 L_awave")
        c("================= S-wave head: clears =================")
        self.srd(24, 88, 256)
        a("s_cmp_eq_u32 s50, 0\ns_cbranch_scc0 L_s_bar")
        a(f"""v_mov_b32 v8, -1
        v_mov_b32 v9, -1
        v_mov_b32 v10, -1
        v_mov_b32 v11, -1
        v_mov_b32 v12, 0
        v_mov_b32 v13, 0
        v_lshlrev_b32 v14, 4, v0
        v_lshlrev_b32 v15, 3, v0
        v_lshlrev_b32 v16, 2, v0
        s_lshl_b32 s52, s48, 5
        s_add_u32 s52, s52, s49
        s_lshl_b32 s52, s52, 9
        s_add_u32 s52, s52, {OACC}
        s_and_b32 s53, s2, 31
        s_lshl_b32 s53, s53, 7
        s_lshr_b32 s54, s2, 5
        s_lshl_b32 s54, s54, 4
        s_add_u32 s53, s53, s54
        s_add_u32 s53, s53, {STAT}
        s_waitcnt lgkmcnt(0)
        s_cmp_lt_u32 s49, 24
        s_cbranch_scc1 L_noclr
        s_sub_u32 s54, s2, 192
        s_lshl_b32 s55, s54, 12
        buffer_store_dwordx4 v[8:11], v14, s[16:19], s55 offen sc1
        buffer_store_dwordx4 v[8:11], v14, s[16:19], s55 offen offset:1024 sc1
        buffer_store_dwordx4 v[8:11], v14, s[16:19], s55 offen offset:2048 sc1
        buffer_store_dwordx4 v[8:11], v14, s[16:19], s55 offen offset:3072 sc1
        s_lshl_b32 s55, s54, 8
        s_add_u32 s55, s55, {HACC}
        buffer_store_dword v12, v16, s[16:19], s55 offen sc1
        L_noclr:
        buffer_store_dwordx2 v[12:13], v15, s[16:19], s52 offen sc1
        s_mov_b64 exec, 1
        buffer_store_dwordx4 v[8:11], v12, s[16:19], s53 offen sc1
        s_mov_b64 exec, -1
        s_sub_u32 s54, s49, 14
        s_cmp_lt_u32 s54, 7
        s_cbranch_scc0 L_nopart
        s_mul_i32 s55, s48, 7
        s_add_u32 s55, s55, s54
        s_mul_i32 s55, s55, 7168
        s_add_u32 s55, s55, {PART}""")
        for i in range(7):
            if i == 4: a("s_add_u32 s55, s55, 4096")
            a(f"buffer_store_dwordx4 v[8:11], v14, s[16:19], s55 offen offset:{(i%4)*1024} sc1")
        a("L_nopart:\ns_barrier\ns_waitcnt vmcnt(0)")
        self.setflag(F_CLR, "v3")
        a("""s_cmp_lt_u32 s49, 24
        s_cbranch_scc1 L_swave
        s_and_b32 s55, s2, 3
        s_lshl_b32 s55, s55, 6
        s_mov_b64 exec, 1
        buffer_atomic_add v4, v12, s[24:27], s55 offen sc1
        s_mov_b64 exec, -1""")
        a("s_branch L_swave\nL_s_bar:\ns_barrier\ns_branch L_swave")

    def dpp_allred16(self, op, regs):
        for rot in (8, 4, 2, 1):
            for r in regs:
                self.a(f"{op}_dpp v{r}, v{r}, v{r} row_ror:{rot} row_mask:0xf bank_mask:0xf")
            self.a("s_nop %d" % max(0, 2 - len(regs)))

    def awave(self):
        a, c = self.a, self.c
        c("================= A-wave: LN1, q partial, q gather, softmax, stats =================")
        a("L_awave:")
        self.srd(24, 88, 256)
        a(f"""v_mov_b32 v8, 0
        v_mov_b32 v9, 0
        v_lshlrev_b32 v10, 3, v0
        v_lshlrev_b32 v11, 1, v0
        ds_write_b64 v10, v[8:9] offset:{ZR}
        ds_write_b16 v11, v8 offset:{FL}
        v_and_b32 v12, 15, v0
        v_mul_u32_u24 v13, 896, v7
        v_lshl_add_u32 v13, v12, 3, v13
        s_lshr_b32 s52, s49, 3
        s_lshl_b32 s53, s52, 8
        s_waitcnt lgkmcnt(0)""")
        for i in range(7):
            a(f"buffer_load_dwordx2 v[{16+2*i}:{17+2*i}], v13, s[20:23], 0 offen offset:{i*128}")
        a("buffer_load_dwordx2 v[30:31], v13, s[20:23], s53 offen\nbuffer_load_dwordx2 v[32:33], v13, s[20:23], s53 offen offset:128")
        a("s_barrier")
        a(f"s_mov_b32 s54, {WQL}")
        self.tr_addr(100, "s54", 104)
        a(f"""v_bfe_u32 v104, v0, 2, 2
        v_lshlrev_b32 v104, 8, v104
        v_lshl_add_u32 v104, v7, 3, v104
        v_add_u32 v104, {XN}, v104
        v_lshlrev_b32 v105, 8, v7
        v_lshl_add_u32 v105, v12, 3, v105
        v_lshlrev_b32 v106, 14, v7
        v_lshl_add_u32 v106, v12, 4, v106
        v_lshlrev_b32 v107, 6, v0
        v_and_b32 v107, 0xff, v107
        v_lshlrev_b32 v108, 4, v0
        s_mov_b32 s60, 0xffff0000
        s_waitcnt vmcnt(0)""")
        self.stamp(1)
        c("unpack x (28 values: v36..v63), own 8 values v64..71")
        for i in range(14):
            a(f"v_lshlrev_b32 v{36+2*i}, 16, v{16+i}\nv_and_b32 v{37+2*i}, s60, v{16+i}")
        for i in range(4):
            a(f"v_lshlrev_b32 v{64+2*i}, 16, v{30+i}\nv_and_b32 v{65+2*i}, s60, v{30+i}")
        a("v_add_f32 v72, v36, v37\nv_add_f32 v73, v38, v39")
        for i in range(2, 14):
            a(f"v_add_f32 v72, v72, v{36+2*i}\nv_add_f32 v73, v73, v{37+2*i}")
        a("v_add_f32 v72, v72, v73\ns_nop 1")
        self.dpp_allred16("v_add_f32", [72])
        a(f"v_mul_f32 v72, {hex(f2u(1/448))}, v72")
        a("v_mov_b32 v73, 0\nv_mov_b32 v74, 0")
        for i in range(14):
            a(f"v_sub_f32 v75, v{36+2*i}, v72\nv_sub_f32 v76, v{37+2*i}, v72\nv_fmac_f32 v73, v75, v75\nv_fmac_f32 v74, v76, v76")
        a("v_add_f32 v73, v73, v74\ns_nop 1")
        self.dpp_allred16("v_add_f32", [73])
        a(f"""v_mul_f32 v73, {hex(f2u(1/448))}, v73
        v_cvt_pk_bf16_f32 v74, v72, v73
        v_lshlrev_b32 v72, 16, v74
        v_and_b32 v73, s60, v74
        v_add_f32 v73, {hex(f2u(1e-5))}, v73
        v_cvt_pk_bf16_f32 v73, v73, v73
        v_and_b32 v73, s60, v73
        v_sqrt_f32 v73, v73
        s_nop 0
        v_cvt_pk_bf16_f32 v73, v73, v73
        v_and_b32 v73, s60, v73
        v_rcp_f32 v73, v73""")
        for i in range(4):
            a(f"""v_sub_f32 v{64+2*i}, v{64+2*i}, v72
            v_sub_f32 v{65+2*i}, v{65+2*i}, v72
            v_cvt_pk_bf16_f32 v74, v{64+2*i}, v{65+2*i}
            v_lshlrev_b32 v75, 16, v74
            v_and_b32 v76, s60, v74
            v_mul_f32 v75, v75, v73
            v_mul_f32 v76, v76, v73
            v_cvt_pk_bf16_f32 v{30+i}, v75, v76""")
        a(f"ds_write_b64 v105, v[30:31] offset:{XN}\nds_write_b64 v105, v[32:33] offset:{XN+128}")
        for ks in range(4):
            a(f"ds_read2_b64 v[{16+4*ks}:{19+4*ks}], v104 offset0:{ks*8} offset1:{ks*8+4}")
        self.stamp(2)
        self.waitflag(F_WQ, n=4, t="v96")
        self.stamp(3)
        for ks in range(4):
            for i in range(4):
                for half in range(2):
                    r = 32 + (ks*4 + i)*4 + half*2
                    a(f"ds_read_b64_tr_b16 v[{r}:{r+1}], v{100+i} offset:{ks*4096 + half*2048}")
            if ks & 1:
                a("s_waitcnt lgkmcnt(0)")
                for k2 in (ks-1, ks):
                    for i in range(4):
                        r = 32 + (k2*4 + i)*4; d = 112 + 4*i
                        cin = "0" if k2 == 0 else f"v[{d}:{d+3}]"
                        a(f"v_mfma_f32_16x16x32_bf16 v[{d}:{d+3}], v[{16+4*k2}:{19+4*k2}], v[{r}:{r+3}], {cin}")
        c("wait for global clear (d_debug counters == 16) and own clear")
        l = self.lab("CL")
        a(f"{l}:\nbuffer_load_dword v8, v107, s[24:27], 0 offen sc1\ns_waitcnt vmcnt(0)\nv_cmp_ne_u32 vcc, 16, v8")
        self.retry(l)
        self.waitflag(F_CLR)
        self.stamp(4)
        a(f"""v_min_u32 v112, -2, v112
        v_mov_b32 v113, v116
        v_mov_b32 v114, v120
        v_mov_b32 v115, v124
        s_lshl_b32 s53, s52, 16
        s_lshl_b32 s54, s48, 11
        s_add_u32 s53, s53, s54
        s_and_b32 s55, s49, 7
        s_lshl_b32 s55, s55, 8
        s_add_u32 s53, s53, s55
        buffer_store_dwordx4 v[112:115], v106, s[16:19], s53 offen sc1
        s_and_b32 s55, s49, 3
        s_lshl_b32 s55, s55, 14
        s_add_u32 s54, s54, s55
        s_add_u32 s55, s54, 0x10000
        s_add_u32 s56, s54, 0x20000
        s_add_u32 s57, s54, 0x30000""")
        c("q gather")
        l = self.lab("QG")
        a(f"{l}:")
        for rg in range(4):
            for z in range(2):
                r = 16 + (rg*2 + z)*4
                a(f"buffer_load_dwordx4 v[{r}:{r+3}], v108, s[16:19], s{54+rg} offen offset:{z*1024} sc1")
        a("s_waitcnt vmcnt(0)")
        a("v_max_u32 v8, v16, v20\nv_max3_u32 v8, v8, v24, v28\nv_max3_u32 v8, v8, v32, v36\nv_max3_u32 v8, v8, v40, v44\nv_cmp_eq_u32 vcc, -1, v8")
        self.retry(l)
        self.stamp(5)
        for k in range(8):
            a(f"v_add_f32 v{16+k}, v{16+k}, v{24+k}\nv_add_f32 v{32+k}, v{32+k}, v{40+k}")
        for k in range(8):
            a(f"v_add_f32 v{16+k}, v{16+k}, v{32+k}")
        a(f"v_lshlrev_b32 v9, 7, v7\nv_lshl_add_u32 v9, v12, 1, v9")
        for k in range(4):
            a(f"v_cvt_pk_bf16_f32 v{24+k}, v{16+2*k}, v{17+2*k}")
        for k in range(4):
            z = k >> 1; i = (k & 1)*2
            a(f"ds_write_b16 v9, v{24+k} offset:{QB + z*512 + i*32}\nds_write_b16_d16_hi v9, v{24+k} offset:{QB + z*512 + i*32 + 32}")
        self.setflag(F_Q, "v3")
        c("softmax over the 128 local keys, 2 heads")
        a(f"""s_and_b32 s53, s2, 31
        s_lshl_b32 s53, s53, 7
        s_add_u32 s53, s53, {STAT}
        s_lshr_b32 s54, s2, 5
        s_lshl_b32 s54, s54, 4
        s_add_u32 s54, s54, s53
        s_mov_b32 s61, {hex(f2u(1.4426950408889634/16))}
        v_and_b32 v30, 8, v0
        v_lshlrev_b32 v31, 3, v12""")
        self.waitflag(F_S, n=4, t="v96")
        self.stamp(6)
        a(f"""ds_read_b64 v[16:17], v10 offset:{SP}
        s_waitcnt lgkmcnt(0)
        v_lshlrev_b32 v18, 16, v16
        v_and_b32 v19, s60, v16
        v_lshlrev_b32 v20, 16, v17
        v_and_b32 v21, s60, v17
        v_max_f32 v22, v18, v19
        v_max3_f32 v22, v22, v20, v21""")
        def red8x4(op, r, t):
            a(f"""s_nop 1
            {op}_dpp v{r}, v{r}, v{r} quad_perm:[1,0,3,2] row_mask:0xf bank_mask:0xf
            s_nop 1
            {op}_dpp v{r}, v{r}, v{r} quad_perm:[2,3,0,1] row_mask:0xf bank_mask:0xf
            s_nop 1
            {op}_dpp v{r}, v{r}, v{r} row_half_mirror row_mask:0xf bank_mask:0xf
            v_mov_b32 v{t}, v{r}
            s_nop 1
            v_permlane16_swap_b32 v{r}, v{t}
            {op} v{r}, v{r}, v{t}
            v_mov_b32 v{t}, v{r}
            s_nop 1
            v_permlane32_swap_b32 v{r}, v{t}
            {op} v{r}, v{r}, v{t}""")
        red8x4("v_max_f32", 22, 24)
        for k in range(4):
            a(f"v_sub_f32 v{18+k}, v{18+k}, v22\nv_mul_f32 v{18+k}, s61, v{18+k}\nv_exp_f32 v{18+k}, v{18+k}")
        a(f"""s_nop 0
        v_cvt_pk_bf16_f32 v16, v18, v19
        v_cvt_pk_bf16_f32 v17, v20, v21
        ds_write_b64 v10, v[16:17] offset:{SP}""")
        self.setflag(F_P, "v3")
        a("v_add_f32 v23, v18, v19\nv_add_f32 v24, v20, v21\nv_add_f32 v23, v23, v24")
        red8x4("v_add_f32", 23, 24)
        a(f"""v_min_u32 v23, -2, v23
        s_mov_b64 exec, 0x101
        buffer_store_dwordx2 v[22:23], v30, s[16:19], s54 offen sc1
        s_mov_b64 exec, -1""")
        self.stamp(7)
        c("cluster stats: lane -> entry (l&15) = (j, h)")
        l = self.lab("ST")
        a(f"{l}:\nbuffer_load_dwordx2 v[16:17], v31, s[16:19], s53 offen sc1\ns_waitcnt vmcnt(0)\nv_cmp_eq_u32 vcc, -1, v17")
        self.retry(l)
        self.stamp(8)
        a("v_mov_b32 v18, v16\ns_nop 1")
        for rot in (8, 4, 2):
            a(f"v_max_f32_dpp v18, v18, v18 row_ror:{rot} row_mask:0xf bank_mask:0xf\ns_nop 1")
        a("v_sub_f32 v16, v16, v18\nv_mul_f32 v16, s61, v16\nv_exp_f32 v16, v16\ns_nop 0\nv_mul_f32 v17, v17, v16\ns_nop 1")
        for rot in (8, 4, 2):
            a(f"v_add_f32_dpp v17, v17, v17 row_ror:{rot} row_mask:0xf bank_mask:0xf\ns_nop 1")
        a(f"""v_rcp_f32 v17, v17
        s_lshr_b32 s54, s2, 5
        v_lshrrev_b32 v19, 1, v0
        v_mul_f32 v16, v16, v17
        v_and_b32 v20, 1, v0
        v_lshl_add_u32 v20, v20, 2, v3
        v_cmp_eq_u32 vcc, s54, v19
        s_and_saveexec_b64 s[56:57], vcc
        ds_write_b32 v20, v16 offset:{F_FAC}
        s_mov_b64 exec, -1""")
        self.setflag(F_F, "v3")
        a("s_branch L_exit")

    def swave(self):
        a, c = self.a, self.c
        c("================= S-wave: scores =================")
        a("L_swave:")
        a(f"""v_and_b32 v12, 15, v0
        v_xor_b32 v13, v7, v12
        v_lshlrev_b32 v13, 4, v13
        v_lshl_add_u32 v13, v12, 9, v13
        s_lshl_b32 s55, s50, 14
        s_add_u32 s55, s55, {KL}
        v_add_u32 v13, s55, v13
        v_xor_b32 v14, 64, v13
        v_xor_b32 v15, 0x80, v13
        v_xor_b32 v16, 0xc0, v13
        v_and_b32 v17, 1, v0
        v_lshlrev_b32 v18, 9, v17
        v_lshl_add_u32 v18, v7, 4, v18
        v_lshlrev_b32 v17, 6, v17
        v_lshl_add_u32 v17, v7, 4, v17
        s_lshl_b32 s56, s50, 7
        v_add_u32 v17, s56, v17""")
        self.waitflag(F_KL, "v2")
        self.stamp(1)
        for T in range(2):
            for ks in range(8):
                r = 64 + (T*8 + ks)*4
                a(f"ds_read_b128 v[{r}:{r+3}], v{13 + (ks & 3)} offset:{(ks >> 2)*256 + T*8192}")
        self.waitflag(F_Q)
        self.stamp(2)
        for ks in range(8):
            a(f"ds_read_b128 v[{32+4*ks}:{35+4*ks}], v18 offset:{QB + ks*64}")
        for ks in range(8):
            a(f"s_waitcnt lgkmcnt({7-ks})")
            for T in range(2):
                r = 64 + (T*8 + ks)*4; d = 20 + 4*T
                cin = "0" if ks == 0 else f"v[{d}:{d+3}]"
                a(f"v_mfma_f32_16x16x32_bf16 v[{d}:{d+3}], v[{r}:{r+3}], v[{32+4*ks}:{35+4*ks}], {cin}")
        a("s_nop 7")
        for k in range(4):
            a(f"v_cvt_pk_bf16_f32 v{28+k}, v{20+2*k}, v{21+2*k}")
        a(f"""s_mov_b32 exec_lo, 0x00030003
        s_mov_b32 exec_hi, 0x00030003
        ds_write_b128 v17, v[28:31] offset:{SP}
        s_mov_b64 exec, -1""")
        self.setflag(F_S)
        self.stamp(3)
        a("""s_cmp_lt_u32 s49, 14
        s_cbranch_scc1 L_wo
        s_cmp_lt_u32 s49, 21
        s_cbranch_scc1 L_mlp
        s_cmp_lt_u32 s49, 28
        s_cbranch_scc0 L_exit
        s_cmp_ge_u32 s50, 2
        s_cbranch_scc1 L_fin
        s_branch L_exit""")

    def role_wo(self):
        a, c = self.a, self.c; ntw = (" " + self.ntw) if self.ntw else ""
        c("================= role WO =================")
        a("L_wo:")
        self.srd(28, 32, 4096*896)
        a(f"""s_cmp_ge_u32 s49, 7
        s_cselect_b32 s52, 1, 0
        s_mul_i32 s53, s52, 7
        s_sub_u32 s53, s49, s53
        s_lshl_b32 s54, s48, 9
        s_lshl_b32 s56, s52, 7
        s_add_u32 s54, s54, s56
        s_lshr_b32 s56, s50, 1
        s_lshl_b32 s56, s56, 6
        s_add_u32 s54, s54, s56
        s_and_b32 s56, s50, 1
        s_lshl_b32 s56, s56, 1
        s_add_u32 s54, s54, s56
        s_mul_i32 s54, s54, 896
        s_lshl_b32 s56, s53, 7
        s_add_u32 s54, s54, s56
        v_and_b32 v20, 1, v6
        v_lshlrev_b32 v20, 8, v20
        v_and_b32 v21, 16, v0
        v_add_u32 v20, v20, v21
        v_lshrrev_b32 v21, 5, v0
        v_lshl_add_u32 v20, v21, 2, v20
        v_mul_u32_u24 v20, 896, v20
        v_add_u32 v20, v20, v5""")
        self.tr_addr(12, "s55", 16)
        a(f"""v_bfe_u32 v21, v0, 2, 2
        v_lshlrev_b32 v21, 12, v21
        v_lshl_add_u32 v21, v7, 6, v21
        v_and_b32 v22, 3, v0
        v_lshl_add_u32 v21, v22, 4, v21
        s_lshl_b32 s57, s48, 14
        s_lshl_b32 s56, s52, 11
        s_add_u32 s57, s57, s56
        s_lshl_b32 s56, s50, 9
        s_add_u32 s57, s57, s56
        s_add_u32 s57, s57, {OACC}
        s_lshl_b32 s56, s50, 10
        v_lshlrev_b32 v23, 2, v0
        v_add_u32 v24, s56, v23
        v_add_u32 v24, {RED}, v24""")
        a(f"""v_lshrrev_b32 v25, 5, v0
        v_lshlrev_b32 v25, 8, v25
        v_bfe_u32 v26, v0, 2, 3
        v_lshl_add_u32 v25, v26, 3, v25
        v_and_b32 v26, 1, v0
        v_lshl_add_u32 v25, v26, 2, v25
        s_lshl_b32 s56, s50, 6
        s_add_u32 s56, s56, {RED}
        v_add_u32 v25, s56, v25
        v_cmp_eq_u32 vcc, 2, v22
        v_mov_b32 v26, 1.0
        s_lshl_b32 s58, s50, 12
        v_cndmask_b32 v26, 0, v26, vcc
        s_lshl_b32 s56, s53, 9
        s_add_u32 s58, s58, s56
        s_add_u32 s58, s58, {HACC}
        v_mov_b32 v27, v26
        s_mov_b32 s59, {hex(f2u(8.0))}""")
        self.waitflag(F_VI, "v2")
        a("s_mov_b32 m0, s55")
        for p in range(8):
            rows = 8*(p & 1) + 32*((p >> 1) & 1) + (p >> 2)
            if p == 4: a("s_add_u32 m0, s55, 4096")
            a(f"s_add_u32 s56, s54, {rows*896 - (p % 4)*1024}")
            a(f"buffer_load_dwordx4 v20, s[28:31], s56 offen offset:{(p%4)*1024}{ntw} lds")
        a("s_waitcnt vmcnt(0)")
        self.stamp(4)
        for z in range(2):
            for i in range(4):
                for half in range(2):
                    r = 64 + (z*4 + i)*4 + half*2
                    a(f"ds_read_b64_tr_b16 v[{r}:{r+1}], v{12+i} offset:{z*4096 + half*2048}")
        l = self.lab("OP")
        a(f"""{l}:
        buffer_load_dwordx4 v[32:35], v21, s[16:19], s57 offen sc1
        buffer_load_dwordx4 v[36:39], v21, s[16:19], s57 offen offset:256 sc1
        s_waitcnt vmcnt(0)
        v_min_f32 v28, v34, v38
        v_cvt_pk_bf16_f32 v32, v32, v33
        v_cmp_neq_f32 vcc, s59, v28
        v_cvt_pk_bf16_f32 v36, v36, v37""")
        self.retry(l)
        self.stamp(5)
        for z in range(2):
            for s in range(4):
                a(f"v_mov_b32_dpp v{40+4*z+s}, v{32+4*z} quad_perm:[{s},{s},{s},{s}] row_mask:0xf bank_mask:0xf")
        a("s_waitcnt lgkmcnt(0)")
        for z in range(2):
            for i in range(4):
                d = 48 + 4*i; r = 64 + (z*4 + i)*4
                cin = "0" if z == 0 else f"v[{d}:{d+3}]"
                a(f"v_mfma_f32_16x16x32_bf16 v[{d}:{d+3}], v[{40+4*z}:{43+4*z}], v[{r}:{r+3}], {cin}")
        a("s_nop 5")
        a("ds_write2st64_b32 v24, v48, v52 offset0:0 offset1:1\ns_nop 1\nds_write2st64_b32 v24, v56, v60 offset0:2 offset1:3")
        a("s_waitcnt lgkmcnt(0)\ns_barrier")
        a("""ds_read2st64_b32 v[32:33], v25 offset0:0 offset1:4
        ds_read2st64_b32 v[34:35], v25 offset0:8 offset1:12
        ds_read2st64_b32 v[36:37], v25 offset0:2 offset1:6
        ds_read2st64_b32 v[38:39], v25 offset0:10 offset1:14
        s_mov_b32 exec_lo, 0x33333333
        s_mov_b32 exec_hi, 0x33333333
        s_waitcnt lgkmcnt(2)
        v_add_f32 v32, v32, v33
        v_add_f32 v34, v34, v35
        v_add_f32 v26, v32, v34
        s_waitcnt lgkmcnt(0)
        v_add_f32 v36, v36, v37
        v_add_f32 v38, v38, v39
        v_add_f32 v27, v36, v38
        s_mov_b64 exec, -1
        buffer_atomic_add_f32 v26, v23, s[16:19], s58 offen
        buffer_atomic_add_f32 v27, v23, s[16:19], s58 offen offset:256""")
        self.stamp(6)
        a("s_branch L_exit")

    def wave_sum2(self, r0, r1, s0, s1):
        a = self.a
        for ctl in ("row_shr:1", "row_shr:2", "row_shr:4", "row_shr:8"):
            a(f"v_add_f32_dpp v{r0}, v{r0}, v{r0} {ctl} row_mask:0xf bank_mask:0xf bound_ctrl:0" if False else
              f"v_add_f32_dpp v{r0}, v{r0}, v{r0} {ctl.replace('shr','ror')} row_mask:0xf bank_mask:0xf")
            a(f"v_add_f32_dpp v{r1}, v{r1}, v{r1} {ctl.replace('shr','ror')} row_mask:0xf bank_mask:0xf\ns_nop 0")
        a(f"v_add_f32_dpp v{r0}, v{r0}, v{r0} row_bcast:15 row_mask:0xa bank_mask:0xf")
        a(f"v_add_f32_dpp v{r1}, v{r1}, v{r1} row_bcast:15 row_mask:0xa bank_mask:0xf\ns_nop 0")
        a(f"v_add_f32_dpp v{r0}, v{r0}, v{r0} row_bcast:31 row_mask:0xc bank_mask:0xf")
        a(f"v_add_f32_dpp v{r1}, v{r1}, v{r1} row_bcast:31 row_mask:0xc bank_mask:0xf")
        a(f"v_readlane_b32 s{s0}, v{r0}, 63\nv_readlane_b32 s{s1}, v{r1}, 63\ns_nop 1")

    def role_mlp(self):
        a, c = self.a, self.c; ntw = (" " + self.ntw) if self.ntw else ""
        c("================= role MLP =================")
        a("L_mlp:")
        self.srd(28, 48, 448*3584)
        self.srd(32, 64, 1792*896)
        self.srd(36, 56, 3584)
        a(f"""s_mul_i32 s52, s48, 7
        s_add_u32 s52, s52, s49
        s_sub_u32 s52, s52, 14
        v_lshrrev_b32 v20, 2, v0
        v_mul_u32_u24 v20, 3584, v20
        v_and_b32 v22, 3, v0
        v_lshl_add_u32 v20, v22, 4, v20
        v_lshlrev_b32 v21, 4, v0
        s_mul_i32 s53, s50, {7*16*3584}
        s_lshl_b32 s54, s52, 6
        s_add_u32 s53, s53, s54
        s_mul_i32 s56, s52, {32*896}
        s_mul_i32 s57, s50, 7168
        s_add_u32 s56, s56, s57
        v_lshlrev_b32 v23, 2, v0
        s_mul_i32 s57, s50, 896
        s_lshl_b32 s58, s50, 5
        s_add_u32 s54, s54, s58
        v_lshlrev_b32 v24, 1, v12
        s_waitcnt lgkmcnt(0)""")
        c("x row (residual) and b1")
        for i in range(8): a(f"v_mov_b32 v{40+i}, 0")
        for i in range(16): a(f"v_mov_b32 v{48+i}, 0")
        a("s_mov_b32 exec_hi, 0x00ffffff")
        for i in range(4):
            a(f"buffer_load_dword v{36+i}, v23, s[20:23], s57 offen offset:{i*224}")
        a("s_mov_b32 exec_hi, -1\nbuffer_load_ushort v28, v24, s[36:39], s54 offen")
        a(f"s_add_u32 s57, s57, {YL}")
        for i in range(4):
            a(f"""v_add_u32 v25, {56*i}, v0
            v_lshrrev_b32 v26, 4, v25
            v_lshlrev_b32 v26, 6, v26
            v_bfe_u32 v27, v25, 1, 2
            v_lshl_add_u32 v26, v27, 4, v26
            v_and_b32 v27, 8, v25
            v_add_u32 v26, v26, v27
            v_and_b32 v27, 1, v25
            v_lshl_add_u32 v26, v27, 2, v26
            v_add_u32 v{32+i}, s57, v26""")
        a("s_mov_b32 s60, 0xffff0000\ns_waitcnt vmcnt(0)\ns_mov_b32 exec_hi, 0x00ffffff")
        for i in range(4):
            a(f"v_lshlrev_b32 v{40+2*i}, 16, v{36+i}\nv_and_b32 v{41+2*i}, s60, v{36+i}")
        a("s_mov_b32 exec_hi, -1\nv_lshlrev_b32 v28, 16, v28\nv_mov_b32 v29, 0\nv_mov_b32 v30, 0\nv_mov_b32 v31, 0")
        self.waitflag(F_VI, "v2")
        a("s_mov_b32 m0, s55\ns_nop 0")
        for x in range(7):
            if x == 4: a("s_add_u32 m0, s55, 4096\ns_add_u32 s53, s53, 4096")
            a(f"buffer_load_dwordx4 v20, s[28:31], s53 offen offset:{(x%4)*1024}{ntw} lds")
            a(f"s_add_u32 s53, s53, {16*3584 - 1024}")
        a("s_add_u32 m0, s55, 7168\ns_nop 0")
        for x in range(7):
            if x == 4: a("s_add_u32 m0, s55, 11264\ns_add_u32 s56, s56, 4096")
            a(f"buffer_load_dwordx4 v21, s[32:35], s56 offen offset:{(x%4)*1024}{ntw} lds")
        a(f"""v_lshrrev_b32 v13, 2, v0
        v_lshlrev_b32 v13, 6, v13
        v_lshl_add_u32 v13, v22, 3, v13
        s_and_b32 s58, s58, 32
        s_add_u32 s58, s58, {KL}
        v_add_u32 v13, s58, v13
        v_bfe_u32 v15, v0, 2, 2
        v_mul_u32_u24 v16, 896, v15
        v_lshl_add_u32 v14, v7, 14, v16
        v_lshl_add_u32 v14, v22, 3, v14
        s_lshl_b32 s58, s50, 7
        s_add_u32 s58, s58, {KL + 7168}
        v_add_u32 v14, s58, v14
        v_lshl_add_u32 v16, v7, 4, v16
        v_add_u32 v16, {YL}, v16
        v_lshlrev_b32 v17, 6, v7
        v_add_u32 v17, v17, v24
        s_lshl_b32 s58, s50, 5
        s_add_u32 s58, s58, {H1L}
        v_add_u32 v17, s58, v17
        v_lshlrev_b32 v18, 6, v15
        v_lshl_add_u32 v18, v7, 4, v18
        v_add_u32 v18, {H1L}, v18
        v_mov_b32 v19, {ZR}""")
        for i in range(4):
            a(f"v_cmp_eq_u32 vcc, {i}, v22\ns_nop 1\nv_cndmask_b32 v{24+i}, v19, v18, vcc")
        a(f"""s_lshl_b32 s57, s50, 12
        s_add_u32 s57, s57, {HACC}
        s_mul_i32 s58, s52, 7168
        s_lshl_b32 s59, s50, 10
        s_add_u32 s58, s58, s59
        s_add_u32 s58, s58, {PART}
        s_add_u32 s62, s58, 4096
        s_mov_b32 s59, {hex(f2u(16.0))}
        s_waitcnt vmcnt(0)
        s_barrier""")
        self.stamp(4)
        for ks in range(14):
            for half in range(2):
                p = 2*ks + half
                r = 64 + ks*4 + half*2
                a(f"ds_read_b64_tr_b16 v[{r}:{r+1}], v13 offset:{(p//7)*16384 + (p%7)*1024}")
            if ks % 4 == 3: a("s_waitcnt lgkmcnt(0)")
        for qq in range(2):
            for i in range(4):
                for half in range(2):
                    r = 120 + (qq*4 + i)*4 + half*2
                    a(f"ds_read_b64_tr_b16 v[{r}:{r+1}], v14 offset:{half*3584 + qq*512 + i*32}")
            a("s_waitcnt lgkmcnt(0)")
        a("s_mov_b32 exec_hi, 0x00ffffff")
        l = self.lab("HP")
        a(f"{l}:")
        for i in range(4):
            a(f"buffer_load_dwordx4 v[{48+4*i}:{51+4*i}], v21, s[16:19], s57 offen offset:{i*896} sc1")
        a("s_waitcnt vmcnt(0)\nv_min_f32 v8, v50, v54\nv_min3_f32 v8, v8, v58, v62\nv_cmp_neq_f32 vcc, s59, v8")
        self.retry(l)
        self.stamp(5)
        c("h = x + attn ; LN ; LN")
        for i in range(4):
            a(f"v_add_f32 v{40+2*i}, v{40+2*i}, v{48+4*i}\nv_add_f32 v{41+2*i}, v{41+2*i}, v{49+4*i}")
        for rep in range(2):
            a("s_mov_b32 exec_hi, -1")
            a("v_add_f32 v8, v40, v41\nv_mul_f32 v9, v40, v40\nv_add_f32 v10, v42, v43\nv_mul_f32 v11, v41, v41")
            a("v_add_f32 v8, v8, v44\nv_fmac_f32 v9, v42, v42\nv_add_f32 v10, v10, v45\nv_fmac_f32 v11, v43, v43")
            a("v_add_f32 v8, v8, v46\nv_fmac_f32 v9, v44, v44\nv_add_f32 v10, v10, v47\nv_fmac_f32 v11, v45, v45")
            a("v_fmac_f32 v9, v46, v46\nv_fmac_f32 v11, v47, v47\nv_add_f32 v8, v8, v10\nv_add_f32 v9, v9, v11\ns_nop 0")
            self.wave_sum2(8, 9, 64, 65)
            a(f"""v_mov_b32 v10, {hex(f2u(1/448))}
            v_mul_f32 v8, s64, v10
            v_mul_f32 v9, s65, v10
            v_fma_f32 v9, -v8, v8, v9
            v_max_f32 v9, 0, v9
            v_add_f32 v9, {hex(f2u(1e-5))}, v9
            v_rsq_f32 v9, v9
            s_mov_b32 exec_hi, 0x00ffffff
            v_mul_f32 v8, v8, v9""")
            for k in range(8):
                a(f"v_fma_f32 v{40+k}, v{40+k}, v9, -v8")
        for i in range(4):
            a(f"v_cvt_pk_bf16_f32 v{36+i}, v{40+2*i}, v{41+2*i}\nds_write_b32 v{32+i}, v{36+i}")
        a("s_mov_b32 exec_hi, -1\ns_waitcnt lgkmcnt(0)\ns_barrier")
        self.stamp(6)
        a("s_cmp_ge_u32 s50, 2\ns_cbranch_scc1 L_mlp2")
        for ks in range(14):
            r = [8, 32, 36, 40, 44, 48, 52, 56, 60, 152, 156, 160][ks] if ks < 12 else None
            if r is not None: a(f"ds_read_b128 v[{r}:{r+3}], v16 offset:{ks*64}")
        regs = [8, 32, 36, 40, 44, 48, 52, 56, 60, 152, 156, 160, 8, 32]
        for ks in range(14):
            if ks < 2: a(f"s_waitcnt lgkmcnt({11-ks})")
            elif ks < 12: a(f"s_waitcnt lgkmcnt({13-ks})")
            else: a(f"s_waitcnt lgkmcnt({13-ks})")
            r = regs[ks]
            a(f"v_mfma_f32_16x16x32_bf16 v[28:31], v[{r}:{r+3}], v[{64+4*ks}:{67+4*ks}], v[28:31]")
            if ks == 1:
                a(f"ds_read_b128 v[8:11], v16 offset:{12*64}\nds_read_b128 v[32:35], v16 offset:{13*64}")
        k1 = -2*1.4426950408889634*0.7978845608028654
        a(f"""s_mov_b32 s64, {hex(f2u(k1*0.044715))}
        v_mov_b32 v9, {hex(f2u(k1))}
        s_nop 5
        v_mul_f32 v8, v28, v28
        v_fma_f32 v8, v8, s64, v9
        v_mul_f32 v8, v8, v28
        v_exp_f32 v8, v8
        s_nop 0
        v_add_f32 v8, 1.0, v8
        v_rcp_f32 v8, v8
        s_nop 0
        v_mul_f32 v8, v8, v28
        v_cvt_pk_bf16_f32 v8, v8, v8
        ds_write_b16 v17, v8
        s_waitcnt lgkmcnt(0)
        L_mlp2:
        s_barrier""")
        self.stamp(7)
        for i in range(4):
            a(f"ds_read_b128 v[{32+4*i}:{35+4*i}], v{24+i}")
        for i in range(4):
            a(f"s_waitcnt lgkmcnt({3-i})")
            for qq in range(2):
                d = 48 + 4*qq; r = 120 + (qq*4 + i)*4
                cin = "0" if i == 0 else f"v[{d}:{d+3}]"
                a(f"v_mfma_f32_16x16x32_bf16 v[{d}:{d+3}], v[{32+4*i}:{35+4*i}], v[{r}:{r+3}], {cin}")
        a("""s_nop 6
        v_min_u32 v48, -2, v48
        buffer_store_dwordx4 v[48:51], v21, s[16:19], s58 offen sc1
        s_cmp_eq_u32 s50, 3
        s_cbranch_scc1 L_exit
        v_min_u32 v52, -2, v52
        buffer_store_dwordx4 v[52:55], v21, s[16:19], s62 offen sc1""")
        self.stamp(8)
        a("s_branch L_exit")

    def role_fin(self):
        a, c = self.a, self.c
        c("================= role FINAL =================")
        a("L_fin:")
        self.srd(40, 72, 896)
        self.srd(44, 80, 3584)
        a(f"""s_mul_i32 s52, s48, 7
        s_add_u32 s52, s52, s49
        s_lshl_b32 s52, s52, 1
        s_add_u32 s52, s52, s50
        s_sub_u32 s52, s52, 44
        s_lshl_b32 s53, s52, 6
        s_add_u32 s53, s53, {PART}
        s_add_u32 s54, s53, {16*7168}
        s_add_u32 s55, s53, {32*7168}
        s_add_u32 s56, s53, {48*7168}
        v_lshrrev_b32 v20, 2, v0
        v_mul_u32_u24 v20, 7168, v20
        v_and_b32 v22, 3, v0
        v_lshl_add_u32 v20, v22, 4, v20
        s_lshr_b32 s57, s52, 4
        s_lshl_b32 s57, s57, 6
        s_and_b32 s58, s52, 3
        s_lshl_b32 s58, s58, 2
        s_add_u32 s57, s57, s58
        v_and_b32 v23, 16, v0
        v_lshlrev_b32 v23, 1, v23
        v_lshrrev_b32 v24, 5, v0
        v_lshl_add_u32 v23, v24, 4, v23
        v_add3_u32 v23, v23, v22, s57
        v_lshlrev_b32 v24, 1, v23
        v_lshrrev_b32 v25, 1, v23
        v_lshlrev_b32 v25, 4, v25
        s_bfe_u32 s58, s52, 0x20002
        s_mul_i32 s59, s58, 896
        s_lshl_b32 s58, s58, 12
        s_add_u32 s58, s58, {HACC}
        s_mov_b32 s61, {hex(f2u(16.0))}
        v_mov_b32 v44, 0
        v_mov_b32 v45, 0
        v_mov_b32 v46, 0
        v_mov_b32 v47, 0
        s_waitcnt lgkmcnt(0)
        buffer_load_ushort v26, v24, s[20:23], s59 offen
        buffer_load_ushort v27, v24, s[40:43], 0 offen
        buffer_load_ushort v28, v24, s[44:47], s59 offen""")
        self.waitflag(F_VI, "v2")
        l = self.lab("FH")
        a(f"{l}:\nbuffer_load_dwordx4 v[28:31], v25, s[16:19], s58 offen sc1\ns_waitcnt vmcnt(0)\nv_cmp_neq_f32 vcc, s61, v30")
        self.retry(l)
        self.stamp(5)
        a("""v_and_b32 v8, 1, v0
        v_cmp_eq_u32 vcc, 1, v8
        v_lshlrev_b32 v26, 16, v26
        v_lshlrev_b32 v27, 16, v27
        v_cndmask_b32 v28, v28, v29, vcc
        v_add_f32 v26, v26, v27
        v_add_f32 v26, v26, v28""")
        l = self.lab("FP")
        a(f"""{l}:
        buffer_load_dwordx4 v[32:35], v20, s[16:19], s53 offen sc1
        buffer_load_dwordx4 v[36:39], v20, s[16:19], s54 offen sc1
        buffer_load_dwordx4 v[40:43], v20, s[16:19], s55 offen sc1
        s_mov_b32 exec_hi, 0
        buffer_load_dwordx4 v[44:47], v20, s[16:19], s56 offen sc1
        s_mov_b32 exec_hi, -1
        s_waitcnt vmcnt(0)
        v_max_u32 v8, v32, v36
        v_max3_u32 v8, v8, v40, v44
        v_cmp_eq_u32 vcc, -1, v8""")
        self.retry(l)
        self.stamp(6)
        for k in range(4): a(f"v_add_f32 v{32+k}, v{32+k}, v{36+k}\nv_add_f32 v{40+k}, v{40+k}, v{44+k}")
        for k in range(4): a(f"v_add_f32 v{32+k}, v{32+k}, v{40+k}")
        a("""s_nop 0
        v_permlane32_swap_b32 v32, v33
        v_permlane32_swap_b32 v34, v35
        v_add_f32 v32, v32, v33
        v_add_f32 v34, v34, v35
        s_nop 1
        v_permlane16_swap_b32 v32, v34
        v_add_f32 v32, v32, v34
        s_nop 1
        v_add_f32_dpp v32, v32, v32 row_ror:4 row_mask:0xf bank_mask:0xf
        s_nop 1
        v_add_f32_dpp v32, v32, v32 row_ror:8 row_mask:0xf bank_mask:0xf
        v_add_f32 v32, v32, v26
        v_cvt_pk_bf16_f32 v32, v32, v32
        s_mov_b32 exec_lo, 0x000f000f
        s_mov_b32 exec_hi, 0x000f000f
        buffer_store_short v32, v24, s[44:47], s59 offen""")
        self.stamp(7)

if __name__ == "__main__":
    import argparse
    ap = argparse.ArgumentParser()
    ap.add_argument("-o", default="k.s"); ap.add_argument("-W", type=int, default=6)
    ap.add_argument("--prof", action="store_true"); ap.add_argument("--nt", default="nt"); ap.add_argument("--ntw", default="nt")
    x = ap.parse_args()
    open(x.o, "w").write(G(W=x.W, prof=x.prof, nt=x.nt, ntw=x.ntw).build())
```

```python
import sys, struct
NAME = "sequential_preLN__sliding_block_cached__mixer_channel_mlp__decode"

def f2u(x): return struct.unpack("<I", struct.pack("<f", x))[0]

QP   = 0x00000
HACC = 0x40000
STAT = 0x44000
OP   = 0xe0000
EW   = 0x6c000
FH   = 0x6e000
QF   = 0x70000
GR   = 0x71000
EPO  = 0x71100
PART = 0x72000
PROF = 0x140000
WQL = 4096; KL = 20480; VL = KL + 65536
XN = 0
QB = XN + 1024
SP = QB + 1024
ZR = SP + 512
FL = ZR + 512
LDS_TOTAL = VL + 65536
RED = WQL
YL = WQL
H1L = WQL + 4096
F_WQ, F_KL, F_S, F_VI, F_Q, F_P, F_F, F_CLR, F_FAC, F_TAG, F_PV, F_K0 = 0, 16, 32, 48, 64, 68, 72, 76, 80, 88, 96, 112

class G:
    def __init__(self, W=6, WV=None, WE=None, NE=0, prof=False, nt="nt", ntw="nt", pf64=False, ntp="nt", hd=2, qd=0):
        self.qd = qd
        self.hd = hd
        self.ntp = ntp
        self.WE = WE or WV or W; self.NE = NE; self.pf64 = pf64
        self.L = []; self.W = W; self.WV = WV or W; self.prof = prof; self.nt = nt; self.ntw = ntw; self.uid = 0
    def a(self, s):
        for line in s.split("\n"):
            line = line.strip()
            if line: self.L.append(("" if line.endswith(":") else "    ") + line)
    def c(self, s): self.L.append("    ; " + s)
    def lab(self, p="L"):
        self.uid += 1; return f"{p}_{self.uid}"
    def stamp(self, i):
        if self.prof:
            self.a(f"s_memrealtime s[90:91]\ns_waitcnt lgkmcnt(0)\nv_writelane_b32 v167, s90, {i}")
    def srd(self, r, karg, size):
        self.a(f"s_load_dwordx2 s[{r}:{r+1}], s[0:1], {karg}\ns_mov_b32 s{r+2}, {size}\ns_mov_b32 s{r+3}, 0x20000")
    def setflag(self, off, vaddr="v2"):
        self.a(f"ds_write_b32 {vaddr}, v4 offset:{off}")
    def waitflag(self, off, vaddr="v3", n=1, t="v8", sleep=True):
        l = self.lab("WF"); d = self.lab("WD")
        ti = int(t[1:])
        self.a(f"{l}:")
        if n == 1:
            self.a(f"ds_read_b32 {t}, {vaddr} offset:{off}\ns_waitcnt lgkmcnt(0)")
        else:
            self.a(f"ds_read_b128 v[{ti}:{ti+3}], {vaddr} offset:{off}\ns_waitcnt lgkmcnt(0)")
            self.a(f"v_and_b32 {t}, {t}, v{ti+1}\nv_and_b32 v{ti+2}, v{ti+2}, v{ti+3}\nv_and_b32 {t}, {t}, v{ti+2}")
        self.a(f"v_cmp_ne_u32 vcc, 0, {t}\ns_cbranch_vccnz {d}")
        if sleep: self.a("s_sleep 1")
        self.a(f"s_sub_u32 s88, s88, 1\ns_cbranch_scc0 {l}\ns_branch L_exit\n{d}:")
    def retry(self, l):
        d = self.lab("RD")
        self.a(f"s_cbranch_vccz {d}\ns_sub_u32 s88, s88, 1\ns_cbranch_scc0 {l}\ns_branch L_exit\n{d}:")

    def shint(self, n, base="s[64:65]"):
        a = self.a
        l = self.lab("SH"); d = self.lab("SD")
        a(f"{l}:\ns_sub_u32 s88, s88, 1\ns_cbranch_scc1 L_exit")
        if n == 8:
            a(f"s_load_dwordx8 s[72:79], {base}, 0 glc\ns_waitcnt lgkmcnt(0)")
            regs = [72, 74, 76, 78]
        else:
            a(f"s_load_dwordx16 s[72:87], {base}, 0 glc\ns_load_dwordx16 s[28:43], {base}, 64 glc\ns_waitcnt lgkmcnt(0)")
            regs = list(range(72, 88, 2)) + list(range(28, 44, 2))
        for r in regs:
            a(f"s_cmp_lg_u64 s[{r}:{r+1}], s[70:71]\ns_cbranch_scc1 {l}")

    def build(self):
        a, c = self.a, self.c
        W = self.W; nt = (" " + self.nt) if self.nt else ""; ntw = (" " + self.ntw) if self.ntw else ""
        self.L.append(f"; @launch grid=(256,1,1) block=(576,1,1) lds={LDS_TOTAL}")
        self.L.append('.amdgcn_target "amdgcn-amd-amdhsa--gfx950"\n.text')
        self.L.append(f".globl {NAME}_kernel\n.p2align 12\n.fill 832, 4, 0xbf810000\n.p2align 8\n.type {NAME}_kernel,@function\n{NAME}_kernel:")
        if self.prof: a("s_memrealtime s[92:93]")
        a("s_cmp_ge_u32 s2, 256\ns_cbranch_scc1 L_end")
        a(f"""v_lshrrev_b32 v1, 6, v0
        v_and_b32 v0, 63, v0
        v_readfirstlane_b32 s3, v1
        v_mov_b32 v8, 0
        v_mov_b32 v9, 0
        v_lshlrev_b32 v10, 3, v0
        s_cmp_eq_u32 s3, 7
        s_cbranch_scc0 L_noinit
        ds_write_b64 v10, v[8:9] offset:{ZR}
        ds_write_b64 v10, v[8:9] offset:{FL}
        s_waitcnt lgkmcnt(0)
        L_noinit:""")
        self.srd(12, 24, 448*8192)
        self.srd(4, 8, 0x4000000)
        self.srd(8, 16, 0x4000000)
        self.srd(16, 96, 0x300000)
        self.srd(20, 0, 3584)
        c("instruction-cache warm-up: waves 5..7 hop through the code with EXEC=0")
        a("""s_barrier
        s_sub_u32 s52, s3, 5
        s_cmp_lt_u32 s52, 3
        s_cbranch_scc0 L_warmdone
        s_cmp_eq_u32 s3, 5
        s_cbranch_scc0 L_warm2
        s_getpc_b64 s[24:25]
        L_pc:
        s_mov_b32 s26, L_end-L_pc
        s_mov_b32 s27, 0x20000
        v_lshlrev_b32 v8, 7, v0
        s_movk_i32 s52, 0x2000
        buffer_load_dword v165, v8, s[24:27], 0 offen
        buffer_load_dword v165, v8, s[24:27], s52 offen
        s_mov_b64 exec, 0
        s_branch PADCHAIN_0
        L_warm2:
        s_mov_b64 exec, 0
        s_cmp_eq_u32 s3, 6
        s_cbranch_scc1 PADCHAIN_1
        s_branch PADCHAIN_2""")
        a("L_warmdone:\ns_mov_b64 exec, -1\ns_mov_b32 s88, 0x8000")
        a("s_and_b32 s48, s2, 7\ns_lshr_b32 s49, s2, 3")
        c("v5 = swizzled 16B chunk offset inside a 128B row; v6 = row (l>>3); v7 = g4")
        a("""v_and_b32 v5, 7, v0
        v_lshrrev_b32 v7, 4, v0
        v_lshlrev_b32 v5, 4, v5
        v_lshlrev_b32 v6, 5, v7
        v_xor_b32 v5, v5, v6
        v_lshrrev_b32 v6, 3, v0
        s_and_b32 s50, s3, 3""")
        a(f"v_mov_b32 v3, {FL}\ns_lshl_b32 s51, s50, 2\nv_add_u32 v2, s51, v3\nv_mov_b32 v4, 1")
        if self.prof: a("v_mov_b32 v167, 0")
        a("s_cmp_lt_u32 s3, 4\ns_cbranch_scc1 L_lwave\ns_cmp_lt_u32 s3, 8\ns_cbranch_scc1 L_shead")
        self.ahead()
        self.lwave()
        self.swave_head()
        self.awave()
        self.swave()
        self.role_wo()
        self.role_mlp()
        self.role_fin()
        a("L_exit:")
        if self.prof:
            a(f"""s_waitcnt lgkmcnt(0)
            s_mov_b64 exec, -1
            v_writelane_b32 v167, s92, 0
            s_memrealtime s[90:91]
            s_waitcnt lgkmcnt(0)
            v_writelane_b32 v167, s90, 63
            v_writelane_b32 v167, s88, 62
            s_lshl_b32 s90, s2, 4
            s_add_u32 s90, s90, s3
            s_lshl_b32 s90, s90, 8
            s_add_u32 s90, s90, {PROF}
            v_lshlrev_b32 v166, 2, v0
            buffer_store_dword v167, v166, s[16:19], s90 offen""")
        a("L_end:\ns_endpgm")
        self.L.append(f""".section .rodata,"a"
.p2align 6
.amdhsa_kernel {NAME}_kernel
  .amdhsa_next_free_vgpr 168
  .amdhsa_next_free_sgpr 96
  .amdhsa_accum_offset 168
  .amdhsa_group_segment_fixed_size 0
  .amdhsa_kernarg_size 104
  .amdhsa_user_sgpr_count 2
  .amdhsa_user_sgpr_kernarg_segment_ptr 1
  .amdhsa_system_sgpr_workgroup_id_x 1
.end_amdhsa_kernel""")
        return "\n".join(self.L) + "\n"

    def tr_addr(self, r, sbase, tmp):
        a = self.a
        a(f"""v_lshrrev_b32 v{tmp}, 2, v0
        v_lshlrev_b32 v{r}, 7, v{tmp}
        v_and_b32 v{tmp+1}, 3, v0
        v_lshl_add_u32 v{r}, v{tmp+1}, 3, v{r}
        v_bfe_u32 v{tmp}, v0, 3, 2
        v_lshl_add_u32 v{r}, v{tmp}, 5, v{r}
        v_add_u32 v{r}, {sbase}, v{r}
        v_xor_b32 v{r+1}, 32, v{r}
        v_xor_b32 v{r+2}, 64, v{r}
        v_xor_b32 v{r+3}, 0x60, v{r}""")

    def lwave(self):
        a, c = self.a, self.c; W = self.W; nt = (" " + self.nt) if self.nt else ""
        c("================= L-wave: stream wq tile, K, V into LDS; PV =================")
        a("L_lwave:")
        a(f"""v_lshl_add_u32 v10, v6, 13, v5
        v_lshl_add_u32 v11, v6, 9, v5
        v_lshrrev_b32 v12, 5, v0
        v_xor_b32 v12, v12, v0
        v_lshlrev_b32 v12, 4, v12
        s_lshr_b32 s52, s49, 3
        s_lshl_b32 s52, s52, 2
        s_add_u32 s52, s52, s50
        s_lshl_b32 s52, s52, 18
        s_lshl_b32 s53, s48, 10
        s_add_u32 s52, s52, s53
        s_and_b32 s53, s49, 7
        s_lshl_b32 s53, s53, 7
        s_add_u32 s52, s52, s53
        s_and_b32 s53, s2, 31
        s_lshl_b32 s53, s53, 21
        s_lshr_b32 s54, s2, 5
        s_lshl_b32 s54, s54, 16
        s_add_u32 s53, s53, s54
        s_add_u32 s53, s53, {3072*512}
        s_lshl_b32 s55, s50, 14
        s_add_u32 s54, s53, s55
        s_lshl_b32 s56, s50, 7
        s_add_u32 s53, s53, s56
        s_lshl_b32 s56, s50, 12
        s_add_u32 m0, s56, {WQL}
        s_waitcnt lgkmcnt(0)""")
        n = 0
        WV = self.WV
        st = dict(landed=0)
        def after(n):
            w = W if n < 20 else (WV if n < 36 - self.NE else self.WE)
            if n < 36 and n - (w - 1) > st["landed"]:
                a(f"s_waitcnt vmcnt({w-1})")
                old = st["landed"]; st["landed"] = n - (w - 1)
                if old < 4 <= st["landed"]: self.setflag(F_WQ); self.stamp(1)
                if old < 12 <= st["landed"]: self.setflag(F_K0)
                if old < 20 <= st["landed"]: self.setflag(F_KL); self.stamp(2)
        for p in range(4):
            a(f"buffer_load_dwordx4 v10, s[12:15], s52 offen offset:{p*1024}{nt} lds")
            if p < 3: a(f"s_add_u32 s52, s52, {65536-1024}")
            n += 1; after(n)
        for p in range(16):
            if p % 4 == 0:
                a(f"s_add_u32 m0, s55, {KL + p*1024}")
                if p: a("s_add_u32 s54, s54, 4096")
            x = ((2*p) & 15) << 4
            a(f"v_xor_b32 v13, {x}, v12")
            a(f"buffer_load_dwordx4 v13, s[4:7], s54 offen offset:{(p%4)*1024}{nt} lds")
            n += 1; after(n)
        for p in range(16):
            if p % 4 == 0:
                a(f"s_add_u32 m0, s55, {VL + p*1024}")
            if p: a(f"s_add_u32 s53, s53, {3072 if p % 4 else 7168}")
            else: a("s_nop 0")
            a(f"buffer_load_dwordx4 v11, s[8:11], s53 offen offset:{(p%4)*1024}{nt} lds")
            n += 1; after(n)
        self.setflag(F_VI); self.stamp(3)
        if st["landed"] < 20:
            a("s_waitcnt vmcnt(16)"); self.setflag(F_KL); self.stamp(2)
        c("PV: address prep")
        a(f"s_add_u32 s55, s55, {VL}")
        self.tr_addr(12, "s55", 16)
        a(f"""v_and_b32 v20, 1, v0
        v_lshlrev_b32 v22, 6, v20
        v_lshl_add_u32 v22, v7, 4, v22
        v_add_u32 v22, {SP}, v22
        v_mov_b32 v21, {ZR}
        v_and_b32 v23, 14, v0
        v_cmp_eq_u32 vcc, 0, v23
        v_lshlrev_b32 v28, 12, v20
        v_bfe_u32 v24, v0, 1, 1
        v_cndmask_b32 v16, v21, v22, vcc
        v_cmp_eq_u32 vcc, 2, v23
        v_lshl_add_u32 v28, v24, 11, v28
        v_lshl_add_u32 v28, v7, 8, v28
        v_cndmask_b32 v17, v21, v22, vcc
        s_lshl_b32 s56, s48, 2
        s_add_u32 s56, s56, s50
        s_lshl_b32 s56, s56, 13
        s_lshr_b32 s57, s49, 4
        s_lshl_b32 s57, s57, 10
        s_add_u32 s56, s56, s57
        s_and_b32 s57, s49, 3
        s_lshl_b32 s57, s57, 6
        s_add_u32 s56, s56, s57
        s_bfe_u32 s57, s49, 0x20002
        s_lshl_b32 s57, s57, 4
        s_add_u32 s56, s56, s57
        s_add_u32 s56, s56, {OP}""")
        self.waitflag(F_P)
        self.stamp(4)
        for ks in range(4):
            for i in range(2):
                r = 64 + (ks*2 + i)*4
                a(f"ds_read_b128 v[{r}:{r+3}], v{16+i} offset:{ks*128}")
        for ks in range(4):
            for half in range(2):
                rem = 16 - (4*ks + 2*half + 2)
                if rem < 36 - st['landed']: a(f"s_waitcnt vmcnt({rem})")
                if ks == 3 and half == 1: self.stamp(5)
                for i in range(4):
                    r = 32 + (ks & 1)*16 + i*4 + half*2
                    a(f"ds_read_b64_tr_b16 v[{r}:{r+1}], v{12+i} offset:{ks*4096 + half*2048}")
            for i in range(4):
                a(f"s_waitcnt lgkmcnt({3-i})")
                ra = 32 + (ks & 1)*16 + i*4; rb = 64 + (ks*2 + (i >> 1))*4; d = 128 + 4*(i & 1)
                cin = "0" if (ks == 0 and i < 2) else f"v[{d}:{d+3}]"
                a(f"v_mfma_f32_16x16x32_bf16 v[{d}:{d+3}], v[{ra}:{ra+3}], v[{rb}:{rb+3}], {cin}")
        a("""s_mov_b32 exec_lo, 0x000f000f
        s_mov_b32 exec_hi, 0x000f000f
        s_nop 4
        v_cvt_pk_bf16_f32 v24, v128, v129
        v_cvt_pk_bf16_f32 v25, v130, v131
        v_min_u32 v24, -2, v24
        v_cvt_pk_bf16_f32 v26, v132, v133
        v_cvt_pk_bf16_f32 v27, v134, v135
        buffer_store_dwordx4 v[24:27], v28, s[16:19], s56 offen sc1
        s_mov_b64 exec, -1""")
        self.setflag(F_PV)
        self.stamp(6)
        a("s_cmp_ge_u32 s49, 14\ns_cbranch_scc1 L_exit\ns_barrier\ns_branch L_exit")

    def swave_head(self):
        a, c = self.a, self.c
        c("================= S-wave head: clears / code prefetch =================")
        a("L_shead:\ns_cmp_eq_u32 s50, 0\ns_cbranch_scc0 L_swave")
        a(f"""v_mov_b32 v8, -1
        v_mov_b32 v9, -1
        v_mov_b32 v10, -1
        v_mov_b32 v11, -1
        v_mov_b32 v12, 0
        v_mov_b32 v13, 0
        v_lshlrev_b32 v15, 3, v0
        s_lshl_b32 s52, s48, 5
        s_add_u32 s52, s52, s49
        s_lshl_b32 s52, s52, 10
        s_add_u32 s52, s52, {OP}
        v_lshlrev_b32 v14, 4, v0
        s_lshl_b32 s53, s48, 2
        s_and_b32 s54, s49, 3
        s_add_u32 s53, s53, s54
        s_lshl_b32 s53, s53, 7
        s_lshr_b32 s54, s2, 5
        s_lshl_b32 s54, s54, 4
        s_add_u32 s53, s53, s54
        s_add_u32 s53, s53, {STAT}
        s_lshl_b32 s55, s2, 6
        s_add_u32 s55, s55, {HACC}
        s_waitcnt lgkmcnt(0)
        buffer_store_dwordx4 v[8:11], v14, s[16:19], s52 offen sc1
        s_mov_b64 exec, 0xff
        buffer_store_dwordx2 v[12:13], v15, s[16:19], s55 offen sc1
        s_mov_b64 exec, 3
        buffer_store_dwordx2 v[8:9], v15, s[16:19], s53 offen sc1
        s_mov_b64 exec, -1
        s_sub_u32 s54, s49, 21
        s_cmp_lt_u32 s54, 7
        s_cbranch_scc0 L_nopart
        s_mul_i32 s55, s48, 7
        s_add_u32 s55, s55, s54
        s_lshl_b32 s55, s55, 7
        s_add_u32 s55, s55, {PART}
        v_mul_u32_u24 v14, 7168, v6
        v_and_b32 v16, 7, v0
        v_lshl_add_u32 v14, v16, 4, v14""")
        for i in range(7):
            a(f"buffer_store_dwordx4 v[8:11], v14, s[16:19], s55 offen sc1")
            if i < 6: a(f"s_add_u32 s55, s55, {8*7168}")
        a("L_nopart:\ns_waitcnt vmcnt(0)")
        self.setflag(F_CLR, "v3")
        a("s_branch L_swave")

    def dpp_allred16(self, op, regs):
        for rot in (8, 4, 2, 1):
            for r in regs:
                self.a(f"{op}_dpp v{r}, v{r}, v{r} row_ror:{rot} row_mask:0xf bank_mask:0xf")
            self.a("s_nop %d" % max(0, 2 - len(regs)))

    def ahead(self):
        a, c = self.a, self.c
        c("A-wave head: x loads first")
        a(f"""s_setprio 3
        v_and_b32 v12, 15, v0
        v_mul_u32_u24 v13, 896, v7
        v_lshl_add_u32 v13, v12, 3, v13
        s_lshr_b32 s52, s49, 3
        s_lshl_b32 s53, s52, 8
        s_mov_b32 s54, {EPO}
        s_waitcnt lgkmcnt(0)""")
        for i in range(7):
            a(f"buffer_load_dwordx2 v[{16+2*i}:{17+2*i}], v13, s[20:23], 0 offen offset:{i*128}")
        a("buffer_load_dwordx2 v[30:31], v13, s[20:23], s53 offen\nbuffer_load_dwordx2 v[32:33], v13, s[20:23], s53 offen offset:128")
        a("buffer_load_dword v110, v8, s[16:19], s54 offen sc1\ns_branch L_awave")

    def awave(self):
        a, c = self.a, self.c
        c("================= A-wave: LN1, q partial, q gather, softmax, stats =================")
        a("L_awave:")
        a(f"s_mov_b32 s54, {WQL}")
        self.tr_addr(100, "s54", 104)
        a(f"""v_bfe_u32 v104, v0, 2, 2
        v_lshlrev_b32 v104, 8, v104
        v_lshl_add_u32 v104, v7, 3, v104
        v_add_u32 v104, {XN}, v104
        v_lshlrev_b32 v105, 8, v7
        v_lshl_add_u32 v105, v12, 3, v105
        v_lshlrev_b32 v106, 14, v7
        v_lshl_add_u32 v106, v12, 4, v106
        v_lshlrev_b32 v108, 4, v0
        s_mov_b32 s60, 0xffff0000
        s_waitcnt vmcnt(1)""")
        self.stamp(1)
        c("unpack x (28 values: v36..v63), own 8 values v64..71")
        for i in range(14):
            a(f"v_lshlrev_b32 v{36+2*i}, 16, v{16+i}\nv_and_b32 v{37+2*i}, s60, v{16+i}")
        for i in range(4):
            a(f"v_lshlrev_b32 v{64+2*i}, 16, v{30+i}\nv_and_b32 v{65+2*i}, s60, v{30+i}")
        a("v_add_f32 v72, v36, v37\nv_add_f32 v73, v38, v39")
        for i in range(2, 14):
            a(f"v_add_f32 v72, v72, v{36+2*i}\nv_add_f32 v73, v73, v{37+2*i}")
        a("v_add_f32 v72, v72, v73\ns_nop 1")
        self.dpp_allred16("v_add_f32", [72])
        a(f"v_mul_f32 v72, {hex(f2u(1/448))}, v72")
        a("v_mov_b32 v73, 0\nv_mov_b32 v74, 0")
        for i in range(14):
            a(f"v_sub_f32 v75, v{36+2*i}, v72\nv_sub_f32 v76, v{37+2*i}, v72\nv_fmac_f32 v73, v75, v75\nv_fmac_f32 v74, v76, v76")
        a("v_add_f32 v73, v73, v74\ns_nop 1")
        self.dpp_allred16("v_add_f32", [73])
        a(f"""v_mul_f32 v73, {hex(f2u(1/448))}, v73
        v_cvt_pk_bf16_f32 v74, v72, v73
        v_lshlrev_b32 v72, 16, v74
        v_and_b32 v73, s60, v74
        v_add_f32 v73, {hex(f2u(1e-5))}, v73
        v_cvt_pk_bf16_f32 v73, v73, v73
        v_and_b32 v73, s60, v73
        v_sqrt_f32 v73, v73
        s_nop 0
        v_cvt_pk_bf16_f32 v73, v73, v73
        v_and_b32 v73, s60, v73
        v_rcp_f32 v73, v73""")
        for i in range(4):
            a(f"""v_sub_f32 v{64+2*i}, v{64+2*i}, v72
            v_sub_f32 v{65+2*i}, v{65+2*i}, v72
            v_cvt_pk_bf16_f32 v74, v{64+2*i}, v{65+2*i}
            v_lshlrev_b32 v75, 16, v74
            v_and_b32 v76, s60, v74
            v_mul_f32 v75, v75, v73
            v_mul_f32 v76, v76, v73
            v_cvt_pk_bf16_f32 v{30+i}, v75, v76""")
        a(f"ds_write_b64 v105, v[30:31] offset:{XN}\nds_write_b64 v105, v[32:33] offset:{XN+128}")
        for ks in range(4):
            a(f"ds_read2_b64 v[{16+4*ks}:{19+4*ks}], v104 offset0:{ks*8} offset1:{ks*8+4}")
        self.stamp(2)
        self.waitflag(F_WQ, n=4, t="v96")
        self.stamp(3)
        for ks in range(4):
            for i in range(4):
                for half in range(2):
                    r = 32 + (ks*4 + i)*4 + half*2
                    a(f"ds_read_b64_tr_b16 v[{r}:{r+1}], v{100+i} offset:{ks*4096 + half*2048}")
            if ks & 1:
                a("s_waitcnt lgkmcnt(0)")
                for k2 in (ks-1, ks):
                    for i in range(4):
                        r = 32 + (k2*4 + i)*4; d = 112 + 4*i
                        cin = "0" if k2 == 0 else f"v[{d}:{d+3}]"
                        a(f"v_mfma_f32_16x16x32_bf16 v[{d}:{d+3}], v[{16+4*k2}:{19+4*k2}], v[{r}:{r+3}], {cin}")
        self.waitflag(F_CLR)
        self.stamp(4)
        a(f"""s_waitcnt vmcnt(0)
        v_add_u32 v110, 1, v110
        s_mov_b32 s56, 0x07060500
        s_mov_b32 s57, 0x07060501
        s_mov_b32 s58, 0x07060502
        s_mov_b32 s59, 0x07060503
        ds_write_b32 v3, v110 offset:{F_TAG}
        v_perm_b32 v112, v112, v110, s56
        v_perm_b32 v113, v116, v110, s57
        v_perm_b32 v114, v120, v110, s58
        v_perm_b32 v115, v124, v110, s59
        v_lshrrev_b32 v116, 8, v110
        v_lshrrev_b32 v117, 16, v110
        v_lshrrev_b32 v118, 24, v110
        s_lshl_b32 s53, s52, 16
        s_lshl_b32 s54, s48, 11
        s_add_u32 s53, s53, s54
        s_and_b32 s55, s49, 7
        s_lshl_b32 s55, s55, 8
        s_add_u32 s53, s53, s55
        buffer_store_dwordx4 v[112:115], v106, s[16:19], s53 offen sc1
        s_and_b32 s55, s49, 3
        s_lshl_b32 s55, s55, 14
        s_add_u32 s54, s54, s55
        s_add_u32 s55, s54, 0x10000
        s_add_u32 s56, s54, 0x20000
        s_add_u32 s57, s54, 0x30000""")
        a("s_waitcnt vmcnt(0)")
        if self.qd: a(f"s_sleep {self.qd}")
        self.stamp(9)
        c("q gather")
        tg = [110, 116, 117, 118]
        a("L_qg:")
        for rg in range(4):
            for z in range(2):
                r = 16 + (rg*2 + z)*4
                a(f"buffer_load_dwordx4 v[{r}:{r+3}], v108, s[16:19], s{54+rg} offen offset:{z*1024} sc1")
        a(f"s_waitcnt vmcnt(0)\nv_xor_b32 v8, v16, v110")
        for k in range(1, 32):
            a(f"v_bitop3_b32 v8, v8, v{16+k}, v{tg[k & 3]} bitop3:0xf6")
        a("v_and_b32 v8, 0xff, v8\nv_cmp_ne_u32 vcc, 0, v8")
        self.retry("L_qg")
        for k in range(8):
            a(f"v_add_f32 v{80+k}, v{16+k}, v{24+k}\nv_add_f32 v{88+k}, v{32+k}, v{40+k}")
        self.stamp(5)
        for k in range(8):
            a(f"v_add_f32 v{80+k}, v{80+k}, v{88+k}")
        a(f"v_lshlrev_b32 v9, 7, v7\nv_lshl_add_u32 v9, v12, 1, v9")
        for k in range(4):
            a(f"v_cvt_pk_bf16_f32 v{88+k}, v{80+2*k}, v{81+2*k}")
        for k in range(4):
            z = k >> 1; i = (k & 1)*2
            a(f"ds_write_b16 v9, v{88+k} offset:{QB + z*512 + i*32}\nds_write_b16_d16_hi v9, v{88+k} offset:{QB + z*512 + i*32 + 32}")
        self.setflag(F_Q, "v3")
        a(f"""s_cmp_lg_u32 s49, 31
        s_cbranch_scc1 L_nogr
        s_lshl_b32 s53, s48, 2
        s_add_u32 s53, s53, {GR}
        s_mov_b64 exec, 1
        buffer_store_dword v110, v108, s[16:19], s53 offen sc1
        s_mov_b64 exec, -1
        L_nogr:""")
        c("softmax over the 128 local keys, 2 heads")
        a(f"""s_lshl_b32 s53, s48, 2
        s_and_b32 s54, s49, 3
        s_add_u32 s53, s53, s54
        s_lshl_b32 s53, s53, 7
        s_add_u32 s53, s53, {STAT}
        s_lshr_b32 s54, s2, 5
        s_lshl_b32 s54, s54, 4
        s_add_u32 s54, s54, s53
        s_mov_b32 s61, {hex(f2u(1.4426950408889634/16))}
        v_and_b32 v30, 8, v0
        """)
        self.waitflag(F_S, n=4, t="v96", sleep=False)
        self.stamp(6)
        a(f"""ds_read_b64 v[16:17], v10 offset:{SP}
        s_waitcnt lgkmcnt(0)
        v_lshlrev_b32 v18, 16, v16
        v_and_b32 v19, s60, v16
        v_lshlrev_b32 v20, 16, v17
        v_and_b32 v21, s60, v17
        v_max_f32 v22, v18, v19
        v_max3_f32 v22, v22, v20, v21""")
        def red8x4(op, r, t):
            a(f"""s_nop 1
            {op}_dpp v{r}, v{r}, v{r} quad_perm:[1,0,3,2] row_mask:0xf bank_mask:0xf
            s_nop 1
            {op}_dpp v{r}, v{r}, v{r} quad_perm:[2,3,0,1] row_mask:0xf bank_mask:0xf
            s_nop 1
            {op}_dpp v{r}, v{r}, v{r} row_half_mirror row_mask:0xf bank_mask:0xf
            v_mov_b32 v{t}, v{r}
            s_nop 1
            v_permlane16_swap_b32 v{r}, v{t}
            {op} v{r}, v{r}, v{t}
            v_mov_b32 v{t}, v{r}
            s_nop 1
            v_permlane32_swap_b32 v{r}, v{t}
            {op} v{r}, v{r}, v{t}""")
        red8x4("v_max_f32", 22, 24)
        for k in range(4):
            a(f"v_sub_f32 v{18+k}, v{18+k}, v22\nv_mul_f32 v{18+k}, s61, v{18+k}\nv_exp_f32 v{18+k}, v{18+k}")
        a(f"""s_nop 0
        v_cvt_pk_bf16_f32 v16, v18, v19
        v_cvt_pk_bf16_f32 v17, v20, v21
        ds_write_b64 v10, v[16:17] offset:{SP}""")
        self.setflag(F_P, "v3")
        a("v_add_f32 v23, v18, v19\nv_add_f32 v24, v20, v21\nv_add_f32 v23, v23, v24")
        red8x4("v_add_f32", 23, 24)
        a(f"""v_min_u32 v23, -2, v23
        s_mov_b64 exec, 0x101
        buffer_store_dwordx2 v[22:23], v30, s[16:19], s54 offen sc1
        """)
        self.stamp(7)
        a("s_branch L_exit")

    def swave(self):
        a, c = self.a, self.c
        c("================= S-wave: scores =================")
        a("L_swave:")
        a(f"""v_and_b32 v12, 15, v0
        v_xor_b32 v13, v7, v12
        v_lshlrev_b32 v13, 4, v13
        v_lshl_add_u32 v13, v12, 9, v13
        s_lshl_b32 s55, s50, 14
        s_add_u32 s55, s55, {KL}
        v_add_u32 v13, s55, v13
        v_xor_b32 v14, 64, v13
        v_xor_b32 v15, 0x80, v13
        v_xor_b32 v16, 0xc0, v13
        v_and_b32 v17, 1, v0
        v_lshlrev_b32 v18, 9, v17
        v_lshl_add_u32 v18, v7, 4, v18
        v_lshlrev_b32 v17, 6, v17
        v_lshl_add_u32 v17, v7, 4, v17
        s_lshl_b32 s56, s50, 7
        v_add_u32 v17, s56, v17""")
        c("weights prefetch addresses: u=0,1 wo ; u=2 w2 ; u=3 w1")
        self.srd(28, 32, 4096*896)
        self.srd(32, 64, 1792*896)
        self.srd(36, 48, 448*3584)
        self.waitflag(F_Q)
        self.stamp(2)
        a(f"ds_read_b32 v164, v3 offset:{F_TAG}")
        for ks in range(8):
            a(f"ds_read_b128 v[{32+4*ks}:{35+4*ks}], v18 offset:{QB + ks*64}")
        for T in range(2):
            self.waitflag(F_K0 if T == 0 else F_KL, "v2", sleep=(T == 0))
            if T == 1: self.stamp(1)
            for ks in range(8):
                r = 64 + (T*8 + ks)*4
                a(f"ds_read_b128 v[{r}:{r+3}], v{13 + (ks & 3)} offset:{(ks >> 2)*256 + T*8192}")
            for ks in range(8):
                a(f"s_waitcnt lgkmcnt({7-ks})")
                r = 64 + (T*8 + ks)*4; d = 20 + 4*T
                cin = "0" if ks == 0 else f"v[{d}:{d+3}]"
                a(f"v_mfma_f32_16x16x32_bf16 v[{d}:{d+3}], v[{r}:{r+3}], v[{32+4*ks}:{35+4*ks}], {cin}")
        a("s_nop 7")
        for k in range(4):
            a(f"v_cvt_pk_bf16_f32 v{28+k}, v{20+2*k}, v{21+2*k}")
        a(f"""s_mov_b32 exec_lo, 0x00030003
        s_mov_b32 exec_hi, 0x00030003
        ds_write_b128 v17, v[28:31] offset:{SP}
        s_mov_b64 exec, -1""")
        self.setflag(F_S)
        self.stamp(3)
        a("""v_readfirstlane_b32 s70, v164
        s_cmp_lt_u32 s49, 14
        s_cbranch_scc1 L_wo
        s_mov_b32 s71, s70
        s_cmp_lt_u32 s49, 21
        s_cbranch_scc1 L_mlp""")
        self.pf_wo()
        self.pf_w()
        a("""s_cmp_lt_u32 s49, 28
        s_cbranch_scc0 L_exit
        s_cmp_ge_u32 s50, 2
        s_cbranch_scc1 L_fin
        s_branch L_exit""")

    def pf_w(self):
        a = self.a
        l3 = self.lab("PF"); ld = self.lab("PD")
        a(f"""s_sub_u32 s67, s49, 16
        s_lshl_b32 s67, s67, 1
        s_and_b32 s66, s50, 1
        s_add_u32 s67, s67, s66""")
        self.waitflag(F_PV, "v2")
        a(f"""s_cmp_lt_u32 s50, 2
        s_cbranch_scc0 {l3}
        v_lshlrev_b32 v8, 7, v0
        s_lshl_b32 s66, s48, 5
        s_add_u32 s66, s66, s67
        s_mul_i32 s66, s66, 6272
        s_mov_b32 exec_hi, 0x0001ffff""")
        self.pf(32, "s66")
        a(f"""s_branch {ld}
        {l3}:
        v_lshrrev_b32 v8, 2, v0
        v_mul_u32_u24 v8, 3584, v8
        v_and_b32 v11, 3, v0
        v_lshl_add_u32 v8, v11, 7, v8
        s_mul_i32 s66, s67, {14*3584}
        s_mul_i32 s67, s48, 448
        s_andn2_b32 s67, s67, 127
        s_add_u32 s66, s66, s67
        s_mov_b32 exec_hi, 0x00ffffff""")
        self.pf(36, "s66")
        a(f"{ld}:\ns_mov_b32 exec_hi, -1")

    def pf(self, srd, so):
        ntw = (" " + self.ntp) if self.ntp else ""
        self.a(f"buffer_load_dword v165, v8, s[{srd}:{srd+3}], {so} offen{ntw}")
    def pf_wo(self):
        a = self.a
        a(f"""s_lshl_b32 s66, s48, 5
        s_add_u32 s66, s66, s49
        s_lshl_b32 s66, s66, 2
        s_add_u32 s66, s66, s50
        s_mul_i32 s66, s66, 3584""")
        self.waitflag(F_VI, "v2")
        a("v_lshlrev_b32 v8, 7, v0\ns_mov_b64 exec, 0x0fffffff")
        self.pf(28, "s66")
        a("s_mov_b64 exec, -1")

    def role_wo(self):
        a, c = self.a, self.c; ntw = (" " + self.ntw) if self.ntw else ""
        c("================= role WO =================")
        a("L_wo:")
        a(f"""s_cmp_ge_u32 s49, 7
        s_cselect_b32 s52, 1, 0
        s_mul_i32 s53, s52, 7
        s_sub_u32 s53, s49, s53
        s_lshr_b32 s68, s50, 1
        s_and_b32 s69, s50, 1
        s_lshl_b32 s56, s52, 1
        s_add_u32 s69, s69, s56
        s_lshl_b32 s54, s48, 1
        s_add_u32 s54, s54, s68
        s_lshl_b32 s54, s54, 2
        s_add_u32 s54, s54, s69
        s_mul_i32 s54, s54, {64*896}
        s_lshl_b32 s56, s53, 7
        s_add_u32 s54, s54, s56
        v_mul_u32_u24 v20, 896, v6
        v_add_u32 v20, v20, v5""")
        self.tr_addr(12, "s55", 16)
        a(f"""v_lshlrev_b32 v21, 4, v0
        v_and_b32 v22, 3, v0
        s_lshl_b32 s57, s48, 2
        s_add_u32 s57, s57, s69
        s_lshl_b32 s57, s57, 1
        s_add_u32 s57, s57, s68
        s_lshl_b32 s57, s57, 12
        s_add_u32 s57, s57, {OP}
        v_lshlrev_b32 v18, 3, v0
        v_and_b32 v18, 0x1f0, v18
        s_lshl_b32 s59, s48, 9
        s_lshl_b32 s56, s68, 3
        s_add_u32 s59, s59, s56
        s_add_u32 s59, s59, {STAT}
        s_mov_b32 s69, {hex(f2u(1.4426950408889634/16))}
        s_lshl_b32 s56, s50, 10
        v_lshlrev_b32 v23, 2, v0
        v_add_u32 v24, s56, v23
        v_add_u32 v24, {RED}, v24""")
        a(f"""v_lshrrev_b32 v25, 5, v0
        v_lshlrev_b32 v25, 8, v25
        v_bfe_u32 v26, v0, 2, 3
        v_lshl_add_u32 v25, v26, 3, v25
        v_and_b32 v26, 1, v0
        v_lshl_add_u32 v25, v26, 2, v25
        s_lshl_b32 s56, s50, 6
        s_add_u32 s56, s56, {RED}
        v_add_u32 v25, s56, v25
        v_cmp_eq_u32 vcc, 2, v22
        v_mov_b32 v26, 1.0
        s_lshl_b32 s58, s50, 12
        v_cndmask_b32 v26, 0, v26, vcc
        s_lshl_b32 s56, s53, 9
        s_add_u32 s58, s58, s56
        s_add_u32 s58, s58, {HACC}
        v_mov_b32 v27, v26""")
        a(f"""v_and_b32 v29, 28, v23
        s_mov_b32 s61, {GR}
        v_lshlrev_b32 v30, 7, v0
        s_lshl_b32 s60, s48, 2
        s_add_u32 s60, s60, {EW}
        s_or_b32 s62, s49, s50
        s_cmp_eq_u32 s62, 0
        s_cselect_b32 s62, -1, 0
        s_cselect_b32 s63, 0x00ffffff, 0""")
        self.pf_wo()
        self.waitflag(F_PV, n=4, t="v96", sleep=False)
        a("buffer_load_dwordx2 v[16:17], v18, s[16:19], s59 offen sc1\nbuffer_load_dword v31, v29, s[16:19], s61 offen sc1\ns_mov_b32 m0, s55")
        for p in range(8):
            if p == 4: a("s_add_u32 m0, s55, 4096")
            a(f"s_add_u32 s56, s54, {p*8*896 - (p % 4)*1024}")
            a(f"buffer_load_dwordx4 v20, s[28:31], s56 offen offset:{(p%4)*1024}{ntw} lds")
        a("s_waitcnt vmcnt(9)\nv_cmp_eq_u32 vcc, -1, v17\ns_cbranch_vccnz L_stwait\nL_stok:")
        c("combine weights w[b][h][j] = exp(m_j - M) / L")
        a("v_mov_b32 v19, v16\ns_nop 1")
        for rot in (8, 4, 2):
            a(f"v_max_f32_dpp v19, v19, v19 row_ror:{rot} row_mask:0xf bank_mask:0xf\ns_nop 1")
        a("v_sub_f32 v16, v16, v19\nv_mul_f32 v16, s69, v16\nv_exp_f32 v16, v16\ns_nop 0\nv_mul_f32 v17, v17, v16\ns_nop 1")
        for rot in (8, 4, 2):
            a(f"v_add_f32_dpp v17, v17, v17 row_ror:{rot} row_mask:0xf bank_mask:0xf\ns_nop 1")
        a("v_rcp_f32 v17, v17\ns_nop 0\nv_mul_f32 v16, v16, v17\ns_nop 1")
        for j in range(8):
            a(f"v_mov_b32_dpp v{96+j}, v16 row_newbcast:{2*j} row_mask:0xf bank_mask:0xf")
        a("s_waitcnt vmcnt(0)")
        self.stamp(4)
        for z in range(2):
            for i in range(4):
                for half in range(2):
                    r = 64 + (z*4 + i)*4 + half*2
                    a(f"ds_read_b64_tr_b16 v[{r}:{r+1}], v{12+i} offset:{z*4096 + half*2048}")
        l = self.lab("OP")
        a(f"{l}:")
        for q in range(4):
            a(f"buffer_load_dwordx4 v[{32+4*q}:{35+4*q}], v21, s[16:19], s57 offen offset:{q*1024} sc1")
        a("s_waitcnt vmcnt(0)\nv_max_u32 v28, v32, v36\nv_max3_u32 v28, v28, v40, v44\nv_cmp_eq_u32 vcc, -1, v28")
        self.retry(l)
        a("s_mov_b64 exec, s[62:63]"); c("NOPAD_ON"); a("buffer_store_dword v164, v30, s[16:19], s60 offen sc1\ns_mov_b64 exec, -1"); c("NOPAD_OFF")
        self.stamp(5)
        a("s_waitcnt lgkmcnt(0)")
        def fm(i):
            for st_ in range(2):
                d = 104 + (i*2 + st_)*4
                for r in range(4):
                    if st_ == 0 and r == 0: a(f"v_mul_f32 v{48+4*i}, v{d}, v96")
                    else: a(f"v_fmac_f32 v{48+4*i}, v{d+r}, v{96+4*st_+r}")
        for i in range(4):
            for z in range(2):
                for st_ in range(2):
                    d = 104 + (i*2 + st_)*4; ra = 32 + (z*2 + st_)*4; rb = 64 + (z*4 + i)*4
                    cin = "0" if z == 0 else f"v[{d}:{d+3}]"
                    a(f"v_mfma_f32_16x16x32_bf16 v[{d}:{d+3}], v[{ra}:{ra+3}], v[{rb}:{rb+3}], {cin}")
            if i == 2: fm(0)
        fm(1)
        a("ds_write2st64_b32 v24, v48, v52 offset0:0 offset1:1")
        fm(2)
        a("v_cmp_ne_u32 vcc, v31, v164")
        fm(3)
        a("ds_write2st64_b32 v24, v56, v60 offset0:2 offset1:3")
        a("s_cbranch_vccnz L_grwait\nL_grok:")
        a("s_waitcnt lgkmcnt(0)\ns_barrier")
        a("""ds_read2st64_b32 v[32:33], v25 offset0:0 offset1:4
        ds_read2st64_b32 v[34:35], v25 offset0:8 offset1:12
        ds_read2st64_b32 v[36:37], v25 offset0:2 offset1:6
        ds_read2st64_b32 v[38:39], v25 offset0:10 offset1:14
        s_mov_b32 exec_lo, 0x33333333
        s_mov_b32 exec_hi, 0x33333333
        s_waitcnt lgkmcnt(2)
        v_add_f32 v32, v32, v33
        v_add_f32 v34, v34, v35
        v_add_f32 v26, v32, v34
        s_waitcnt lgkmcnt(0)
        v_add_f32 v36, v36, v37
        v_add_f32 v38, v38, v39
        v_add_f32 v27, v36, v38
        s_mov_b64 exec, -1
        buffer_atomic_add_f32 v26, v23, s[16:19], s58 offen
        buffer_atomic_add_f32 v27, v23, s[16:19], s58 offen offset:256""")
        self.stamp(6)
        a("s_branch L_exit")
        a("L_grwait:\nbuffer_load_dword v31, v29, s[16:19], s61 offen sc1\ns_waitcnt vmcnt(0)\nv_cmp_ne_u32 vcc, v31, v164")
        self.retry("L_grwait")
        a("s_branch L_grok")
        a("L_stwait:\nbuffer_load_dwordx2 v[16:17], v18, s[16:19], s59 offen sc1\ns_waitcnt vmcnt(0)\nv_cmp_eq_u32 vcc, -1, v17")
        self.retry("L_stwait")
        a("s_branch L_stok")

    def wave_sum2(self, r0, r1, s0, s1):
        a = self.a
        for ctl in ("row_shr:1", "row_shr:2", "row_shr:4", "row_shr:8"):
            a(f"v_add_f32_dpp v{r0}, v{r0}, v{r0} {ctl} row_mask:0xf bank_mask:0xf bound_ctrl:0" if False else
              f"v_add_f32_dpp v{r0}, v{r0}, v{r0} {ctl.replace('shr','ror')} row_mask:0xf bank_mask:0xf")
            a(f"v_add_f32_dpp v{r1}, v{r1}, v{r1} {ctl.replace('shr','ror')} row_mask:0xf bank_mask:0xf\ns_nop 0")
        a(f"v_add_f32_dpp v{r0}, v{r0}, v{r0} row_bcast:15 row_mask:0xa bank_mask:0xf")
        a(f"v_add_f32_dpp v{r1}, v{r1}, v{r1} row_bcast:15 row_mask:0xa bank_mask:0xf\ns_nop 0")
        a(f"v_add_f32_dpp v{r0}, v{r0}, v{r0} row_bcast:31 row_mask:0xc bank_mask:0xf")
        a(f"v_add_f32_dpp v{r1}, v{r1}, v{r1} row_bcast:31 row_mask:0xc bank_mask:0xf")
        a(f"v_readlane_b32 s{s0}, v{r0}, 63\nv_readlane_b32 s{s1}, v{r1}, 63\ns_nop 1")

    def ew_gate(self, va):
        a = self.a
        l = self.lab("EW")
        a(f"v_lshlrev_b32 v{va}, 7, v12\ns_mov_b32 s63, {EW}")
        a(f"{l}:\nbuffer_load_dword v8, v{va}, s[16:19], s63 offen sc1\ns_waitcnt vmcnt(0)\nv_cmp_ne_u32 vcc, v8, v164")
        self.retry(l)

    def role_mlp(self):
        a, c = self.a, self.c; ntw = (" " + self.ntw) if self.ntw else ""
        c("================= role MLP =================")
        a("L_mlp:")
        self.srd(40, 56, 3584)
        a(f"""s_mul_i32 s52, s48, 7
        s_add_u32 s52, s52, s49
        s_sub_u32 s52, s52, 14
        v_lshrrev_b32 v20, 2, v0
        v_mul_u32_u24 v20, 3584, v20
        v_and_b32 v22, 3, v0
        v_lshl_add_u32 v20, v22, 4, v20
        v_lshlrev_b32 v21, 4, v0
        s_mul_i32 s53, s50, {7*16*3584}
        s_lshl_b32 s54, s52, 6
        s_add_u32 s53, s53, s54
        s_mul_i32 s56, s52, {32*896}
        s_mul_i32 s57, s50, 7168
        s_add_u32 s56, s56, s57
        v_lshlrev_b32 v23, 2, v0
        s_mul_i32 s57, s50, 896
        s_lshl_b32 s58, s50, 5
        s_add_u32 s54, s54, s58
        v_lshlrev_b32 v24, 1, v12
        s_waitcnt lgkmcnt(0)""")
        c("x row (residual) and b1")
        for i in range(8): a(f"v_mov_b32 v{40+i}, 0")
        for i in range(16): a(f"v_mov_b32 v{48+i}, 0")
        a("s_mov_b32 exec_hi, 0x00ffffff")
        for i in range(4):
            a(f"buffer_load_dword v{36+i}, v23, s[20:23], s57 offen offset:{i*224}")
        a("s_mov_b32 exec_hi, -1\nbuffer_load_ushort v28, v24, s[40:43], s54 offen")
        a(f"s_add_u32 s57, s57, {YL}")
        for i in range(4):
            a(f"""v_add_u32 v25, {56*i}, v0
            v_lshrrev_b32 v26, 4, v25
            v_lshlrev_b32 v26, 6, v26
            v_bfe_u32 v27, v25, 1, 2
            v_lshl_add_u32 v26, v27, 4, v26
            v_and_b32 v27, 8, v25
            v_add_u32 v26, v26, v27
            v_and_b32 v27, 1, v25
            v_lshl_add_u32 v26, v27, 2, v26
            v_add_u32 v{32+i}, s57, v26""")
        a("s_mov_b32 s60, 0xffff0000\ns_waitcnt vmcnt(0)\ns_mov_b32 exec_hi, 0x00ffffff")
        for i in range(4):
            a(f"v_lshlrev_b32 v{40+2*i}, 16, v{36+i}\nv_and_b32 v{41+2*i}, s60, v{36+i}")
        a("s_mov_b32 exec_hi, -1\nv_lshlrev_b32 v28, 16, v28\nv_mov_b32 v29, 0\nv_mov_b32 v30, 0\nv_mov_b32 v31, 0")
        self.pf_wo()
        a("s_cmp_lt_u32 s49, 16\ns_cbranch_scc1 L_mlp_np")
        self.pf_w()
        a("L_mlp_np:")
        self.waitflag(F_PV, n=4, t="v96")
        a("s_mov_b32 m0, s55\ns_nop 0")
        for x in range(7):
            if x == 4: a("s_add_u32 m0, s55, 4096\ns_add_u32 s53, s53, 4096")
            a(f"buffer_load_dwordx4 v20, s[36:39], s53 offen offset:{(x%4)*1024}{ntw} lds")
            a(f"s_add_u32 s53, s53, {16*3584 - 1024}")
        a("s_add_u32 m0, s55, 7168\ns_nop 0")
        for x in range(7):
            if x == 4: a("s_add_u32 m0, s55, 11264\ns_add_u32 s56, s56, 4096")
            a(f"buffer_load_dwordx4 v21, s[32:35], s56 offen offset:{(x%4)*1024}{ntw} lds")
        a(f"""v_lshrrev_b32 v13, 2, v0
        v_lshlrev_b32 v13, 6, v13
        v_lshl_add_u32 v13, v22, 3, v13
        s_and_b32 s58, s58, 32
        s_add_u32 s58, s58, {KL}
        v_add_u32 v13, s58, v13
        v_bfe_u32 v15, v0, 2, 2
        v_mul_u32_u24 v16, 896, v15
        v_lshl_add_u32 v14, v7, 14, v16
        v_lshl_add_u32 v14, v22, 3, v14
        s_lshl_b32 s58, s50, 7
        s_add_u32 s58, s58, {KL + 7168}
        v_add_u32 v14, s58, v14
        v_lshl_add_u32 v16, v7, 4, v16
        v_add_u32 v16, {YL}, v16
        v_lshlrev_b32 v17, 6, v7
        v_add_u32 v17, v17, v24
        s_lshl_b32 s58, s50, 5
        s_add_u32 s58, s58, {H1L}
        v_add_u32 v17, s58, v17
        v_lshlrev_b32 v18, 6, v15
        v_lshl_add_u32 v18, v7, 4, v18
        v_add_u32 v18, {H1L}, v18
        v_mov_b32 v19, {ZR}""")
        for i in range(4):
            a(f"v_cmp_eq_u32 vcc, {i}, v22\ns_nop 1\nv_cndmask_b32 v{24+i}, v19, v18, vcc")
        a(f"""s_lshl_b32 s57, s50, 12
        s_add_u32 s57, s57, {HACC}
        s_mul_i32 s58, s52, 7168
        s_lshl_b32 s59, s50, 10
        s_add_u32 s58, s58, s59
        s_add_u32 s58, s58, {PART}
        s_add_u32 s62, s58, 4096
        s_mov_b32 s59, {hex(f2u(16.0))}
        s_waitcnt vmcnt(0)
        s_barrier""")
        self.stamp(4)
        for ks in range(14):
            for half in range(2):
                p = 2*ks + half
                r = 64 + ks*4 + half*2
                a(f"ds_read_b64_tr_b16 v[{r}:{r+1}], v13 offset:{(p//7)*16384 + (p%7)*1024}")
            if ks % 4 == 3: a("s_waitcnt lgkmcnt(0)")
        for qq in range(2):
            for i in range(4):
                for half in range(2):
                    r = 120 + (qq*4 + i)*4 + half*2
                    a(f"ds_read_b64_tr_b16 v[{r}:{r+1}], v14 offset:{half*3584 + qq*512 + i*32}")
            a("s_waitcnt lgkmcnt(0)")
        a(f"""s_lshl_b32 s63, s52, 7
        s_add_u32 s63, s63, {EW}
        s_add_u32 s64, s16, s63
        s_addc_u32 s65, s17, 0
        v_mul_u32_u24 v19, {7*128}, v0
        s_sub_u32 s63, s49, 14
        s_lshl_b32 s63, s63, 7
        s_lshl_b32 s61, s48, 2
        s_add_u32 s63, s63, s61
        s_add_u32 s63, s63, {FH}""")
        self.shint(8)
        self.stamp(9)
        a("s_mov_b32 exec_hi, 0x00ffffff")
        l = self.lab("HP")
        a(f"{l}:")
        for i in range(4):
            a(f"buffer_load_dwordx4 v[{48+4*i}:{51+4*i}], v21, s[16:19], s57 offen offset:{i*896} sc1")
        a("s_waitcnt vmcnt(0)\nv_min_f32 v8, v50, v54\nv_min3_f32 v8, v8, v58, v62\nv_cmp_neq_f32 vcc, s59, v8")
        self.retry(l)
        self.stamp(5)
        c("h = x + attn ; LN ; LN")
        for i in range(4):
            a(f"v_add_f32 v{40+2*i}, v{40+2*i}, v{48+4*i}\nv_add_f32 v{41+2*i}, v{41+2*i}, v{49+4*i}")
        for rep in range(2):
            a("s_mov_b32 exec_hi, -1")
            a("v_add_f32 v8, v40, v41\nv_mul_f32 v9, v40, v40\nv_add_f32 v10, v42, v43\nv_mul_f32 v11, v41, v41")
            a("v_add_f32 v8, v8, v44\nv_fmac_f32 v9, v42, v42\nv_add_f32 v10, v10, v45\nv_fmac_f32 v11, v43, v43")
            a("v_add_f32 v8, v8, v46\nv_fmac_f32 v9, v44, v44\nv_add_f32 v10, v10, v47\nv_fmac_f32 v11, v45, v45")
            a("v_fmac_f32 v9, v46, v46\nv_fmac_f32 v11, v47, v47\nv_add_f32 v8, v8, v10\nv_add_f32 v9, v9, v11\ns_nop 0")
            self.wave_sum2(8, 9, 64, 65)
            a(f"""v_mov_b32 v10, {hex(f2u(1/448))}
            v_mul_f32 v8, s64, v10
            v_mul_f32 v9, s65, v10
            v_fma_f32 v9, -v8, v8, v9
            v_max_f32 v9, 0, v9
            v_add_f32 v9, {hex(f2u(1e-5))}, v9
            v_rsq_f32 v9, v9
            s_mov_b32 exec_hi, 0x00ffffff
            v_mul_f32 v8, v8, v9""")
            for k in range(8):
                a(f"v_fma_f32 v{40+k}, v{40+k}, v9, -v8")
        for i in range(4):
            a(f"v_cvt_pk_bf16_f32 v{36+i}, v{40+2*i}, v{41+2*i}\nds_write_b32 v{32+i}, v{36+i}")
        a("s_mov_b32 exec_hi, -1\ns_waitcnt lgkmcnt(0)\ns_barrier")
        self.stamp(6)
        a("s_cmp_ge_u32 s50, 2\ns_cbranch_scc1 L_mlp_hint")
        for ks in range(14):
            r = [8, 32, 36, 40, 44, 48, 52, 56, 60, 152, 156, 160][ks] if ks < 12 else None
            if r is not None: a(f"ds_read_b128 v[{r}:{r+3}], v16 offset:{ks*64}")
        regs = [8, 32, 36, 40, 44, 48, 52, 56, 60, 152, 156, 160, 8, 32]
        for ks in range(14):
            if ks < 2: a(f"s_waitcnt lgkmcnt({11-ks})")
            elif ks < 12: a(f"s_waitcnt lgkmcnt({13-ks})")
            else: a(f"s_waitcnt lgkmcnt({13-ks})")
            r = regs[ks]
            a(f"v_mfma_f32_16x16x32_bf16 v[28:31], v[{r}:{r+3}], v[{64+4*ks}:{67+4*ks}], v[28:31]")
            if ks == 1:
                a(f"ds_read_b128 v[8:11], v16 offset:{12*64}\nds_read_b128 v[32:35], v16 offset:{13*64}")
        k1 = -2*1.4426950408889634*0.7978845608028654
        a(f"""s_mov_b32 s64, {hex(f2u(k1*0.044715))}
        v_mov_b32 v9, {hex(f2u(k1))}
        s_nop 5
        v_mul_f32 v8, v28, v28
        v_fma_f32 v8, v8, s64, v9
        v_mul_f32 v8, v8, v28
        v_exp_f32 v8, v8
        s_nop 0
        v_add_f32 v8, 1.0, v8
        v_rcp_f32 v8, v8
        s_nop 0
        v_mul_f32 v8, v8, v28
        v_cvt_pk_bf16_f32 v8, v8, v8
        ds_write_b16 v17, v8
        s_waitcnt lgkmcnt(0)
        L_mlp2:
        s_barrier""")
        self.stamp(7)
        for i in range(4):
            a(f"ds_read_b128 v[{32+4*i}:{35+4*i}], v{24+i}")
        for i in range(4):
            a(f"s_waitcnt lgkmcnt({3-i})")
            for qq in range(2):
                d = 48 + 4*qq; r = 120 + (qq*4 + i)*4
                cin = "0" if i == 0 else f"v[{d}:{d+3}]"
                a(f"v_mfma_f32_16x16x32_bf16 v[{d}:{d+3}], v[{32+4*i}:{35+4*i}], v[{r}:{r+3}], {cin}")
        a("""s_nop 6
        v_min_u32 v48, -2, v48
        buffer_store_dwordx4 v[48:51], v21, s[16:19], s58 offen sc1
        s_cmp_eq_u32 s50, 3
        s_cbranch_scc1 L_exit
        v_min_u32 v52, -2, v52
        buffer_store_dwordx4 v[52:55], v21, s[16:19], s62 offen sc1""")
        self.stamp(8)
        a("s_branch L_exit")
        a(f"""L_mlp_hint:
        s_cmp_eq_u32 s50, 2
        s_cbranch_scc0 L_mlp2
        s_sleep {self.hd}
        s_mov_b64 exec, 0xff
        buffer_store_dword v164, v19, s[16:19], s63 offen sc1
        s_mov_b64 exec, -1
        s_branch L_mlp2""")

    def role_fin(self):
        a, c = self.a, self.c
        c("================= role FINAL =================")
        a("L_fin:")
        self.srd(40, 72, 896)
        self.srd(44, 80, 3584)
        a(f"""s_mul_i32 s52, s48, 7
        s_add_u32 s52, s52, s49
        s_lshl_b32 s52, s52, 1
        s_add_u32 s52, s52, s50
        s_sub_u32 s52, s52, 44
        s_lshl_b32 s53, s52, 6
        s_add_u32 s53, s53, {PART}
        s_add_u32 s54, s53, {16*7168}
        s_add_u32 s55, s53, {32*7168}
        s_add_u32 s56, s53, {48*7168}
        v_lshrrev_b32 v20, 2, v0
        v_mul_u32_u24 v20, 7168, v20
        v_and_b32 v22, 3, v0
        v_lshl_add_u32 v20, v22, 4, v20
        s_lshr_b32 s57, s52, 4
        s_lshl_b32 s57, s57, 6
        s_and_b32 s58, s52, 3
        s_lshl_b32 s58, s58, 2
        s_add_u32 s57, s57, s58
        v_and_b32 v23, 16, v0
        v_lshlrev_b32 v23, 1, v23
        v_lshrrev_b32 v24, 5, v0
        v_lshl_add_u32 v23, v24, 4, v23
        v_add3_u32 v23, v23, v22, s57
        v_lshlrev_b32 v24, 1, v23
        v_lshrrev_b32 v25, 1, v23
        v_lshlrev_b32 v25, 4, v25
        s_bfe_u32 s58, s52, 0x20002
        s_mul_i32 s59, s58, 896
        s_lshl_b32 s58, s58, 12
        s_add_u32 s58, s58, {HACC}
        s_mov_b32 s61, {hex(f2u(16.0))}
        v_mov_b32 v44, 0
        v_mov_b32 v45, 0
        v_mov_b32 v46, 0
        v_mov_b32 v47, 0
        s_waitcnt lgkmcnt(0)
        buffer_load_ushort v26, v24, s[20:23], s59 offen
        buffer_load_ushort v27, v24, s[40:43], 0 offen
        buffer_load_ushort v28, v24, s[44:47], s59 offen""")
        a(f"""s_lshr_b32 s63, s52, 1
        s_lshl_b32 s63, s63, 7
        s_add_u32 s63, s63, {FH}
        s_add_u32 s64, s16, s63
        s_addc_u32 s65, s17, 0
        v_and_b32 v8, 1, v0
        v_cmp_eq_u32 s[66:67], 1, v8
        s_waitcnt vmcnt(0)
        v_lshlrev_b32 v26, 16, v26
        v_lshlrev_b32 v27, 16, v27
        v_add_f32 v26, v26, v27""")
        self.shint(8)
        self.stamp(5)
        l = self.lab("FP")
        a(f"""{l}:
        buffer_load_dwordx4 v[28:31], v25, s[16:19], s58 offen sc1
        buffer_load_dwordx4 v[32:35], v20, s[16:19], s53 offen sc1
        buffer_load_dwordx4 v[36:39], v20, s[16:19], s54 offen sc1
        buffer_load_dwordx4 v[40:43], v20, s[16:19], s55 offen sc1
        s_mov_b32 exec_hi, 0
        buffer_load_dwordx4 v[44:47], v20, s[16:19], s56 offen sc1
        s_mov_b32 exec_hi, -1
        s_waitcnt vmcnt(4)
        v_cndmask_b32 v28, v28, v29, s[66:67]
        v_add_f32 v27, v26, v28
        s_waitcnt vmcnt(0)
        v_max_u32 v8, v32, v36
        v_max3_u32 v8, v8, v40, v44
        v_cmp_eq_u32 vcc, -1, v8""")
        self.retry(l)
        self.stamp(6)
        for k in range(4): a(f"v_add_f32 v{32+k}, v{32+k}, v{36+k}\nv_add_f32 v{40+k}, v{40+k}, v{44+k}")
        for k in range(4): a(f"v_add_f32 v{32+k}, v{32+k}, v{40+k}")
        a("""s_nop 0
        v_permlane32_swap_b32 v32, v33
        v_permlane32_swap_b32 v34, v35
        v_add_f32 v32, v32, v33
        v_add_f32 v34, v34, v35
        s_nop 1
        v_permlane16_swap_b32 v32, v34
        v_add_f32 v32, v32, v34
        s_nop 1
        v_add_f32_dpp v32, v32, v32 row_ror:4 row_mask:0xf bank_mask:0xf
        s_nop 1
        v_add_f32_dpp v32, v32, v32 row_ror:8 row_mask:0xf bank_mask:0xf
        v_add_f32 v32, v32, v27
        v_cvt_pk_bf16_f32 v32, v32, v32
        s_mov_b32 exec_lo, 0x000f000f
        s_mov_b32 exec_hi, 0x000f000f
        buffer_store_short v32, v24, s[44:47], s59 offen""")
        self.stamp(7)
        a(f"""s_cmp_lg_u32 s52, 0
        s_cbranch_scc1 L_exit
        s_mov_b32 s53, {EPO}
        s_mov_b64 exec, 1
        buffer_store_dword v164, v22, s[16:19], s53 offen sc1""")

def add_pads(text, gap=960, nchain=3):
    import subprocess, re, tempfile, os
    lines = text.split("\n")
    start = next(i for i, l in enumerate(lines) if l.startswith(NAME + "_kernel:"))
    end = next(i for i, l in enumerate(lines) if l.startswith("L_end:"))
    def addrs(ls):
        t = []
        for i, l in enumerate(ls):
            if start < i and l.startswith("    ") and not l.strip().startswith(";") and not l.strip().startswith("."):
                t.append(f"ZZ_{i}:")
            t.append(l)
        src = "\n".join(t)
        for k in range(nchain):
            if f"PADCHAIN_{k}:" not in src: src = src.replace(f"PADCHAIN_{k}", "L_end")
        src = re.sub(r"PADNEXT", "L_end", src)
        with tempfile.TemporaryDirectory() as d:
            open(d + "/a.s", "w").write(src)
            subprocess.check_call(["clang", "-x", "assembler", "-target", "amdgcn-amd-amdhsa", "-mcpu=gfx950", "-c", d + "/a.s", "-o", d + "/a.o"])
            out = subprocess.check_output(["llvm-objdump", "-t", d + "/a.o"], text=True)
        r = {}
        for l in out.splitlines():
            p = l.split()
            if not p: continue
            if p[-1].startswith("ZZ_"): r[int(p[-1][3:])] = int(p[0], 16)
            if p[-1] == NAME + "_kernel": base = int(p[0], 16)
        return {k: v - base for k, v in r.items()}
    ad = addrs(lines)
    pads = []; last = 0; shift = 0; noz = False
    for i in sorted(ad):
        if i >= end: break
        if "NOPAD_ON" in lines[i - 1]: noz = True
        if "NOPAD_OFF" in lines[i - 1]: noz = False
        x = ad[i] + shift
        if not noz and (x - last >= gap or (x >> 12) != (last >> 12)):
            pads.append(i); last = x; shift += 4
    n = len(pads)
    out = []
    for i, l in enumerate(lines):
        if i in pads:
            k = pads.index(i)
            if k < nchain: out.append(f"PADCHAIN_{k}:")
            out.append(f"PAD_{k}:")
            nxt = f"PAD_{k + nchain}" if k + nchain < n else "L_warmdone"
            out.append(f"    s_cbranch_execz {nxt}")
        out.append(l)
    return "\n".join(out)

if __name__ == "__main__":
    import argparse
    ap = argparse.ArgumentParser()
    ap.add_argument("-o", default="k.s"); ap.add_argument("-W", type=int, default=6); ap.add_argument("--WV", type=int, default=0); ap.add_argument("--WE", type=int, default=0); ap.add_argument("--NE", type=int, default=0); ap.add_argument("--pf64", action="store_true"); ap.add_argument("--ntp", default=""); ap.add_argument("--hd", type=int, default=4); ap.add_argument("--qd", type=int, default=0)
    ap.add_argument("--prof", action="store_true"); ap.add_argument("--nt", default="nt"); ap.add_argument("--ntw", default="nt")
    x = ap.parse_args()
    open(x.o, "w").write(add_pads(G(W=x.W, WV=x.WV, WE=x.WE, NE=x.NE, pf64=x.pf64, ntp=x.ntp, hd=x.hd, qd=x.qd, prof=x.prof, nt=x.nt, ntw=x.ntw).build()))
```

```python
import sys, struct
NAME = "sequential_preLN__sliding_block_cached__mixer_channel_mlp__decode"

def f2u(x): return struct.unpack("<I", struct.pack("<f", x))[0]

QP   = 0x00000
HACC = 0x40000
STAT = 0x44000
OP   = 0xe0000
EW   = 0x6c000
FH   = 0x6e000
QF   = 0x70000
GR   = 0x71000
EPO  = 0x71100
PART = 0x72000
PROF = 0x140000
WQL = 4096; KL = 20480; VL = KL + 65536
XN = 0
QB = XN + 1024
SP = QB + 1024
ZR = SP + 512
FL = ZR + 512
LDS_TOTAL = VL + 65536
RED = WQL
YL = WQL
H1L = WQL + 4096
F_WQ, F_S, F_VI, F_Q, F_P, F_CLR, F_TAG, F_PV, F_WOD, F_KL = 0, 32, 48, 64, 68, 76, 88, 96, 112, 128

class G:
    def __init__(self, W=6, WV=None, WE=None, NE=0, prof=False, nt="nt", ntw="nt", pf64=False, ntp="nt", hd=2, qd=0, dly=None, skip='', rot=0, pw='pv', ewp=1, hp=1, pft=0, ww=3, od=2, dx=-1):
        self.dx = dx
        self.ww = ww; self.od = od
        self.pw = pw; self.ewp = ewp; self.hp = hp; self.pft = pft
        self.rot = ['s_mov_b32 s59, 0', 's_mov_b32 s59, s49', 's_lshr_b32 s59, s2, 4', 's_mul_i32 s59, s2, 5', 's_add_u32 s59, s49, s2'][rot]
        self.skip = set(skip.split(','))
        self.dly = dly; self.cur = 'E'
        self.qd = qd
        self.hd = hd
        self.ntp = ntp
        self.WE = WE or WV or W; self.NE = NE; self.pf64 = pf64
        self.L = []; self.W = W; self.WV = WV or W; self.prof = prof; self.nt = nt; self.ntw = ntw; self.uid = 0
    def a(self, s):
        for line in s.split("\n"):
            line = line.strip()
            if line: self.L.append(("" if line.endswith(":") else "    ") + line)
    def c(self, s): self.L.append("    ; " + s)
    def lab(self, p="L"):
        self.uid += 1; return f"{p}_{self.uid}"
    def stamp(self, i):
        if self.dly == f"{self.cur}:{i}":
            self.a("s_memrealtime s[92:93]\ns_waitcnt lgkmcnt(0)\ns_mov_b32 s94, 1")
        if self.prof:
            self.a(f"s_memrealtime s[90:91]\ns_waitcnt lgkmcnt(0)\nv_writelane_b32 v167, s90, {i}")
    def srd(self, r, karg, size):
        self.a(f"s_load_dwordx2 s[{r}:{r+1}], s[0:1], {karg}\ns_mov_b32 s{r+2}, {size}\ns_mov_b32 s{r+3}, 0x20000")
    def setflag(self, off, vaddr="v2"):
        self.a(f"ds_write_b32 {vaddr}, v4 offset:{off}")
    def waitflag(self, off, vaddr="v3", n=1, t="v8", sleep=True):
        l = self.lab("WF"); d = self.lab("WD")
        ti = int(t[1:])
        self.a(f"{l}:")
        if n == 1:
            self.a(f"ds_read_b32 {t}, {vaddr} offset:{off}\ns_waitcnt lgkmcnt(0)")
        else:
            self.a(f"ds_read_b128 v[{ti}:{ti+3}], {vaddr} offset:{off}\ns_waitcnt lgkmcnt(0)")
            self.a(f"v_and_b32 {t}, {t}, v{ti+1}\nv_and_b32 v{ti+2}, v{ti+2}, v{ti+3}\nv_and_b32 {t}, {t}, v{ti+2}")
        self.a(f"v_cmp_ne_u32 vcc, 0, {t}\ns_cbranch_vccnz {d}")
        if sleep: self.a("s_sleep 1")
        self.a(f"s_sub_u32 s88, s88, 1\ns_cbranch_scc0 {l}\ns_branch L_exit\n{d}:")
    def retry(self, l):
        d = self.lab("RD")
        self.a(f"s_cbranch_vccz {d}\ns_sub_u32 s88, s88, 1\ns_cbranch_scc0 {l}\ns_branch L_exit\n{d}:")

    def shint(self, n, base="s[64:65]"):
        a = self.a
        l = self.lab("SH"); d = self.lab("SD")
        a(f"{l}:\ns_sub_u32 s88, s88, 1\ns_cbranch_scc1 L_exit")
        if n == 8:
            a(f"s_load_dwordx8 s[72:79], {base}, 0 glc\ns_waitcnt lgkmcnt(0)")
            regs = [72, 74, 76, 78]
        else:
            a(f"s_load_dwordx16 s[72:87], {base}, 0 glc\ns_load_dwordx16 s[28:43], {base}, 64 glc\ns_waitcnt lgkmcnt(0)")
            regs = list(range(72, 88, 2)) + list(range(28, 44, 2))
        for r in regs:
            a(f"s_cmp_lg_u64 s[{r}:{r+1}], s[70:71]\ns_cbranch_scc1 {l}")

    def build(self):
        a, c = self.a, self.c
        W = self.W; nt = (" " + self.nt) if self.nt else ""; ntw = (" " + self.ntw) if self.ntw else ""
        self.L.append(f"; @launch grid=(256,1,1) block=(576,1,1) lds={LDS_TOTAL}")
        self.L.append('.amdgcn_target "amdgcn-amd-amdhsa--gfx950"\n.text')
        self.L.append(f".globl {NAME}_kernel\n.p2align 12\n.fill 832, 4, 0xbf810000\n.p2align 8\n.type {NAME}_kernel,@function\n{NAME}_kernel:")
        if self.prof: a("s_memrealtime s[92:93]")
        if self.dly: a("s_mov_b32 s94, 0"); self.stamp(0)
        a("s_cmp_ge_u32 s2, 256\ns_cbranch_scc1 L_end")
        a(f"""v_lshrrev_b32 v1, 6, v0
        v_and_b32 v0, 63, v0
        v_readfirstlane_b32 s3, v1
        v_mov_b32 v8, 0
        v_mov_b32 v9, 0
        v_lshlrev_b32 v10, 3, v0
        s_cmp_eq_u32 s3, 7
        s_cbranch_scc0 L_noinit
        ds_write_b64 v10, v[8:9] offset:{ZR}
        ds_write_b64 v10, v[8:9] offset:{FL}
        s_waitcnt lgkmcnt(0)
        L_noinit:""")
        self.srd(12, 24, 448*8192)
        self.srd(4, 8, 0x4000000)
        self.srd(8, 16, 0x4000000)
        self.srd(16, 96, 0x300000)
        self.srd(20, 0, 3584)
        c("instruction-cache warm-up: waves 5..7 hop through the code with EXEC=0")
        a(f"""s_barrier
        {'s_branch L_warmdone' if 'nowarm' in self.skip else ''}
        s_sub_u32 s52, s3, 5
        s_cmp_lt_u32 s52, 3
        s_cbranch_scc0 L_warmdone
        s_cmp_eq_u32 s3, 5
        s_cbranch_scc0 L_warm2
        s_getpc_b64 s[24:25]
        L_pc:
        s_mov_b32 s26, L_end-L_pc
        s_mov_b32 s27, 0x20000
        v_lshlrev_b32 v8, 7, v0
        s_movk_i32 s52, 0x2000
        {'' if 'nocpf' in self.skip else 'buffer_load_dword v165, v8, s[24:27], 0 offen'}
        {'' if 'nocpf' in self.skip else 'buffer_load_dword v165, v8, s[24:27], s52 offen'}
        s_mov_b64 exec, 0
        s_branch PADCHAIN_0
        L_warm2:
        s_mov_b64 exec, 0
        s_cmp_eq_u32 s3, 6
        s_cbranch_scc1 PADCHAIN_1
        s_branch PADCHAIN_2""")
        a("L_warmdone:\ns_mov_b64 exec, -1\ns_mov_b32 s88, 0x8000")
        a("s_and_b32 s48, s2, 7\ns_lshr_b32 s49, s2, 3")
        c("v5 = swizzled 16B chunk offset inside a 128B row; v6 = row (l>>3); v7 = g4")
        a("""v_and_b32 v5, 7, v0
        v_lshrrev_b32 v7, 4, v0
        v_lshlrev_b32 v5, 4, v5
        v_lshlrev_b32 v6, 5, v7
        v_xor_b32 v5, v5, v6
        v_lshrrev_b32 v6, 3, v0
        s_and_b32 s50, s3, 3""")
        a(f"v_mov_b32 v3, {FL}\ns_lshl_b32 s51, s50, 2\nv_add_u32 v2, s51, v3\nv_mov_b32 v4, 1")
        if self.prof: a("v_mov_b32 v167, 0")
        if 'sa' in self.skip: a("s_waitcnt lgkmcnt(0)\ns_cmp_ge_u32 s3, 4\ns_cbranch_scc1 L_exit")
        a("s_cmp_lt_u32 s3, 4\ns_cbranch_scc1 L_lwave\ns_cmp_lt_u32 s3, 8\ns_cbranch_scc1 L_shead")
        self.ahead()
        self.lwave()
        self.swave_head()
        self.awave()
        self.swave()
        self.role_wo()
        self.role_mlp()
        self.role_fin()
        a("L_exit:")
        if self.dly:
            if self.dly[0] in "ELAS": a("s_cmp_lt_u32 s2, 168\ns_cbranch_scc1 L_end")
            if self.dx >= 0: a(f"s_and_b32 s90, s2, 7\ns_cmp_lg_u32 s90, {self.dx}\ns_cbranch_scc1 L_end")
            a("""s_cmp_eq_u32 s94, 0
            s_cbranch_scc1 L_end
            L_dly:
            s_memrealtime s[90:91]
            s_waitcnt lgkmcnt(0)
            s_sub_u32 s90, s90, s92
            s_cmp_lt_u32 s90, 3000
            s_cbranch_scc1 L_dly""")
        if self.prof:
            a(f"""s_waitcnt lgkmcnt(0)
            s_mov_b64 exec, -1
            v_writelane_b32 v167, s92, 0
            s_memrealtime s[90:91]
            s_waitcnt lgkmcnt(0)
            v_writelane_b32 v167, s90, 63
            v_writelane_b32 v167, s88, 62
            s_lshl_b32 s90, s2, 4
            s_add_u32 s90, s90, s3
            s_lshl_b32 s90, s90, 8
            s_add_u32 s90, s90, {PROF}
            v_lshlrev_b32 v166, 2, v0
            buffer_store_dword v167, v166, s[16:19], s90 offen""")
        a("L_end:\ns_endpgm")
        self.L.append(f""".section .rodata,"a"
.p2align 6
.amdhsa_kernel {NAME}_kernel
  .amdhsa_next_free_vgpr 168
  .amdhsa_next_free_sgpr 96
  .amdhsa_accum_offset 168
  .amdhsa_group_segment_fixed_size 0
  .amdhsa_kernarg_size 104
  .amdhsa_user_sgpr_count 2
  .amdhsa_user_sgpr_kernarg_segment_ptr 1
  .amdhsa_system_sgpr_workgroup_id_x 1
.end_amdhsa_kernel""")
        return "\n".join(self.L) + "\n"

    def tr_addr(self, r, sbase, tmp):
        a = self.a
        a(f"""v_lshrrev_b32 v{tmp}, 2, v0
        v_lshlrev_b32 v{r}, 7, v{tmp}
        v_and_b32 v{tmp+1}, 3, v0
        v_lshl_add_u32 v{r}, v{tmp+1}, 3, v{r}
        v_bfe_u32 v{tmp}, v0, 3, 2
        v_lshl_add_u32 v{r}, v{tmp}, 5, v{r}
        v_add_u32 v{r}, {sbase}, v{r}
        v_xor_b32 v{r+1}, 32, v{r}
        v_xor_b32 v{r+2}, 64, v{r}
        v_xor_b32 v{r+3}, 0x60, v{r}""")

    def lwave(self):
        self.cur = 'L'
        a, c = self.a, self.c; W = self.W; nt = (" " + self.nt) if self.nt else ""
        c("================= L-wave: stream wq tile, K, V into LDS; PV =================")
        a("L_lwave:")
        a(f"""v_lshl_add_u32 v10, v6, 13, v5
        v_lshl_add_u32 v11, v6, 9, v5
        v_lshrrev_b32 v12, 5, v0
        v_xor_b32 v12, v12, v0
        v_lshlrev_b32 v12, 4, v12
        s_lshl_b32 s57, s50, 5
        v_xor_b32 v12, s57, v12
        v_xor_b32 v13, 0x80, v12
        s_lshr_b32 s52, s49, 3
        s_lshl_b32 s52, s52, 2
        s_add_u32 s52, s52, s50
        s_lshl_b32 s52, s52, 18
        s_lshl_b32 s53, s48, 10
        s_add_u32 s52, s52, s53
        s_and_b32 s53, s49, 7
        s_lshl_b32 s53, s53, 7
        s_add_u32 s52, s52, s53
        s_and_b32 s53, s2, 31
        s_lshl_b32 s53, s53, 21
        s_lshr_b32 s54, s2, 5
        s_lshl_b32 s54, s54, 16
        s_add_u32 s53, s53, s54
        s_add_u32 s53, s53, {3072*512}
        s_lshl_b32 s55, s50, 14
        s_lshl_b32 s58, s50, 10
        s_add_u32 s54, s53, s58
        {self.rot}
        s_lshl_b32 s59, s59, 12
        s_lshl_b32 s56, s50, 7
        s_add_u32 s53, s53, s56
        s_lshl_b32 s56, s50, 12
        s_add_u32 m0, s56, {WQL}
        s_waitcnt lgkmcnt(0)""")
        if 'wqlin' in self.skip: a("v_lshlrev_b32 v10, 4, v0\ns_mul_i32 s52, s2, 14336\ns_lshl_b32 s57, s50, 10\ns_add_u32 s52, s52, s57")
        if 'nowq' in self.skip: a("s_mov_b32 s52, 0x1000000")
        if 'pst' in self.skip: self.stamp(11)
        n = 0
        WV = self.WV
        st = dict(landed=0)
        def after(n):
            w = W if n < 20 else (WV if n < 36 - self.NE else self.WE)
            if n < 36 and n - (w - 1) > st["landed"]:
                a(f"s_waitcnt vmcnt({w-1})")
                old = st["landed"]; st["landed"] = n - (w - 1)
                if 'pst' in self.skip: self.stamp(11 + st["landed"])
                if old < 4 <= st["landed"]: self.setflag(F_WQ); self.stamp(1)
                for u in range(4):
                    if old < 8 + 4*u <= st["landed"]: self.setflag(F_KL + 16*u)
                if old < 20 <= st["landed"]: self.stamp(2)
        for p in range(4):
            a(f"buffer_load_dwordx4 v10, s[12:15], s52 offen offset:{p*1024}{nt} lds")
            if p < 3: a(f"s_add_u32 s52, s52, {3072 if 'wqlin' in self.skip else 65536-1024}")
            n += 1; after(n)
        for p in range(16):
            a(f"s_add_u32 m0, s58, {KL + p*4096}\ns_and_b32 s59, s59, 0xf000\ns_add_u32 s60, s54, s59")
            a(f"buffer_load_dwordx4 v{12 + (p & 1)}, s[4:7], s60 offen{nt} lds\ns_addk_i32 s59, 0x1000")
            n += 1; after(n)
        for p in range(16):
            a(f"s_add_u32 m0, s55, {VL + p*1024}\ns_and_b32 s59, s59, 0xf000\ns_add_u32 s60, s53, s59")
            a(f"buffer_load_dwordx4 v11, s[8:11], s60 offen{nt} lds")
            if p < 15: a("s_addk_i32 s59, 0x1000")
            n += 1; after(n)
        self.setflag(F_VI); self.stamp(3)
        assert st["landed"] >= 20
        c("PV: address prep")
        a(f"s_add_u32 s55, s55, {VL}")
        self.tr_addr(12, "s55", 16)
        a(f"""v_bfe_u32 v20, v0, 2, 1
        v_lshlrev_b32 v22, 6, v20
        v_lshl_add_u32 v22, v7, 4, v22
        v_add_u32 v22, {SP}, v22
        v_mov_b32 v21, {ZR}
        v_and_b32 v23, 11, v0""")
        for i in range(4):
            a(f"v_cmp_eq_u32 vcc, {i}, v23\ns_nop 1\nv_cndmask_b32 v{16+i}, v21, v22, vcc")
        a(f"""v_and_b32 v28, 15, v0
        v_lshlrev_b32 v28, 3, v28
        v_lshl_add_u32 v28, v7, 12, v28
        s_lshl_b32 s56, s48, 2
        s_add_u32 s56, s56, s50
        s_lshl_b32 s56, s56, 13
        s_lshr_b32 s57, s49, 4
        s_lshl_b32 s57, s57, 11
        s_add_u32 s56, s56, s57
        s_and_b32 s57, s49, 3
        s_lshl_b32 s57, s57, 9
        s_add_u32 s56, s56, s57
        s_bfe_u32 s57, s49, 0x20002
        s_lshl_b32 s57, s57, 7
        s_add_u32 s56, s56, s57
        s_add_u32 s56, s56, {OP}""")
        if 'sa' not in self.skip: self.waitflag(F_P)
        self.stamp(4)
        for ks in range(4):
            for i in range(4):
                r = 64 + (ks*4 + i)*4
                a(f"ds_read_b128 v[{r}:{r+3}], v{16+i} offset:{ks*128}")
        for ks in range(4):
            for half in range(2):
                rem = 16 - (4*ks + 2*half + 2)
                if rem < 36 - st['landed']: a(f"s_waitcnt vmcnt({rem})")
                if ks == 3 and half == 1: self.stamp(5)
                for i in range(4):
                    r = 32 + (ks & 1)*16 + i*4 + half*2
                    a(f"ds_read_b64_tr_b16 v[{r}:{r+1}], v{12+i} offset:{ks*4096 + half*2048}")
            for i in range(4):
                a(f"s_waitcnt lgkmcnt({3-i})")
                rb = 32 + (ks & 1)*16 + i*4; ra = 64 + (ks*4 + i)*4
                cin = "0" if (ks == 0 and i == 0) else "v[128:131]"
                a(f"v_mfma_f32_16x16x32_bf16 v[128:131], v[{ra}:{ra+3}], v[{rb}:{rb+3}], {cin}")
        a("""s_mov_b32 exec_hi, 0
        s_nop 6
        v_cvt_pk_bf16_f32 v24, v128, v129
        v_cvt_pk_bf16_f32 v25, v130, v131
        v_min_u32 v24, -2, v24
        buffer_store_dwordx2 v[24:25], v28, s[16:19], s56 offen sc1
        s_mov_b32 exec_hi, -1""")
        self.setflag(F_PV)
        self.stamp(6)
        a("s_cmp_ge_u32 s49, 14\ns_cbranch_scc1 L_exit\ns_barrier\ns_branch L_exit")

    def swave_head(self):
        a, c = self.a, self.c
        c("================= S-wave head: clears / code prefetch =================")
        a("L_shead:\ns_cmp_eq_u32 s50, 0\ns_cbranch_scc0 L_swave")
        if 'touch' in self.skip:
            c("touch every page used later (address-translation warm-up) through the scalar path")
            a(f"""s_load_dwordx2 s[28:29], s[0:1], 32
            s_load_dwordx8 s[32:39], s[0:1], 48
            s_load_dwordx2 s[40:41], s[0:1], 80
            s_and_b32 s56, s2, 31
            s_lshl_b32 s56, s56, 21
            s_add_u32 s56, s56, {3072*512}
            s_mul_i32 s57, s48, {512*896}
            s_add_u32 s58, s57, {512*896-64}
            s_mov_b32 s59, {448*3584-64}
            s_waitcnt lgkmcnt(0)
            s_load_dword s60, s[8:9], s56
            s_load_dword s61, s[28:29], s57
            s_load_dword s62, s[28:29], s58
            s_load_dword s63, s[32:33], 0
            s_load_dword s64, s[32:33], s59
            s_load_dword s65, s[34:35], 0
            s_load_dword s66, s[36:37], 0
            s_load_dword s67, s[36:37], s59
            s_load_dword s68, s[38:39], 0
            s_load_dword s69, s[40:41], 0""")
        a(f"""v_mov_b32 v8, -1
        v_mov_b32 v9, -1
        v_mov_b32 v10, -1
        v_mov_b32 v11, -1
        v_mov_b32 v12, 0
        v_mov_b32 v13, 0
        v_lshlrev_b32 v15, 3, v0
        s_lshl_b32 s52, s48, 5
        s_add_u32 s52, s52, s49
        s_lshl_b32 s52, s52, 10
        s_add_u32 s52, s52, {OP}
        v_lshlrev_b32 v14, 4, v0
        s_lshl_b32 s53, s48, 2
        s_and_b32 s54, s49, 3
        s_add_u32 s53, s53, s54
        s_lshl_b32 s53, s53, 10
        s_lshr_b32 s54, s2, 5
        s_lshl_b32 s54, s54, 7
        s_add_u32 s53, s53, s54
        s_add_u32 s53, s53, {STAT}
        s_lshl_b32 s55, s2, 6
        s_add_u32 s55, s55, {HACC}
        {'s_waitcnt lgkmcnt(0)' if 'touch' not in self.skip else ''}
        {'s_branch L_nopart' if 'clr' in self.skip else ''}
        buffer_store_dwordx4 v[8:11], v14, s[16:19], s52 offen sc1
        s_mov_b64 exec, 0xff
        buffer_store_dwordx2 v[12:13], v15, s[16:19], s55 offen sc1
        s_mov_b64 exec, 3
        buffer_store_dwordx2 v[8:9], v15, s[16:19], s53 offen sc1
        s_mov_b64 exec, -1
        s_sub_u32 s54, s49, 21
        s_cmp_lt_u32 s54, 7
        s_cbranch_scc0 L_nopart
        s_mul_i32 s55, s48, 7
        s_add_u32 s55, s55, s54
        s_lshl_b32 s55, s55, 7
        s_add_u32 s55, s55, {PART}
        v_mul_u32_u24 v14, 7168, v6
        v_and_b32 v16, 7, v0
        v_lshl_add_u32 v14, v16, 4, v14""")
        for i in range(7):
            a(f"buffer_store_dwordx4 v[8:11], v14, s[16:19], s55 offen sc1")
            if i < 6: a(f"s_add_u32 s55, s55, {8*7168}")
        a("L_nopart:\ns_waitcnt vmcnt(0)")
        self.setflag(F_CLR, "v3")
        a("s_waitcnt lgkmcnt(0)\ns_branch L_swave")

    def dpp_allred16(self, op, regs):
        for rot in (8, 4, 2, 1):
            for r in regs:
                self.a(f"{op}_dpp v{r}, v{r}, v{r} row_ror:{rot} row_mask:0xf bank_mask:0xf")
            self.a("s_nop %d" % max(0, 2 - len(regs)))

    def ahead(self):
        a, c = self.a, self.c
        c("A-wave head: x loads first")
        a(f"""s_setprio 3
        v_and_b32 v12, 15, v0
        v_mul_u32_u24 v13, 896, v7
        v_lshl_add_u32 v13, v12, 3, v13
        s_lshr_b32 s52, s49, 3
        s_lshl_b32 s53, s52, 8
        s_mov_b32 s54, {EPO}
        s_waitcnt lgkmcnt(0)""")
        for i in range(7):
            a(f"buffer_load_dwordx2 v[{16+2*i}:{17+2*i}], v13, s[20:23], 0 offen offset:{i*128}")
        a("buffer_load_dwordx2 v[30:31], v13, s[20:23], s53 offen\nbuffer_load_dwordx2 v[32:33], v13, s[20:23], s53 offen offset:128")
        a("buffer_load_dword v110, v8, s[16:19], s54 offen sc1\ns_branch L_awave")

    def awave(self):
        self.cur = 'A'
        a, c = self.a, self.c
        c("================= A-wave: LN1, q partial, q gather, softmax, stats =================")
        a("L_awave:")
        a(f"s_mov_b32 s54, {WQL}")
        self.tr_addr(100, "s54", 104)
        a(f"""v_bfe_u32 v104, v0, 2, 2
        v_lshlrev_b32 v104, 8, v104
        v_lshl_add_u32 v104, v7, 3, v104
        v_add_u32 v104, {XN}, v104
        v_lshlrev_b32 v105, 8, v7
        v_lshl_add_u32 v105, v12, 3, v105
        v_lshlrev_b32 v106, 14, v7
        v_lshl_add_u32 v106, v12, 4, v106
        v_lshlrev_b32 v108, 4, v0
        s_mov_b32 s60, 0xffff0000
        s_waitcnt vmcnt(1)""")
        self.stamp(1)
        c("unpack x (28 values: v36..v63), own 8 values v64..71")
        for i in range(14):
            a(f"v_lshlrev_b32 v{36+2*i}, 16, v{16+i}\nv_and_b32 v{37+2*i}, s60, v{16+i}")
        for i in range(4):
            a(f"v_lshlrev_b32 v{64+2*i}, 16, v{30+i}\nv_and_b32 v{65+2*i}, s60, v{30+i}")
        a("v_add_f32 v72, v36, v37\nv_add_f32 v73, v38, v39")
        for i in range(2, 14):
            a(f"v_add_f32 v72, v72, v{36+2*i}\nv_add_f32 v73, v73, v{37+2*i}")
        a("v_add_f32 v72, v72, v73\ns_nop 1")
        self.dpp_allred16("v_add_f32", [72])
        a(f"v_mul_f32 v72, {hex(f2u(1/448))}, v72")
        a("v_mov_b32 v73, 0\nv_mov_b32 v74, 0")
        for i in range(14):
            a(f"v_sub_f32 v75, v{36+2*i}, v72\nv_sub_f32 v76, v{37+2*i}, v72\nv_fmac_f32 v73, v75, v75\nv_fmac_f32 v74, v76, v76")
        a("v_add_f32 v73, v73, v74\ns_nop 1")
        self.dpp_allred16("v_add_f32", [73])
        a(f"""v_mul_f32 v73, {hex(f2u(1/448))}, v73
        v_cvt_pk_bf16_f32 v74, v72, v73
        v_lshlrev_b32 v72, 16, v74
        v_and_b32 v73, s60, v74
        v_add_f32 v73, {hex(f2u(1e-5))}, v73
        v_cvt_pk_bf16_f32 v73, v73, v73
        v_and_b32 v73, s60, v73
        v_sqrt_f32 v73, v73
        s_nop 0
        v_cvt_pk_bf16_f32 v73, v73, v73
        v_and_b32 v73, s60, v73
        v_rcp_f32 v73, v73""")
        for i in range(4):
            a(f"""v_sub_f32 v{64+2*i}, v{64+2*i}, v72
            v_sub_f32 v{65+2*i}, v{65+2*i}, v72
            v_cvt_pk_bf16_f32 v74, v{64+2*i}, v{65+2*i}
            v_lshlrev_b32 v75, 16, v74
            v_and_b32 v76, s60, v74
            v_mul_f32 v75, v75, v73
            v_mul_f32 v76, v76, v73
            v_cvt_pk_bf16_f32 v{30+i}, v75, v76""")
        a(f"ds_write_b64 v105, v[30:31] offset:{XN}\nds_write_b64 v105, v[32:33] offset:{XN+128}")
        for ks in range(4):
            a(f"ds_read2_b64 v[{16+4*ks}:{19+4*ks}], v104 offset0:{ks*8} offset1:{ks*8+4}")
        self.stamp(2)
        self.waitflag(F_WQ, n=4, t="v96")
        self.stamp(3)
        for ks in range(4):
            for i in range(4):
                for half in range(2):
                    r = 32 + (ks*4 + i)*4 + half*2
                    a(f"ds_read_b64_tr_b16 v[{r}:{r+1}], v{100+i} offset:{ks*4096 + half*2048}")
            if ks & 1:
                a("s_waitcnt lgkmcnt(0)")
                for k2 in (ks-1, ks):
                    for i in range(4):
                        r = 32 + (k2*4 + i)*4; d = 112 + 4*i
                        cin = "0" if k2 == 0 else f"v[{d}:{d+3}]"
                        a(f"v_mfma_f32_16x16x32_bf16 v[{d}:{d+3}], v[{16+4*k2}:{19+4*k2}], v[{r}:{r+3}], {cin}")
        self.waitflag(F_CLR)
        self.stamp(4)
        a(f"""s_waitcnt vmcnt(0)
        v_add_u32 v110, 1, v110
        s_mov_b32 s56, 0x07060500
        s_mov_b32 s57, 0x07060501
        s_mov_b32 s58, 0x07060502
        s_mov_b32 s59, 0x07060503
        ds_write_b32 v3, v110 offset:{F_TAG}
        v_perm_b32 v112, v112, v110, s56
        v_perm_b32 v113, v116, v110, s57
        v_perm_b32 v114, v120, v110, s58
        v_perm_b32 v115, v124, v110, s59
        v_lshrrev_b32 v116, 8, v110
        v_lshrrev_b32 v117, 16, v110
        v_lshrrev_b32 v118, 24, v110
        s_lshl_b32 s53, s52, 16
        s_lshl_b32 s54, s48, 11
        s_add_u32 s53, s53, s54
        s_and_b32 s55, s49, 7
        s_lshl_b32 s55, s55, 8
        s_add_u32 s53, s53, s55
        {'' if 'qx' in self.skip else 'buffer_store_dwordx4 v[112:115], v106, s[16:19], s53 offen sc1'}
        s_and_b32 s55, s49, 3
        s_lshl_b32 s55, s55, 14
        s_add_u32 s54, s54, s55
        s_add_u32 s55, s54, 0x10000
        s_add_u32 s56, s54, 0x20000
        s_add_u32 s57, s54, 0x30000""")
        a("s_waitcnt vmcnt(0)")
        if self.qd: a(f"s_sleep {self.qd}")
        self.stamp(9)
        c("q gather")
        tg = [110, 116, 117, 118]
        if 'qx' in self.skip: a("s_branch L_qgskip")
        a("L_qg:")
        for rg in range(4):
            for z in range(2):
                r = 16 + (rg*2 + z)*4
                a(f"buffer_load_dwordx4 v[{r}:{r+3}], v108, s[16:19], s{54+rg} offen offset:{z*1024} sc1")
        a(f"s_waitcnt vmcnt(0)\nv_xor_b32 v8, v16, v110")
        for k in range(1, 32):
            a(f"v_bitop3_b32 v8, v8, v{16+k}, v{tg[k & 3]} bitop3:0xf6")
        a("v_and_b32 v8, 0xff, v8\nv_cmp_ne_u32 vcc, 0, v8")
        self.retry("L_qg")
        a("L_qgskip:")
        for k in range(8):
            a(f"v_add_f32 v{80+k}, v{16+k}, v{24+k}\nv_add_f32 v{88+k}, v{32+k}, v{40+k}")
        self.stamp(5)
        for k in range(8):
            a(f"v_add_f32 v{80+k}, v{80+k}, v{88+k}")
        a(f"v_lshlrev_b32 v9, 7, v7\nv_lshl_add_u32 v9, v12, 1, v9")
        for k in range(4):
            a(f"v_cvt_pk_bf16_f32 v{88+k}, v{80+2*k}, v{81+2*k}")
        for k in range(4):
            z = k >> 1; i = (k & 1)*2
            a(f"ds_write_b16 v9, v{88+k} offset:{QB + z*512 + i*32}\nds_write_b16_d16_hi v9, v{88+k} offset:{QB + z*512 + i*32 + 32}")
        self.setflag(F_Q, "v3")
        a(f"""s_cmp_lg_u32 s49, 31
        s_cbranch_scc1 L_nogr
        s_lshl_b32 s53, s48, 2
        s_add_u32 s53, s53, {GR}
        s_mov_b64 exec, 1
        buffer_store_dword v110, v108, s[16:19], s53 offen sc1
        s_mov_b64 exec, -1
        L_nogr:""")
        c("softmax over the 128 local keys, 2 heads")
        a(f"""s_lshl_b32 s53, s48, 2
        s_and_b32 s54, s49, 3
        s_add_u32 s53, s53, s54
        s_lshl_b32 s53, s53, 10
        s_add_u32 s53, s53, {STAT}
        s_lshr_b32 s54, s2, 5
        s_lshl_b32 s54, s54, 7
        s_add_u32 s54, s54, s53
        s_mov_b32 s61, {hex(f2u(1.4426950408889634/16))}
        v_and_b32 v30, 8, v0
        """)
        self.waitflag(F_S, n=4, t="v96", sleep=False)
        self.stamp(6)
        a(f"""ds_read_b64 v[16:17], v10 offset:{SP}
        s_waitcnt lgkmcnt(0)
        v_lshlrev_b32 v18, 16, v16
        v_and_b32 v19, s60, v16
        v_lshlrev_b32 v20, 16, v17
        v_and_b32 v21, s60, v17
        v_max_f32 v22, v18, v19
        v_max3_f32 v22, v22, v20, v21""")
        def red8x4(op, r, t):
            a(f"""s_nop 1
            {op}_dpp v{r}, v{r}, v{r} quad_perm:[1,0,3,2] row_mask:0xf bank_mask:0xf
            s_nop 1
            {op}_dpp v{r}, v{r}, v{r} quad_perm:[2,3,0,1] row_mask:0xf bank_mask:0xf
            s_nop 1
            {op}_dpp v{r}, v{r}, v{r} row_half_mirror row_mask:0xf bank_mask:0xf
            v_mov_b32 v{t}, v{r}
            s_nop 1
            v_permlane16_swap_b32 v{r}, v{t}
            {op} v{r}, v{r}, v{t}
            v_mov_b32 v{t}, v{r}
            s_nop 1
            v_permlane32_swap_b32 v{r}, v{t}
            {op} v{r}, v{r}, v{t}""")
        red8x4("v_max_f32", 22, 24)
        for k in range(4):
            a(f"v_sub_f32 v{18+k}, v{18+k}, v22\nv_mul_f32 v{18+k}, s61, v{18+k}\nv_exp_f32 v{18+k}, v{18+k}")
        a(f"""s_nop 0
        v_cvt_pk_bf16_f32 v16, v18, v19
        v_cvt_pk_bf16_f32 v17, v20, v21
        ds_write_b64 v10, v[16:17] offset:{SP}""")
        self.setflag(F_P, "v3")
        a("v_add_f32 v23, v18, v19\nv_add_f32 v24, v20, v21\nv_add_f32 v23, v23, v24")
        red8x4("v_add_f32", 23, 24)
        a(f"""v_min_u32 v23, -2, v23
        s_mov_b64 exec, 0x180
        buffer_store_dwordx2 v[22:23], v30, s[16:19], s54 offen sc1
        """)
        self.stamp(7)
        a("s_branch L_exit")

    def swave(self):
        self.cur = 'S'
        a, c = self.a, self.c
        c("================= S-wave: scores =================")
        a("L_swave:")
        a(f"""v_and_b32 v12, 15, v0
        v_xor_b32 v13, v7, v12
        v_lshlrev_b32 v13, 4, v13
        v_lshl_add_u32 v13, v12, 9, v13
        s_lshl_b32 s55, s50, 14
        s_add_u32 s55, s55, {KL}
        v_add_u32 v13, s55, v13
        v_xor_b32 v14, 64, v13
        v_xor_b32 v15, 0x80, v13
        v_xor_b32 v16, 0xc0, v13
        v_and_b32 v17, 1, v0
        v_lshlrev_b32 v18, 9, v17
        v_lshl_add_u32 v18, v7, 4, v18
        v_lshlrev_b32 v17, 6, v17
        v_lshl_add_u32 v17, v7, 4, v17
        s_lshl_b32 s56, s50, 7
        v_add_u32 v17, s56, v17""")
        c("weights prefetch addresses: u=0,1 wo ; u=2 w2 ; u=3 w1")
        self.srd(28, 32, 4096*896)
        self.srd(32, 64, 1792*896)
        self.srd(36, 48, 448*3584)
        self.pf_wo()
        self.waitflag(F_Q)
        self.stamp(2)
        a(f"ds_read_b32 v164, v3 offset:{F_TAG}")
        for ks in range(8):
            a(f"ds_read_b128 v[{32+4*ks}:{35+4*ks}], v18 offset:{QB + ks*64}")
        a("s_lshl_b32 s56, s50, 4\nv_add_u32 v19, s56, v3")
        self.waitflag(F_KL, "v19", n=4)
        self.stamp(1)
        for ks in range(8):
            for T in range(2):
                r = 64 + (T*8 + ks)*4
                a(f"ds_read_b128 v[{r}:{r+3}], v{13 + (ks & 3)} offset:{(ks >> 2)*256 + T*8192}")
        for ks in range(8):
            for T in range(2):
                if 15 - 2*ks - T <= 14: a(f"s_waitcnt lgkmcnt({15 - 2*ks - T})")
                else: a("s_waitcnt lgkmcnt(14)")
                r = 64 + (T*8 + ks)*4; d = 20 + 4*T
                cin = "0" if ks == 0 else f"v[{d}:{d+3}]"
                a(f"v_mfma_f32_16x16x32_bf16 v[{d}:{d+3}], v[{r}:{r+3}], v[{32+4*ks}:{35+4*ks}], {cin}")
        a("s_nop 7")
        for k in range(4):
            a(f"v_cvt_pk_bf16_f32 v{28+k}, v{20+2*k}, v{21+2*k}")
        a(f"""s_mov_b32 exec_lo, 0x00030003
        s_mov_b32 exec_hi, 0x00030003
        ds_write_b128 v17, v[28:31] offset:{SP}
        s_mov_b64 exec, -1""")
        self.setflag(F_S)
        self.stamp(3)
        if 'roles' in self.skip: a("s_branch L_exit")
        a("""v_readfirstlane_b32 s70, v164
        s_cmp_lt_u32 s49, 14
        s_cbranch_scc1 L_wo
        s_mov_b32 s71, s70""")
        if 'nomlp' in self.skip: a("s_branch L_exit")
        if 'nomlpwg' in self.skip: a("s_cmp_lt_u32 s49, 21\ns_cbranch_scc1 L_exit")
        a("""s_cmp_lt_u32 s49, 21
        s_cbranch_scc1 L_mlp""")
        if self.pw != 'none': self.pf_w()
        if 'nofin' in self.skip: a("s_branch L_exit")
        a("""s_cmp_lt_u32 s49, 28
        s_cbranch_scc0 L_exit
        s_cmp_ge_u32 s50, 2
        s_cbranch_scc1 L_fin
        s_branch L_exit""")

    def pf_w(self, early=False):
        a = self.a
        l3 = self.lab("PF"); ld = self.lab("PD")
        if early:
            a(f"s_mov_b32 s67, s49\ns_bitcmp1_b32 s50, 0\ns_cbranch_scc1 {ld}")
            self.waitflag(F_KL + 16*min(3, self.pft + 1), "v2")
        else:
            a(f"""s_sub_u32 s67, s49, 16
            s_lshl_b32 s67, s67, 1
            s_and_b32 s66, s50, 1
            s_add_u32 s67, s67, s66""")
            self.waitflag(F_PV if self.pw == 'pv' else F_VI, "v2")
        a(f"""s_cmp_lt_u32 s50, 2
        s_cbranch_scc0 {l3}
        v_lshlrev_b32 v8, 7, v0
        s_lshl_b32 s66, s48, 5
        s_add_u32 s66, s66, s67
        s_mul_i32 s66, s66, 6272
        s_mov_b32 exec_hi, 0x0001ffff""")
        self.pf(32, "s66")
        a(f"""s_branch {ld}
        {l3}:
        v_lshrrev_b32 v8, 2, v0
        v_mul_u32_u24 v8, 3584, v8
        v_and_b32 v11, 3, v0
        v_lshl_add_u32 v8, v11, 7, v8
        s_mul_i32 s66, s67, {14*3584}
        s_mul_i32 s67, s48, 448
        s_andn2_b32 s67, s67, 127
        s_add_u32 s66, s66, s67
        s_mov_b32 exec_hi, 0x00ffffff""")
        self.pf(36, "s66")
        a(f"{ld}:\ns_mov_b32 exec_hi, -1")

    def pf(self, srd, so):
        ntw = (" " + self.ntp) if self.ntp else ""
        self.a(f"buffer_load_dword v165, v8, s[{srd}:{srd+3}], {so} offen{ntw}")
    def pf_wo(self, early=False):
        a = self.a
        a(f"""s_lshl_b32 s66, s48, 5
        s_add_u32 s66, s66, s49
        s_lshl_b32 s66, s66, 2
        s_add_u32 s66, s66, s50
        s_mul_i32 s66, s66, 3584""")
        self.waitflag(F_WQ if self.pft < 0 else F_KL + 16*self.pft, "v2")
        a("v_lshlrev_b32 v8, 7, v0\ns_mov_b64 exec, 0x0fffffff")
        self.pf(28, "s66")
        a("s_mov_b64 exec, -1")

    def role_wo(self):
        self.cur = 'WO'
        a, c = self.a, self.c; ntw = (" " + self.ntw) if self.ntw else ""
        c("================= role WO =================")
        a("L_wo:")
        a(f"""s_cmp_ge_u32 s49, 7
        s_cselect_b32 s52, 1, 0
        s_mul_i32 s53, s52, 7
        s_sub_u32 s53, s49, s53
        s_lshr_b32 s68, s50, 1
        s_and_b32 s69, s50, 1
        s_lshl_b32 s56, s52, 1
        s_add_u32 s69, s69, s56
        s_lshl_b32 s54, s48, 1
        s_add_u32 s54, s54, s68
        s_lshl_b32 s54, s54, 2
        s_add_u32 s54, s54, s69
        s_mul_i32 s54, s54, {64*896}
        s_lshl_b32 s56, s53, 7
        s_add_u32 s54, s54, s56
        v_and_b32 v20, 3, v6
        v_lshlrev_b32 v20, 4, v20
        v_lshrrev_b32 v21, 5, v0
        v_lshl_add_u32 v20, v21, 1, v20
        v_mul_u32_u24 v20, 896, v20
        v_add_u32 v20, v20, v5
        s_mov_b32 m0, s55""")
        self.tr_addr(160, "s55", 21)
        a(f"""v_xor_b32 v21, v0, v6
        v_lshlrev_b32 v21, 4, v21
        v_and_b32 v22, 7, v0
        v_xor_b32 v12, v7, v22
        v_lshlrev_b32 v12, 4, v12
        v_and_b32 v22, 15, v0
        v_lshl_add_u32 v12, v22, 7, v12
        s_add_u32 s72, s55, 8192
        v_add_u32 v12, s72, v12
        v_xor_b32 v13, 64, v12
        v_and_b32 v22, 3, v0
        s_lshl_b32 s57, s48, 2
        s_add_u32 s57, s57, s69
        s_lshl_b32 s57, s57, 1
        s_add_u32 s57, s57, s68
        s_lshl_b32 s57, s57, 12
        s_add_u32 s57, s57, {OP}
        v_lshrrev_b32 v18, 1, v0
        v_lshlrev_b32 v18, 7, v18
        s_lshl_b32 s59, s48, 12
        s_lshl_b32 s56, s68, 3
        s_add_u32 s59, s59, s56
        s_add_u32 s59, s59, {STAT}
        s_mov_b32 s69, {hex(f2u(1.4426950408889634/16))}
        s_lshl_b32 s56, s50, 10
        v_lshlrev_b32 v23, 2, v0
        v_add_u32 v24, s56, v23
        v_add_u32 v24, {RED}, v24""")
        a(f"""v_lshrrev_b32 v25, 5, v0
        v_lshlrev_b32 v25, 8, v25
        v_bfe_u32 v26, v0, 2, 3
        v_lshl_add_u32 v25, v26, 3, v25
        v_and_b32 v26, 1, v0
        v_lshl_add_u32 v25, v26, 2, v25
        s_lshl_b32 s56, s50, 6
        s_add_u32 s56, s56, {RED}
        v_add_u32 v25, s56, v25
        v_cmp_eq_u32 vcc, 2, v22
        v_mov_b32 v26, 1.0
        s_lshl_b32 s58, s50, 12
        v_cndmask_b32 v26, 0, v26, vcc
        s_lshl_b32 s56, s53, 9
        s_add_u32 s58, s58, s56
        s_add_u32 s58, s58, {HACC}
        v_mov_b32 v27, v26""")
        a(f"""v_and_b32 v29, 28, v23
        s_mov_b32 s61, {GR}
        v_lshlrev_b32 v30, 7, v0
        s_lshl_b32 s60, s48, 2
        s_add_u32 s60, s60, {EW}
        s_or_b32 s62, s49, s50
        s_cmp_eq_u32 s62, 0
        s_cselect_b32 s62, -1, 0
        s_cselect_b32 s63, 0x00ffffff, 0""")
        self.waitflag(F_VI, n=4, t="v8")
        for p in range(8):
            rows = 4*(p & 1) + ((p >> 1) & 1) + 8*(p >> 2)
            a(f"s_add_u32 m0, s55, {p*1024}\ns_add_u32 s56, s54, {rows*896}")
            a(f"buffer_load_dwordx4 v20, s[28:31], s56 offen{ntw} lds")
            if p + 1 >= self.ww and p < 7: a(f"s_waitcnt vmcnt({self.ww - 1})")
        a("buffer_load_dwordx2 v[16:17], v18, s[16:19], s59 offen sc1\nbuffer_load_dword v31, v29, s[16:19], s61 offen sc1")
        a("s_waitcnt vmcnt(2)")
        self.stamp(4)
        for z in range(2):
            for i in range(4):
                for half in range(2):
                    r = 128 + (z*4 + i)*4 + half*2
                    a(f"ds_read_b64_tr_b16 v[{r}:{r+1}], v{160+i} offset:{z*4096 + half*2048}")
        a("s_waitcnt vmcnt(1)\nv_cmp_eq_u32 vcc, -1, v17\ns_cbranch_vccnz L_stwait\nL_stok:")
        c("combine weights w[b][h][j] = exp(m_j - M) / L")
        a("v_mov_b32 v19, v16\ns_nop 1")
        for rot in (8, 4, 2):
            a(f"v_max_f32_dpp v19, v19, v19 row_ror:{rot} row_mask:0xf bank_mask:0xf\ns_nop 1")
        a("v_sub_f32 v16, v16, v19\nv_mul_f32 v16, s69, v16\nv_exp_f32 v16, v16\ns_nop 0\nv_mul_f32 v17, v17, v16\ns_nop 1")
        for rot in (8, 4, 2):
            a(f"v_add_f32_dpp v17, v17, v17 row_ror:{rot} row_mask:0xf bank_mask:0xf\ns_nop 1")
        a("v_rcp_f32 v17, v17\ns_nop 0\nv_mul_f32 v16, v16, v17\ns_nop 1")
        for j in range(8):
            a(f"v_mov_b32_dpp v{96+j}, v16 row_newbcast:{2*j} row_mask:0xf bank_mask:0xf")
        self.waitflag(F_PV, n=4, t="v8", sleep=False)
        if self.od: a(f"s_sleep {self.od}")
        l = self.lab("OP")
        a(f"s_mov_b32 m0, s72\n{l}:\ns_nop 0")
        for q in range(4):
            a(f"buffer_load_dwordx4 v21, s[16:19], s57 offen offset:{q*1024} sc1 lds")
        a("s_waitcnt vmcnt(0)")
        for z in range(2):
            for st_ in range(2):
                r = 32 + (z*2 + st_)*4
                a(f"ds_read_b128 v[{r}:{r+3}], v{12+z} offset:{st_*2048}")
        a("s_waitcnt lgkmcnt(0)\nv_max3_u32 v28, v32, v34, v36\nv_max3_u32 v14, v38, v40, v42\nv_max3_u32 v28, v28, v44, v46\nv_max_u32 v28, v28, v14\nv_cmp_eq_u32 vcc, -1, v28")
        self.retry(l)
        def ew(k):
            if self.ewp == k:
                a("s_mov_b64 exec, s[62:63]"); c("NOPAD_ON"); a("buffer_store_dword v164, v30, s[16:19], s60 offen sc1\ns_mov_b64 exec, -1"); c("NOPAD_OFF")
        ew(0)
        self.stamp(5)
        a("s_waitcnt lgkmcnt(0)")
        def fm(i):
            for st_ in range(2):
                d = 64 + (i*2 + st_)*4
                for r in range(4):
                    if st_ == 0 and r == 0: a(f"v_mul_f32 v{48+4*i}, v{d}, v96")
                    else: a(f"v_fmac_f32 v{48+4*i}, v{d+r}, v{96+4*st_+r}")
        for i in range(4):
            for z in range(2):
                for st_ in range(2):
                    d = 64 + (i*2 + st_)*4; ra = 32 + (z*2 + st_)*4; rb = 128 + (z*4 + i)*4
                    cin = "0" if z == 0 else f"v[{d}:{d+3}]"
                    a(f"v_mfma_f32_16x16x32_bf16 v[{d}:{d+3}], v[{ra}:{ra+3}], v[{rb}:{rb+3}], {cin}")
            if i == 2: fm(0)
        fm(1)
        a("ds_write2st64_b32 v24, v48, v52 offset0:0 offset1:1")
        fm(2)
        a("v_cmp_ne_u32 vcc, v31, v164")
        fm(3)
        a("ds_write2st64_b32 v24, v56, v60 offset0:2 offset1:3")
        a("s_cbranch_vccnz L_grwait\nL_grok:")
        ew(1)
        a("s_waitcnt lgkmcnt(0)\ns_barrier")
        ew(2)
        a("""ds_read2st64_b32 v[32:33], v25 offset0:0 offset1:4
        ds_read2st64_b32 v[34:35], v25 offset0:8 offset1:12
        ds_read2st64_b32 v[36:37], v25 offset0:2 offset1:6
        ds_read2st64_b32 v[38:39], v25 offset0:10 offset1:14
        s_mov_b32 exec_lo, 0x33333333
        s_mov_b32 exec_hi, 0x33333333
        s_waitcnt lgkmcnt(2)
        v_add_f32 v32, v32, v33
        v_add_f32 v34, v34, v35
        v_add_f32 v26, v32, v34
        s_waitcnt lgkmcnt(0)
        v_add_f32 v36, v36, v37
        v_add_f32 v38, v38, v39
        v_add_f32 v27, v36, v38
        s_mov_b64 exec, -1
        buffer_atomic_add_f32 v26, v23, s[16:19], s58 offen
        buffer_atomic_add_f32 v27, v23, s[16:19], s58 offen offset:256""")
        self.stamp(6)
        a("s_branch L_exit")
        a("L_grwait:\nbuffer_load_dword v31, v29, s[16:19], s61 offen sc1\ns_waitcnt vmcnt(0)\nv_cmp_ne_u32 vcc, v31, v164")
        self.retry("L_grwait")
        a("s_branch L_grok")
        a("L_stwait:\ns_sleep 4\nbuffer_load_dwordx2 v[16:17], v18, s[16:19], s59 offen sc1\ns_waitcnt vmcnt(0)\nv_cmp_eq_u32 vcc, -1, v17")
        self.retry("L_stwait")
        a("s_branch L_stok")

    def wave_sum2(self, r0, r1, s0, s1):
        a = self.a
        for ctl in ("row_shr:1", "row_shr:2", "row_shr:4", "row_shr:8"):
            a(f"v_add_f32_dpp v{r0}, v{r0}, v{r0} {ctl} row_mask:0xf bank_mask:0xf bound_ctrl:0" if False else
              f"v_add_f32_dpp v{r0}, v{r0}, v{r0} {ctl.replace('shr','ror')} row_mask:0xf bank_mask:0xf")
            a(f"v_add_f32_dpp v{r1}, v{r1}, v{r1} {ctl.replace('shr','ror')} row_mask:0xf bank_mask:0xf\ns_nop 0")
        a(f"v_add_f32_dpp v{r0}, v{r0}, v{r0} row_bcast:15 row_mask:0xa bank_mask:0xf")
        a(f"v_add_f32_dpp v{r1}, v{r1}, v{r1} row_bcast:15 row_mask:0xa bank_mask:0xf\ns_nop 0")
        a(f"v_add_f32_dpp v{r0}, v{r0}, v{r0} row_bcast:31 row_mask:0xc bank_mask:0xf")
        a(f"v_add_f32_dpp v{r1}, v{r1}, v{r1} row_bcast:31 row_mask:0xc bank_mask:0xf")
        a(f"v_readlane_b32 s{s0}, v{r0}, 63\nv_readlane_b32 s{s1}, v{r1}, 63\ns_nop 1")

    def ew_gate(self, va):
        a = self.a
        l = self.lab("EW")
        a(f"v_lshlrev_b32 v{va}, 7, v12\ns_mov_b32 s63, {EW}")
        a(f"{l}:\nbuffer_load_dword v8, v{va}, s[16:19], s63 offen sc1\ns_waitcnt vmcnt(0)\nv_cmp_ne_u32 vcc, v8, v164")
        self.retry(l)

    def role_mlp(self):
        self.cur = 'MLP'
        a, c = self.a, self.c; ntw = (" " + self.ntw) if self.ntw else ""
        c("================= role MLP =================")
        a("L_mlp:")
        self.srd(40, 56, 3584)
        a(f"""s_mul_i32 s52, s48, 7
        s_add_u32 s52, s52, s49
        s_sub_u32 s52, s52, 14
        v_lshrrev_b32 v20, 2, v0
        v_mul_u32_u24 v20, 3584, v20
        v_and_b32 v22, 3, v0
        v_lshl_add_u32 v20, v22, 4, v20
        v_lshlrev_b32 v21, 4, v0
        s_mul_i32 s53, s50, {7*16*3584}
        s_lshl_b32 s54, s52, 6
        s_add_u32 s53, s53, s54
        s_mul_i32 s56, s52, {32*896}
        s_mul_i32 s57, s50, 7168
        s_add_u32 s56, s56, s57
        v_lshlrev_b32 v23, 2, v0
        s_mul_i32 s57, s50, 896
        s_lshl_b32 s58, s50, 5
        s_add_u32 s54, s54, s58
        v_lshlrev_b32 v24, 1, v12
        s_waitcnt lgkmcnt(0)""")
        c("x row (residual) and b1")
        for i in range(8): a(f"v_mov_b32 v{40+i}, 0")
        for i in range(16): a(f"v_mov_b32 v{48+i}, 0")
        a("s_mov_b32 exec_hi, 0x00ffffff")
        for i in range(4):
            a(f"buffer_load_dword v{36+i}, v23, s[20:23], s57 offen offset:{i*224}")
        a("s_mov_b32 exec_hi, -1\nbuffer_load_ushort v28, v24, s[40:43], s54 offen")
        a(f"s_add_u32 s57, s57, {YL}")
        for i in range(4):
            a(f"""v_add_u32 v25, {56*i}, v0
            v_lshrrev_b32 v26, 4, v25
            v_lshlrev_b32 v26, 6, v26
            v_bfe_u32 v27, v25, 1, 2
            v_lshl_add_u32 v26, v27, 4, v26
            v_and_b32 v27, 8, v25
            v_add_u32 v26, v26, v27
            v_and_b32 v27, 1, v25
            v_lshl_add_u32 v26, v27, 2, v26
            v_add_u32 v{32+i}, s57, v26""")
        a("s_mov_b32 s60, 0xffff0000\ns_waitcnt vmcnt(0)\ns_mov_b32 exec_hi, 0x00ffffff")
        for i in range(4):
            a(f"v_lshlrev_b32 v{40+2*i}, 16, v{36+i}\nv_and_b32 v{41+2*i}, s60, v{36+i}")
        a("s_mov_b32 exec_hi, -1\nv_lshlrev_b32 v28, 16, v28\nv_mov_b32 v29, 0\nv_mov_b32 v30, 0\nv_mov_b32 v31, 0")
        if self.pw != 'none':
            a("s_cmp_lt_u32 s49, 16\ns_cbranch_scc1 L_mlp_np")
            self.pf_w()
            a("L_mlp_np:")
        self.waitflag(F_PV, n=4, t="v96")
        a("s_mov_b32 m0, s55\ns_nop 0")
        for x in range(7):
            if x == 4: a("s_add_u32 m0, s55, 4096\ns_add_u32 s53, s53, 4096")
            a(f"buffer_load_dwordx4 v20, s[36:39], s53 offen offset:{(x%4)*1024}{ntw} lds")
            a(f"s_add_u32 s53, s53, {16*3584 - 1024}")
        a("s_add_u32 m0, s55, 7168\ns_nop 0")
        for x in range(7):
            if x == 4: a("s_add_u32 m0, s55, 11264\ns_add_u32 s56, s56, 4096")
            a(f"buffer_load_dwordx4 v21, s[32:35], s56 offen offset:{(x%4)*1024}{ntw} lds")
        a(f"""v_lshrrev_b32 v13, 2, v0
        v_lshlrev_b32 v13, 6, v13
        v_lshl_add_u32 v13, v22, 3, v13
        s_and_b32 s58, s58, 32
        s_add_u32 s58, s58, {KL}
        v_add_u32 v13, s58, v13
        v_bfe_u32 v15, v0, 2, 2
        v_mul_u32_u24 v16, 896, v15
        v_lshl_add_u32 v14, v7, 14, v16
        v_lshl_add_u32 v14, v22, 3, v14
        s_lshl_b32 s58, s50, 7
        s_add_u32 s58, s58, {KL + 7168}
        v_add_u32 v14, s58, v14
        v_lshl_add_u32 v16, v7, 4, v16
        v_add_u32 v16, {YL}, v16
        v_lshlrev_b32 v17, 6, v7
        v_add_u32 v17, v17, v24
        s_lshl_b32 s58, s50, 5
        s_add_u32 s58, s58, {H1L}
        v_add_u32 v17, s58, v17
        v_lshlrev_b32 v18, 6, v15
        v_lshl_add_u32 v18, v7, 4, v18
        v_add_u32 v18, {H1L}, v18
        v_mov_b32 v19, {ZR}""")
        for i in range(4):
            a(f"v_cmp_eq_u32 vcc, {i}, v22\ns_nop 1\nv_cndmask_b32 v{24+i}, v19, v18, vcc")
        a(f"""s_lshl_b32 s57, s50, 12
        s_add_u32 s57, s57, {HACC}
        s_mul_i32 s58, s52, 7168
        s_lshl_b32 s59, s50, 10
        s_add_u32 s58, s58, s59
        s_add_u32 s58, s58, {PART}
        s_add_u32 s62, s58, 4096
        s_mov_b32 s59, {hex(f2u(16.0))}
        s_waitcnt vmcnt(0)
        s_barrier""")
        self.stamp(4)
        for ks in range(14):
            for half in range(2):
                p = 2*ks + half
                r = 64 + ks*4 + half*2
                a(f"ds_read_b64_tr_b16 v[{r}:{r+1}], v13 offset:{(p//7)*16384 + (p%7)*1024}")
            if ks % 4 == 3: a("s_waitcnt lgkmcnt(0)")
        for qq in range(2):
            for i in range(4):
                for half in range(2):
                    r = 120 + (qq*4 + i)*4 + half*2
                    a(f"ds_read_b64_tr_b16 v[{r}:{r+1}], v14 offset:{half*3584 + qq*512 + i*32}")
            a("s_waitcnt lgkmcnt(0)")
        a(f"""s_lshl_b32 s63, s52, 7
        s_add_u32 s63, s63, {EW}
        s_add_u32 s64, s16, s63
        s_addc_u32 s65, s17, 0
        v_mul_u32_u24 v19, {7*128}, v0
        s_sub_u32 s63, s49, 14
        s_lshl_b32 s63, s63, 7
        s_lshl_b32 s61, s48, 2
        s_add_u32 s63, s63, s61
        s_add_u32 s63, s63, {FH}
        s_cmp_eq_u32 s50, 2
        s_cselect_b64 s[66:67], 0xff, 0""")
        def fh(k):
            if self.hp == k:
                a("s_mov_b64 exec, s[66:67]"); c("NOPAD_ON"); a("buffer_store_dword v164, v19, s[16:19], s63 offen sc1\ns_mov_b64 exec, -1"); c("NOPAD_OFF")
        self.shint(8)
        self.stamp(9)
        a("s_mov_b32 exec_hi, 0x00ffffff")
        l = self.lab("HP")
        a(f"{l}:")
        for i in range(4):
            a(f"buffer_load_dwordx4 v[{48+4*i}:{51+4*i}], v21, s[16:19], s57 offen offset:{i*896} sc1")
        a("s_waitcnt vmcnt(0)\nv_min_f32 v8, v50, v54\nv_min3_f32 v8, v8, v58, v62\nv_cmp_neq_f32 vcc, s59, v8")
        self.retry(l)
        self.stamp(5)
        c("h = x + attn ; LN ; LN")
        for i in range(4):
            a(f"v_add_f32 v{40+2*i}, v{40+2*i}, v{48+4*i}\nv_add_f32 v{41+2*i}, v{41+2*i}, v{49+4*i}")
        for rep in range(2):
            a("s_mov_b32 exec_hi, -1")
            fh(rep)
            a("v_add_f32 v8, v40, v41\nv_mul_f32 v9, v40, v40\nv_add_f32 v10, v42, v43\nv_mul_f32 v11, v41, v41")
            a("v_add_f32 v8, v8, v44\nv_fmac_f32 v9, v42, v42\nv_add_f32 v10, v10, v45\nv_fmac_f32 v11, v43, v43")
            a("v_add_f32 v8, v8, v46\nv_fmac_f32 v9, v44, v44\nv_add_f32 v10, v10, v47\nv_fmac_f32 v11, v45, v45")
            a("v_fmac_f32 v9, v46, v46\nv_fmac_f32 v11, v47, v47\nv_add_f32 v8, v8, v10\nv_add_f32 v9, v9, v11\ns_nop 0")
            self.wave_sum2(8, 9, 64, 65)
            a(f"""v_mov_b32 v10, {hex(f2u(1/448))}
            v_mul_f32 v8, s64, v10
            v_mul_f32 v9, s65, v10
            v_fma_f32 v9, -v8, v8, v9
            v_max_f32 v9, 0, v9
            v_add_f32 v9, {hex(f2u(1e-5))}, v9
            v_rsq_f32 v9, v9
            s_mov_b32 exec_hi, 0x00ffffff
            v_mul_f32 v8, v8, v9""")
            for k in range(8):
                a(f"v_fma_f32 v{40+k}, v{40+k}, v9, -v8")
        for i in range(4):
            a(f"v_cvt_pk_bf16_f32 v{36+i}, v{40+2*i}, v{41+2*i}\nds_write_b32 v{32+i}, v{36+i}")
        a("s_mov_b32 exec_hi, -1\ns_waitcnt lgkmcnt(0)\ns_barrier")
        self.stamp(6)
        fh(2)
        a("s_cmp_ge_u32 s50, 2\ns_cbranch_scc1 L_mlp2")
        for ks in range(14):
            r = [8, 32, 36, 40, 44, 48, 52, 56, 60, 152, 156, 160][ks] if ks < 12 else None
            if r is not None: a(f"ds_read_b128 v[{r}:{r+3}], v16 offset:{ks*64}")
        regs = [8, 32, 36, 40, 44, 48, 52, 56, 60, 152, 156, 160, 8, 32]
        for ks in range(14):
            if ks < 2: a(f"s_waitcnt lgkmcnt({11-ks})")
            elif ks < 12: a(f"s_waitcnt lgkmcnt({13-ks})")
            else: a(f"s_waitcnt lgkmcnt({13-ks})")
            r = regs[ks]
            a(f"v_mfma_f32_16x16x32_bf16 v[28:31], v[{r}:{r+3}], v[{64+4*ks}:{67+4*ks}], v[28:31]")
            if ks == 1:
                a(f"ds_read_b128 v[8:11], v16 offset:{12*64}\nds_read_b128 v[32:35], v16 offset:{13*64}")
        k1 = -2*1.4426950408889634*0.7978845608028654
        a(f"""s_mov_b32 s64, {hex(f2u(k1*0.044715))}
        v_mov_b32 v9, {hex(f2u(k1))}
        s_nop 5
        v_mul_f32 v8, v28, v28
        v_fma_f32 v8, v8, s64, v9
        v_mul_f32 v8, v8, v28
        v_exp_f32 v8, v8
        s_nop 0
        v_add_f32 v8, 1.0, v8
        v_rcp_f32 v8, v8
        s_nop 0
        v_mul_f32 v8, v8, v28
        v_cvt_pk_bf16_f32 v8, v8, v8
        ds_write_b16 v17, v8
        s_waitcnt lgkmcnt(0)
        L_mlp2:
        s_barrier""")
        self.stamp(7)
        for i in range(4):
            a(f"ds_read_b128 v[{32+4*i}:{35+4*i}], v{24+i}")
        for i in range(4):
            a(f"s_waitcnt lgkmcnt({3-i})")
            for qq in range(2):
                d = 48 + 4*qq; r = 120 + (qq*4 + i)*4
                cin = "0" if i == 0 else f"v[{d}:{d+3}]"
                a(f"v_mfma_f32_16x16x32_bf16 v[{d}:{d+3}], v[{32+4*i}:{35+4*i}], v[{r}:{r+3}], {cin}")
        a("""s_nop 6
        v_min_u32 v48, -2, v48
        buffer_store_dwordx4 v[48:51], v21, s[16:19], s58 offen sc1
        s_cmp_eq_u32 s50, 3
        s_cbranch_scc1 L_exit
        v_min_u32 v52, -2, v52
        buffer_store_dwordx4 v[52:55], v21, s[16:19], s62 offen sc1""")
        self.stamp(8)
        a("s_branch L_exit")

    def role_fin(self):
        self.cur = 'FIN'
        a, c = self.a, self.c
        c("================= role FINAL =================")
        a("L_fin:")
        self.srd(40, 72, 896)
        self.srd(44, 80, 3584)
        a(f"""s_mul_i32 s52, s48, 7
        s_add_u32 s52, s52, s49
        s_lshl_b32 s52, s52, 1
        s_add_u32 s52, s52, s50
        s_sub_u32 s52, s52, 44
        s_lshl_b32 s53, s52, 6
        s_add_u32 s53, s53, {PART}
        s_add_u32 s54, s53, {16*7168}
        s_add_u32 s55, s53, {32*7168}
        s_add_u32 s56, s53, {48*7168}
        v_lshrrev_b32 v20, 2, v0
        v_mul_u32_u24 v20, 7168, v20
        v_and_b32 v22, 3, v0
        v_lshl_add_u32 v20, v22, 4, v20
        s_lshr_b32 s57, s52, 4
        s_lshl_b32 s57, s57, 6
        s_and_b32 s58, s52, 3
        s_lshl_b32 s58, s58, 2
        s_add_u32 s57, s57, s58
        v_and_b32 v23, 16, v0
        v_lshlrev_b32 v23, 1, v23
        v_lshrrev_b32 v24, 5, v0
        v_lshl_add_u32 v23, v24, 4, v23
        v_add3_u32 v23, v23, v22, s57
        v_lshlrev_b32 v24, 1, v23
        v_lshrrev_b32 v25, 1, v23
        v_lshlrev_b32 v25, 4, v25
        s_bfe_u32 s58, s52, 0x20002
        s_mul_i32 s59, s58, 896
        s_lshl_b32 s58, s58, 12
        s_add_u32 s58, s58, {HACC}
        s_mov_b32 s61, {hex(f2u(16.0))}
        v_mov_b32 v44, 0
        v_mov_b32 v45, 0
        v_mov_b32 v46, 0
        v_mov_b32 v47, 0
        s_waitcnt lgkmcnt(0)
        buffer_load_ushort v26, v24, s[20:23], s59 offen
        buffer_load_ushort v27, v24, s[40:43], 0 offen
        buffer_load_ushort v28, v24, s[44:47], s59 offen""")
        a(f"""s_lshr_b32 s63, s52, 1
        s_lshl_b32 s63, s63, 7
        s_add_u32 s63, s63, {FH}
        s_add_u32 s64, s16, s63
        s_addc_u32 s65, s17, 0
        v_and_b32 v8, 1, v0
        v_cmp_eq_u32 s[66:67], 1, v8
        s_waitcnt vmcnt(0)
        v_lshlrev_b32 v26, 16, v26
        v_lshlrev_b32 v27, 16, v27
        v_add_f32 v26, v26, v27""")
        self.shint(8)
        self.stamp(5)
        l = self.lab("FP")
        a(f"""{l}:
        buffer_load_dwordx4 v[28:31], v25, s[16:19], s58 offen sc1
        buffer_load_dwordx4 v[32:35], v20, s[16:19], s53 offen sc1
        buffer_load_dwordx4 v[36:39], v20, s[16:19], s54 offen sc1
        buffer_load_dwordx4 v[40:43], v20, s[16:19], s55 offen sc1
        s_mov_b32 exec_hi, 0
        buffer_load_dwordx4 v[44:47], v20, s[16:19], s56 offen sc1
        s_mov_b32 exec_hi, -1
        s_waitcnt vmcnt(4)
        v_cndmask_b32 v28, v28, v29, s[66:67]
        v_add_f32 v27, v26, v28
        v_cmp_neq_f32 s[68:69], s61, v30
        s_waitcnt vmcnt(0)
        v_max_u32 v8, v32, v36
        v_max3_u32 v8, v8, v40, v44
        v_cmp_eq_u32 vcc, -1, v8
        s_or_b64 vcc, vcc, s[68:69]""")
        self.retry(l)
        self.stamp(6)
        for k in range(4): a(f"v_add_f32 v{32+k}, v{32+k}, v{36+k}\nv_add_f32 v{40+k}, v{40+k}, v{44+k}")
        for k in range(4): a(f"v_add_f32 v{32+k}, v{32+k}, v{40+k}")
        a("""s_nop 0
        v_permlane32_swap_b32 v32, v33
        v_permlane32_swap_b32 v34, v35
        v_add_f32 v32, v32, v33
        v_add_f32 v34, v34, v35
        s_nop 1
        v_permlane16_swap_b32 v32, v34
        v_add_f32 v32, v32, v34
        s_nop 1
        v_add_f32_dpp v32, v32, v32 row_ror:4 row_mask:0xf bank_mask:0xf
        s_nop 1
        v_add_f32_dpp v32, v32, v32 row_ror:8 row_mask:0xf bank_mask:0xf
        v_add_f32 v32, v32, v27
        v_cvt_pk_bf16_f32 v32, v32, v32
        s_mov_b32 exec_lo, 0x000f000f
        s_mov_b32 exec_hi, 0x000f000f
        buffer_store_short v32, v24, s[44:47], s59 offen""")
        self.stamp(7)
        a(f"""s_cmp_lg_u32 s52, 0
        s_cbranch_scc1 L_exit
        s_mov_b32 s53, {EPO}
        s_mov_b64 exec, 1
        buffer_store_dword v164, v22, s[16:19], s53 offen sc1""")

def add_pads(text, gap=960, nchain=3):
    import subprocess, re, tempfile, os
    lines = text.split("\n")
    start = next(i for i, l in enumerate(lines) if l.startswith(NAME + "_kernel:"))
    end = next(i for i, l in enumerate(lines) if l.startswith("L_end:"))
    def addrs(ls):
        t = []
        for i, l in enumerate(ls):
            if start < i and l.startswith("    ") and not l.strip().startswith(";") and not l.strip().startswith("."):
                t.append(f"ZZ_{i}:")
            t.append(l)
        src = "\n".join(t)
        for k in range(nchain):
            if f"PADCHAIN_{k}:" not in src: src = src.replace(f"PADCHAIN_{k}", "L_end")
        src = re.sub(r"PADNEXT", "L_end", src)
        with tempfile.TemporaryDirectory() as d:
            open(d + "/a.s", "w").write(src)
            subprocess.check_call(["clang", "-x", "assembler", "-target", "amdgcn-amd-amdhsa", "-mcpu=gfx950", "-c", d + "/a.s", "-o", d + "/a.o"])
            out = subprocess.check_output(["llvm-objdump", "-t", d + "/a.o"], text=True)
        r = {}
        for l in out.splitlines():
            p = l.split()
            if not p: continue
            if p[-1].startswith("ZZ_"): r[int(p[-1][3:])] = int(p[0], 16)
            if p[-1] == NAME + "_kernel": base = int(p[0], 16)
        return {k: v - base for k, v in r.items()}
    ad = addrs(lines)
    pads = []; last = 0; shift = 0; noz = False
    for i in sorted(ad):
        if i >= end: break
        if "NOPAD_ON" in lines[i - 1]: noz = True
        if "NOPAD_OFF" in lines[i - 1]: noz = False
        x = ad[i] + shift
        if not noz and (x - last >= gap or (x >> 12) != (last >> 12)):
            pads.append(i); last = x; shift += 4
    n = len(pads)
    out = []
    for i, l in enumerate(lines):
        if i in pads:
            k = pads.index(i)
            if k < nchain: out.append(f"PADCHAIN_{k}:")
            out.append(f"PAD_{k}:")
            nxt = f"PAD_{k + nchain}" if k + nchain < n else "L_warmdone"
            out.append(f"    s_cbranch_execz {nxt}")
        out.append(l)
    return "\n".join(out)

if __name__ == "__main__":
    import argparse
    ap = argparse.ArgumentParser()
    ap.add_argument("-o", default="k.s"); ap.add_argument("-W", type=int, default=6); ap.add_argument("--WV", type=int, default=0); ap.add_argument("--WE", type=int, default=0); ap.add_argument("--NE", type=int, default=0); ap.add_argument("--pf64", action="store_true"); ap.add_argument("--ntp", default=""); ap.add_argument("--hd", type=int, default=4); ap.add_argument("--qd", type=int, default=12); ap.add_argument("--dly", default=None); ap.add_argument("--skip", default=""); ap.add_argument("--rot", type=int, default=1); ap.add_argument("--pw", default="pv"); ap.add_argument("--ewp", type=int, default=2); ap.add_argument("--hp", type=int, default=2); ap.add_argument("--pft", type=int, default=3); ap.add_argument("--ww", type=int, default=8); ap.add_argument("--od", type=int, default=2); ap.add_argument("--dx", type=int, default=-1)
    ap.add_argument("--prof", action="store_true"); ap.add_argument("--nt", default="nt"); ap.add_argument("--ntw", default="nt")
    x = ap.parse_args()
    open(x.o, "w").write(add_pads(G(W=x.W, WV=x.WV, WE=x.WE, NE=x.NE, pf64=x.pf64, ntp=x.ntp, hd=x.hd, qd=x.qd, dly=x.dly, skip=x.skip, rot=x.rot, pw=x.pw, ewp=x.ewp, hp=x.hp, pft=x.pft, ww=x.ww, od=x.od, dx=x.dx, prof=x.prof, nt=x.nt, ntw=x.ntw).build()))
```

```python
import sys, struct
NAME = "sequential_preLN__sliding_block_cached__mixer_channel_mlp__decode"

def f2u(x): return struct.unpack("<I", struct.pack("<f", x))[0]

QP   = 0x00000
HACC = 0x40000
STAT = 0x44000
OP   = 0xe0000
EW   = 0x68000
FH   = 0x6e000
TK   = 0x70000
GR   = 0x71000
EPO  = 0x71100
PART = 0x72000
PROF = 0x180000
WQL = 4096; KL = 20480; VL = KL + 65536
XN = 0
QB = XN + 1024
SP = QB + 1024
ZR = SP + 512
FL = ZR + 512
LDS_TOTAL = VL + 65536
RED = WQL
YL = WQL
H1L = WQL + 4096
STL = WQL + 4608
F_WQ, F_S, F_VI, F_Q, F_P, F_CLR, F_TAG, F_PV, F_V8, F_KL, F_TK, F_W1 = 0, 32, 48, 64, 68, 76, 88, 96, 112, 128, 72, 16

class G:
    def __init__(self, W=6, WV=None, WE=None, NE=0, prof=False, nt="nt", ntw="nt", pf64=False, ntp="nt", hd=2, qd=0, dly=None, skip='', rot=0, pw='pv', ewp=1, hp=1, pft=0, ww=3, od=2, dx=-1, tkp=8, ps=2):
        self.ps = ps
        self.tkp = tkp
        self.dx = dx
        self.ww = ww; self.od = od
        self.pw = pw; self.ewp = ewp; self.hp = hp; self.pft = pft
        self.rot = ['s_mov_b32 s59, 0', 's_mov_b32 s59, s49', 's_lshr_b32 s59, s2, 4', 's_mul_i32 s59, s2, 5', 's_add_u32 s59, s49, s2'][rot]
        self.skip = set(skip.split(','))
        self.dly = dly; self.cur = 'E'
        self.qd = qd
        self.hd = hd
        self.ntp = ntp
        self.WE = WE or WV or W; self.NE = NE; self.pf64 = pf64
        self.L = []; self.W = W; self.WV = WV or W; self.prof = prof; self.nt = nt; self.ntw = ntw; self.uid = 0
    def a(self, s):
        for line in s.split("\n"):
            line = line.strip()
            if line: self.L.append(("" if line.endswith(":") else "    ") + line)
    def c(self, s): self.L.append("    ; " + s)
    def lab(self, p="L"):
        self.uid += 1; return f"{p}_{self.uid}"
    def stamp(self, i):
        if self.dly == f"{self.cur}:{i}":
            self.a("s_memrealtime s[92:93]\ns_waitcnt lgkmcnt(0)\ns_mov_b32 s94, 1")
        if self.prof:
            self.a(f"s_memrealtime s[90:91]\ns_waitcnt lgkmcnt(0)\nv_writelane_b32 v167, s90, {i}")
    def srd(self, r, karg, size):
        self.a(f"s_load_dwordx2 s[{r}:{r+1}], s[0:1], {karg}\ns_mov_b32 s{r+2}, {size}\ns_mov_b32 s{r+3}, 0x20000")
    def setflag(self, off, vaddr="v2"):
        self.a(f"ds_write_b32 {vaddr}, v4 offset:{off}")
    def waitflag(self, off, vaddr="v3", n=1, t="v8", sleep=True):
        l = self.lab("WF"); d = self.lab("WD")
        ti = int(t[1:])
        self.a(f"{l}:")
        if n == 1:
            self.a(f"ds_read_b32 {t}, {vaddr} offset:{off}\ns_waitcnt lgkmcnt(0)")
        else:
            self.a(f"ds_read_b128 v[{ti}:{ti+3}], {vaddr} offset:{off}\ns_waitcnt lgkmcnt(0)")
            self.a(f"v_and_b32 {t}, {t}, v{ti+1}\nv_and_b32 v{ti+2}, v{ti+2}, v{ti+3}\nv_and_b32 {t}, {t}, v{ti+2}")
        self.a(f"v_cmp_ne_u32 vcc, 0, {t}\ns_cbranch_vccnz {d}")
        if sleep: self.a("s_sleep 1")
        self.a(f"s_sub_u32 s88, s88, 1\ns_cbranch_scc0 {l}\ns_branch L_exit\n{d}:")
    def retry(self, l):
        d = self.lab("RD")
        self.a(f"s_cbranch_vccz {d}\ns_sub_u32 s88, s88, 1\ns_cbranch_scc0 {l}\ns_branch L_exit\n{d}:")

    def shint(self, n, base="s[64:65]"):
        a = self.a
        l = self.lab("SH"); d = self.lab("SD")
        a(f"{l}:\ns_sub_u32 s88, s88, 1\ns_cbranch_scc1 L_exit")
        if n == 8:
            a(f"s_load_dwordx8 s[72:79], {base}, 0 glc\ns_waitcnt lgkmcnt(0)")
            regs = [72, 74, 76, 78]
        elif n == 16:
            a(f"s_load_dwordx8 s[72:79], {base}, 0 glc\ns_load_dwordx8 s[80:87], {base}, 128 glc\ns_waitcnt lgkmcnt(0)")
            for k in range(4): a(f"s_xor_b64 s[{80+2*k}:{81+2*k}], s[{80+2*k}:{81+2*k}], s[{72+2*k}:{73+2*k}]")
            a("s_or_b64 s[80:81], s[80:81], s[82:83]\ns_or_b64 s[84:85], s[84:85], s[86:87]\ns_or_b64 s[80:81], s[80:81], s[84:85]")
            a(f"s_cbranch_scc1 {l}")
            regs = [72, 74, 76, 78]
        else:
            a(f"s_load_dwordx16 s[72:87], {base}, 0 glc\ns_load_dwordx16 s[28:43], {base}, 64 glc\ns_waitcnt lgkmcnt(0)")
            regs = list(range(72, 88, 2)) + list(range(28, 44, 2))
        for r in regs:
            a(f"s_cmp_lg_u64 s[{r}:{r+1}], s[70:71]\ns_cbranch_scc1 {l}")

    def phint_warm(self, n, base="s[64:65]"):
        self.a(f"s_load_dwordx8 s[72:79], {base}, 0 glc")
        if n == 16: self.a(f"s_load_dwordx8 s[80:87], {base}, 128 glc")
    def phint(self, n, base="s[64:65]"):
        a = self.a; l = self.lab("PH")
        a(f"{l}:\ns_sub_u32 s88, s88, 1\ns_cbranch_scc1 L_exit")
        self.phint_warm(n, base)
        a("s_waitcnt lgkmcnt(0)")
        for r in range(72, 72 + n, 2):
            a(f"s_cmp_lg_u64 s[{r}:{r+1}], s[70:71]\ns_cbranch_scc1 {l}")

    def build(self):
        a, c = self.a, self.c
        W = self.W; nt = (" " + self.nt) if self.nt else ""; ntw = (" " + self.ntw) if self.ntw else ""
        self.L.append(f"; @launch grid=(256,1,1) block=(576,1,1) lds={LDS_TOTAL}")
        self.L.append('.amdgcn_target "amdgcn-amd-amdhsa--gfx950"\n.text')
        self.L.append(f".globl {NAME}_kernel\n.p2align 12\n.fill 832, 4, 0xbf810000\n.p2align 8\n.type {NAME}_kernel,@function\n{NAME}_kernel:")
        if self.prof: a("s_memrealtime s[92:93]")
        if self.dly: a("s_mov_b32 s94, 0"); self.stamp(0)
        a("s_cmp_ge_u32 s2, 256\ns_cbranch_scc1 L_end")
        a(f"""v_lshrrev_b32 v1, 6, v0
        v_and_b32 v0, 63, v0
        v_readfirstlane_b32 s3, v1
        v_mov_b32 v8, 0
        v_mov_b32 v9, 0
        v_lshlrev_b32 v10, 3, v0
        s_cmp_eq_u32 s3, 7
        s_cbranch_scc0 L_noinit
        ds_write_b64 v10, v[8:9] offset:{ZR}
        ds_write_b64 v10, v[8:9] offset:{FL}
        s_waitcnt lgkmcnt(0)
        L_noinit:""")
        self.srd(12, 24, 448*8192)
        self.srd(4, 8, 0x4000000)
        self.srd(8, 16, 0x4000000)
        self.srd(16, 96, 0x300000)
        self.srd(20, 0, 3584)
        c("instruction-cache warm-up: waves 5..7 hop through the code with EXEC=0")
        a(f"""s_barrier
        {'s_branch L_warmdone' if 'nowarm' in self.skip else ''}
        s_sub_u32 s52, s3, 5
        s_cmp_lt_u32 s52, 3
        s_cbranch_scc0 L_warmdone
        s_cmp_eq_u32 s3, 5
        s_cbranch_scc0 L_warm2
        s_getpc_b64 s[24:25]
        L_pc:
        s_mov_b32 s26, L_end-L_pc
        s_mov_b32 s27, 0x20000
        v_lshlrev_b32 v8, 7, v0
        s_movk_i32 s52, 0x2000
        {'' if 'nocpf' in self.skip else 'buffer_load_dword v165, v8, s[24:27], 0 offen'}
        {'' if 'nocpf' in self.skip else 'buffer_load_dword v165, v8, s[24:27], s52 offen'}
        s_mov_b64 exec, 0
        s_branch PADCHAIN_0
        L_warm2:
        s_mov_b64 exec, 0
        s_cmp_eq_u32 s3, 6
        s_cbranch_scc1 PADCHAIN_1
        s_branch PADCHAIN_2""")
        a("L_warmdone:\ns_mov_b64 exec, -1\ns_mov_b32 s88, 0x8000")
        a("s_and_b32 s48, s2, 7\ns_lshr_b32 s49, s2, 3")
        c("v5 = swizzled 16B chunk offset inside a 128B row; v6 = row (l>>3); v7 = g4")
        a("""v_and_b32 v5, 7, v0
        v_lshrrev_b32 v7, 4, v0
        v_lshlrev_b32 v5, 4, v5
        v_lshlrev_b32 v6, 5, v7
        v_xor_b32 v5, v5, v6
        v_lshrrev_b32 v6, 3, v0
        s_and_b32 s50, s3, 3""")
        a(f"v_mov_b32 v3, {FL}\ns_lshl_b32 s51, s50, 2\nv_add_u32 v2, s51, v3\nv_mov_b32 v4, 1")
        if self.prof: a("v_mov_b32 v167, 0")
        if 'sa' in self.skip: a("s_waitcnt lgkmcnt(0)\ns_cmp_ge_u32 s3, 4\ns_cbranch_scc1 L_exit")
        a("s_cmp_lt_u32 s3, 4\ns_cbranch_scc1 L_lwave\ns_cmp_lt_u32 s3, 8\ns_cbranch_scc1 L_shead")
        self.ahead()
        self.lwave()
        self.swave_head()
        self.awave()
        self.swave()
        self.role_wo()
        self.role_mlp()
        self.role_fin()
        a("L_exit:")
        if self.dly:
            if self.dly[0] in "ELAS": a("s_cmp_lt_u32 s2, 168\ns_cbranch_scc1 L_end")
            if self.dx >= 0: a(f"s_and_b32 s90, s2, 7\ns_cmp_lg_u32 s90, {self.dx}\ns_cbranch_scc1 L_end")
            a("""s_cmp_eq_u32 s94, 0
            s_cbranch_scc1 L_end
            L_dly:
            s_memrealtime s[90:91]
            s_waitcnt lgkmcnt(0)
            s_sub_u32 s90, s90, s92
            s_cmp_lt_u32 s90, 3000
            s_cbranch_scc1 L_dly""")
        if self.prof:
            a(f"""s_waitcnt lgkmcnt(0)
            s_mov_b64 exec, -1
            v_writelane_b32 v167, s92, 0
            s_memrealtime s[90:91]
            s_waitcnt lgkmcnt(0)
            v_writelane_b32 v167, s90, 63
            v_writelane_b32 v167, s88, 62
            s_lshl_b32 s90, s2, 4
            s_add_u32 s90, s90, s3
            s_lshl_b32 s90, s90, 8
            s_add_u32 s90, s90, {PROF}
            v_lshlrev_b32 v166, 2, v0
            buffer_store_dword v167, v166, s[16:19], s90 offen""")
        a("L_end:\ns_endpgm")
        self.L.append(f""".section .rodata,"a"
.p2align 6
.amdhsa_kernel {NAME}_kernel
  .amdhsa_next_free_vgpr 168
  .amdhsa_next_free_sgpr 96
  .amdhsa_accum_offset 168
  .amdhsa_group_segment_fixed_size 0
  .amdhsa_kernarg_size 104
  .amdhsa_user_sgpr_count 2
  .amdhsa_user_sgpr_kernarg_segment_ptr 1
  .amdhsa_system_sgpr_workgroup_id_x 1
.end_amdhsa_kernel""")
        return "\n".join(self.L) + "\n"

    def tr_addr(self, r, sbase, tmp):
        a = self.a
        a(f"""v_lshrrev_b32 v{tmp}, 2, v0
        v_lshlrev_b32 v{r}, 7, v{tmp}
        v_and_b32 v{tmp+1}, 3, v0
        v_lshl_add_u32 v{r}, v{tmp+1}, 3, v{r}
        v_bfe_u32 v{tmp}, v0, 3, 2
        v_lshl_add_u32 v{r}, v{tmp}, 5, v{r}
        v_add_u32 v{r}, {sbase}, v{r}
        v_xor_b32 v{r+1}, 32, v{r}
        v_xor_b32 v{r+2}, 64, v{r}
        v_xor_b32 v{r+3}, 0x60, v{r}""")

    def lwave(self):
        self.cur = 'L'
        a, c = self.a, self.c; W = self.W; nt = (" " + self.nt) if self.nt else ""
        c("================= L-wave: stream wq tile, K, V into LDS; PV =================")
        a("L_lwave:")
        a(f"""v_lshl_add_u32 v10, v6, 13, v5
        v_lshl_add_u32 v11, v6, 9, v5
        v_lshrrev_b32 v12, 5, v0
        v_xor_b32 v12, v12, v0
        v_lshlrev_b32 v12, 4, v12
        s_lshl_b32 s57, s50, 5
        v_xor_b32 v12, s57, v12
        v_xor_b32 v13, 0x80, v12
        s_lshr_b32 s52, s49, 3
        s_lshl_b32 s52, s52, 2
        s_add_u32 s52, s52, s50
        s_lshl_b32 s52, s52, 18
        s_lshl_b32 s53, s48, 10
        s_add_u32 s52, s52, s53
        s_and_b32 s53, s49, 7
        s_lshl_b32 s53, s53, 7
        s_add_u32 s52, s52, s53
        s_and_b32 s53, s2, 31
        s_lshl_b32 s53, s53, 21
        s_lshr_b32 s54, s2, 5
        s_lshl_b32 s54, s54, 16
        s_add_u32 s53, s53, s54
        s_add_u32 s53, s53, {3072*512}
        s_lshl_b32 s55, s50, 14
        s_lshl_b32 s58, s50, 10
        s_add_u32 s54, s53, s58
        {self.rot}
        s_lshl_b32 s59, s59, 12
        s_lshl_b32 s56, s50, 7
        s_add_u32 s53, s53, s56
        s_lshl_b32 s56, s50, 12
        s_add_u32 m0, s56, {WQL}
        s_waitcnt lgkmcnt(0)""")
        if 'wqlin' in self.skip: a("v_lshlrev_b32 v10, 4, v0\ns_mul_i32 s52, s2, 14336\ns_lshl_b32 s57, s50, 10\ns_add_u32 s52, s52, s57")
        if 'nowq' in self.skip: a("s_mov_b32 s52, 0x1000000")
        if 'pst' in self.skip: self.stamp(11)
        n = 0
        WV = self.WV
        st = dict(landed=0)
        def after(n):
            w = W if n < 20 else (WV if n < 36 - self.NE else self.WE)
            if n < 36 and n - (w - 1) > st["landed"]:
                a(f"s_waitcnt vmcnt({w-1})")
                old = st["landed"]; st["landed"] = n - (w - 1)
                if 'pst' in self.skip: self.stamp(11 + st["landed"])
                if old < 4 <= st["landed"]: self.setflag(F_WQ); self.stamp(1)
                for u in range(4):
                    if old < 8 + 4*u <= st["landed"]: self.setflag(F_KL + 16*u)
                if old < 20 <= st["landed"]: self.stamp(2)
        for p in range(4):
            a(f"buffer_load_dwordx4 v10, s[12:15], s52 offen offset:{p*1024}{nt} lds")
            if p < 3: a(f"s_add_u32 s52, s52, {3072 if 'wqlin' in self.skip else 65536-1024}")
            n += 1; after(n)
        for p in range(16):
            a(f"s_add_u32 m0, s58, {KL + p*4096}\ns_and_b32 s59, s59, 0xf000\ns_add_u32 s60, s54, s59")
            a(f"buffer_load_dwordx4 v{12 + (p & 1)}, s[4:7], s60 offen{nt} lds\ns_addk_i32 s59, 0x1000")
            n += 1; after(n)
        for p in range(16):
            a(f"s_add_u32 m0, s55, {VL + p*1024}\ns_and_b32 s59, s59, 0xf000\ns_add_u32 s60, s53, s59")
            a(f"buffer_load_dwordx4 v11, s[8:11], s60 offen{nt} lds")
            if p < 15: a("s_addk_i32 s59, 0x1000")
            if p == self.tkp: self.setflag(F_V8)
            n += 1; after(n)
        self.setflag(F_VI); self.stamp(3)
        assert st["landed"] >= 20
        c("PV: address prep")
        a(f"s_add_u32 s55, s55, {VL}")
        self.tr_addr(12, "s55", 16)
        a(f"""v_bfe_u32 v20, v0, 2, 1
        v_lshlrev_b32 v22, 6, v20
        v_lshl_add_u32 v22, v7, 4, v22
        v_add_u32 v22, {SP}, v22
        v_mov_b32 v21, {ZR}
        v_and_b32 v23, 11, v0""")
        for i in range(4):
            a(f"v_cmp_eq_u32 vcc, {i}, v23\ns_nop 1\nv_cndmask_b32 v{16+i}, v21, v22, vcc")
        a(f"""v_and_b32 v28, 15, v0
        v_lshlrev_b32 v28, 3, v28
        v_lshl_add_u32 v28, v7, 12, v28
        s_lshl_b32 s56, s48, 2
        s_add_u32 s56, s56, s50
        s_lshl_b32 s56, s56, 13
        s_lshr_b32 s57, s49, 4
        s_lshl_b32 s57, s57, 11
        s_add_u32 s56, s56, s57
        s_and_b32 s57, s49, 3
        s_lshl_b32 s57, s57, 9
        s_add_u32 s56, s56, s57
        s_bfe_u32 s57, s49, 0x20002
        s_lshl_b32 s57, s57, 7
        s_add_u32 s56, s56, s57
        s_add_u32 s56, s56, {OP}""")
        if 'sa' not in self.skip: self.waitflag(F_P)
        a("v_readfirstlane_b32 s57, v8")
        self.stamp(4)
        for ks in range(4):
            for i in range(4):
                r = 64 + (ks*4 + i)*4
                a(f"ds_read_b128 v[{r}:{r+3}], v{16+i} offset:{ks*128}")
        for ks in range(4):
            for half in range(2):
                rem = 16 - (4*ks + 2*half + 2)
                if rem < 36 - st['landed']: a(f"s_waitcnt vmcnt({rem})")
                if ks == 3 and half == 1: self.stamp(5)
                for i in range(4):
                    r = 32 + (ks & 1)*16 + i*4 + half*2
                    a(f"ds_read_b64_tr_b16 v[{r}:{r+1}], v{12+i} offset:{ks*4096 + half*2048}")
            for i in range(4):
                a(f"s_waitcnt lgkmcnt({3-i})")
                rb = 32 + (ks & 1)*16 + i*4; ra = 64 + (ks*4 + i)*4
                cin = "0" if (ks == 0 and i == 0) else "v[128:131]"
                a(f"v_mfma_f32_16x16x32_bf16 v[128:131], v[{ra}:{ra+3}], v[{rb}:{rb+3}], {cin}")
        a("""s_mov_b32 exec_hi, 0
        s_cmp_eq_u32 s57, 1
        s_nop 5
        v_cvt_pk_bf16_f32 v24, v128, v129
        v_cvt_pk_bf16_f32 v25, v130, v131
        v_min_u32 v24, -2, v24
        s_cbranch_scc0 L_oglob
        buffer_store_dwordx2 v[24:25], v28, s[16:19], s56 offen
        L_odone:
        s_mov_b32 exec_hi, -1""")
        self.setflag(F_PV)
        self.stamp(6)
        if self.tkp < 0: a("s_cmp_ge_u32 s49, 14\ns_cbranch_scc1 L_exit\ns_barrier")
        a("s_branch L_exit")
        a("L_oglob:\nbuffer_store_dwordx2 v[24:25], v28, s[16:19], s56 offen sc1\ns_branch L_odone")

    def swave_head(self):
        a, c = self.a, self.c
        c("================= S-wave head: clears / code prefetch =================")
        a("L_shead:\ns_cmp_eq_u32 s50, 0\ns_cbranch_scc0 L_swave")
        if 'touch' in self.skip:
            c("touch every page used later (address-translation warm-up) through the scalar path")
            a(f"""s_load_dwordx2 s[28:29], s[0:1], 32
            s_load_dwordx8 s[32:39], s[0:1], 48
            s_load_dwordx2 s[40:41], s[0:1], 80
            s_and_b32 s56, s2, 31
            s_lshl_b32 s56, s56, 21
            s_add_u32 s56, s56, {3072*512}
            s_mul_i32 s57, s48, {512*896}
            s_add_u32 s58, s57, {512*896-64}
            s_mov_b32 s59, {448*3584-64}
            s_waitcnt lgkmcnt(0)
            s_load_dword s60, s[8:9], s56
            s_load_dword s61, s[28:29], s57
            s_load_dword s62, s[28:29], s58
            s_load_dword s63, s[32:33], 0
            s_load_dword s64, s[32:33], s59
            s_load_dword s65, s[34:35], 0
            s_load_dword s66, s[36:37], 0
            s_load_dword s67, s[36:37], s59
            s_load_dword s68, s[38:39], 0
            s_load_dword s69, s[40:41], 0""")
        a(f"""v_mov_b32 v8, -1
        v_mov_b32 v9, -1
        v_mov_b32 v10, -1
        v_mov_b32 v11, -1
        v_mov_b32 v12, 0
        v_mov_b32 v13, 0
        v_lshlrev_b32 v15, 3, v0
        s_lshl_b32 s52, s48, 5
        s_add_u32 s52, s52, s49
        s_lshl_b32 s52, s52, 10
        s_add_u32 s52, s52, {OP}
        v_lshlrev_b32 v14, 4, v0
        s_lshl_b32 s53, s48, 2
        s_and_b32 s54, s49, 3
        s_add_u32 s53, s53, s54
        s_lshl_b32 s53, s53, 10
        s_lshr_b32 s54, s2, 5
        s_lshl_b32 s54, s54, 7
        s_add_u32 s53, s53, s54
        s_add_u32 s53, s53, {STAT}
        s_lshl_b32 s55, s2, 6
        s_add_u32 s55, s55, {HACC}
        {'s_waitcnt lgkmcnt(0)' if 'touch' not in self.skip else ''}
        {'s_branch L_nopart' if 'clr' in self.skip else ''}
        buffer_store_dwordx4 v[8:11], v14, s[16:19], s52 offen sc1
        s_mov_b64 exec, 0xff
        buffer_store_dwordx2 v[12:13], v15, s[16:19], s55 offen sc1
        s_mov_b64 exec, 3
        buffer_store_dwordx2 v[8:9], v15, s[16:19], s53 offen sc1
        s_cmp_lg_u32 s49, 0
        s_cbranch_scc1 L_notk
        s_lshl_b32 s55, s48, 7
        s_add_u32 s55, s55, {TK}
        buffer_store_dwordx2 v[12:13], v15, s[16:19], s55 offen sc1
        L_notk:
        s_mov_b64 exec, -1
        s_sub_u32 s54, s49, 21
        s_cmp_lt_u32 s54, 7
        s_cbranch_scc0 L_nopart
        s_mul_i32 s55, s48, 7
        s_add_u32 s55, s55, s54
        s_lshl_b32 s55, s55, 7
        s_add_u32 s55, s55, {PART}
        v_mul_u32_u24 v14, 7168, v6
        v_and_b32 v16, 7, v0
        v_lshl_add_u32 v14, v16, 4, v14""")
        for i in range(7):
            a(f"buffer_store_dwordx4 v[8:11], v14, s[16:19], s55 offen sc1")
            if i < 6: a(f"s_add_u32 s55, s55, {8*7168}")
        a("L_nopart:\ns_waitcnt vmcnt(0)")
        self.setflag(F_CLR, "v3")
        a("s_waitcnt lgkmcnt(0)\ns_branch L_swave")

    def dpp_allred16(self, op, regs):
        for rot in (8, 4, 2, 1):
            for r in regs:
                self.a(f"{op}_dpp v{r}, v{r}, v{r} row_ror:{rot} row_mask:0xf bank_mask:0xf")
            self.a("s_nop %d" % max(0, 2 - len(regs)))

    def ahead(self):
        a, c = self.a, self.c
        c("A-wave head: x loads first")
        a(f"""s_setprio 3
        v_and_b32 v12, 15, v0
        v_mul_u32_u24 v13, 896, v7
        v_lshl_add_u32 v13, v12, 3, v13
        s_lshr_b32 s52, s49, 3
        s_lshl_b32 s53, s52, 8
        s_mov_b32 s54, {EPO}
        s_waitcnt lgkmcnt(0)""")
        for i in range(7):
            a(f"buffer_load_dwordx2 v[{16+2*i}:{17+2*i}], v13, s[20:23], 0 offen offset:{i*128}")
        a("buffer_load_dwordx2 v[30:31], v13, s[20:23], s53 offen\nbuffer_load_dwordx2 v[32:33], v13, s[20:23], s53 offen offset:128")
        a("buffer_load_dword v110, v8, s[16:19], s54 offen sc1\ns_branch L_awave")

    def awave(self):
        self.cur = 'A'
        a, c = self.a, self.c
        c("================= A-wave: LN1, q partial, q gather, softmax, stats =================")
        a("L_awave:")
        a(f"s_mov_b32 s54, {WQL}")
        self.tr_addr(100, "s54", 104)
        a(f"""v_bfe_u32 v104, v0, 2, 2
        v_lshlrev_b32 v104, 8, v104
        v_lshl_add_u32 v104, v7, 3, v104
        v_add_u32 v104, {XN}, v104
        v_lshlrev_b32 v105, 8, v7
        v_lshl_add_u32 v105, v12, 3, v105
        v_lshlrev_b32 v106, 14, v7
        v_lshl_add_u32 v106, v12, 4, v106
        v_lshlrev_b32 v108, 4, v0
        s_mov_b32 s60, 0xffff0000
        s_waitcnt vmcnt(1)""")
        self.stamp(1)
        c("unpack x (28 values: v36..v63), own 8 values v64..71")
        for i in range(14):
            a(f"v_lshlrev_b32 v{36+2*i}, 16, v{16+i}\nv_and_b32 v{37+2*i}, s60, v{16+i}")
        for i in range(4):
            a(f"v_lshlrev_b32 v{64+2*i}, 16, v{30+i}\nv_and_b32 v{65+2*i}, s60, v{30+i}")
        a("v_add_f32 v72, v36, v37\nv_add_f32 v73, v38, v39")
        for i in range(2, 14):
            a(f"v_add_f32 v72, v72, v{36+2*i}\nv_add_f32 v73, v73, v{37+2*i}")
        a("v_add_f32 v72, v72, v73\ns_nop 1")
        self.dpp_allred16("v_add_f32", [72])
        a(f"v_mul_f32 v72, {hex(f2u(1/448))}, v72")
        a("v_mov_b32 v73, 0\nv_mov_b32 v74, 0")
        for i in range(14):
            a(f"v_sub_f32 v75, v{36+2*i}, v72\nv_sub_f32 v76, v{37+2*i}, v72\nv_fmac_f32 v73, v75, v75\nv_fmac_f32 v74, v76, v76")
        a("v_add_f32 v73, v73, v74\ns_nop 1")
        self.dpp_allred16("v_add_f32", [73])
        a(f"""v_mul_f32 v73, {hex(f2u(1/448))}, v73
        v_cvt_pk_bf16_f32 v74, v72, v73
        v_lshlrev_b32 v72, 16, v74
        v_and_b32 v73, s60, v74
        v_add_f32 v73, {hex(f2u(1e-5))}, v73
        v_cvt_pk_bf16_f32 v73, v73, v73
        v_and_b32 v73, s60, v73
        v_sqrt_f32 v73, v73
        s_nop 0
        v_cvt_pk_bf16_f32 v73, v73, v73
        v_and_b32 v73, s60, v73
        v_rcp_f32 v73, v73""")
        for i in range(4):
            a(f"""v_sub_f32 v{64+2*i}, v{64+2*i}, v72
            v_sub_f32 v{65+2*i}, v{65+2*i}, v72
            v_cvt_pk_bf16_f32 v74, v{64+2*i}, v{65+2*i}
            v_lshlrev_b32 v75, 16, v74
            v_and_b32 v76, s60, v74
            v_mul_f32 v75, v75, v73
            v_mul_f32 v76, v76, v73
            v_cvt_pk_bf16_f32 v{30+i}, v75, v76""")
        a(f"ds_write_b64 v105, v[30:31] offset:{XN}\nds_write_b64 v105, v[32:33] offset:{XN+128}")
        for ks in range(4):
            a(f"ds_read2_b64 v[{16+4*ks}:{19+4*ks}], v104 offset0:{ks*8} offset1:{ks*8+4}")
        self.stamp(2)
        self.waitflag(F_WQ, n=4, t="v96")
        self.stamp(3)
        for ks in range(4):
            for i in range(4):
                for half in range(2):
                    r = 32 + (ks*4 + i)*4 + half*2
                    a(f"ds_read_b64_tr_b16 v[{r}:{r+1}], v{100+i} offset:{ks*4096 + half*2048}")
            if ks & 1:
                a("s_waitcnt lgkmcnt(0)")
                for k2 in (ks-1, ks):
                    for i in range(4):
                        r = 32 + (k2*4 + i)*4; d = 112 + 4*i
                        cin = "0" if k2 == 0 else f"v[{d}:{d+3}]"
                        a(f"v_mfma_f32_16x16x32_bf16 v[{d}:{d+3}], v[{16+4*k2}:{19+4*k2}], v[{r}:{r+3}], {cin}")
        self.waitflag(F_CLR)
        self.stamp(4)
        a(f"""s_waitcnt vmcnt(0)
        v_add_u32 v110, 1, v110
        s_mov_b32 s56, 0x07060500
        s_mov_b32 s57, 0x07060501
        s_mov_b32 s58, 0x07060502
        s_mov_b32 s59, 0x07060503
        ds_write_b32 v3, v110 offset:{F_TAG}
        v_perm_b32 v112, v112, v110, s56
        v_perm_b32 v113, v116, v110, s57
        v_perm_b32 v114, v120, v110, s58
        s_getreg_b32 s62, hwreg(HW_REG_XCC_ID, 0, 4)
        v_bfe_u32 v118, v110, 24, 4
        v_lshl_or_b32 v118, s62, 4, v118
        v_lshrrev_b32 v116, 8, v110
        v_lshrrev_b32 v117, 16, v110
        v_perm_b32 v115, v124, v118, s56
        s_lshl_b32 s53, s52, 16
        s_lshl_b32 s54, s48, 11
        s_add_u32 s53, s53, s54
        s_and_b32 s55, s49, 7
        s_lshl_b32 s55, s55, 8
        s_add_u32 s53, s53, s55
        {'' if 'qx' in self.skip else 'buffer_store_dwordx4 v[112:115], v106, s[16:19], s53 offen sc1'}
        s_and_b32 s55, s49, 3
        s_lshl_b32 s55, s55, 14
        s_add_u32 s54, s54, s55
        s_add_u32 s55, s54, 0x10000
        s_add_u32 s56, s54, 0x20000
        s_add_u32 s57, s54, 0x30000""")
        a("s_waitcnt vmcnt(0)")
        if self.qd: a(f"s_sleep {self.qd}")
        self.stamp(9)
        c("q gather")
        tg = [110, 116, 117, 118]
        if 'qx' in self.skip: a("s_branch L_qgskip")
        a("L_qg:")
        for rg in range(4):
            for z in range(2):
                r = 16 + (rg*2 + z)*4
                a(f"buffer_load_dwordx4 v[{r}:{r+3}], v108, s[16:19], s{54+rg} offen offset:{z*1024} sc1")
        a(f"s_waitcnt vmcnt(0)\nv_xor_b32 v8, v16, v110\nv_xor_b32 v119, v19, v118")
        for k in range(1, 32):
            if k == 3: continue
            d = 119 if (k & 3) == 3 else 8
            a(f"v_bitop3_b32 v{d}, v{d}, v{16+k}, v{tg[k & 3]} bitop3:0xf6")
        a("v_and_b32 v8, 0xff, v8\nv_and_or_b32 v8, v119, 15, v8\nv_cmp_ne_u32 vcc, 0, v8")
        self.retry("L_qg")
        a("L_qgskip:")
        for k in range(8):
            a(f"v_add_f32 v{80+k}, v{16+k}, v{24+k}\nv_add_f32 v{88+k}, v{32+k}, v{40+k}")
        self.stamp(5)
        for k in range(8):
            a(f"v_add_f32 v{80+k}, v{80+k}, v{88+k}")
        a(f"v_lshlrev_b32 v9, 7, v7\nv_lshl_add_u32 v9, v12, 1, v9")
        for k in range(4):
            a(f"v_cvt_pk_bf16_f32 v{88+k}, v{80+2*k}, v{81+2*k}")
        for k in range(4):
            z = k >> 1; i = (k & 1)*2
            a(f"ds_write_b16 v9, v{88+k} offset:{QB + z*512 + i*32}\nds_write_b16_d16_hi v9, v{88+k} offset:{QB + z*512 + i*32 + 32}")
        self.setflag(F_Q, "v3")
        a(f"v_and_b32 v119, 0xf0, v119\nv_cmp_ne_u32 vcc, 0, v119\ns_cmp_eq_u64 vcc, 0\ns_cselect_b32 s62, {2 if 'noloc' in self.skip else 1}, 2\nv_mov_b32 v119, s62")
        a(f"""s_cmp_lg_u32 s49, 31
        s_cbranch_scc1 L_nogr
        s_lshl_b32 s53, s48, 2
        s_add_u32 s53, s53, {GR}
        s_mov_b64 exec, 1
        buffer_store_dword v110, v108, s[16:19], s53 offen sc1
        s_mov_b64 exec, -1
        L_nogr:""")
        c("softmax over the 128 local keys, 2 heads")
        a(f"""s_lshl_b32 s53, s48, 2
        s_and_b32 s54, s49, 3
        s_add_u32 s53, s53, s54
        s_lshl_b32 s53, s53, 10
        s_add_u32 s53, s53, {STAT}
        s_lshr_b32 s54, s2, 5
        s_lshl_b32 s54, s54, 7
        s_add_u32 s54, s54, s53
        s_mov_b32 s61, {hex(f2u(1.4426950408889634/16))}
        v_and_b32 v30, 8, v0
        """)
        self.waitflag(F_S, n=4, t="v96", sleep=False)
        self.stamp(6)
        a(f"""ds_read_b64 v[16:17], v10 offset:{SP}
        s_waitcnt lgkmcnt(0)
        v_lshlrev_b32 v18, 16, v16
        v_and_b32 v19, s60, v16
        v_lshlrev_b32 v20, 16, v17
        v_and_b32 v21, s60, v17
        v_max_f32 v22, v18, v19
        v_max3_f32 v22, v22, v20, v21""")
        def red8x4(op, r, t):
            a(f"""s_nop 1
            {op}_dpp v{r}, v{r}, v{r} quad_perm:[1,0,3,2] row_mask:0xf bank_mask:0xf
            s_nop 1
            {op}_dpp v{r}, v{r}, v{r} quad_perm:[2,3,0,1] row_mask:0xf bank_mask:0xf
            s_nop 1
            {op}_dpp v{r}, v{r}, v{r} row_half_mirror row_mask:0xf bank_mask:0xf
            v_mov_b32 v{t}, v{r}
            s_nop 1
            v_permlane16_swap_b32 v{r}, v{t}
            {op} v{r}, v{r}, v{t}
            v_mov_b32 v{t}, v{r}
            s_nop 1
            v_permlane32_swap_b32 v{r}, v{t}
            {op} v{r}, v{r}, v{t}""")
        red8x4("v_max_f32", 22, 24)
        for k in range(4):
            a(f"v_sub_f32 v{18+k}, v{18+k}, v22\nv_mul_f32 v{18+k}, s61, v{18+k}\nv_exp_f32 v{18+k}, v{18+k}")
        a(f"""s_nop 0
        v_cvt_pk_bf16_f32 v16, v18, v19
        v_cvt_pk_bf16_f32 v17, v20, v21
        ds_write_b64 v10, v[16:17] offset:{SP}""")
        a(f"ds_write_b32 v3, v119 offset:{F_P}")
        a("v_add_f32 v23, v18, v19\nv_add_f32 v24, v20, v21\nv_add_f32 v23, v23, v24")
        red8x4("v_add_f32", 23, 24)
        a(f"""v_min_u32 v23, -2, v23
        s_mov_b64 exec, 0x180
        s_cmp_eq_u32 s62, 1
        s_cbranch_scc1 L_sloc
        buffer_store_dwordx2 v[22:23], v30, s[16:19], s54 offen sc1
        s_branch L_exit
        L_sloc:
        buffer_store_dwordx2 v[22:23], v30, s[16:19], s54 offen
        """)
        self.stamp(7)
        a("s_branch L_exit")

    def swave(self):
        self.cur = 'S'
        a, c = self.a, self.c
        c("================= S-wave: scores =================")
        a("L_swave:")
        a(f"""v_and_b32 v12, 15, v0
        v_xor_b32 v13, v7, v12
        v_lshlrev_b32 v13, 4, v13
        v_lshl_add_u32 v13, v12, 9, v13
        s_lshl_b32 s55, s50, 14
        s_add_u32 s55, s55, {KL}
        v_add_u32 v13, s55, v13
        v_xor_b32 v14, 64, v13
        v_xor_b32 v15, 0x80, v13
        v_xor_b32 v16, 0xc0, v13
        v_and_b32 v17, 1, v0
        v_lshlrev_b32 v18, 9, v17
        v_lshl_add_u32 v18, v7, 4, v18
        v_lshlrev_b32 v17, 6, v17
        v_lshl_add_u32 v17, v7, 4, v17
        s_lshl_b32 s56, s50, 7
        v_add_u32 v17, s56, v17""")
        c("weights prefetch addresses: u=0,1 wo ; u=2 w2 ; u=3 w1")
        self.srd(28, 32, 4096*896)
        self.srd(32, 64, 1792*896)
        self.srd(36, 48, 448*3584)
        self.srd(40, 56, 3584)
        if 'notouch2' not in self.skip:
            a("s_cmp_lg_u32 s50, 1\ns_cbranch_scc1 L_notouch\ns_cmp_lg_u32 s49, 30\ns_cbranch_scc1 L_notouch")
            a("s_load_dwordx4 s[72:75], s[0:1], 72")
            self.waitflag(F_KL, "v2")
            a(f"""s_load_dword s62, s[32:33], 0
            s_load_dword s64, s[40:41], 0
            s_load_dword s60, s[72:73], 0
            s_load_dword s61, s[74:75], 0
            L_notouch:""")
        a("s_lshl_b32 s56, s50, 4\nv_add_u32 v19, s56, v3")
        self.waitflag(F_KL, "v19", n=4)
        self.stamp(1)
        for ks in range(8):
            for T in range(2):
                r = 64 + (T*8 + ks)*4
                a(f"ds_read_b128 v[{r}:{r+3}], v{13 + (ks & 3)} offset:{(ks >> 2)*256 + T*8192}")
        self.pf_wo()
        if self.tkp == 100:
            a(f"""s_cmp_lg_u32 s50, 0
            s_cbranch_scc1 L_tki""")
            self.waitflag(F_Q)
            a(f"""s_lshl_b32 s56, s48, 7
            s_add_u32 s56, s56, {TK}
            v_mov_b32 v163, 1
            v_mov_b32 v9, 0
            s_mov_b64 exec, 1
            buffer_atomic_add v163, v9, s[16:19], s56 offen sc0 sc1
            s_mov_b64 exec, -1
            L_tki:""")
        self.waitflag(F_Q, sleep=False)
        self.stamp(2)
        a(f"ds_read_b32 v164, v3 offset:{F_TAG}")
        for ks in range(8):
            a(f"ds_read_b128 v[{32+4*ks}:{35+4*ks}], v18 offset:{QB + ks*64}")
        for ks in range(8):
            a(f"s_waitcnt lgkmcnt({7-ks})")
            for T in range(2):
                r = 64 + (T*8 + ks)*4; d = 20 + 4*T
                cin = "0" if ks == 0 else f"v[{d}:{d+3}]"
                a(f"v_mfma_f32_16x16x32_bf16 v[{d}:{d+3}], v[{r}:{r+3}], v[{32+4*ks}:{35+4*ks}], {cin}")
        a("s_nop 7")
        for k in range(4):
            a(f"v_cvt_pk_bf16_f32 v{28+k}, v{20+2*k}, v{21+2*k}")
        a(f"""s_mov_b32 exec_lo, 0x00030003
        s_mov_b32 exec_hi, 0x00030003
        ds_write_b128 v17, v[28:31] offset:{SP}
        s_mov_b64 exec, -1""")
        self.setflag(F_S)
        self.stamp(3)
        if 'roles' in self.skip: a("s_branch L_exit")
        if self.tkp == 100:
            a(f"""s_cmp_lg_u32 s50, 0
            s_cbranch_scc1 L_tkw
            s_mov_b64 exec, 1
            s_waitcnt vmcnt(0)
            v_add_u32 v8, 1, v163
            ds_write_b32 v3, v8 offset:{F_TK}
            s_mov_b64 exec, -1
            L_tkw:""")
            self.waitflag(F_TK)
            a("v_readfirstlane_b32 s49, v8\ns_nop 0\ns_sub_u32 s49, s49, 1")
            if self.prof: a("v_writelane_b32 v167, s49, 61")
        elif self.tkp >= 0:
            a("s_cmp_lg_u32 s50, 0\ns_cbranch_scc1 L_tkw")
            self.waitflag(F_V8, "v2")
            a(f"""s_lshl_b32 s56, s48, 7
            s_add_u32 s56, s56, {TK}
            v_mov_b32 v8, 1
            v_mov_b32 v9, 0
            s_mov_b64 exec, 1
            buffer_atomic_add v8, v9, s[16:19], s56 offen sc0 sc1
            s_waitcnt vmcnt(0)
            v_add_u32 v8, 1, v8
            ds_write_b32 v3, v8 offset:{F_TK}
            s_mov_b64 exec, -1
            L_tkw:""")
            self.waitflag(F_TK)
            a("v_readfirstlane_b32 s49, v8\ns_nop 0\ns_sub_u32 s49, s49, 1")
            if self.prof: a("v_writelane_b32 v167, s49, 61")
        a("""v_readfirstlane_b32 s70, v164
        s_cmp_lt_u32 s49, 14
        s_cbranch_scc1 L_wo
        s_mov_b32 s71, s70""")
        if 'nomlp' in self.skip: a("s_branch L_exit")
        if 'nomlpwg' in self.skip: a("s_cmp_lt_u32 s49, 21\ns_cbranch_scc1 L_exit")
        a("""s_cmp_lt_u32 s49, 21
        s_cbranch_scc1 L_mlp""")
        if 'nofin' in self.skip: a("s_branch L_exit")
        a("""s_cmp_lt_u32 s49, 28
        s_cbranch_scc0 L_exit
        s_cmp_ge_u32 s50, 2
        s_cbranch_scc1 L_fin
        s_branch L_exit""")

    def pf(self, srd, so):
        ntw = (" " + self.ntp) if self.ntp else ""
        self.a(f"buffer_load_dword v165, v8, s[{srd}:{srd+3}], {so} offen{ntw}")
    def pf_wo(self, early=False):
        a = self.a
        a(f"""s_lshl_b32 s66, s48, 5
        s_add_u32 s66, s66, s49
        s_lshl_b32 s66, s66, 2
        s_add_u32 s66, s66, s50
        s_mul_i32 s66, s66, 3584""")
        self.waitflag(F_WQ if self.pft < 0 else F_KL + 16*self.pft, "v2")
        a("v_lshlrev_b32 v8, 7, v0\ns_mov_b64 exec, 0x0fffffff")
        self.pf(28, "s66")
        a("s_mov_b64 exec, -1")
        if '2' in self.pw:
            a(f"""s_cmp_lg_u32 s50, 2
            s_cbranch_scc1 L_pf3
            s_lshl_b32 s66, s48, 5
            s_add_u32 s66, s66, s49
            s_mul_i32 s66, s66, 6272
            s_mov_b32 exec_hi, 0x0001ffff""")
            self.pf(32, "s66")
            a("s_mov_b32 exec_hi, -1\nL_pf3:")
        if '1' in self.pw:
            a(f"""s_cmp_lg_u32 s50, 3
            s_cbranch_scc1 L_pfd
            v_lshrrev_b32 v8, 2, v0
            v_mul_u32_u24 v8, 3584, v8
            v_and_b32 v11, 3, v0
            v_lshl_add_u32 v8, v11, 7, v8
            s_mul_i32 s66, s49, {14*3584}
            s_mul_i32 s67, s48, 448
            s_andn2_b32 s67, s67, 127
            s_add_u32 s66, s66, s67
            s_mov_b32 exec_hi, 0x00ffffff""")
            self.pf(36, "s66")
            a("s_mov_b32 exec_hi, -1\nL_pfd:")

    def role_wo(self):
        self.cur = 'WO'
        a, c = self.a, self.c; ntw = (" " + self.ntw) if self.ntw else ""
        c("================= role WO =================")
        a("L_wo:")
        a(f"""s_cmp_ge_u32 s49, 7
        s_cselect_b32 s52, 1, 0
        s_mul_i32 s53, s52, 7
        s_sub_u32 s53, s49, s53
        s_lshr_b32 s68, s50, 1
        s_and_b32 s69, s50, 1
        s_lshl_b32 s56, s52, 1
        s_add_u32 s69, s69, s56
        s_lshl_b32 s54, s48, 1
        s_add_u32 s54, s54, s68
        s_lshl_b32 s54, s54, 2
        s_add_u32 s54, s54, s69
        s_mul_i32 s54, s54, {64*896}
        s_lshl_b32 s56, s53, 7
        s_add_u32 s54, s54, s56
        v_and_b32 v20, 3, v6
        v_lshlrev_b32 v20, 4, v20
        v_lshrrev_b32 v21, 5, v0
        v_lshl_add_u32 v20, v21, 1, v20
        v_mul_u32_u24 v20, 896, v20
        v_add_u32 v20, v20, v5
        s_mov_b32 m0, s55""")
        self.tr_addr(160, "s55", 21)
        a(f"""v_xor_b32 v21, v0, v6
        v_lshlrev_b32 v21, 4, v21
        v_and_b32 v22, 7, v0
        v_xor_b32 v12, v7, v22
        v_lshlrev_b32 v12, 4, v12
        v_and_b32 v22, 15, v0
        v_lshl_add_u32 v12, v22, 7, v12
        s_add_u32 s72, s55, 8192
        v_add_u32 v12, s72, v12
        v_xor_b32 v13, 64, v12
        v_and_b32 v22, 3, v0
        s_lshl_b32 s57, s48, 2
        s_add_u32 s57, s57, s69
        s_lshl_b32 s57, s57, 1
        s_add_u32 s57, s57, s68
        s_lshl_b32 s57, s57, 12
        s_add_u32 s57, s57, {OP}
        v_lshrrev_b32 v15, 1, v0
        v_lshlrev_b32 v15, 7, v15
        s_lshl_b32 s59, s48, 12
        s_lshl_b32 s56, s68, 3
        s_add_u32 s59, s59, s56
        s_add_u32 s59, s59, {STAT}
        s_mov_b32 s69, {hex(f2u(1.4426950408889634/16))}
        s_lshl_b32 s56, s50, 10
        v_lshlrev_b32 v23, 2, v0
        v_add_u32 v24, s56, v23
        v_add_u32 v24, {RED}, v24""")
        a(f"""v_lshrrev_b32 v25, 5, v0
        v_lshlrev_b32 v25, 8, v25
        v_bfe_u32 v26, v0, 2, 3
        v_lshl_add_u32 v25, v26, 3, v25
        v_and_b32 v26, 1, v0
        v_lshl_add_u32 v25, v26, 2, v25
        s_lshl_b32 s56, s50, 6
        s_add_u32 s56, s56, {RED}
        v_add_u32 v25, s56, v25
        v_cmp_eq_u32 vcc, 2, v22
        v_mov_b32 v26, 1.0
        s_lshl_b32 s58, s50, 12
        v_cndmask_b32 v26, 0, v26, vcc
        s_lshl_b32 s56, s53, 9
        s_add_u32 s58, s58, s56
        s_add_u32 s58, s58, {HACC}
        v_mov_b32 v27, v26""")
        a(f"""v_and_b32 v29, 28, v23
        s_mov_b32 s61, {GR}
        v_lshlrev_b32 v30, 8, v0
        s_lshl_b32 s60, s48, 2
        s_lshl_b32 s62, s52, 7
        s_add_u32 s60, s60, s62
        s_lshl_b32 s62, s53, 11
        s_add_u32 s60, s60, s62
        s_add_u32 s60, s60, {EW}
        s_cmp_eq_u32 s50, 0
        s_cselect_b64 s[62:63], 0xff, 0""")
        a("buffer_load_dword v165, v15, s[16:19], s57 offen sc1")
        self.stamp(10)
        self.waitflag(F_VI, n=4, t="v8", sleep=False)
        a(f"""buffer_load_dwordx2 v[16:17], v15, s[16:19], s59 offen sc1
        buffer_load_dword v31, v29, s[16:19], s61 offen sc1""")
        for p in range(8):
            rows = 4*(p & 1) + ((p >> 1) & 1) + 8*(p >> 2)
            a(f"s_add_u32 m0, s55, {p*1024}\ns_add_u32 s56, s54, {rows*896}")
            a(f"buffer_load_dwordx4 v20, s[28:31], s56 offen{ntw} lds")
        a("s_waitcnt vmcnt(9)\nv_cmp_eq_u32 vcc, -1, v17\ns_cbranch_vccnz L_stwait\nL_stok:")
        c("combine weights w[b][h][j] = exp(m_j - M) / L")
        a("v_mov_b32 v19, v16\ns_nop 1")
        for rot in (8, 4, 2):
            a(f"v_max_f32_dpp v19, v19, v19 row_ror:{rot} row_mask:0xf bank_mask:0xf\ns_nop 1")
        a("v_sub_f32 v16, v16, v19\nv_mul_f32 v16, s69, v16\nv_exp_f32 v16, v16\ns_nop 0\nv_mul_f32 v17, v17, v16\ns_nop 1")
        for rot in (8, 4, 2):
            a(f"v_add_f32_dpp v17, v17, v17 row_ror:{rot} row_mask:0xf bank_mask:0xf\ns_nop 1")
        a("v_rcp_f32 v17, v17\ns_nop 0\nv_mul_f32 v16, v16, v17\ns_nop 1")
        for j in range(8):
            a(f"v_mov_b32_dpp v{96+j}, v16 row_newbcast:{2*j} row_mask:0xf bank_mask:0xf")
        a("s_waitcnt vmcnt(0)")
        self.stamp(4)
        for z in range(2):
            for i in range(4):
                for half in range(2):
                    r = 128 + (z*4 + i)*4 + half*2
                    a(f"ds_read_b64_tr_b16 v[{r}:{r+1}], v{160+i} offset:{z*4096 + half*2048}")
        l = self.lab("OP")
        a(f"s_mov_b32 m0, s72\n{l}:\ns_nop 0")
        for q in range(4):
            a(f"buffer_load_dwordx4 v21, s[16:19], s57 offen offset:{q*1024} sc1 lds")
        a("s_waitcnt vmcnt(0)")
        for z in range(2):
            for st_ in range(2):
                r = 32 + (z*2 + st_)*4
                a(f"ds_read_b128 v[{r}:{r+3}], v{12+z} offset:{st_*2048}")
        def ew(k):
            if self.ewp == k:
                a("s_mov_b64 exec, s[62:63]"); c("NOPAD_ON"); a("buffer_store_dword v164, v30, s[16:19], s60 offen sc1\ns_mov_b64 exec, -1"); c("NOPAD_OFF")
        def mf(i, z, st_):
            d = 64 + (i*2 + st_)*4; ra = 32 + (z*2 + st_)*4; rb = 128 + (z*4 + i)*4
            cin = "0" if z == 0 else f"v[{d}:{d+3}]"
            a(f"v_mfma_f32_16x16x32_bf16 v[{d}:{d+3}], v[{ra}:{ra+3}], v[{rb}:{rb+3}], {cin}")
        def fm(i, st_, r):
            d = 64 + (i*2 + st_)*4; acc = 48 + 4*i + st_
            if r == 0: a(f"v_mul_f32 v{acc}, v{d}, v{96+4*st_}")
            else: a(f"v_fmac_f32 v{acc}, v{d+r}, v{96+4*st_+r}")
        c("tile 0 starts speculatively while the sentinels are checked")
        a("s_waitcnt lgkmcnt(3)"); mf(0, 0, 0)
        a("s_waitcnt lgkmcnt(2)"); mf(0, 0, 1)
        a("v_max3_u32 v28, v32, v34, v36\ns_waitcnt lgkmcnt(1)"); mf(0, 1, 0)
        a("v_max3_u32 v14, v38, v40, v42\ns_waitcnt lgkmcnt(0)"); mf(0, 1, 1)
        a("v_max3_u32 v28, v28, v44, v46\nv_max_u32 v28, v28, v14\nv_cmp_eq_u32 vcc, -1, v28")
        mf(1, 0, 0)
        self.retry(l)
        if self.ewp == 0: a("s_barrier")
        ew(0)
        self.stamp(5)
        seq = [(1, 0, 1), (1, 1, 0), (1, 1, 1)] + [(i, z, st_) for i in (2, 3) for z in range(2) for st_ in range(2)]
        fq = [(i, st_, r) for i in range(4) for r in range(4) for st_ in range(2)]
        for k, m in enumerate(seq):
            mf(*m)
            if k >= 3:
                for _ in range(2): fm(*fq.pop(0))
        a("v_add_f32 v48, v48, v49\nv_add_f32 v52, v52, v53")
        for _ in range(4): fm(*fq.pop(0))
        a("ds_write2st64_b32 v24, v48, v52 offset0:0 offset1:1")
        for _ in range(4): fm(*fq.pop(0))
        a("v_cmp_ne_u32 vcc, v31, v164\nv_add_f32 v56, v56, v57")
        while fq: fm(*fq.pop(0))
        a("v_add_f32 v60, v60, v61")
        a("ds_write2st64_b32 v24, v56, v60 offset0:2 offset1:3")
        a("s_cbranch_vccnz L_grwait\nL_grok:")
        ew(1)
        a("s_waitcnt lgkmcnt(0)\ns_barrier")
        ew(2)
        a("""ds_read2st64_b32 v[32:33], v25 offset0:0 offset1:4
        ds_read2st64_b32 v[34:35], v25 offset0:8 offset1:12
        ds_read2st64_b32 v[36:37], v25 offset0:2 offset1:6
        ds_read2st64_b32 v[38:39], v25 offset0:10 offset1:14
        s_mov_b32 exec_lo, 0x33333333
        s_mov_b32 exec_hi, 0x33333333
        s_waitcnt lgkmcnt(2)
        v_add_f32 v32, v32, v33
        v_add_f32 v34, v34, v35
        v_add_f32 v26, v32, v34
        s_waitcnt lgkmcnt(0)
        v_add_f32 v36, v36, v37
        v_add_f32 v38, v38, v39
        v_add_f32 v27, v36, v38
        s_mov_b64 exec, -1
        buffer_atomic_add_f32 v26, v23, s[16:19], s58 offen
        buffer_atomic_add_f32 v27, v23, s[16:19], s58 offen offset:256""")
        ew(3)
        self.stamp(6)
        a("s_branch L_exit")
        a("L_grwait:\nbuffer_load_dword v31, v29, s[16:19], s61 offen sc1\ns_waitcnt vmcnt(0)\nv_cmp_ne_u32 vcc, v31, v164")
        self.retry("L_grwait")
        a("s_branch L_grok")
        a("L_stwait:\ns_sleep 1\nbuffer_load_dwordx2 v[16:17], v15, s[16:19], s59 offen sc1\ns_waitcnt vmcnt(0)\nv_cmp_eq_u32 vcc, -1, v17")
        self.retry("L_stwait")
        a("s_branch L_stok")

    def wave_sum2(self, r0, r1, s0, s1):
        a = self.a
        for ctl in ("row_shr:1", "row_shr:2", "row_shr:4", "row_shr:8"):
            a(f"v_add_f32_dpp v{r0}, v{r0}, v{r0} {ctl} row_mask:0xf bank_mask:0xf bound_ctrl:0" if False else
              f"v_add_f32_dpp v{r0}, v{r0}, v{r0} {ctl.replace('shr','ror')} row_mask:0xf bank_mask:0xf")
            a(f"v_add_f32_dpp v{r1}, v{r1}, v{r1} {ctl.replace('shr','ror')} row_mask:0xf bank_mask:0xf\ns_nop 0")
        a(f"v_add_f32_dpp v{r0}, v{r0}, v{r0} row_bcast:15 row_mask:0xa bank_mask:0xf")
        a(f"v_add_f32_dpp v{r1}, v{r1}, v{r1} row_bcast:15 row_mask:0xa bank_mask:0xf\ns_nop 0")
        a(f"v_add_f32_dpp v{r0}, v{r0}, v{r0} row_bcast:31 row_mask:0xc bank_mask:0xf")
        a(f"v_add_f32_dpp v{r1}, v{r1}, v{r1} row_bcast:31 row_mask:0xc bank_mask:0xf")
        a(f"v_readlane_b32 s{s0}, v{r0}, 63\nv_readlane_b32 s{s1}, v{r1}, 63\ns_nop 1")

    def ew_gate(self, va):
        a = self.a
        l = self.lab("EW")
        a(f"v_lshlrev_b32 v{va}, 7, v12\ns_mov_b32 s63, {EW}")
        a(f"{l}:\nbuffer_load_dword v8, v{va}, s[16:19], s63 offen sc1\ns_waitcnt vmcnt(0)\nv_cmp_ne_u32 vcc, v8, v164")
        self.retry(l)

    def role_mlp(self):
        self.cur = 'MLP'
        a, c = self.a, self.c; ntw = (" " + self.ntw) if self.ntw else ""
        c("================= role MLP =================")
        a("L_mlp:")
        a(f"""s_mul_i32 s52, s48, 7
        s_add_u32 s52, s52, s49
        s_sub_u32 s52, s52, 14
        v_lshrrev_b32 v20, 2, v0
        v_mul_u32_u24 v20, 3584, v20
        v_and_b32 v22, 3, v0
        v_lshl_add_u32 v20, v22, 4, v20
        v_mul_u32_u24 v21, 896, v6
        v_add_u32 v21, v21, v5
        s_mul_i32 s53, s50, {7*16*3584}
        s_lshl_b32 s54, s52, 6
        s_add_u32 s53, s53, s54
        s_mul_i32 s56, s52, {32*896}
        s_lshl_b32 s57, s50, 7
        s_add_u32 s56, s56, s57
        v_lshlrev_b32 v23, 2, v0
        s_mul_i32 s57, s50, 896
        s_xor_b32 s59, s50, 2
        s_mul_i32 s59, s59, 896
        s_lshl_b32 s58, s50, 5
        s_add_u32 s54, s54, s58
        v_lshlrev_b32 v24, 1, v12""")
        self.waitflag(F_VI, n=4, t="v96", sleep=False)
        c("w1 tile (shared, 7 pieces per wave), w2 tile (private: quads u, u+4), x rows, b1")
        a("s_mov_b32 m0, s55\ns_nop 0")
        for x in range(7):
            if x == 4: a("s_add_u32 m0, s55, 4096\ns_add_u32 s53, s53, 4096")
            a(f"buffer_load_dwordx4 v20, s[36:39], s53 offen offset:{(x%4)*1024}{ntw} lds")
            a(f"s_add_u32 s53, s53, {16*3584 - 1024}")
        a("s_mov_b32 exec_hi, 0x00ffffff")
        for i in range(4):
            a(f"buffer_load_dword v{36+i}, v23, s[20:23], s57 offen offset:{i*224}")
        for i in range(4):
            a(f"buffer_load_dword v{156+i}, v23, s[20:23], s59 offen offset:{i*224}")
        a("s_mov_b32 exec_hi, -1\nbuffer_load_ushort v28, v24, s[40:43], s54 offen")
        a(f"s_add_u32 s57, s57, {YL}")
        for i in range(4):
            a(f"""v_add_u32 v25, {56*i}, v0
            v_lshrrev_b32 v26, 4, v25
            v_lshlrev_b32 v26, 6, v26
            v_bfe_u32 v27, v25, 1, 2
            v_lshl_add_u32 v26, v27, 4, v26
            v_and_b32 v27, 8, v25
            v_add_u32 v26, v26, v27
            v_and_b32 v27, 1, v25
            v_lshl_add_u32 v26, v27, 2, v26
            v_add_u32 v{32+i}, s57, v26""")
        a("s_add_u32 s53, s55, 8192")
        self.tr_addr(160, "s53", 25)
        a(f"""v_lshrrev_b32 v13, 2, v0
        v_lshlrev_b32 v13, 6, v13
        v_lshl_add_u32 v13, v22, 3, v13
        s_and_b32 s58, s58, 32
        s_add_u32 s58, s58, {KL}
        v_add_u32 v13, s58, v13
        v_bfe_u32 v15, v0, 2, 2
        v_mul_u32_u24 v16, 896, v15
        v_lshl_add_u32 v16, v7, 4, v16
        v_add_u32 v16, {YL}, v16
        v_lshlrev_b32 v17, 6, v7
        v_lshl_add_u32 v17, v15, 4, v17
        v_lshl_add_u32 v17, v22, 1, v17
        s_lshl_b32 s58, s50, 3
        s_add_u32 s53, s58, {H1L}
        v_add_u32 v17, s53, v17
        v_lshlrev_b32 v18, 6, v15
        v_lshl_add_u32 v18, v7, 4, v18
        v_add_u32 v18, {H1L}, v18
        v_mov_b32 v19, {ZR}
        v_lshlrev_b32 v14, 3, v7
        v_mov_b32 v15, s58""")
        for i in range(4):
            a(f"v_cmp_eq_u32 vcc, {i}, v22\ns_nop 1\nv_cndmask_b32 v{24+i}, v19, v18, vcc")
        a(f"""s_lshl_b32 s57, s50, 12
        s_add_u32 s57, s57, {HACC}
        s_xor_b32 s61, s57, 0x2000
        s_mul_i32 s58, s52, 7168
        s_lshl_b32 s59, s50, 10
        s_add_u32 s58, s58, s59
        s_add_u32 s58, s58, {PART}
        s_add_u32 s62, s58, 4096
        s_mov_b32 s59, {hex(f2u(16.0))}
        s_lshl_b32 s63, s52, 8
        s_add_u32 s63, s63, {EW}
        s_add_u32 s64, s16, s63
        s_addc_u32 s65, s17, 0
        v_mul_u32_u24 v19, {7*128}, v0
        s_sub_u32 s63, s49, 14
        s_lshl_b32 s63, s63, 7
        s_lshl_b32 s53, s48, 2
        s_add_u32 s63, s63, s53
        s_add_u32 s63, s63, {FH}
        s_mov_b32 s60, 0xffff0000""")
        for i in range(8): a(f"v_mov_b32 v{40+i}, 0\nv_mov_b32 v{104+i}, 0")
        self.waitflag(F_PV, n=4, t="v96", sleep=False)
        for p in range(8):
            a(f"s_add_u32 m0, s55, {8192 + p*1024}\ns_add_u32 s53, s56, {(p & 3)*8*896 + (p >> 2)*512}")
            a(f"buffer_load_dwordx4 v21, s[32:35], s53 offen{ntw} lds")
        a("v_lshlrev_b32 v21, 4, v0\ns_waitcnt vmcnt(8)")
        self.setflag(F_W1)
        a("s_mov_b32 exec_hi, 0x00ffffff")
        for i in range(4):
            a(f"v_lshlrev_b32 v{40+2*i}, 16, v{36+i}\nv_and_b32 v{41+2*i}, s60, v{36+i}")
        a("s_cmp_ge_u32 s50, 2\ns_cbranch_scc0 L_mlp_w1")
        for i in range(4):
            a(f"v_lshlrev_b32 v{104+2*i}, 16, v{156+i}\nv_and_b32 v{105+2*i}, s60, v{156+i}")
        a("s_branch L_mlp_w2\nL_mlp_w1:\ns_mov_b32 exec_hi, -1")
        c("waves 0,1: w1 B operands and their column sums")
        self.waitflag(F_W1, n=4, t="v96", sleep=False)
        for ks in range(14):
            for half in range(2):
                p = 2*ks + half
                r = 64 + ks*4 + half*2
                a(f"ds_read_b64_tr_b16 v[{r}:{r+1}], v13 offset:{(p//7)*16384 + (p%7)*1024}")
        for k in range(4): a(f"v_mov_b32 v{8+k}, 0x3f803f80")
        a("v_lshlrev_b32 v28, 16, v28")
        a("s_waitcnt lgkmcnt(0)")
        for ks in range(14):
            a(f"v_mfma_f32_16x16x32_bf16 v[152:155], v[8:11], v[{64+4*ks}:{67+4*ks}], {'0' if ks == 0 else 'v[152:155]'}")
        a("L_mlp_w2:\ns_mov_b32 exec_hi, -1")
        self.stamp(4)
        def w2rd(n):
            a(f"s_mov_b32 exec_hi, -1\ns_waitcnt vmcnt({n})")
            for qq in range(2):
                for i in range(4):
                    for half in range(2):
                        r = 120 + (qq*4 + i)*4 + half*2
                        a(f"ds_read_b64_tr_b16 v[{r}:{r+1}], v{160+i} offset:{qq*4096 + half*2048}")
            a("s_mov_b32 exec_hi, 0x00ffffff")
        def fh(k):
            if self.hp == k:
                a("s_mov_b64 exec, 0xff\nbuffer_store_dword v164, v19, s[16:19], s63 offen sc1\ns_mov_b64 exec, -1")
        a("s_cmp_lg_u32 s50, 3\ns_cbranch_scc1 L_ewbar")
        self.phint(16)
        a("L_ewbar:\ns_barrier")
        if self.prof: a("s_memrealtime s[94:95]")
        a("v_mov_b32 v29, v152")
        a("s_mov_b32 exec_hi, 0x00ffffff\ns_cmp_ge_u32 s50, 2\ns_cbranch_scc1 L_mlp_b")
        def own_row(after):
            a(f"s_waitcnt vmcnt({after})")
            for i in range(4):
                a(f"v_add_f32 v{48+4*i}, v{48+4*i}, v{40+2*i}\nv_add_f32 v{49+4*i}, v{49+4*i}, v{41+2*i}\nv_cvt_pk_bf16_f32 v{36+i}, v{48+4*i}, v{49+4*i}\nds_write_b32 v{32+i}, v{36+i}")
            a("v_min_f32 v8, v50, v54\nv_min3_f32 v8, v8, v58, v62")
        c("---- waves 0,1: h row -> LDS, then (h @ w1) while waves 2,3 compute the LayerNorm statistics ----")
        a("L_hpa:")
        for i in range(4):
            a(f"buffer_load_dwordx4 v[{48+4*i}:{51+4*i}], v21, s[16:19], s57 offen offset:{i*896} sc1")
        w2rd(4)
        own_row(0)
        a("v_cmp_neq_f32 vcc, s59, v8")
        self.retry("L_hpa")
        self.stamp(5)
        if self.prof: a("v_writelane_b32 v167, s94, 9")
        a("s_mov_b32 exec_hi, -1\ns_waitcnt lgkmcnt(0)\ns_barrier")
        self.stamp(6)
        regs = [8, 32, 36, 40, 44, 48, 52, 56, 60, 156, 160, 8, 32, 36]
        for ks in range(11):
            a(f"ds_read_b128 v[{regs[ks]}:{regs[ks]+3}], v16 offset:{ks*64}")
        for ks in range(14):
            a(f"s_waitcnt lgkmcnt({10-ks if ks < 3 else 13-ks})")
            r = regs[ks]
            a(f"v_mfma_f32_16x16x32_bf16 v[152:155], v[{r}:{r+3}], v[{64+4*ks}:{67+4*ks}], {'0' if ks == 0 else 'v[152:155]'}")
            if ks == 2:
                for k2 in (11, 12, 13): a(f"ds_read_b128 v[{regs[k2]}:{regs[k2]+3}], v16 offset:{k2*64}")
        k1 = -2*1.4426950408889634*0.7978845608028654
        a(f"""s_barrier
        ds_read_b64 v[30:31], v14 offset:{STL}
        s_mov_b32 s64, {hex(f2u(k1*0.044715))}
        v_mov_b32 v9, {hex(f2u(k1))}
        s_waitcnt lgkmcnt(0)
        v_fma_f32 v28, -v31, v29, v28
        s_nop 1
        v_fmac_f32 v28, v152, v30
        v_mul_f32 v8, v28, v28
        v_fma_f32 v8, v8, s64, v9
        v_mul_f32 v8, v8, v28
        v_exp_f32 v8, v8
        s_nop 0
        v_add_f32 v8, 1.0, v8
        v_rcp_f32 v8, v8
        s_nop 0
        v_mul_f32 v8, v8, v28
        v_cvt_pk_bf16_f32 v8, v8, v8
        ds_write_b16 v17, v8
        s_waitcnt lgkmcnt(0)
        L_mlp2:
        s_barrier""")
        self.stamp(7)
        for i in range(4):
            a(f"ds_read_b128 v[{32+4*i}:{35+4*i}], v{24+i}")
        for i in range(4):
            a(f"s_waitcnt lgkmcnt({3-i})")
            for qq in range(2):
                d = 48 + 4*qq; r = 120 + (qq*4 + i)*4
                cin = "0" if i == 0 else f"v[{d}:{d+3}]"
                a(f"v_mfma_f32_16x16x32_bf16 v[{d}:{d+3}], v[{32+4*i}:{35+4*i}], v[{r}:{r+3}], {cin}")
        a("""s_nop 6
        v_min_u32 v48, -2, v48
        buffer_store_dwordx4 v[48:51], v21, s[16:19], s58 offen sc1
        s_cmp_eq_u32 s50, 3
        s_cbranch_scc1 L_exit
        v_min_u32 v52, -2, v52
        buffer_store_dwordx4 v[52:55], v21, s[16:19], s62 offen sc1""")
        self.stamp(8)
        a("s_branch L_exit")
        c("---- waves 2,3: own row -> LDS, statistics of rows u and u-2 ----")
        a("L_mlp_b:")
        for i in range(4):
            a(f"buffer_load_dwordx4 v[{48+4*i}:{51+4*i}], v21, s[16:19], s57 offen offset:{i*896} sc1")
        for i in range(4):
            a(f"buffer_load_dwordx4 v[{64+4*i}:{67+4*i}], v21, s[16:19], s61 offen offset:{i*896} sc1")
        w2rd(8)
        own_row(4)
        a("s_waitcnt vmcnt(0)\nv_min3_f32 v8, v8, v66, v70\nv_min3_f32 v8, v8, v74, v78\nv_cmp_neq_f32 vcc, s59, v8")
        self.retry("L_mlp_b")
        self.stamp(5)
        a("s_waitcnt lgkmcnt(0)\ns_barrier")
        for i in range(4):
            a(f"v_add_f32 v{104+2*i}, v{104+2*i}, v{64+4*i}\nv_add_f32 v{105+2*i}, v{105+2*i}, v{65+4*i}")
        ra = [48, 49, 52, 53, 56, 57, 60, 61]; rb = list(range(104, 112))
        a("s_mov_b32 exec_hi, -1\nv_mov_b32 v8, 0\nv_mov_b32 v9, 0\nv_mov_b32 v10, 0\nv_mov_b32 v11, 0")
        a("s_cmp_eq_u32 s50, 2\ns_cbranch_scc0 L_nofh0"); fh(0); a("L_nofh0:\ns_mov_b32 exec_hi, 0x00ffffff")
        for k in range(8):
            a(f"v_add_f32 v8, v8, v{ra[k]}\nv_fmac_f32 v9, v{ra[k]}, v{ra[k]}\nv_add_f32 v10, v10, v{rb[k]}\nv_fmac_f32 v11, v{rb[k]}, v{rb[k]}")
        a("s_mov_b32 exec_hi, -1")
        a("s_cmp_eq_u32 s50, 2\ns_cbranch_scc0 L_nofh2"); fh(2); a("L_nofh2:")
        c("reduce-scatter the four sums over the wave: rows 0..3 end up with S(u), S(u-2), Q(u), Q(u-2)")
        a("""s_nop 0
        v_permlane32_swap_b32 v8, v9
        v_permlane32_swap_b32 v10, v11
        v_add_f32 v8, v8, v9
        v_add_f32 v10, v10, v11
        s_nop 1
        v_permlane16_swap_b32 v8, v10
        v_add_f32 v8, v8, v10
        s_nop 1""")
        self.dpp_allred16("v_add_f32", [8])
        c("LN(LN(h)) = (h - m) * rs1 * rs2 : rs1 = rsq(v + eps), second LN sees mean 0 and variance v*rs1^2")
        a(f"""v_mul_f32 v8, {hex(f2u(1/448))}, v8
        v_mov_b32 v9, v8
        s_mov_b32 s64, {hex(f2u(1e-5))}
        v_and_b32 v10, 16, v0
        v_permlane32_swap_b32 v8, v9
        v_fma_f32 v9, -v8, v8, v9
        v_max_f32 v9, 0, v9
        v_add_f32 v11, s64, v9
        v_rsq_f32 v11, v11
        v_xor_b32 v15, v15, v10
        v_mul_f32 v9, v9, v11
        v_fma_f32 v9, v9, v11, s64
        v_rsq_f32 v9, v9
        s_mov_b32 exec_lo, 0x00010001
        s_mov_b32 exec_hi, 0
        v_mul_f32 v30, v9, v11
        v_mul_f32 v31, v30, v8
        ds_write_b64 v15, v[30:31] offset:{STL}
        s_mov_b64 exec, -1
        s_waitcnt lgkmcnt(0)
        s_barrier""")
        a("s_cmp_eq_u32 s50, 2\ns_cbranch_scc0 L_mlp2"); fh(1)
        a("s_branch L_mlp2")

    def role_fin(self):
        self.cur = 'FIN'
        a, c = self.a, self.c
        c("================= role FINAL =================")
        a("L_fin:")
        self.srd(40, 72, 896)
        self.srd(44, 80, 3584)
        a(f"""s_mul_i32 s52, s48, 7
        s_add_u32 s52, s52, s49
        s_lshl_b32 s52, s52, 1
        s_add_u32 s52, s52, s50
        s_sub_u32 s52, s52, 44
        s_lshl_b32 s53, s52, 6
        s_add_u32 s53, s53, {PART}
        s_add_u32 s54, s53, {16*7168}
        s_add_u32 s55, s53, {32*7168}
        s_add_u32 s56, s53, {48*7168}
        v_lshrrev_b32 v20, 2, v0
        v_mul_u32_u24 v20, 7168, v20
        v_and_b32 v22, 3, v0
        v_lshl_add_u32 v20, v22, 4, v20
        s_lshr_b32 s57, s52, 4
        s_lshl_b32 s57, s57, 6
        s_and_b32 s58, s52, 3
        s_lshl_b32 s58, s58, 2
        s_add_u32 s57, s57, s58
        v_and_b32 v23, 16, v0
        v_lshlrev_b32 v23, 1, v23
        v_lshrrev_b32 v24, 5, v0
        v_lshl_add_u32 v23, v24, 4, v23
        v_add3_u32 v23, v23, v22, s57
        v_lshlrev_b32 v24, 1, v23
        v_lshrrev_b32 v25, 1, v23
        v_lshlrev_b32 v25, 4, v25
        s_bfe_u32 s58, s52, 0x20002
        s_mul_i32 s59, s58, 896
        s_lshl_b32 s58, s58, 12
        s_add_u32 s58, s58, {HACC}
        s_mov_b32 s61, {hex(f2u(16.0))}
        v_mov_b32 v44, 0
        v_mov_b32 v45, 0
        v_mov_b32 v46, 0
        v_mov_b32 v47, 0
        s_waitcnt lgkmcnt(0)
        buffer_load_ushort v26, v24, s[20:23], s59 offen
        buffer_load_ushort v27, v24, s[40:43], 0 offen
        buffer_load_ushort v28, v24, s[44:47], s59 offen""")
        a(f"""s_lshr_b32 s63, s52, 1
        s_lshl_b32 s63, s63, 7
        s_add_u32 s63, s63, {FH}
        s_add_u32 s64, s16, s63
        s_addc_u32 s65, s17, 0
        v_and_b32 v8, 1, v0
        v_cmp_eq_u32 s[66:67], 1, v8
        s_waitcnt vmcnt(0)
        v_lshlrev_b32 v26, 16, v26
        v_lshlrev_b32 v27, 16, v27
        v_add_f32 v26, v26, v27""")
        a("s_cmp_lg_u32 s50, 3\ns_cbranch_scc1 L_fhbar")
        self.phint(8)
        a("L_fhbar:\ns_barrier")
        if self.prof: a("s_memrealtime s[94:95]")
        l = self.lab("FP")
        a(f"""{l}:
        buffer_load_dwordx4 v[28:31], v25, s[16:19], s58 offen sc1
        buffer_load_dwordx4 v[32:35], v20, s[16:19], s53 offen sc1
        buffer_load_dwordx4 v[36:39], v20, s[16:19], s54 offen sc1
        buffer_load_dwordx4 v[40:43], v20, s[16:19], s55 offen sc1
        s_mov_b32 exec_hi, 0
        buffer_load_dwordx4 v[44:47], v20, s[16:19], s56 offen sc1
        s_mov_b32 exec_hi, -1
        s_waitcnt vmcnt(4)
        v_cndmask_b32 v28, v28, v29, s[66:67]
        v_add_f32 v27, v26, v28
        v_cmp_neq_f32 s[68:69], s61, v30
        s_waitcnt vmcnt(0)
        v_max_u32 v8, v32, v36
        v_max3_u32 v8, v8, v40, v44
        v_cmp_eq_u32 vcc, -1, v8
        s_or_b64 vcc, vcc, s[68:69]""")
        self.retry(l)
        self.stamp(6)
        if self.prof: a("v_writelane_b32 v167, s94, 5")
        for k in range(4): a(f"v_add_f32 v{32+k}, v{32+k}, v{36+k}\nv_add_f32 v{40+k}, v{40+k}, v{44+k}")
        for k in range(4): a(f"v_add_f32 v{32+k}, v{32+k}, v{40+k}")
        a("""s_nop 0
        v_permlane32_swap_b32 v32, v33
        v_permlane32_swap_b32 v34, v35
        v_add_f32 v32, v32, v33
        v_add_f32 v34, v34, v35
        s_nop 1
        v_permlane16_swap_b32 v32, v34
        v_add_f32 v32, v32, v34
        s_nop 1
        v_add_f32_dpp v32, v32, v32 row_ror:4 row_mask:0xf bank_mask:0xf
        s_nop 1
        v_add_f32_dpp v32, v32, v32 row_ror:8 row_mask:0xf bank_mask:0xf
        v_add_f32 v32, v32, v27
        v_cvt_pk_bf16_f32 v32, v32, v32
        s_mov_b32 exec_lo, 0x000f000f
        s_mov_b32 exec_hi, 0x000f000f
        buffer_store_short v32, v24, s[44:47], s59 offen""")
        self.stamp(7)
        a(f"""s_cmp_lg_u32 s52, 0
        s_cbranch_scc1 L_exit
        s_mov_b32 s53, {EPO}
        s_mov_b64 exec, 1
        buffer_store_dword v164, v22, s[16:19], s53 offen sc1""")

def add_pads(text, gap=960, nchain=3):
    import subprocess, re, tempfile, os
    lines = text.split("\n")
    start = next(i for i, l in enumerate(lines) if l.startswith(NAME + "_kernel:"))
    end = next(i for i, l in enumerate(lines) if l.startswith("L_end:"))
    def addrs(ls):
        t = []
        for i, l in enumerate(ls):
            if start < i and l.startswith("    ") and not l.strip().startswith(";") and not l.strip().startswith("."):
                t.append(f"ZZ_{i}:")
            t.append(l)
        src = "\n".join(t)
        for k in range(nchain):
            if f"PADCHAIN_{k}:" not in src: src = src.replace(f"PADCHAIN_{k}", "L_end")
        src = re.sub(r"PADNEXT", "L_end", src)
        with tempfile.TemporaryDirectory() as d:
            open(d + "/a.s", "w").write(src)
            subprocess.check_call(["clang", "-x", "assembler", "-target", "amdgcn-amd-amdhsa", "-mcpu=gfx950", "-c", d + "/a.s", "-o", d + "/a.o"])
            out = subprocess.check_output(["llvm-objdump", "-t", d + "/a.o"], text=True)
        r = {}
        for l in out.splitlines():
            p = l.split()
            if not p: continue
            if p[-1].startswith("ZZ_"): r[int(p[-1][3:])] = int(p[0], 16)
            if p[-1] == NAME + "_kernel": base = int(p[0], 16)
        return {k: v - base for k, v in r.items()}
    ad = addrs(lines)
    pads = []; last = 0; shift = 0; noz = False
    for i in sorted(ad):
        if i >= end: break
        if "NOPAD_ON" in lines[i - 1]: noz = True
        if "NOPAD_OFF" in lines[i - 1]: noz = False
        x = ad[i] + shift
        if not noz and (x - last >= gap or (x >> 12) != (last >> 12)):
            pads.append(i); last = x; shift += 4
    n = len(pads)
    out = []
    for i, l in enumerate(lines):
        if i in pads:
            k = pads.index(i)
            if k < nchain: out.append(f"PADCHAIN_{k}:")
            out.append(f"PAD_{k}:")
            nxt = f"PAD_{k + nchain}" if k + nchain < n else "L_warmdone"
            out.append(f"    s_cbranch_execz {nxt}")
        out.append(l)
    return "\n".join(out)

if __name__ == "__main__":
    import argparse
    ap = argparse.ArgumentParser()
    ap.add_argument("-o", default="k.s"); ap.add_argument("-W", type=int, default=6); ap.add_argument("--WV", type=int, default=0); ap.add_argument("--WE", type=int, default=0); ap.add_argument("--NE", type=int, default=0); ap.add_argument("--pf64", action="store_true"); ap.add_argument("--ntp", default=""); ap.add_argument("--hd", type=int, default=4); ap.add_argument("--qd", type=int, default=12); ap.add_argument("--dly", default=None); ap.add_argument("--skip", default=""); ap.add_argument("--rot", type=int, default=1); ap.add_argument("--pw", default="1"); ap.add_argument("--ewp", type=int, default=2); ap.add_argument("--hp", type=int, default=2); ap.add_argument("--pft", type=int, default=3); ap.add_argument("--ww", type=int, default=8); ap.add_argument("--od", type=int, default=2); ap.add_argument("--dx", type=int, default=-1); ap.add_argument("--tkp", type=int, default=8); ap.add_argument("--ps", type=int, default=2)
    ap.add_argument("--prof", action="store_true"); ap.add_argument("--nt", default="nt"); ap.add_argument("--ntw", default="nt")
    x = ap.parse_args()
    open(x.o, "w").write(add_pads(G(W=x.W, WV=x.WV, WE=x.WE, NE=x.NE, pf64=x.pf64, ntp=x.ntp, hd=x.hd, qd=x.qd, dly=x.dly, skip=x.skip, rot=x.rot, pw=x.pw, ewp=x.ewp, hp=x.hp, pft=x.pft, ww=x.ww, od=x.od, dx=x.dx, tkp=x.tkp, ps=x.ps, prof=x.prof, nt=x.nt, ntw=x.ntw).build()))
```

```python
import sys, struct
NAME = "sequential_preLN__sliding_block_cached__mixer_channel_mlp__decode"

def f2u(x): return struct.unpack("<I", struct.pack("<f", x))[0]

QP   = 0x00000
HACC = 0x40000
STAT = 0x44000
OP   = 0xe0000
EW   = 0x50000
FH   = 0x60000
TK   = 0x70000
GR   = 0x71000
EPO  = 0x71100
PART = 0x72000
PROF = 0x180000
WQL = 4096; KL = 20480; VL = KL + 65536
XN = 0
QB = XN + 1024
SP = QB + 1024
ZR = SP + 512
FL = ZR + 512
LDS_TOTAL = VL + 65536
RED = WQL
YL = WQL
H1L = WQL + 4096
STL = WQL + 4608
F_WQ, F_S, F_VI, F_Q, F_P, F_CLR, F_TAG, F_PV, F_V8, F_KL, F_TK, F_W1 = 0, 32, 48, 64, 68, 76, 88, 96, 112, 128, 72, 16

class G:
    def __init__(self, W=6, WV=None, WE=None, NE=0, prof=False, nt="nt", ntw="nt", pf64=False, ntp="nt", hd=2, qd=0, dly=None, skip='', rot=0, pw='pv', ewp=1, hp=1, pft=0, ww=3, od=2, dx=-1, tkp=8, ps=2, light=False, ewk=4):
        self.light = light; self.ewk = ewk
        self.ps = ps
        self.tkp = tkp
        self.dx = dx
        self.ww = ww; self.od = od
        self.pw = pw; self.ewp = ewp; self.hp = hp; self.pft = pft
        self.rot = ['s_mov_b32 s59, 0', 's_mov_b32 s59, s49', 's_lshr_b32 s59, s2, 4', 's_mul_i32 s59, s2, 5', 's_add_u32 s59, s49, s2'][rot]
        self.skip = set(skip.split(','))
        self.dly = dly; self.cur = 'E'
        self.qd = qd
        self.hd = hd
        self.ntp = ntp
        self.WE = WE or WV or W; self.NE = NE; self.pf64 = pf64
        self.L = []; self.W = W; self.WV = WV or W; self.prof = prof; self.nt = nt; self.ntw = ntw; self.uid = 0
    def a(self, s):
        for line in s.split("\n"):
            line = line.strip()
            if line: self.L.append(("" if line.endswith(":") else "    ") + line)
    def c(self, s): self.L.append("    ; " + s)
    def lab(self, p="L"):
        self.uid += 1; return f"{p}_{self.uid}"
    def stamp(self, i):
        if self.dly == f"{self.cur}:{i}":
            self.a("s_memrealtime s[92:93]\ns_waitcnt lgkmcnt(0)\ns_mov_b32 s94, 1")
        if self.prof and (not self.light or (self.cur == 'L' and i == 6)):
            self.a(f"s_memrealtime s[90:91]\ns_waitcnt lgkmcnt(0)\nv_writelane_b32 v167, s90, {i}")
    def srd(self, r, karg, size):
        self.a(f"s_load_dwordx2 s[{r}:{r+1}], s[0:1], {karg}\ns_mov_b32 s{r+2}, {size}\ns_mov_b32 s{r+3}, 0x20000")
    def setflag(self, off, vaddr="v2"):
        self.a(f"ds_write_b32 {vaddr}, v4 offset:{off}")
    def waitflag(self, off, vaddr="v3", n=1, t="v8", sleep=True):
        l = self.lab("WF"); d = self.lab("WD")
        ti = int(t[1:])
        self.a(f"{l}:")
        if n == 1:
            self.a(f"ds_read_b32 {t}, {vaddr} offset:{off}\ns_waitcnt lgkmcnt(0)")
        else:
            self.a(f"ds_read_b128 v[{ti}:{ti+3}], {vaddr} offset:{off}\ns_waitcnt lgkmcnt(0)")
            self.a(f"v_and_b32 {t}, {t}, v{ti+1}\nv_and_b32 v{ti+2}, v{ti+2}, v{ti+3}\nv_and_b32 {t}, {t}, v{ti+2}")
        self.a(f"v_cmp_ne_u32 vcc, 0, {t}\ns_cbranch_vccnz {d}")
        if sleep: self.a("s_sleep 1")
        self.a(f"s_sub_u32 s88, s88, 1\ns_cbranch_scc0 {l}\ns_branch L_exit\n{d}:")
    def retry(self, l):
        d = self.lab("RD")
        self.a(f"s_cbranch_vccz {d}\ns_sub_u32 s88, s88, 1\ns_cbranch_scc0 {l}\ns_branch L_exit\n{d}:")

    def shint(self, n, base="s[64:65]"):
        a = self.a
        l = self.lab("SH"); d = self.lab("SD")
        a(f"{l}:\ns_sub_u32 s88, s88, 1\ns_cbranch_scc1 L_exit")
        if n == 8:
            a(f"s_load_dwordx8 s[72:79], {base}, 0 glc\ns_waitcnt lgkmcnt(0)")
            regs = [72, 74, 76, 78]
        elif n == 16:
            a(f"s_load_dwordx8 s[72:79], {base}, 0 glc\ns_load_dwordx8 s[80:87], {base}, 128 glc\ns_waitcnt lgkmcnt(0)")
            for k in range(4): a(f"s_xor_b64 s[{80+2*k}:{81+2*k}], s[{80+2*k}:{81+2*k}], s[{72+2*k}:{73+2*k}]")
            a("s_or_b64 s[80:81], s[80:81], s[82:83]\ns_or_b64 s[84:85], s[84:85], s[86:87]\ns_or_b64 s[80:81], s[80:81], s[84:85]")
            a(f"s_cbranch_scc1 {l}")
            regs = [72, 74, 76, 78]
        else:
            a(f"s_load_dwordx16 s[72:87], {base}, 0 glc\ns_load_dwordx16 s[28:43], {base}, 64 glc\ns_waitcnt lgkmcnt(0)")
            regs = list(range(72, 88, 2)) + list(range(28, 44, 2))
        for r in regs:
            a(f"s_cmp_lg_u64 s[{r}:{r+1}], s[70:71]\ns_cbranch_scc1 {l}")

    def phint(self, n, base="s[64:65]"):
        a = self.a; l = self.lab("PH"); step = 256 if n == 16 else 128
        def ld():
            a(f"s_load_dwordx8 s[72:79], {base}, s89 glc")
            if n == 16: a(f"s_load_dwordx8 s[80:87], s[68:69], s89 glc")
        if n == 16: a("s_add_u32 s68, s64, 128\ns_addc_u32 s69, s65, 0")
        a("s_mov_b32 s89, 0"); ld(); a("s_waitcnt lgkmcnt(0)")
        a(f"{l}:\ns_sub_u32 s88, s88, 1\ns_cbranch_scc1 L_exit\ns_add_u32 s89, s89, {step}\ns_and_b32 s89, s89, {4*step-1}")
        ld()
        if self.ps == 0: a("s_waitcnt lgkmcnt(0)")
        else:
            a(f"s_sleep {self.ps}")
        for r in range(72, 72 + n, 2):
            a(f"s_cmp_lg_u64 s[{r}:{r+1}], s[70:71]\ns_cbranch_scc1 {l}")

    def build(self):
        a, c = self.a, self.c
        W = self.W; nt = (" " + self.nt) if self.nt else ""; ntw = (" " + self.ntw) if self.ntw else ""
        self.L.append(f"; @launch grid=(256,1,1) block=(576,1,1) lds={LDS_TOTAL}")
        self.L.append('.amdgcn_target "amdgcn-amd-amdhsa--gfx950"\n.text')
        self.L.append(f".globl {NAME}_kernel\n.p2align 12\n.fill 832, 4, 0xbf810000\n.p2align 8\n.type {NAME}_kernel,@function\n{NAME}_kernel:")
        if self.prof: a("s_memrealtime s[92:93]")
        if self.dly: a("s_mov_b32 s94, 0"); self.stamp(0)
        a("s_cmp_ge_u32 s2, 256\ns_cbranch_scc1 L_end")
        a(f"""v_lshrrev_b32 v1, 6, v0
        v_and_b32 v0, 63, v0
        v_readfirstlane_b32 s3, v1
        v_mov_b32 v8, 0
        v_mov_b32 v9, 0
        v_lshlrev_b32 v10, 3, v0
        s_cmp_eq_u32 s3, 7
        s_cbranch_scc0 L_noinit
        ds_write_b64 v10, v[8:9] offset:{ZR}
        ds_write_b64 v10, v[8:9] offset:{FL}
        s_waitcnt lgkmcnt(0)
        L_noinit:""")
        self.srd(12, 24, 448*8192)
        self.srd(4, 8, 0x4000000)
        self.srd(8, 16, 0x4000000)
        self.srd(16, 96, 0x300000)
        self.srd(20, 0, 3584)
        c("instruction-cache warm-up: waves 5..7 hop through the code with EXEC=0")
        a(f"""s_barrier
        {'s_branch L_warmdone' if 'nowarm' in self.skip else ''}
        s_sub_u32 s52, s3, 5
        s_cmp_lt_u32 s52, 3
        s_cbranch_scc0 L_warmdone
        s_cmp_eq_u32 s3, 5
        s_cbranch_scc0 L_warm2
        s_getpc_b64 s[24:25]
        L_pc:
        s_mov_b32 s26, L_end-L_pc
        s_mov_b32 s27, 0x20000
        v_lshlrev_b32 v8, 7, v0
        s_movk_i32 s52, 0x2000
        {'' if 'nocpf' in self.skip else 'buffer_load_dword v165, v8, s[24:27], 0 offen'}
        {'' if 'nocpf' in self.skip else 'buffer_load_dword v165, v8, s[24:27], s52 offen'}
        s_mov_b64 exec, 0
        s_branch PADCHAIN_0
        L_warm2:
        s_mov_b64 exec, 0
        s_cmp_eq_u32 s3, 6
        s_cbranch_scc1 PADCHAIN_1
        s_branch PADCHAIN_2""")
        a("L_warmdone:\ns_mov_b64 exec, -1\ns_mov_b32 s88, 0x8000")
        a("s_and_b32 s48, s2, 7\ns_lshr_b32 s49, s2, 3")
        c("v5 = swizzled 16B chunk offset inside a 128B row; v6 = row (l>>3); v7 = g4")
        a("""v_and_b32 v5, 7, v0
        v_lshrrev_b32 v7, 4, v0
        v_lshlrev_b32 v5, 4, v5
        v_lshlrev_b32 v6, 5, v7
        v_xor_b32 v5, v5, v6
        v_lshrrev_b32 v6, 3, v0
        s_and_b32 s50, s3, 3""")
        a(f"v_mov_b32 v3, {FL}\ns_lshl_b32 s51, s50, 2\nv_add_u32 v2, s51, v3\nv_mov_b32 v4, 1")
        if self.prof: a("v_mov_b32 v167, 0")
        if 'sa' in self.skip: a("s_waitcnt lgkmcnt(0)\ns_cmp_ge_u32 s3, 4\ns_cbranch_scc1 L_exit")
        a("s_cmp_lt_u32 s3, 4\ns_cbranch_scc1 L_lwave\ns_cmp_lt_u32 s3, 8\ns_cbranch_scc1 L_shead")
        self.ahead()
        self.lwave()
        self.swave_head()
        self.awave()
        self.swave()
        self.role_wo()
        self.role_mlp()
        self.role_fin()
        a("L_exit:")
        if self.dly:
            if self.dly[0] in "ELAS": a("s_cmp_lt_u32 s2, 224\ns_cbranch_scc1 L_end")
            if self.dx >= 0: a(f"s_and_b32 s90, s2, 7\ns_cmp_lg_u32 s90, {self.dx}\ns_cbranch_scc1 L_end")
            a("""s_cmp_eq_u32 s94, 0
            s_cbranch_scc1 L_end
            L_dly:
            s_memrealtime s[90:91]
            s_waitcnt lgkmcnt(0)
            s_sub_u32 s90, s90, s92
            s_cmp_lt_u32 s90, 3000
            s_cbranch_scc1 L_dly""")
        if self.prof:
            a(f"""s_waitcnt lgkmcnt(0)
            s_mov_b64 exec, -1
            v_writelane_b32 v167, s92, 0
            s_memrealtime s[90:91]
            s_waitcnt lgkmcnt(0)
            v_writelane_b32 v167, s90, 63
            v_writelane_b32 v167, s88, 62
            s_lshl_b32 s90, s2, 4
            s_add_u32 s90, s90, s3
            s_lshl_b32 s90, s90, 8
            s_add_u32 s90, s90, {PROF}
            v_lshlrev_b32 v166, 2, v0
            buffer_store_dword v167, v166, s[16:19], s90 offen""")
        a("L_end:\ns_endpgm")
        self.L.append(f""".section .rodata,"a"
.p2align 6
.amdhsa_kernel {NAME}_kernel
  .amdhsa_next_free_vgpr 168
  .amdhsa_next_free_sgpr 96
  .amdhsa_accum_offset 168
  .amdhsa_group_segment_fixed_size 0
  .amdhsa_kernarg_size 104
  .amdhsa_user_sgpr_count 2
  .amdhsa_user_sgpr_kernarg_segment_ptr 1
  .amdhsa_system_sgpr_workgroup_id_x 1
.end_amdhsa_kernel""")
        return "\n".join(self.L) + "\n"

    def tr_addr(self, r, sbase, tmp):
        a = self.a
        a(f"""v_lshrrev_b32 v{tmp}, 2, v0
        v_lshlrev_b32 v{r}, 7, v{tmp}
        v_and_b32 v{tmp+1}, 3, v0
        v_lshl_add_u32 v{r}, v{tmp+1}, 3, v{r}
        v_bfe_u32 v{tmp}, v0, 3, 2
        v_lshl_add_u32 v{r}, v{tmp}, 5, v{r}
        v_add_u32 v{r}, {sbase}, v{r}
        v_xor_b32 v{r+1}, 32, v{r}
        v_xor_b32 v{r+2}, 64, v{r}
        v_xor_b32 v{r+3}, 0x60, v{r}""")

    def lwave(self):
        self.cur = 'L'
        a, c = self.a, self.c; W = self.W; nt = (" " + self.nt) if self.nt else ""
        c("================= L-wave: stream wq tile, K, V into LDS; PV =================")
        a("L_lwave:")
        a(f"""v_lshl_add_u32 v10, v6, 13, v5
        v_lshl_add_u32 v11, v6, 9, v5
        v_lshrrev_b32 v12, 5, v0
        v_xor_b32 v12, v12, v0
        v_lshlrev_b32 v12, 4, v12
        s_lshl_b32 s57, s50, 5
        v_xor_b32 v12, s57, v12
        v_xor_b32 v13, 0x80, v12
        s_lshr_b32 s52, s49, 3
        s_lshl_b32 s52, s52, 2
        s_add_u32 s52, s52, s50
        s_lshl_b32 s52, s52, 18
        s_lshl_b32 s53, s48, 10
        s_add_u32 s52, s52, s53
        s_and_b32 s53, s49, 7
        s_lshl_b32 s53, s53, 7
        s_add_u32 s52, s52, s53
        s_and_b32 s53, s2, 31
        s_lshl_b32 s53, s53, 21
        s_lshr_b32 s54, s2, 5
        s_lshl_b32 s54, s54, 16
        s_add_u32 s53, s53, s54
        s_add_u32 s53, s53, {3072*512}
        s_lshl_b32 s55, s50, 14
        s_lshl_b32 s58, s50, 10
        s_add_u32 s54, s53, s58
        {self.rot}
        s_lshl_b32 s59, s59, 12
        s_lshl_b32 s56, s50, 7
        s_add_u32 s53, s53, s56
        s_lshl_b32 s56, s50, 12
        s_add_u32 m0, s56, {WQL}
        s_waitcnt lgkmcnt(0)""")
        if 'wqlin' in self.skip: a("v_lshlrev_b32 v10, 4, v0\ns_mul_i32 s52, s2, 14336\ns_lshl_b32 s57, s50, 10\ns_add_u32 s52, s52, s57")
        if 'nowq' in self.skip: a("s_mov_b32 s52, 0x1000000")
        if 'pst' in self.skip: self.stamp(11)
        n = 0
        WV = self.WV
        st = dict(landed=0)
        def after(n):
            w = W if n < 20 else (WV if n < 36 - self.NE else self.WE)
            if n < 36 and n - (w - 1) > st["landed"]:
                a(f"s_waitcnt vmcnt({w-1})")
                old = st["landed"]; st["landed"] = n - (w - 1)
                if 'pst' in self.skip: self.stamp(11 + st["landed"])
                if old < 4 <= st["landed"]: self.setflag(F_WQ); self.stamp(1)
                for u in range(4):
                    if old < 8 + 4*u <= st["landed"]: self.setflag(F_KL + 16*u)
                if old < 20 <= st["landed"]: self.stamp(2)
        for p in range(4):
            a(f"buffer_load_dwordx4 v10, s[12:15], s52 offen offset:{p*1024}{nt} lds")
            if p < 3: a(f"s_add_u32 s52, s52, {3072 if 'wqlin' in self.skip else 65536-1024}")
            n += 1; after(n)
        for p in range(16):
            a(f"s_add_u32 m0, s58, {KL + p*4096}\ns_and_b32 s59, s59, 0xf000\ns_add_u32 s60, s54, s59")
            a(f"buffer_load_dwordx4 v{12 + (p & 1)}, s[4:7], s60 offen{nt} lds\ns_addk_i32 s59, 0x1000")
            n += 1; after(n)
        for p in range(16):
            a(f"s_add_u32 m0, s55, {VL + p*1024}\ns_and_b32 s59, s59, 0xf000\ns_add_u32 s60, s53, s59")
            a(f"buffer_load_dwordx4 v11, s[8:11], s60 offen{nt} lds")
            if p < 15: a("s_addk_i32 s59, 0x1000")
            if p == self.tkp: self.setflag(F_V8)
            n += 1; after(n)
        self.setflag(F_VI); self.stamp(3)
        assert st["landed"] >= 20
        c("PV: address prep")
        a(f"s_add_u32 s55, s55, {VL}")
        self.tr_addr(12, "s55", 16)
        a(f"""v_bfe_u32 v20, v0, 2, 1
        v_lshlrev_b32 v22, 6, v20
        v_lshl_add_u32 v22, v7, 4, v22
        v_add_u32 v22, {SP}, v22
        v_mov_b32 v21, {ZR}
        v_and_b32 v23, 11, v0""")
        for i in range(4):
            a(f"v_cmp_eq_u32 vcc, {i}, v23\ns_nop 1\nv_cndmask_b32 v{16+i}, v21, v22, vcc")
        a(f"""v_and_b32 v28, 15, v0
        v_lshlrev_b32 v28, 3, v28
        v_lshl_add_u32 v28, v7, 12, v28
        s_lshl_b32 s56, s48, 2
        s_add_u32 s56, s56, s50
        s_lshl_b32 s56, s56, 13
        s_lshr_b32 s57, s49, 4
        s_lshl_b32 s57, s57, 11
        s_add_u32 s56, s56, s57
        s_and_b32 s57, s49, 3
        s_lshl_b32 s57, s57, 9
        s_add_u32 s56, s56, s57
        s_bfe_u32 s57, s49, 0x20002
        s_lshl_b32 s57, s57, 7
        s_add_u32 s56, s56, s57
        s_add_u32 s56, s56, {OP}""")
        if 'sa' not in self.skip: self.waitflag(F_P)
        a("v_readfirstlane_b32 s57, v8")
        self.stamp(4)
        for ks in range(4):
            for i in range(4):
                r = 64 + (ks*4 + i)*4
                a(f"ds_read_b128 v[{r}:{r+3}], v{16+i} offset:{ks*128}")
        for ks in range(4):
            for half in range(2):
                rem = 16 - (4*ks + 2*half + 2)
                if rem < 36 - st['landed']: a(f"s_waitcnt vmcnt({rem})")
                if ks == 3 and half == 1: self.stamp(5)
                for i in range(4):
                    r = 32 + (ks & 1)*16 + i*4 + half*2
                    a(f"ds_read_b64_tr_b16 v[{r}:{r+1}], v{12+i} offset:{ks*4096 + half*2048}")
            for i in range(4):
                a(f"s_waitcnt lgkmcnt({3-i})")
                rb = 32 + (ks & 1)*16 + i*4; ra = 64 + (ks*4 + i)*4
                cin = "0" if (ks == 0 and i == 0) else "v[128:131]"
                a(f"v_mfma_f32_16x16x32_bf16 v[128:131], v[{ra}:{ra+3}], v[{rb}:{rb+3}], {cin}")
        a("""s_mov_b32 exec_hi, 0
        s_cmp_eq_u32 s57, 1
        s_nop 5
        v_cvt_pk_bf16_f32 v24, v128, v129
        v_cvt_pk_bf16_f32 v25, v130, v131
        v_min_u32 v24, -2, v24
        s_cbranch_scc0 L_oglob
        buffer_store_dwordx2 v[24:25], v28, s[16:19], s56 offen
        L_odone:
        s_mov_b32 exec_hi, -1""")
        self.setflag(F_PV)
        self.stamp(6)
        if self.tkp < 0: a("s_cmp_ge_u32 s49, 14\ns_cbranch_scc1 L_exit\ns_barrier")
        a("s_branch L_exit")
        a("L_oglob:\nbuffer_store_dwordx2 v[24:25], v28, s[16:19], s56 offen sc1\ns_branch L_odone")

    def swave_head(self):
        a, c = self.a, self.c
        c("================= S-wave head: clears / code prefetch =================")
        a("L_shead:\ns_cmp_eq_u32 s50, 0\ns_cbranch_scc0 L_swave")
        if 'touch' in self.skip:
            c("touch every page used later (address-translation warm-up) through the scalar path")
            a(f"""s_load_dwordx2 s[28:29], s[0:1], 32
            s_load_dwordx8 s[32:39], s[0:1], 48
            s_load_dwordx2 s[40:41], s[0:1], 80
            s_and_b32 s56, s2, 31
            s_lshl_b32 s56, s56, 21
            s_add_u32 s56, s56, {3072*512}
            s_mul_i32 s57, s48, {512*896}
            s_add_u32 s58, s57, {512*896-64}
            s_mov_b32 s59, {448*3584-64}
            s_waitcnt lgkmcnt(0)
            s_load_dword s60, s[8:9], s56
            s_load_dword s61, s[28:29], s57
            s_load_dword s62, s[28:29], s58
            s_load_dword s63, s[32:33], 0
            s_load_dword s64, s[32:33], s59
            s_load_dword s65, s[34:35], 0
            s_load_dword s66, s[36:37], 0
            s_load_dword s67, s[36:37], s59
            s_load_dword s68, s[38:39], 0
            s_load_dword s69, s[40:41], 0""")
        a(f"""v_mov_b32 v8, -1
        v_mov_b32 v9, -1
        v_mov_b32 v10, -1
        v_mov_b32 v11, -1
        v_mov_b32 v12, 0
        v_mov_b32 v13, 0
        v_lshlrev_b32 v15, 3, v0
        s_lshl_b32 s52, s48, 5
        s_add_u32 s52, s52, s49
        s_lshl_b32 s52, s52, 10
        s_add_u32 s52, s52, {OP}
        v_lshlrev_b32 v14, 4, v0
        s_lshl_b32 s53, s48, 2
        s_and_b32 s54, s49, 3
        s_add_u32 s53, s53, s54
        s_lshl_b32 s53, s53, 10
        s_lshr_b32 s54, s2, 5
        s_lshl_b32 s54, s54, 7
        s_add_u32 s53, s53, s54
        s_add_u32 s53, s53, {STAT}
        s_lshl_b32 s55, s2, 6
        s_add_u32 s55, s55, {HACC}
        {'s_waitcnt lgkmcnt(0)' if 'touch' not in self.skip else ''}
        {'s_branch L_nopart' if 'clr' in self.skip else ''}
        buffer_store_dwordx4 v[8:11], v14, s[16:19], s52 offen sc1
        s_mov_b64 exec, 0xff
        buffer_store_dwordx2 v[12:13], v15, s[16:19], s55 offen sc1
        s_mov_b64 exec, 3
        buffer_store_dwordx2 v[8:9], v15, s[16:19], s53 offen sc1
        s_cmp_lg_u32 s49, 0
        s_cbranch_scc1 L_notk
        s_lshl_b32 s55, s48, 7
        s_add_u32 s55, s55, {TK}
        buffer_store_dwordx2 v[12:13], v15, s[16:19], s55 offen sc1
        L_notk:
        s_mov_b64 exec, -1
        s_sub_u32 s54, s49, 21
        s_cmp_lt_u32 s54, 7
        s_cbranch_scc0 L_nopart
        s_mul_i32 s55, s48, 7
        s_add_u32 s55, s55, s54
        s_lshl_b32 s55, s55, 7
        s_add_u32 s55, s55, {PART}
        v_mul_u32_u24 v14, 7168, v6
        v_and_b32 v16, 7, v0
        v_lshl_add_u32 v14, v16, 4, v14""")
        for i in range(7):
            a(f"buffer_store_dwordx4 v[8:11], v14, s[16:19], s55 offen sc1")
            if i < 6: a(f"s_add_u32 s55, s55, {8*7168}")
        a("L_nopart:\ns_waitcnt vmcnt(0)")
        self.setflag(F_CLR, "v3")
        a("s_waitcnt lgkmcnt(0)\ns_branch L_swave")

    def dpp_allred16(self, op, regs):
        for rot in (8, 4, 2, 1):
            for r in regs:
                self.a(f"{op}_dpp v{r}, v{r}, v{r} row_ror:{rot} row_mask:0xf bank_mask:0xf")
            self.a("s_nop %d" % max(0, 2 - len(regs)))

    def ahead(self):
        a, c = self.a, self.c
        c("A-wave head: x loads first")
        a(f"""s_setprio 3
        v_and_b32 v12, 15, v0
        v_mul_u32_u24 v13, 896, v7
        v_lshl_add_u32 v13, v12, 3, v13
        s_lshr_b32 s52, s49, 3
        s_lshl_b32 s53, s52, 8
        s_mov_b32 s54, {EPO}
        s_waitcnt lgkmcnt(0)""")
        for i in range(7):
            a(f"buffer_load_dwordx2 v[{16+2*i}:{17+2*i}], v13, s[20:23], 0 offen offset:{i*128}")
        a("buffer_load_dwordx2 v[30:31], v13, s[20:23], s53 offen\nbuffer_load_dwordx2 v[32:33], v13, s[20:23], s53 offen offset:128")
        a("buffer_load_dword v110, v8, s[16:19], s54 offen sc1\ns_branch L_awave")

    def awave(self):
        self.cur = 'A'
        a, c = self.a, self.c
        c("================= A-wave: LN1, q partial, q gather, softmax, stats =================")
        a("L_awave:")
        a(f"s_mov_b32 s54, {WQL}")
        self.tr_addr(100, "s54", 104)
        a(f"""v_bfe_u32 v104, v0, 2, 2
        v_lshlrev_b32 v104, 8, v104
        v_lshl_add_u32 v104, v7, 3, v104
        v_add_u32 v104, {XN}, v104
        v_lshlrev_b32 v105, 8, v7
        v_lshl_add_u32 v105, v12, 3, v105
        v_lshlrev_b32 v106, 14, v7
        v_lshl_add_u32 v106, v12, 4, v106
        v_lshlrev_b32 v108, 4, v0
        s_mov_b32 s60, 0xffff0000
        s_waitcnt vmcnt(1)""")
        self.stamp(1)
        c("unpack x (28 values: v36..v63), own 8 values v64..71")
        for i in range(14):
            a(f"v_lshlrev_b32 v{36+2*i}, 16, v{16+i}\nv_and_b32 v{37+2*i}, s60, v{16+i}")
        for i in range(4):
            a(f"v_lshlrev_b32 v{64+2*i}, 16, v{30+i}\nv_and_b32 v{65+2*i}, s60, v{30+i}")
        a("v_add_f32 v72, v36, v37\nv_add_f32 v73, v38, v39")
        for i in range(2, 14):
            a(f"v_add_f32 v72, v72, v{36+2*i}\nv_add_f32 v73, v73, v{37+2*i}")
        a("v_add_f32 v72, v72, v73\ns_nop 1")
        self.dpp_allred16("v_add_f32", [72])
        a(f"v_mul_f32 v72, {hex(f2u(1/448))}, v72")
        a("v_mov_b32 v73, 0\nv_mov_b32 v74, 0")
        for i in range(14):
            a(f"v_sub_f32 v75, v{36+2*i}, v72\nv_sub_f32 v76, v{37+2*i}, v72\nv_fmac_f32 v73, v75, v75\nv_fmac_f32 v74, v76, v76")
        a("v_add_f32 v73, v73, v74\ns_nop 1")
        self.dpp_allred16("v_add_f32", [73])
        a(f"""v_mul_f32 v73, {hex(f2u(1/448))}, v73
        v_cvt_pk_bf16_f32 v74, v72, v73
        v_lshlrev_b32 v72, 16, v74
        v_and_b32 v73, s60, v74
        v_add_f32 v73, {hex(f2u(1e-5))}, v73
        v_cvt_pk_bf16_f32 v73, v73, v73
        v_and_b32 v73, s60, v73
        v_sqrt_f32 v73, v73
        s_nop 0
        v_cvt_pk_bf16_f32 v73, v73, v73
        v_and_b32 v73, s60, v73
        v_rcp_f32 v73, v73""")
        for i in range(4):
            a(f"""v_sub_f32 v{64+2*i}, v{64+2*i}, v72
            v_sub_f32 v{65+2*i}, v{65+2*i}, v72
            v_cvt_pk_bf16_f32 v74, v{64+2*i}, v{65+2*i}
            v_lshlrev_b32 v75, 16, v74
            v_and_b32 v76, s60, v74
            v_mul_f32 v75, v75, v73
            v_mul_f32 v76, v76, v73
            v_cvt_pk_bf16_f32 v{30+i}, v75, v76""")
        a(f"ds_write_b64 v105, v[30:31] offset:{XN}\nds_write_b64 v105, v[32:33] offset:{XN+128}")
        for ks in range(4):
            a(f"ds_read2_b64 v[{16+4*ks}:{19+4*ks}], v104 offset0:{ks*8} offset1:{ks*8+4}")
        self.stamp(2)
        self.waitflag(F_WQ, n=4, t="v96")
        self.stamp(3)
        for ks in range(4):
            for i in range(4):
                for half in range(2):
                    r = 32 + (ks*4 + i)*4 + half*2
                    a(f"ds_read_b64_tr_b16 v[{r}:{r+1}], v{100+i} offset:{ks*4096 + half*2048}")
            if ks & 1:
                a("s_waitcnt lgkmcnt(0)")
                for k2 in (ks-1, ks):
                    for i in range(4):
                        r = 32 + (k2*4 + i)*4; d = 112 + 4*i
                        cin = "0" if k2 == 0 else f"v[{d}:{d+3}]"
                        a(f"v_mfma_f32_16x16x32_bf16 v[{d}:{d+3}], v[{16+4*k2}:{19+4*k2}], v[{r}:{r+3}], {cin}")
        self.waitflag(F_CLR)
        self.stamp(4)
        a(f"""s_waitcnt vmcnt(0)
        v_add_u32 v110, 1, v110
        s_mov_b32 s56, 0x07060500
        s_mov_b32 s57, 0x07060501
        s_mov_b32 s58, 0x07060502
        s_mov_b32 s59, 0x07060503
        ds_write_b32 v3, v110 offset:{F_TAG}
        v_perm_b32 v112, v112, v110, s56
        v_perm_b32 v113, v116, v110, s57
        v_perm_b32 v114, v120, v110, s58
        s_getreg_b32 s62, hwreg(HW_REG_XCC_ID, 0, 4)
        v_bfe_u32 v118, v110, 24, 4
        v_lshl_or_b32 v118, s62, 4, v118
        v_lshrrev_b32 v116, 8, v110
        v_lshrrev_b32 v117, 16, v110
        v_perm_b32 v115, v124, v118, s56
        s_lshl_b32 s53, s52, 16
        s_lshl_b32 s54, s48, 11
        s_add_u32 s53, s53, s54
        s_and_b32 s55, s49, 7
        s_lshl_b32 s55, s55, 8
        s_add_u32 s53, s53, s55
        {'' if 'qx' in self.skip else 'buffer_store_dwordx4 v[112:115], v106, s[16:19], s53 offen sc1'}
        s_and_b32 s55, s49, 3
        s_lshl_b32 s55, s55, 14
        s_add_u32 s54, s54, s55
        s_add_u32 s55, s54, 0x10000
        s_add_u32 s56, s54, 0x20000
        s_add_u32 s57, s54, 0x30000""")
        a("s_waitcnt vmcnt(0)")
        if self.qd: a(f"s_sleep {self.qd}")
        self.stamp(9)
        c("q gather")
        tg = [110, 116, 117, 118]
        if 'qx' in self.skip: a("s_branch L_qgskip")
        a("L_qg:")
        for rg in range(4):
            for z in range(2):
                r = 16 + (rg*2 + z)*4
                a(f"buffer_load_dwordx4 v[{r}:{r+3}], v108, s[16:19], s{54+rg} offen offset:{z*1024} sc1")
        a(f"s_waitcnt vmcnt(0)\nv_xor_b32 v8, v16, v110\nv_xor_b32 v119, v19, v118")
        for k in range(1, 32):
            if k == 3: continue
            d = 119 if (k & 3) == 3 else 8
            a(f"v_bitop3_b32 v{d}, v{d}, v{16+k}, v{tg[k & 3]} bitop3:0xf6")
        a("v_and_b32 v8, 0xff, v8\nv_and_or_b32 v8, v119, 15, v8\nv_cmp_ne_u32 vcc, 0, v8")
        self.retry("L_qg")
        a("L_qgskip:")
        for k in range(8):
            a(f"v_add_f32 v{80+k}, v{16+k}, v{24+k}\nv_add_f32 v{88+k}, v{32+k}, v{40+k}")
        self.stamp(5)
        for k in range(8):
            a(f"v_add_f32 v{80+k}, v{80+k}, v{88+k}")
        a(f"v_lshlrev_b32 v9, 7, v7\nv_lshl_add_u32 v9, v12, 1, v9")
        for k in range(4):
            a(f"v_cvt_pk_bf16_f32 v{88+k}, v{80+2*k}, v{81+2*k}")
        for k in range(4):
            z = k >> 1; i = (k & 1)*2
            a(f"ds_write_b16 v9, v{88+k} offset:{QB + z*512 + i*32}\nds_write_b16_d16_hi v9, v{88+k} offset:{QB + z*512 + i*32 + 32}")
        self.setflag(F_Q, "v3")
        a(f"v_and_b32 v119, 0xf0, v119\nv_cmp_ne_u32 vcc, 0, v119\ns_cmp_eq_u64 vcc, 0\ns_cselect_b32 s62, {2 if 'noloc' in self.skip else 1}, 2\nv_mov_b32 v119, s62")
        a(f"""s_cmp_lg_u32 s49, 31
        s_cbranch_scc1 L_nogr
        s_lshl_b32 s53, s48, 2
        s_add_u32 s53, s53, {GR}
        s_mov_b64 exec, 1
        buffer_store_dword v110, v108, s[16:19], s53 offen sc1
        s_mov_b64 exec, -1
        L_nogr:""")
        c("softmax over the 128 local keys, 2 heads")
        a(f"""s_lshl_b32 s53, s48, 2
        s_and_b32 s54, s49, 3
        s_add_u32 s53, s53, s54
        s_lshl_b32 s53, s53, 10
        s_add_u32 s53, s53, {STAT}
        s_lshr_b32 s54, s2, 5
        s_lshl_b32 s54, s54, 7
        s_add_u32 s54, s54, s53
        s_mov_b32 s61, {hex(f2u(1.4426950408889634/16))}
        v_and_b32 v30, 8, v0
        """)
        self.waitflag(F_S, n=4, t="v96", sleep=False)
        self.stamp(6)
        a(f"""ds_read_b64 v[16:17], v10 offset:{SP}
        s_waitcnt lgkmcnt(0)
        v_lshlrev_b32 v18, 16, v16
        v_and_b32 v19, s60, v16
        v_lshlrev_b32 v20, 16, v17
        v_and_b32 v21, s60, v17
        v_max_f32 v22, v18, v19
        v_max3_f32 v22, v22, v20, v21""")
        def red8x4(op, r, t):
            a(f"""s_nop 1
            {op}_dpp v{r}, v{r}, v{r} quad_perm:[1,0,3,2] row_mask:0xf bank_mask:0xf
            s_nop 1
            {op}_dpp v{r}, v{r}, v{r} quad_perm:[2,3,0,1] row_mask:0xf bank_mask:0xf
            s_nop 1
            {op}_dpp v{r}, v{r}, v{r} row_half_mirror row_mask:0xf bank_mask:0xf
            v_mov_b32 v{t}, v{r}
            s_nop 1
            v_permlane16_swap_b32 v{r}, v{t}
            {op} v{r}, v{r}, v{t}
            v_mov_b32 v{t}, v{r}
            s_nop 1
            v_permlane32_swap_b32 v{r}, v{t}
            {op} v{r}, v{r}, v{t}""")
        red8x4("v_max_f32", 22, 24)
        for k in range(4):
            a(f"v_sub_f32 v{18+k}, v{18+k}, v22\nv_mul_f32 v{18+k}, s61, v{18+k}\nv_exp_f32 v{18+k}, v{18+k}")
        a(f"""s_nop 0
        v_cvt_pk_bf16_f32 v16, v18, v19
        v_cvt_pk_bf16_f32 v17, v20, v21
        ds_write_b64 v10, v[16:17] offset:{SP}""")
        a(f"ds_write_b32 v3, v119 offset:{F_P}")
        a("v_add_f32 v23, v18, v19\nv_add_f32 v24, v20, v21\nv_add_f32 v23, v23, v24")
        red8x4("v_add_f32", 23, 24)
        a(f"""v_min_u32 v23, -2, v23
        s_mov_b64 exec, 0x180
        s_cmp_eq_u32 s62, 1
        s_cbranch_scc1 L_sloc
        buffer_store_dwordx2 v[22:23], v30, s[16:19], s54 offen sc1
        s_branch L_exit
        L_sloc:
        buffer_store_dwordx2 v[22:23], v30, s[16:19], s54 offen
        """)
        self.stamp(7)
        a("s_branch L_exit")

    def swave(self):
        self.cur = 'S'
        a, c = self.a, self.c
        c("================= S-wave: scores =================")
        a("L_swave:")
        a(f"""v_and_b32 v12, 15, v0
        v_xor_b32 v13, v7, v12
        v_lshlrev_b32 v13, 4, v13
        v_lshl_add_u32 v13, v12, 9, v13
        s_lshl_b32 s55, s50, 14
        s_add_u32 s55, s55, {KL}
        v_add_u32 v13, s55, v13
        v_xor_b32 v14, 64, v13
        v_xor_b32 v15, 0x80, v13
        v_xor_b32 v16, 0xc0, v13
        v_and_b32 v17, 1, v0
        v_lshlrev_b32 v18, 9, v17
        v_lshl_add_u32 v18, v7, 4, v18
        v_lshlrev_b32 v17, 6, v17
        v_lshl_add_u32 v17, v7, 4, v17
        s_lshl_b32 s56, s50, 7
        v_add_u32 v17, s56, v17""")
        c("weights prefetch addresses: u=0,1 wo ; u=2 w2 ; u=3 w1")
        self.srd(28, 32, 4096*896)
        self.srd(32, 64, 1792*896)
        self.srd(36, 48, 448*3584)
        self.srd(40, 56, 3584)
        if 'notouch2' not in self.skip:
            a("s_cmp_lg_u32 s50, 1\ns_cbranch_scc1 L_notouch\ns_cmp_lg_u32 s49, 30\ns_cbranch_scc1 L_notouch")
            a("s_load_dwordx4 s[72:75], s[0:1], 72")
            self.waitflag(F_KL, "v2")
            a(f"""s_load_dword s62, s[32:33], 0
            s_load_dword s64, s[40:41], 0
            s_load_dword s60, s[72:73], 0
            s_load_dword s61, s[74:75], 0
            L_notouch:""")
        a("s_lshl_b32 s56, s50, 4\nv_add_u32 v19, s56, v3")
        self.waitflag(F_KL, "v19", n=4)
        self.stamp(1)
        for ks in range(8):
            for T in range(2):
                r = 64 + (T*8 + ks)*4
                a(f"ds_read_b128 v[{r}:{r+3}], v{13 + (ks & 3)} offset:{(ks >> 2)*256 + T*8192}")
        self.pf_wo()
        if self.tkp == 100:
            a(f"""s_cmp_lg_u32 s50, 0
            s_cbranch_scc1 L_tki""")
            self.waitflag(F_Q)
            a(f"""s_lshl_b32 s56, s48, 7
            s_add_u32 s56, s56, {TK}
            v_mov_b32 v163, 1
            v_mov_b32 v9, 0
            s_mov_b64 exec, 1
            buffer_atomic_add v163, v9, s[16:19], s56 offen sc0 sc1
            s_mov_b64 exec, -1
            L_tki:""")
        self.waitflag(F_Q, sleep=False)
        self.stamp(2)
        a(f"ds_read_b32 v164, v3 offset:{F_TAG}")
        for ks in range(8):
            a(f"ds_read_b128 v[{32+4*ks}:{35+4*ks}], v18 offset:{QB + ks*64}")
        for ks in range(8):
            a(f"s_waitcnt lgkmcnt({7-ks})")
            for T in range(2):
                r = 64 + (T*8 + ks)*4; d = 20 + 4*T
                cin = "0" if ks == 0 else f"v[{d}:{d+3}]"
                a(f"v_mfma_f32_16x16x32_bf16 v[{d}:{d+3}], v[{r}:{r+3}], v[{32+4*ks}:{35+4*ks}], {cin}")
        a("s_nop 7")
        for k in range(4):
            a(f"v_cvt_pk_bf16_f32 v{28+k}, v{20+2*k}, v{21+2*k}")
        a(f"""s_mov_b32 exec_lo, 0x00030003
        s_mov_b32 exec_hi, 0x00030003
        ds_write_b128 v17, v[28:31] offset:{SP}
        s_mov_b64 exec, -1""")
        self.setflag(F_S)
        self.stamp(3)
        if 'roles' in self.skip: a("s_branch L_exit")
        if self.tkp == 100:
            a(f"""s_cmp_lg_u32 s50, 0
            s_cbranch_scc1 L_tkw
            s_mov_b64 exec, 1
            s_waitcnt vmcnt(0)
            v_add_u32 v8, 1, v163
            ds_write_b32 v3, v8 offset:{F_TK}
            s_mov_b64 exec, -1
            L_tkw:""")
            self.waitflag(F_TK)
            a("v_readfirstlane_b32 s49, v8\ns_nop 0\ns_sub_u32 s49, s49, 1")
            if self.prof: a("v_writelane_b32 v167, s49, 61")
        elif self.tkp >= 0:
            a("s_cmp_lg_u32 s50, 0\ns_cbranch_scc1 L_tkw")
            self.waitflag(F_V8, "v2")
            a(f"""s_lshl_b32 s56, s48, 7
            s_add_u32 s56, s56, {TK}
            v_mov_b32 v8, 1
            v_mov_b32 v9, 0
            s_mov_b64 exec, 1
            buffer_atomic_add v8, v9, s[16:19], s56 offen sc0 sc1
            s_waitcnt vmcnt(0)
            v_add_u32 v8, 1, v8
            ds_write_b32 v3, v8 offset:{F_TK}
            s_mov_b64 exec, -1
            L_tkw:""")
            self.waitflag(F_TK)
            a("v_readfirstlane_b32 s49, v8\ns_nop 0\ns_sub_u32 s49, s49, 1")
            if self.prof: a("v_writelane_b32 v167, s49, 61")
        a("""v_readfirstlane_b32 s70, v164
        s_cmp_lt_u32 s49, 14
        s_cbranch_scc1 L_wo
        s_mov_b32 s71, s70""")
        if 'nomlp' in self.skip: a("s_branch L_exit")
        if 'nomlpwg' in self.skip: a("s_cmp_lt_u32 s49, 21\ns_cbranch_scc1 L_exit")
        a("""s_cmp_lt_u32 s49, 21
        s_cbranch_scc1 L_mlp""")
        if 'nofin' in self.skip: a("s_branch L_exit")
        a("""s_cmp_lt_u32 s49, 28
        s_cbranch_scc0 L_exit
        s_cmp_ge_u32 s50, 2
        s_cbranch_scc1 L_fin
        s_branch L_exit""")

    def pf(self, srd, so):
        ntw = (" " + self.ntp) if self.ntp else ""
        self.a(f"buffer_load_dword v165, v8, s[{srd}:{srd+3}], {so} offen{ntw}")
    def pf_wo(self, early=False):
        a = self.a
        a(f"""s_lshl_b32 s66, s48, 5
        s_add_u32 s66, s66, s49
        s_lshl_b32 s66, s66, 2
        s_add_u32 s66, s66, s50
        s_mul_i32 s66, s66, 3584""")
        self.waitflag(F_WQ if self.pft < 0 else F_KL + 16*self.pft, "v2")
        a("v_lshlrev_b32 v8, 7, v0\ns_mov_b64 exec, 0x0fffffff")
        self.pf(28, "s66")
        a("s_mov_b64 exec, -1")
        if '2' in self.pw:
            a(f"""s_cmp_lg_u32 s50, 2
            s_cbranch_scc1 L_pf3
            s_lshl_b32 s66, s48, 5
            s_add_u32 s66, s66, s49
            s_mul_i32 s66, s66, 6272
            s_mov_b32 exec_hi, 0x0001ffff""")
            self.pf(32, "s66")
            a("s_mov_b32 exec_hi, -1\nL_pf3:")
        if '1' in self.pw:
            a(f"""s_cmp_lg_u32 s50, 3
            s_cbranch_scc1 L_pfd
            v_lshrrev_b32 v8, 2, v0
            v_mul_u32_u24 v8, 3584, v8
            v_and_b32 v11, 3, v0
            v_lshl_add_u32 v8, v11, 7, v8
            s_mul_i32 s66, s49, {14*3584}
            s_mul_i32 s67, s48, 448
            s_andn2_b32 s67, s67, 127
            s_add_u32 s66, s66, s67
            s_mov_b32 exec_hi, 0x00ffffff""")
            self.pf(36, "s66")
            a("s_mov_b32 exec_hi, -1\nL_pfd:")

    def role_wo(self):
        self.cur = 'WO'
        a, c = self.a, self.c; ntw = (" " + self.ntw) if self.ntw else ""
        c("================= role WO =================")
        a("L_wo:")
        a(f"""s_cmp_ge_u32 s49, 7
        s_cselect_b32 s52, 1, 0
        s_mul_i32 s53, s52, 7
        s_sub_u32 s53, s49, s53
        s_lshr_b32 s68, s50, 1
        s_and_b32 s69, s50, 1
        s_lshl_b32 s56, s52, 1
        s_add_u32 s69, s69, s56
        s_lshl_b32 s54, s48, 1
        s_add_u32 s54, s54, s68
        s_lshl_b32 s54, s54, 2
        s_add_u32 s54, s54, s69
        s_mul_i32 s54, s54, {64*896}
        s_lshl_b32 s56, s53, 7
        s_add_u32 s54, s54, s56
        v_and_b32 v20, 3, v6
        v_lshlrev_b32 v20, 4, v20
        v_lshrrev_b32 v21, 5, v0
        v_lshl_add_u32 v20, v21, 1, v20
        v_mul_u32_u24 v20, 896, v20
        v_add_u32 v20, v20, v5
        s_mov_b32 m0, s55""")
        self.tr_addr(160, "s55", 21)
        a(f"""v_xor_b32 v21, v0, v6
        v_lshlrev_b32 v21, 4, v21
        v_and_b32 v22, 7, v0
        v_xor_b32 v12, v7, v22
        v_lshlrev_b32 v12, 4, v12
        v_and_b32 v22, 15, v0
        v_lshl_add_u32 v12, v22, 7, v12
        s_add_u32 s72, s55, 8192
        v_add_u32 v12, s72, v12
        v_xor_b32 v13, 64, v12
        v_and_b32 v22, 3, v0
        s_lshl_b32 s57, s48, 2
        s_add_u32 s57, s57, s69
        s_lshl_b32 s57, s57, 1
        s_add_u32 s57, s57, s68
        s_lshl_b32 s57, s57, 12
        s_add_u32 s57, s57, {OP}
        v_lshrrev_b32 v15, 1, v0
        v_lshlrev_b32 v15, 7, v15
        s_lshl_b32 s59, s48, 12
        s_lshl_b32 s56, s68, 3
        s_add_u32 s59, s59, s56
        s_add_u32 s59, s59, {STAT}
        s_mov_b32 s69, {hex(f2u(1.4426950408889634/16))}
        s_lshl_b32 s56, s50, 10
        v_lshlrev_b32 v23, 2, v0
        v_add_u32 v24, s56, v23
        v_add_u32 v24, {RED}, v24""")
        a(f"""v_lshrrev_b32 v25, 5, v0
        v_lshlrev_b32 v25, 8, v25
        v_bfe_u32 v26, v0, 2, 3
        v_lshl_add_u32 v25, v26, 3, v25
        v_and_b32 v26, 1, v0
        v_lshl_add_u32 v25, v26, 2, v25
        s_lshl_b32 s56, s50, 6
        s_add_u32 s56, s56, {RED}
        v_add_u32 v25, s56, v25
        v_cmp_eq_u32 vcc, 2, v22
        v_mov_b32 v26, 1.0
        s_lshl_b32 s58, s50, 12
        v_cndmask_b32 v26, 0, v26, vcc
        s_lshl_b32 s56, s53, 9
        s_add_u32 s58, s58, s56
        s_add_u32 s58, s58, {HACC}
        v_mov_b32 v27, v26""")
        a(f"""v_and_b32 v29, 28, v23
        s_mov_b32 s61, {GR}
        v_lshlrev_b32 v30, 10, v0
        s_lshl_b32 s60, s48, 2
        s_lshl_b32 s62, s52, 7
        s_add_u32 s60, s60, s62
        s_lshl_b32 s62, s53, 13
        s_add_u32 s60, s60, s62
        s_lshl_b32 s62, s50, 8
        s_add_u32 s60, s60, s62
        s_add_u32 s60, s60, {EW}""")
        a("buffer_load_dword v165, v15, s[16:19], s57 offen sc1")
        self.stamp(10)
        self.waitflag(F_VI, n=4, t="v8", sleep=False)
        a(f"""buffer_load_dwordx2 v[16:17], v15, s[16:19], s59 offen sc1
        buffer_load_dword v31, v29, s[16:19], s61 offen sc1""")
        for p in range(8):
            rows = 4*(p & 1) + ((p >> 1) & 1) + 8*(p >> 2)
            a(f"s_add_u32 m0, s55, {p*1024}\ns_add_u32 s56, s54, {rows*896}")
            a(f"buffer_load_dwordx4 v20, s[28:31], s56 offen{ntw} lds")
        a("s_waitcnt vmcnt(9)\nv_cmp_eq_u32 vcc, -1, v17\ns_cbranch_vccnz L_stwait\nL_stok:")
        c("combine weights w[b][h][j] = exp(m_j - M) / L")
        a("v_mov_b32 v19, v16\ns_nop 1")
        for rot in (8, 4, 2):
            a(f"v_max_f32_dpp v19, v19, v19 row_ror:{rot} row_mask:0xf bank_mask:0xf\ns_nop 1")
        a("v_sub_f32 v16, v16, v19\nv_mul_f32 v16, s69, v16\nv_exp_f32 v16, v16\ns_nop 0\nv_mul_f32 v17, v17, v16\ns_nop 1")
        for rot in (8, 4, 2):
            a(f"v_add_f32_dpp v17, v17, v17 row_ror:{rot} row_mask:0xf bank_mask:0xf\ns_nop 1")
        a("v_rcp_f32 v17, v17\ns_nop 0\nv_mul_f32 v16, v16, v17\ns_nop 1")
        for j in range(8):
            a(f"v_mov_b32_dpp v{96+j}, v16 row_newbcast:{2*j} row_mask:0xf bank_mask:0xf")
        a("s_waitcnt vmcnt(0)")
        self.stamp(4)
        for z in range(2):
            for i in range(4):
                for half in range(2):
                    r = 128 + (z*4 + i)*4 + half*2
                    a(f"ds_read_b64_tr_b16 v[{r}:{r+1}], v{160+i} offset:{z*4096 + half*2048}")
        l = self.lab("OP")
        a(f"s_mov_b32 m0, s72\n{l}:\ns_nop 0")
        for q in range(4):
            a(f"buffer_load_dwordx4 v21, s[16:19], s57 offen offset:{q*1024} sc1 lds")
        a("s_waitcnt vmcnt(0)")
        for z in range(2):
            for st_ in range(2):
                r = 32 + (z*2 + st_)*4
                a(f"ds_read_b128 v[{r}:{r+3}], v{12+z} offset:{st_*2048}")
        def ew(k):
            if self.ewp == k:
                a("s_mov_b64 exec, 0xff\nbuffer_store_dword v164, v30, s[16:19], s60 offen sc1\ns_mov_b64 exec, -1")
        def mf(i, z, st_):
            d = 64 + (i*2 + st_)*4; ra = 32 + (z*2 + st_)*4; rb = 128 + (z*4 + i)*4
            cin = "0" if z == 0 else f"v[{d}:{d+3}]"
            a(f"v_mfma_f32_16x16x32_bf16 v[{d}:{d+3}], v[{ra}:{ra+3}], v[{rb}:{rb+3}], {cin}")
        def fm(i, st_, r):
            d = 64 + (i*2 + st_)*4; acc = 48 + 4*i + st_
            if r == 0: a(f"v_mul_f32 v{acc}, v{d}, v{96+4*st_}")
            else: a(f"v_fmac_f32 v{acc}, v{d+r}, v{96+4*st_+r}")
        c("tile 0 starts speculatively while the sentinels are checked")
        a("s_waitcnt lgkmcnt(3)"); mf(0, 0, 0)
        a("s_waitcnt lgkmcnt(2)"); mf(0, 0, 1)
        a("v_max3_u32 v28, v32, v34, v36\ns_waitcnt lgkmcnt(1)"); mf(0, 1, 0)
        a("v_max3_u32 v14, v38, v40, v42\ns_waitcnt lgkmcnt(0)"); mf(0, 1, 1)
        a("v_max3_u32 v28, v28, v44, v46\nv_max_u32 v28, v28, v14\nv_cmp_eq_u32 vcc, -1, v28")
        mf(1, 0, 0)
        self.retry(l)
        if self.ewp in (0, 4): a("s_barrier")
        ew(0)
        self.stamp(5)
        seq = [(1, 0, 1), (1, 1, 0), (1, 1, 1)] + [(i, z, st_) for i in (2, 3) for z in range(2) for st_ in range(2)]
        fq = [(i, st_, r) for i in range(4) for r in range(4) for st_ in range(2)]
        for k, m in enumerate(seq):
            mf(*m)
            if k >= 3:
                for _ in range(2): fm(*fq.pop(0))
            if k == self.ewk: ew(4)
        a("v_add_f32 v48, v48, v49\nv_add_f32 v52, v52, v53")
        for _ in range(4): fm(*fq.pop(0))
        a("ds_write2st64_b32 v24, v48, v52 offset0:0 offset1:1")
        for _ in range(4): fm(*fq.pop(0))
        a("v_cmp_ne_u32 vcc, v31, v164\nv_add_f32 v56, v56, v57")
        while fq: fm(*fq.pop(0))
        a("v_add_f32 v60, v60, v61")
        a("ds_write2st64_b32 v24, v56, v60 offset0:2 offset1:3")
        a("s_cbranch_vccnz L_grwait\nL_grok:")
        ew(1)
        a("s_waitcnt lgkmcnt(0)\ns_barrier")
        ew(2)
        a("""ds_read2st64_b32 v[32:33], v25 offset0:0 offset1:4
        ds_read2st64_b32 v[34:35], v25 offset0:8 offset1:12
        ds_read2st64_b32 v[36:37], v25 offset0:2 offset1:6
        ds_read2st64_b32 v[38:39], v25 offset0:10 offset1:14
        s_mov_b32 exec_lo, 0x33333333
        s_mov_b32 exec_hi, 0x33333333
        s_waitcnt lgkmcnt(2)
        v_add_f32 v32, v32, v33
        v_add_f32 v34, v34, v35
        v_add_f32 v26, v32, v34
        s_waitcnt lgkmcnt(0)
        v_add_f32 v36, v36, v37
        v_add_f32 v38, v38, v39
        v_add_f32 v27, v36, v38
        s_mov_b64 exec, -1
        buffer_atomic_add_f32 v26, v23, s[16:19], s58 offen
        buffer_atomic_add_f32 v27, v23, s[16:19], s58 offen offset:256""")
        ew(3)
        self.stamp(6)
        a("s_branch L_exit")
        a("L_grwait:\nbuffer_load_dword v31, v29, s[16:19], s61 offen sc1\ns_waitcnt vmcnt(0)\nv_cmp_ne_u32 vcc, v31, v164")
        self.retry("L_grwait")
        a("s_branch L_grok")
        a("L_stwait:\ns_sleep 1\nbuffer_load_dwordx2 v[16:17], v15, s[16:19], s59 offen sc1\ns_waitcnt vmcnt(0)\nv_cmp_eq_u32 vcc, -1, v17")
        self.retry("L_stwait")
        a("s_branch L_stok")

    def wave_sum2(self, r0, r1, s0, s1):
        a = self.a
        for ctl in ("row_shr:1", "row_shr:2", "row_shr:4", "row_shr:8"):
            a(f"v_add_f32_dpp v{r0}, v{r0}, v{r0} {ctl} row_mask:0xf bank_mask:0xf bound_ctrl:0" if False else
              f"v_add_f32_dpp v{r0}, v{r0}, v{r0} {ctl.replace('shr','ror')} row_mask:0xf bank_mask:0xf")
            a(f"v_add_f32_dpp v{r1}, v{r1}, v{r1} {ctl.replace('shr','ror')} row_mask:0xf bank_mask:0xf\ns_nop 0")
        a(f"v_add_f32_dpp v{r0}, v{r0}, v{r0} row_bcast:15 row_mask:0xa bank_mask:0xf")
        a(f"v_add_f32_dpp v{r1}, v{r1}, v{r1} row_bcast:15 row_mask:0xa bank_mask:0xf\ns_nop 0")
        a(f"v_add_f32_dpp v{r0}, v{r0}, v{r0} row_bcast:31 row_mask:0xc bank_mask:0xf")
        a(f"v_add_f32_dpp v{r1}, v{r1}, v{r1} row_bcast:31 row_mask:0xc bank_mask:0xf")
        a(f"v_readlane_b32 s{s0}, v{r0}, 63\nv_readlane_b32 s{s1}, v{r1}, 63\ns_nop 1")

    def ew_gate(self, va):
        a = self.a
        l = self.lab("EW")
        a(f"v_lshlrev_b32 v{va}, 7, v12\ns_mov_b32 s63, {EW}")
        a(f"{l}:\nbuffer_load_dword v8, v{va}, s[16:19], s63 offen sc1\ns_waitcnt vmcnt(0)\nv_cmp_ne_u32 vcc, v8, v164")
        self.retry(l)

    def role_mlp(self):
        self.cur = 'MLP'
        a, c = self.a, self.c; ntw = (" " + self.ntw) if self.ntw else ""
        c("================= role MLP =================")
        a("L_mlp:")
        a(f"""s_mul_i32 s52, s48, 7
        s_add_u32 s52, s52, s49
        s_sub_u32 s52, s52, 14
        v_lshrrev_b32 v20, 2, v0
        v_mul_u32_u24 v20, 3584, v20
        v_and_b32 v22, 3, v0
        v_lshl_add_u32 v20, v22, 4, v20
        v_mul_u32_u24 v21, 896, v6
        v_add_u32 v21, v21, v5
        s_mul_i32 s53, s50, {7*16*3584}
        s_lshl_b32 s54, s52, 6
        s_add_u32 s53, s53, s54
        s_mul_i32 s56, s52, {32*896}
        s_lshl_b32 s57, s50, 7
        s_add_u32 s56, s56, s57
        v_lshlrev_b32 v23, 2, v0
        s_mul_i32 s57, s50, 896
        s_xor_b32 s59, s50, 2
        s_mul_i32 s59, s59, 896
        s_lshl_b32 s58, s50, 5
        s_add_u32 s54, s54, s58
        v_lshlrev_b32 v24, 1, v12""")
        self.waitflag(F_VI, n=4, t="v96", sleep=False)
        c("w1 tile (shared, 7 pieces per wave), w2 tile (private: quads u, u+4), x rows, b1")
        a("s_mov_b32 m0, s55\ns_nop 0")
        for x in range(7):
            if x == 4: a("s_add_u32 m0, s55, 4096\ns_add_u32 s53, s53, 4096")
            a(f"buffer_load_dwordx4 v20, s[36:39], s53 offen offset:{(x%4)*1024}{ntw} lds")
            a(f"s_add_u32 s53, s53, {16*3584 - 1024}")
        a("s_mov_b32 exec_hi, 0x00ffffff")
        for i in range(4):
            a(f"buffer_load_dword v{36+i}, v23, s[20:23], s57 offen offset:{i*224}")
        for i in range(4):
            a(f"buffer_load_dword v{156+i}, v23, s[20:23], s59 offen offset:{i*224}")
        a("s_mov_b32 exec_hi, -1\nbuffer_load_ushort v28, v24, s[40:43], s54 offen")
        a(f"s_add_u32 s57, s57, {YL}")
        for i in range(4):
            a(f"""v_add_u32 v25, {56*i}, v0
            v_lshrrev_b32 v26, 4, v25
            v_lshlrev_b32 v26, 6, v26
            v_bfe_u32 v27, v25, 1, 2
            v_lshl_add_u32 v26, v27, 4, v26
            v_and_b32 v27, 8, v25
            v_add_u32 v26, v26, v27
            v_and_b32 v27, 1, v25
            v_lshl_add_u32 v26, v27, 2, v26
            v_add_u32 v{32+i}, s57, v26""")
        a("s_add_u32 s53, s55, 8192")
        self.tr_addr(160, "s53", 25)
        a(f"""v_lshrrev_b32 v13, 2, v0
        v_lshlrev_b32 v13, 6, v13
        v_lshl_add_u32 v13, v22, 3, v13
        s_and_b32 s58, s58, 32
        s_add_u32 s58, s58, {KL}
        v_add_u32 v13, s58, v13
        v_bfe_u32 v15, v0, 2, 2
        v_mul_u32_u24 v16, 896, v15
        v_lshl_add_u32 v16, v7, 4, v16
        v_add_u32 v16, {YL}, v16
        v_lshlrev_b32 v17, 6, v7
        v_lshl_add_u32 v17, v15, 4, v17
        v_lshl_add_u32 v17, v22, 1, v17
        s_lshl_b32 s58, s50, 3
        s_add_u32 s53, s58, {H1L}
        v_add_u32 v17, s53, v17
        v_lshlrev_b32 v18, 6, v15
        v_lshl_add_u32 v18, v7, 4, v18
        v_add_u32 v18, {H1L}, v18
        v_mov_b32 v19, {ZR}
        v_lshlrev_b32 v14, 3, v7
        v_mov_b32 v15, s58""")
        for i in range(4):
            a(f"v_cmp_eq_u32 vcc, {i}, v22\ns_nop 1\nv_cndmask_b32 v{24+i}, v19, v18, vcc")
        a(f"""s_lshl_b32 s57, s50, 12
        s_add_u32 s57, s57, {HACC}
        s_xor_b32 s61, s57, 0x2000
        s_mul_i32 s58, s52, 7168
        s_lshl_b32 s59, s50, 10
        s_add_u32 s58, s58, s59
        s_add_u32 s58, s58, {PART}
        s_add_u32 s62, s58, 4096
        s_mov_b32 s59, {hex(f2u(16.0))}
        s_lshl_b32 s63, s52, 10
        s_add_u32 s63, s63, {EW}
        s_add_u32 s64, s16, s63
        s_addc_u32 s65, s17, 0
        v_lshrrev_b32 v19, 1, v0
        v_mul_u32_u24 v19, {7*512}, v19
        v_and_b32 v18, 1, v0
        v_lshl_add_u32 v19, v18, 7, v19
        s_sub_u32 s63, s49, 14
        s_lshl_b32 s63, s63, 9
        s_lshl_b32 s53, s48, 2
        s_add_u32 s63, s63, s53
        s_and_b32 s53, s50, 1
        s_lshl_b32 s53, s53, 8
        s_add_u32 s63, s63, s53
        s_add_u32 s63, s63, {FH}
        s_mov_b32 s60, 0xffff0000""")
        for i in range(8): a(f"v_mov_b32 v{40+i}, 0\nv_mov_b32 v{104+i}, 0")
        self.waitflag(F_PV, n=4, t="v96", sleep=False)
        for p in range(8):
            a(f"s_add_u32 m0, s55, {8192 + p*1024}\ns_add_u32 s53, s56, {(p & 3)*8*896 + (p >> 2)*512}")
            a(f"buffer_load_dwordx4 v21, s[32:35], s53 offen{ntw} lds")
        a("v_lshlrev_b32 v21, 4, v0\ns_waitcnt vmcnt(8)")
        self.setflag(F_W1)
        a("s_mov_b32 exec_hi, 0x00ffffff")
        for i in range(4):
            a(f"v_lshlrev_b32 v{40+2*i}, 16, v{36+i}\nv_and_b32 v{41+2*i}, s60, v{36+i}")
        a("s_cmp_ge_u32 s50, 2\ns_cbranch_scc0 L_mlp_w1")
        for i in range(4):
            a(f"v_lshlrev_b32 v{104+2*i}, 16, v{156+i}\nv_and_b32 v{105+2*i}, s60, v{156+i}")
        a("s_branch L_mlp_w2\nL_mlp_w1:\ns_mov_b32 exec_hi, -1")
        c("waves 0,1: w1 B operands and their column sums")
        self.waitflag(F_W1, n=4, t="v96", sleep=False)
        for ks in range(14):
            for half in range(2):
                p = 2*ks + half
                r = 64 + ks*4 + half*2
                a(f"ds_read_b64_tr_b16 v[{r}:{r+1}], v13 offset:{(p//7)*16384 + (p%7)*1024}")
        for k in range(4): a(f"v_mov_b32 v{8+k}, 0x3f803f80")
        a("v_lshlrev_b32 v28, 16, v28")
        a("s_waitcnt lgkmcnt(0)")
        for ks in range(14):
            a(f"v_mfma_f32_16x16x32_bf16 v[152:155], v[8:11], v[{64+4*ks}:{67+4*ks}], {'0' if ks == 0 else 'v[152:155]'}")
        a("L_mlp_w2:\ns_mov_b32 exec_hi, -1")
        self.stamp(4)
        def w2rd(n):
            a(f"s_mov_b32 exec_hi, -1\ns_waitcnt vmcnt({n})")
            for qq in range(2):
                for i in range(4):
                    for half in range(2):
                        r = 120 + (qq*4 + i)*4 + half*2
                        a(f"ds_read_b64_tr_b16 v[{r}:{r+1}], v{160+i} offset:{qq*4096 + half*2048}")
            a("s_mov_b32 exec_hi, 0x00ffffff")
        def fh(k):
            if self.hp == k:
                a("s_mov_b64 exec, 0xffff\nbuffer_store_dword v164, v19, s[16:19], s63 offen sc1\ns_mov_b64 exec, -1")
        a("s_cmp_lg_u32 s50, 3\ns_cbranch_scc1 L_ewbar")
        self.phint(16)
        a("L_ewbar:\ns_barrier")
        if self.prof and not self.light: a("s_memrealtime s[94:95]")
        a("v_mov_b32 v29, v152")
        a("s_mov_b32 exec_hi, 0x00ffffff\ns_cmp_ge_u32 s50, 2\ns_cbranch_scc1 L_mlp_b")
        def own_row(after):
            a(f"s_waitcnt vmcnt({after})")
            for i in range(4):
                a(f"v_add_f32 v{48+4*i}, v{48+4*i}, v{40+2*i}\nv_add_f32 v{49+4*i}, v{49+4*i}, v{41+2*i}\nv_cvt_pk_bf16_f32 v{36+i}, v{48+4*i}, v{49+4*i}\nds_write_b32 v{32+i}, v{36+i}")
            a("v_min_f32 v8, v50, v54\nv_min3_f32 v8, v8, v58, v62")
        c("---- waves 0,1: h row -> LDS, then (h @ w1) while waves 2,3 compute the LayerNorm statistics ----")
        a("L_hpa:")
        for i in range(4):
            a(f"buffer_load_dwordx4 v[{48+4*i}:{51+4*i}], v21, s[16:19], s57 offen offset:{i*896} sc1")
        w2rd(4)
        own_row(0)
        a("v_cmp_neq_f32 vcc, s59, v8")
        self.retry("L_hpa")
        self.stamp(5)
        if self.prof and not self.light: a("v_writelane_b32 v167, s94, 9")
        a("s_mov_b32 exec_hi, -1\ns_waitcnt lgkmcnt(0)\ns_barrier")
        self.stamp(6)
        regs = [8, 32, 36, 40, 44, 48, 52, 56, 60, 156, 160, 8, 32, 36]
        for ks in range(11):
            a(f"ds_read_b128 v[{regs[ks]}:{regs[ks]+3}], v16 offset:{ks*64}")
        for ks in range(14):
            a(f"s_waitcnt lgkmcnt({10-ks if ks < 3 else 13-ks})")
            r = regs[ks]
            a(f"v_mfma_f32_16x16x32_bf16 v[152:155], v[{r}:{r+3}], v[{64+4*ks}:{67+4*ks}], {'0' if ks == 0 else 'v[152:155]'}")
            if ks == 2:
                for k2 in (11, 12, 13): a(f"ds_read_b128 v[{regs[k2]}:{regs[k2]+3}], v16 offset:{k2*64}")
        k1 = -2*1.4426950408889634*0.7978845608028654
        a(f"""s_barrier
        ds_read_b64 v[30:31], v14 offset:{STL}
        s_mov_b32 s64, {hex(f2u(k1*0.044715))}
        v_mov_b32 v9, {hex(f2u(k1))}
        s_waitcnt lgkmcnt(0)
        v_fma_f32 v28, -v31, v29, v28
        s_nop 1
        v_fmac_f32 v28, v152, v30
        v_mul_f32 v8, v28, v28
        v_fma_f32 v8, v8, s64, v9
        v_mul_f32 v8, v8, v28
        v_exp_f32 v8, v8
        s_nop 0
        v_add_f32 v8, 1.0, v8
        v_rcp_f32 v8, v8
        s_nop 0
        v_mul_f32 v8, v8, v28
        v_cvt_pk_bf16_f32 v8, v8, v8
        ds_write_b16 v17, v8
        s_waitcnt lgkmcnt(0)
        L_mlp2:
        s_barrier""")
        self.stamp(7)
        for i in range(4):
            a(f"ds_read_b128 v[{32+4*i}:{35+4*i}], v{24+i}")
        for i in range(4):
            a(f"s_waitcnt lgkmcnt({3-i})")
            for qq in range(2):
                d = 48 + 4*qq; r = 120 + (qq*4 + i)*4
                cin = "0" if i == 0 else f"v[{d}:{d+3}]"
                a(f"v_mfma_f32_16x16x32_bf16 v[{d}:{d+3}], v[{32+4*i}:{35+4*i}], v[{r}:{r+3}], {cin}")
        a("""s_nop 6
        v_min_u32 v48, -2, v48
        buffer_store_dwordx4 v[48:51], v21, s[16:19], s58 offen sc1
        s_cmp_eq_u32 s50, 3
        s_cbranch_scc1 L_exit
        v_min_u32 v52, -2, v52
        buffer_store_dwordx4 v[52:55], v21, s[16:19], s62 offen sc1""")
        self.stamp(8)
        a("s_branch L_exit")
        c("---- waves 2,3: own row -> LDS, statistics of rows u and u-2 ----")
        a("L_mlp_b:")
        for i in range(4):
            a(f"buffer_load_dwordx4 v[{48+4*i}:{51+4*i}], v21, s[16:19], s57 offen offset:{i*896} sc1")
        for i in range(4):
            a(f"buffer_load_dwordx4 v[{64+4*i}:{67+4*i}], v21, s[16:19], s61 offen offset:{i*896} sc1")
        w2rd(8)
        own_row(4)
        a("s_waitcnt vmcnt(0)\nv_min3_f32 v8, v8, v66, v70\nv_min3_f32 v8, v8, v74, v78\nv_cmp_neq_f32 vcc, s59, v8")
        self.retry("L_mlp_b")
        self.stamp(5)
        a("s_waitcnt lgkmcnt(0)\ns_barrier")
        for i in range(4):
            a(f"v_add_f32 v{104+2*i}, v{104+2*i}, v{64+4*i}\nv_add_f32 v{105+2*i}, v{105+2*i}, v{65+4*i}")
        ra = [48, 49, 52, 53, 56, 57, 60, 61]; rb = list(range(104, 112))
        a("s_mov_b32 exec_hi, -1\nv_mov_b32 v8, 0\nv_mov_b32 v9, 0\nv_mov_b32 v10, 0\nv_mov_b32 v11, 0")
        fh(0); a("s_mov_b32 exec_hi, 0x00ffffff")
        for k in range(8):
            a(f"v_add_f32 v8, v8, v{ra[k]}\nv_fmac_f32 v9, v{ra[k]}, v{ra[k]}\nv_add_f32 v10, v10, v{rb[k]}\nv_fmac_f32 v11, v{rb[k]}, v{rb[k]}")
        a("s_mov_b32 exec_hi, -1")
        fh(2)
        c("reduce-scatter the four sums over the wave: rows 0..3 end up with S(u), S(u-2), Q(u), Q(u-2)")
        a("""s_nop 0
        v_permlane32_swap_b32 v8, v9
        v_permlane32_swap_b32 v10, v11
        v_add_f32 v8, v8, v9
        v_add_f32 v10, v10, v11
        s_nop 1
        v_permlane16_swap_b32 v8, v10
        v_add_f32 v8, v8, v10
        s_nop 1""")
        self.dpp_allred16("v_add_f32", [8])
        c("LN(LN(h)) = (h - m) * rs1 * rs2 : rs1 = rsq(v + eps), second LN sees mean 0 and variance v*rs1^2")
        a(f"""v_mul_f32 v8, {hex(f2u(1/448))}, v8
        v_mov_b32 v9, v8
        s_mov_b32 s64, {hex(f2u(1e-5))}
        v_and_b32 v10, 16, v0
        v_permlane32_swap_b32 v8, v9
        v_fma_f32 v9, -v8, v8, v9
        v_max_f32 v9, 0, v9
        v_add_f32 v11, s64, v9
        v_rsq_f32 v11, v11
        v_xor_b32 v15, v15, v10
        v_mul_f32 v9, v9, v11
        v_fma_f32 v9, v9, v11, s64
        v_rsq_f32 v9, v9
        s_mov_b32 exec_lo, 0x00010001
        s_mov_b32 exec_hi, 0
        v_mul_f32 v30, v9, v11
        v_mul_f32 v31, v30, v8
        ds_write_b64 v15, v[30:31] offset:{STL}
        s_mov_b64 exec, -1
        s_waitcnt lgkmcnt(0)
        s_barrier""")
        fh(1)
        c("every workgroup has read the epoch by now: advance it for the next launch")
        a(f"""s_lshl_b32 s53, s52, 2
        s_add_u32 s53, s53, s50
        s_cmp_lg_u32 s53, 3
        s_cbranch_scc1 L_mlp2
        s_mov_b32 s53, {EPO}
        s_mov_b64 exec, 1
        buffer_store_dword v164, v21, s[16:19], s53 offen sc1
        s_mov_b64 exec, -1
        s_branch L_mlp2""")

    def role_fin(self):
        self.cur = 'FIN'
        a, c = self.a, self.c
        c("================= role FINAL =================")
        a("L_fin:")
        self.srd(40, 72, 896)
        self.srd(44, 80, 3584)
        a(f"""s_mul_i32 s52, s48, 7
        s_add_u32 s52, s52, s49
        s_lshl_b32 s52, s52, 1
        s_add_u32 s52, s52, s50
        s_sub_u32 s52, s52, 44
        s_lshl_b32 s53, s52, 6
        s_add_u32 s53, s53, {PART}
        s_add_u32 s54, s53, {16*7168}
        s_add_u32 s55, s53, {32*7168}
        s_add_u32 s56, s53, {48*7168}
        v_lshrrev_b32 v20, 2, v0
        v_mul_u32_u24 v20, 7168, v20
        v_and_b32 v22, 3, v0
        v_lshl_add_u32 v20, v22, 4, v20
        s_lshr_b32 s57, s52, 4
        s_lshl_b32 s57, s57, 6
        s_and_b32 s58, s52, 3
        s_lshl_b32 s58, s58, 2
        s_add_u32 s57, s57, s58
        v_and_b32 v23, 16, v0
        v_lshlrev_b32 v23, 1, v23
        v_lshrrev_b32 v24, 5, v0
        v_lshl_add_u32 v23, v24, 4, v23
        v_add3_u32 v23, v23, v22, s57
        v_lshlrev_b32 v24, 1, v23
        v_lshrrev_b32 v25, 1, v23
        v_lshlrev_b32 v25, 4, v25
        s_bfe_u32 s58, s52, 0x20002
        s_mul_i32 s59, s58, 896
        s_lshl_b32 s58, s58, 12
        s_add_u32 s58, s58, {HACC}
        s_mov_b32 s61, {hex(f2u(16.0))}
        v_mov_b32 v44, 0
        v_mov_b32 v45, 0
        v_mov_b32 v46, 0
        v_mov_b32 v47, 0
        s_waitcnt lgkmcnt(0)
        buffer_load_ushort v26, v24, s[20:23], s59 offen
        buffer_load_ushort v27, v24, s[40:43], 0 offen
        buffer_load_ushort v28, v24, s[44:47], s59 offen""")
        a(f"""s_lshr_b32 s63, s52, 1
        s_lshl_b32 s63, s63, 9
        s_add_u32 s63, s63, {FH}
        s_add_u32 s64, s16, s63
        s_addc_u32 s65, s17, 0
        v_and_b32 v8, 1, v0
        v_cmp_eq_u32 s[66:67], 1, v8
        s_waitcnt vmcnt(0)
        v_lshlrev_b32 v26, 16, v26
        v_lshlrev_b32 v27, 16, v27
        v_add_f32 v26, v26, v27""")
        a("s_cmp_lg_u32 s50, 3\ns_cbranch_scc1 L_fhbar")
        self.phint(8)
        a("L_fhbar:\ns_barrier")
        if self.prof and not self.light: a("s_memrealtime s[94:95]")
        l = self.lab("FP")
        a(f"""{l}:
        buffer_load_dwordx4 v[28:31], v25, s[16:19], s58 offen sc1
        buffer_load_dwordx4 v[32:35], v20, s[16:19], s53 offen sc1
        buffer_load_dwordx4 v[36:39], v20, s[16:19], s54 offen sc1
        buffer_load_dwordx4 v[40:43], v20, s[16:19], s55 offen sc1
        s_mov_b32 exec_hi, 0
        buffer_load_dwordx4 v[44:47], v20, s[16:19], s56 offen sc1
        s_mov_b32 exec_hi, -1
        s_waitcnt vmcnt(4)
        v_cndmask_b32 v28, v28, v29, s[66:67]
        v_add_f32 v27, v26, v28
        v_cmp_neq_f32 s[68:69], s61, v30
        s_waitcnt vmcnt(0)
        v_max_u32 v8, v32, v36
        v_max3_u32 v8, v8, v40, v44
        v_cmp_eq_u32 vcc, -1, v8
        s_or_b64 vcc, vcc, s[68:69]""")
        self.retry(l)
        self.stamp(6)
        if self.prof and not self.light: a("v_writelane_b32 v167, s94, 5")
        for k in range(4): a(f"v_add_f32 v{32+k}, v{32+k}, v{36+k}\nv_add_f32 v{40+k}, v{40+k}, v{44+k}")
        for k in range(4): a(f"v_add_f32 v{32+k}, v{32+k}, v{40+k}")
        a("""s_nop 0
        v_permlane32_swap_b32 v32, v33
        v_permlane32_swap_b32 v34, v35
        v_add_f32 v32, v32, v33
        v_add_f32 v34, v34, v35
        s_nop 1
        v_permlane16_swap_b32 v32, v34
        v_add_f32 v32, v32, v34
        s_nop 1
        v_add_f32_dpp v32, v32, v32 row_ror:4 row_mask:0xf bank_mask:0xf
        s_nop 1
        v_add_f32_dpp v32, v32, v32 row_ror:8 row_mask:0xf bank_mask:0xf
        v_add_f32 v32, v32, v27
        v_cvt_pk_bf16_f32 v32, v32, v32
        s_mov_b32 exec_lo, 0x000f000f
        s_mov_b32 exec_hi, 0x000f000f
        buffer_store_short v32, v24, s[44:47], s59 offen""")
        self.stamp(7)

def add_pads(text, gap=960, nchain=3):
    import subprocess, re, tempfile, os
    lines = text.split("\n")
    start = next(i for i, l in enumerate(lines) if l.startswith(NAME + "_kernel:"))
    end = next(i for i, l in enumerate(lines) if l.startswith("L_end:"))
    def addrs(ls):
        t = []
        for i, l in enumerate(ls):
            if start < i and l.startswith("    ") and not l.strip().startswith(";") and not l.strip().startswith("."):
                t.append(f"ZZ_{i}:")
            t.append(l)
        src = "\n".join(t)
        for k in range(nchain):
            if f"PADCHAIN_{k}:" not in src: src = src.replace(f"PADCHAIN_{k}", "L_end")
        src = re.sub(r"PADNEXT", "L_end", src)
        with tempfile.TemporaryDirectory() as d:
            open(d + "/a.s", "w").write(src)
            subprocess.check_call(["clang", "-x", "assembler", "-target", "amdgcn-amd-amdhsa", "-mcpu=gfx950", "-c", d + "/a.s", "-o", d + "/a.o"])
            out = subprocess.check_output(["llvm-objdump", "-t", d + "/a.o"], text=True)
        r = {}
        for l in out.splitlines():
            p = l.split()
            if not p: continue
            if p[-1].startswith("ZZ_"): r[int(p[-1][3:])] = int(p[0], 16)
            if p[-1] == NAME + "_kernel": base = int(p[0], 16)
        return {k: v - base for k, v in r.items()}
    ad = addrs(lines)
    pads = []; last = 0; shift = 0; noz = False
    for i in sorted(ad):
        if i >= end: break
        if "NOPAD_ON" in lines[i - 1]: noz = True
        if "NOPAD_OFF" in lines[i - 1]: noz = False
        x = ad[i] + shift
        if not noz and (x - last >= gap or (x >> 12) != (last >> 12)):
            pads.append(i); last = x; shift += 4
    n = len(pads)
    out = []
    for i, l in enumerate(lines):
        if i in pads:
            k = pads.index(i)
            if k < nchain: out.append(f"PADCHAIN_{k}:")
            out.append(f"PAD_{k}:")
            nxt = f"PAD_{k + nchain}" if k + nchain < n else "L_warmdone"
            out.append(f"    s_cbranch_execz {nxt}")
        out.append(l)
    return "\n".join(out)

if __name__ == "__main__":
    import argparse
    ap = argparse.ArgumentParser()
    ap.add_argument("-o", default="k.s"); ap.add_argument("-W", type=int, default=6); ap.add_argument("--WV", type=int, default=0); ap.add_argument("--WE", type=int, default=0); ap.add_argument("--NE", type=int, default=0); ap.add_argument("--pf64", action="store_true"); ap.add_argument("--ntp", default=""); ap.add_argument("--hd", type=int, default=4); ap.add_argument("--qd", type=int, default=12); ap.add_argument("--dly", default=None); ap.add_argument("--skip", default=""); ap.add_argument("--rot", type=int, default=1); ap.add_argument("--pw", default="1"); ap.add_argument("--ewp", type=int, default=2); ap.add_argument("--hp", type=int, default=2); ap.add_argument("--pft", type=int, default=3); ap.add_argument("--ww", type=int, default=8); ap.add_argument("--od", type=int, default=2); ap.add_argument("--dx", type=int, default=-1); ap.add_argument("--tkp", type=int, default=8); ap.add_argument("--ps", type=int, default=1); ap.add_argument("--light", action="store_true"); ap.add_argument("--ewk", type=int, default=4)
    ap.add_argument("--prof", action="store_true"); ap.add_argument("--nt", default="nt"); ap.add_argument("--ntw", default="nt")
    x = ap.parse_args()
    open(x.o, "w").write(add_pads(G(W=x.W, WV=x.WV, WE=x.WE, NE=x.NE, pf64=x.pf64, ntp=x.ntp, hd=x.hd, qd=x.qd, dly=x.dly, skip=x.skip, rot=x.rot, pw=x.pw, ewp=x.ewp, hp=x.hp, pft=x.pft, ww=x.ww, od=x.od, dx=x.dx, tkp=x.tkp, ps=x.ps, light=x.light, ewk=x.ewk, prof=x.prof, nt=x.nt, ntw=x.ntw).build()))
```

```python
import sys, struct
NAME = "sequential_preLN__sliding_block_cached__mixer_channel_mlp__decode"

def f2u(x): return struct.unpack("<I", struct.pack("<f", x))[0]

QP   = 0x00000
HACC = 0x40000
STAT = 0x44000
OP   = 0xe0000
EW   = 0x50000
FH   = 0x60000
TK   = 0x70000
GR   = 0x71000
EPO  = 0x71100
PART = 0x72000
PROF = 0x180000
WQL = 4096; KL = 24576; VL = KL + 65536
XN = 0
QB = XN + 1024
SP = QB + 1024
ZR = SP + 512
FL = ZR + 512
LDS_TOTAL = VL + 65536
RED = WQL
YL = WQL
H1L = WQL + 4096
STL = WQL + 4608
F_WQ, F_S, F_VI, F_Q, F_P, F_CLR, F_TAG, F_PV, F_V8, F_KL, F_TK, F_W1 = 0, 32, 48, 64, 68, 76, 88, 96, 112, 128, 72, 16

class G:
    def __init__(self, W=6, WV=None, WE=None, NE=0, prof=False, nt="nt", ntw="nt", pf64=False, ntp="nt", hd=2, qd=0, dly=None, skip='', rot=0, pw='pv', ewp=1, hp=1, pft=0, ww=3, od=2, dx=-1, tkp=8, ps=2, light=False, ewk=4, pwo=0, pw1=0, pw2=99):
        self.pfpos = dict(wo=pwo, w1=pw1, w2=pw2)
        self.light = light; self.ewk = ewk
        self.ps = ps
        self.tkp = tkp
        self.dx = dx
        self.ww = ww; self.od = od
        self.pw = pw; self.ewp = ewp; self.hp = hp; self.pft = pft
        self.rot = ['s_mov_b32 s59, 0', 's_mov_b32 s59, s49', 's_lshr_b32 s59, s2, 4', 's_mul_i32 s59, s2, 5', 's_add_u32 s59, s49, s2'][rot]
        self.skip = set(skip.split(','))
        self.dly = dly; self.cur = 'E'
        self.qd = qd
        self.hd = hd
        self.ntp = ntp
        self.WE = WE or WV or W; self.NE = NE; self.pf64 = pf64
        self.L = []; self.W = W; self.WV = WV or W; self.prof = prof; self.nt = nt; self.ntw = ntw; self.uid = 0
    def a(self, s):
        for line in s.split("\n"):
            line = line.strip()
            if line: self.L.append(("" if line.endswith(":") else "    ") + line)
    def c(self, s): self.L.append("    ; " + s)
    def lab(self, p="L"):
        self.uid += 1; return f"{p}_{self.uid}"
    def stamp(self, i):
        if self.dly == f"{self.cur}:{i}":
            self.a("s_memrealtime s[92:93]\ns_waitcnt lgkmcnt(0)\ns_mov_b32 s94, 1")
        if self.prof and (not self.light or (self.cur == 'L' and i == 6)):
            self.a(f"s_memrealtime s[90:91]\ns_waitcnt lgkmcnt(0)\nv_writelane_b32 v167, s90, {i}")
    def srd(self, r, karg, size):
        self.a(f"s_load_dwordx2 s[{r}:{r+1}], s[0:1], {karg}\ns_mov_b32 s{r+2}, {size}\ns_mov_b32 s{r+3}, 0x20000")
    def setflag(self, off, vaddr="v2"):
        self.a(f"ds_write_b32 {vaddr}, v4 offset:{off}")
    def waitflag(self, off, vaddr="v3", n=1, t="v8", sleep=True):
        l = self.lab("WF"); d = self.lab("WD")
        ti = int(t[1:])
        self.a(f"{l}:")
        if n == 1:
            self.a(f"ds_read_b32 {t}, {vaddr} offset:{off}\ns_waitcnt lgkmcnt(0)")
        else:
            self.a(f"ds_read_b128 v[{ti}:{ti+3}], {vaddr} offset:{off}\ns_waitcnt lgkmcnt(0)")
            self.a(f"v_and_b32 {t}, {t}, v{ti+1}\nv_and_b32 v{ti+2}, v{ti+2}, v{ti+3}\nv_and_b32 {t}, {t}, v{ti+2}")
        self.a(f"v_cmp_ne_u32 vcc, 0, {t}\ns_cbranch_vccnz {d}")
        if sleep: self.a("s_sleep 1")
        self.a(f"s_sub_u32 s88, s88, 1\ns_cbranch_scc0 {l}\ns_branch L_exit\n{d}:")
    def retry(self, l):
        d = self.lab("RD")
        self.a(f"s_cbranch_vccz {d}\ns_sub_u32 s88, s88, 1\ns_cbranch_scc0 {l}\ns_branch L_exit\n{d}:")

    def shint(self, n, base="s[64:65]"):
        a = self.a
        l = self.lab("SH"); d = self.lab("SD")
        a(f"{l}:\ns_sub_u32 s88, s88, 1\ns_cbranch_scc1 L_exit")
        if n == 8:
            a(f"s_load_dwordx8 s[72:79], {base}, 0 glc\ns_waitcnt lgkmcnt(0)")
            regs = [72, 74, 76, 78]
        elif n == 16:
            a(f"s_load_dwordx8 s[72:79], {base}, 0 glc\ns_load_dwordx8 s[80:87], {base}, 128 glc\ns_waitcnt lgkmcnt(0)")
            for k in range(4): a(f"s_xor_b64 s[{80+2*k}:{81+2*k}], s[{80+2*k}:{81+2*k}], s[{72+2*k}:{73+2*k}]")
            a("s_or_b64 s[80:81], s[80:81], s[82:83]\ns_or_b64 s[84:85], s[84:85], s[86:87]\ns_or_b64 s[80:81], s[80:81], s[84:85]")
            a(f"s_cbranch_scc1 {l}")
            regs = [72, 74, 76, 78]
        else:
            a(f"s_load_dwordx16 s[72:87], {base}, 0 glc\ns_load_dwordx16 s[28:43], {base}, 64 glc\ns_waitcnt lgkmcnt(0)")
            regs = list(range(72, 88, 2)) + list(range(28, 44, 2))
        for r in regs:
            a(f"s_cmp_lg_u64 s[{r}:{r+1}], s[70:71]\ns_cbranch_scc1 {l}")

    def phint(self, n, base="s[64:65]"):
        a = self.a; l = self.lab("PH"); step = 256 if n == 16 else 128
        def ld():
            a(f"s_load_dwordx8 s[72:79], {base}, s89 glc")
            if n == 16: a(f"s_load_dwordx8 s[80:87], s[68:69], s89 glc")
        if n == 16: a("s_add_u32 s68, s64, 128\ns_addc_u32 s69, s65, 0")
        a("s_mov_b32 s89, 0"); ld(); a("s_waitcnt lgkmcnt(0)")
        a(f"{l}:\ns_sub_u32 s88, s88, 1\ns_cbranch_scc1 L_exit\ns_add_u32 s89, s89, {step}\ns_and_b32 s89, s89, {4*step-1}")
        ld()
        if self.ps == 0: a("s_waitcnt lgkmcnt(0)")
        else:
            a(f"s_sleep {self.ps}")
        for r in range(72, 72 + n, 2):
            a(f"s_cmp_lg_u64 s[{r}:{r+1}], s[70:71]\ns_cbranch_scc1 {l}")

    def build(self):
        a, c = self.a, self.c
        W = self.W; nt = (" " + self.nt) if self.nt else ""; ntw = (" " + self.ntw) if self.ntw else ""
        self.L.append(f"; @launch grid=(256,1,1) block=(576,1,1) lds={LDS_TOTAL}")
        self.L.append('.amdgcn_target "amdgcn-amd-amdhsa--gfx950"\n.text')
        self.L.append(f".globl {NAME}_kernel\n.p2align 12\n.fill 832, 4, 0xbf810000\n.p2align 8\n.type {NAME}_kernel,@function\n{NAME}_kernel:")
        if self.prof: a("s_memrealtime s[92:93]")
        if self.dly: a("s_mov_b32 s94, 0"); self.stamp(0)
        a("s_cmp_ge_u32 s2, 256\ns_cbranch_scc1 L_end")
        a(f"""v_lshrrev_b32 v1, 6, v0
        v_and_b32 v0, 63, v0
        v_readfirstlane_b32 s3, v1
        v_mov_b32 v8, 0
        v_mov_b32 v9, 0
        v_lshlrev_b32 v10, 3, v0
        s_cmp_eq_u32 s3, 7
        s_cbranch_scc0 L_noinit
        ds_write_b64 v10, v[8:9] offset:{ZR}
        ds_write_b64 v10, v[8:9] offset:{FL}
        s_waitcnt lgkmcnt(0)
        L_noinit:""")
        self.srd(12, 24, 448*8192)
        self.srd(4, 8, 0x4000000)
        self.srd(8, 16, 0x4000000)
        self.srd(16, 96, 0x300000)
        self.srd(20, 0, 3584)
        c("instruction-cache warm-up: waves 5..7 hop through the code with EXEC=0")
        a(f"""s_sub_u32 s52, s3, 5
        s_cmp_lt_u32 s52, 3
        s_cbranch_scc0 L_warmdone
        s_barrier
        s_cmp_eq_u32 s3, 5
        s_cbranch_scc0 L_warm2
        s_getpc_b64 s[24:25]
        L_pc:
        s_mov_b32 s26, L_end-L_pc
        s_mov_b32 s27, 0x20000
        v_lshlrev_b32 v8, 7, v0
        s_movk_i32 s52, 0x2000
        {'' if 'nocpf' in self.skip else 'buffer_load_dword v165, v8, s[24:27], 0 offen'}
        {'' if 'nocpf' in self.skip else 'buffer_load_dword v165, v8, s[24:27], s52 offen'}
        s_mov_b64 exec, 0
        s_branch PADCHAIN_0
        L_warm2:
        s_mov_b64 exec, 0
        s_cmp_eq_u32 s3, 6
        s_cbranch_scc1 PADCHAIN_1
        s_branch PADCHAIN_2""")
        a("L_warmdone:\ns_mov_b64 exec, -1\ns_mov_b32 s88, 0x80000")
        a("s_and_b32 s48, s2, 7\ns_lshr_b32 s49, s2, 3")
        c("v5 = swizzled 16B chunk offset inside a 128B row; v6 = row (l>>3); v7 = g4")
        a("""v_and_b32 v5, 7, v0
        v_lshrrev_b32 v7, 4, v0
        v_lshlrev_b32 v5, 4, v5
        v_lshlrev_b32 v6, 5, v7
        v_xor_b32 v5, v5, v6
        v_lshrrev_b32 v6, 3, v0
        s_and_b32 s50, s3, 3""")
        a(f"v_mov_b32 v3, {FL}\ns_lshl_b32 s51, s50, 2\nv_add_u32 v2, s51, v3\nv_mov_b32 v4, 1")
        if self.prof: a("v_mov_b32 v167, 0")
        if 'sa' in self.skip: a("s_waitcnt lgkmcnt(0)\ns_cmp_ge_u32 s3, 4\ns_cbranch_scc1 L_exit")
        a("s_cmp_lt_u32 s3, 4\ns_cbranch_scc1 L_lwave\ns_cmp_eq_u32 s3, 8\ns_cbranch_scc1 L_ahead\ns_cmp_eq_u32 s3, 4\ns_cbranch_scc0 L_swave\ns_barrier\ns_branch L_shead\nL_ahead:")
        self.ahead()
        self.lwave()
        self.swave_head()
        self.awave()
        self.swave()
        self.role_wo()
        self.role_mlp()
        self.role_fin()
        a("L_exit:")
        if self.dly:
            if self.dly[0] in "ELAS": a("s_cmp_lt_u32 s2, 224\ns_cbranch_scc1 L_end")
            if self.dx >= 0: a(f"s_and_b32 s90, s2, 7\ns_cmp_lg_u32 s90, {self.dx}\ns_cbranch_scc1 L_end")
            a("""s_cmp_eq_u32 s94, 0
            s_cbranch_scc1 L_end
            L_dly:
            s_memrealtime s[90:91]
            s_waitcnt lgkmcnt(0)
            s_sub_u32 s90, s90, s92
            s_cmp_lt_u32 s90, 3000
            s_cbranch_scc1 L_dly""")
        if self.prof:
            a(f"""s_waitcnt lgkmcnt(0)
            s_mov_b64 exec, -1
            v_writelane_b32 v167, s92, 0
            s_memrealtime s[90:91]
            s_waitcnt lgkmcnt(0)
            v_writelane_b32 v167, s90, 63
            v_writelane_b32 v167, s88, 62
            s_lshl_b32 s90, s2, 4
            s_add_u32 s90, s90, s3
            s_lshl_b32 s90, s90, 8
            s_add_u32 s90, s90, {PROF}
            v_lshlrev_b32 v166, 2, v0
            buffer_store_dword v167, v166, s[16:19], s90 offen""")
        a("L_end:\ns_endpgm")
        self.L.append(f""".section .rodata,"a"
.p2align 6
.amdhsa_kernel {NAME}_kernel
  .amdhsa_next_free_vgpr 168
  .amdhsa_next_free_sgpr 96
  .amdhsa_accum_offset 168
  .amdhsa_group_segment_fixed_size 0
  .amdhsa_kernarg_size 104
  .amdhsa_user_sgpr_count 2
  .amdhsa_user_sgpr_kernarg_segment_ptr 1
  .amdhsa_system_sgpr_workgroup_id_x 1
.end_amdhsa_kernel""")
        return "\n".join(self.L) + "\n"

    def tr_addr(self, r, sbase, tmp):
        a = self.a
        a(f"""v_lshrrev_b32 v{tmp}, 2, v0
        v_lshlrev_b32 v{r}, 7, v{tmp}
        v_and_b32 v{tmp+1}, 3, v0
        v_lshl_add_u32 v{r}, v{tmp+1}, 3, v{r}
        v_bfe_u32 v{tmp}, v0, 3, 2
        v_lshl_add_u32 v{r}, v{tmp}, 5, v{r}
        v_add_u32 v{r}, {sbase}, v{r}
        v_xor_b32 v{r+1}, 32, v{r}
        v_xor_b32 v{r+2}, 64, v{r}
        v_xor_b32 v{r+3}, 0x60, v{r}""")

    def lwave(self):
        self.cur = 'L'
        a, c = self.a, self.c; W = self.W; nt = (" " + self.nt) if self.nt else ""
        c("================= L-wave: stream wq tile, K, V into LDS; PV =================")
        a("L_lwave:")
        a(f"""v_lshl_add_u32 v10, v6, 13, v5
        v_lshl_add_u32 v11, v6, 9, v5
        v_lshrrev_b32 v12, 5, v0
        v_xor_b32 v12, v12, v0
        v_lshlrev_b32 v12, 4, v12
        s_lshl_b32 s57, s50, 5
        v_xor_b32 v12, s57, v12
        v_xor_b32 v13, 0x80, v12
        s_lshr_b32 s52, s49, 3
        s_lshl_b32 s52, s52, 2
        s_add_u32 s52, s52, s50
        s_lshl_b32 s52, s52, 18
        s_lshl_b32 s53, s48, 10
        s_add_u32 s52, s52, s53
        s_and_b32 s53, s49, 7
        s_lshl_b32 s53, s53, 7
        s_add_u32 s52, s52, s53
        s_and_b32 s53, s2, 31
        s_lshl_b32 s53, s53, 21
        s_lshr_b32 s54, s2, 5
        s_lshl_b32 s54, s54, 16
        s_add_u32 s53, s53, s54
        s_add_u32 s53, s53, {3072*512}
        s_lshl_b32 s55, s50, 14
        s_lshl_b32 s58, s50, 10
        s_add_u32 s54, s53, s58
        {self.rot}
        s_lshl_b32 s59, s59, 12
        s_lshl_b32 s56, s50, 7
        s_add_u32 s53, s53, s56
        s_lshl_b32 s56, s50, 12
        s_add_u32 m0, s56, {WQL}
        s_barrier
        s_waitcnt lgkmcnt(0)""")
        if 'wqlin' in self.skip: a("v_lshlrev_b32 v10, 4, v0\ns_mul_i32 s52, s2, 14336\ns_lshl_b32 s57, s50, 10\ns_add_u32 s52, s52, s57")
        if 'nowq' in self.skip: a("s_mov_b32 s52, 0x1000000")
        if 'tk' in self.skip: a("s_load_dword s61, s[4:5], s54")
        if 'tv' in self.skip: a("s_load_dword s62, s[8:9], s54")
        if 'pst' in self.skip: self.stamp(11)
        WV = self.WV
        ops = [('wq', p) for p in range(4)] + [('K', p) for p in range(16)]
        if 'tvm' in self.skip: pass
        for p in range(17):
            for kind in ('wo', 'w1', 'w2'):
                if self.pfpos[kind] == p: ops.append(('pf', kind))
            if p < 16: ops.append(('V', p))
        pos = {o: i for i, o in enumerate(ops)}
        lastV = pos[('V', 15)]
        st = dict(landed=0)
        ntp = (" " + self.ntp) if self.ntp else ""
        for n, (kind, p) in enumerate(ops):
            if kind == 'wq':
                a(f"buffer_load_dwordx4 v10, s[12:15], s52 offen offset:{p*1024}{nt} lds")
                if p < 3: a(f"s_add_u32 s52, s52, {65536-1024}")
            elif kind == 'K':
                a(f"s_add_u32 m0, s58, {KL + p*4096}\ns_and_b32 s59, s59, 0xf000\ns_add_u32 s60, s54, s59")
                a(f"buffer_load_dwordx4 v{12 + (p & 1)}, s[4:7], s60 offen{nt} lds\ns_addk_i32 s59, 0x1000")
                if p == 4:
                    c("descriptors / offsets for the weight prefetch (one dword per 128B line into L2)")
                    self.srd(28, 32, 4096*896); self.srd(32, 64, 1792*896); self.srd(36, 48, 448*3584)
                    a(f"""s_lshl_b32 s66, s48, 5
                    s_add_u32 s66, s66, s49
                    s_mul_i32 s67, s66, 6272
                    s_mul_i32 s68, s50, {13*128}
                    s_add_u32 s67, s67, s68
                    s_lshl_b32 s66, s66, 2
                    s_add_u32 s66, s66, s50
                    s_mul_i32 s66, s66, 3584
                    s_mul_i32 s68, s49, {14*3584}
                    s_mul_i32 s69, s48, 448
                    s_andn2_b32 s69, s69, 127
                    s_add_u32 s68, s68, s69
                    s_mul_i32 s69, s50, 14
                    v_add_u32 v31, s69, v0
                    v_lshrrev_b32 v16, 2, v31
                    v_mul_u32_u24 v16, 3584, v16
                    v_and_b32 v31, 3, v31
                    v_lshl_add_u32 v31, v31, 7, v16
                    v_lshlrev_b32 v30, 7, v0""")
                if p == 8: a("s_waitcnt lgkmcnt(0)")
                if p == 5 and 'tvm' in self.skip: a("s_load_dword s62, s[8:9], s54")
            elif kind == 'V':
                a(f"s_add_u32 m0, s55, {VL + p*1024}\ns_and_b32 s59, s59, 0xf000\ns_add_u32 s60, s53, s59")
                a(f"buffer_load_dwordx4 v11, s[8:11], s60 offen{nt} lds")
                if p < 15: a("s_addk_i32 s59, 0x1000")
                if p == self.tkp: self.setflag(F_V8)
            else:
                m, va, srd, so = dict(wo=(0x0fffffff, 30, 28, 66), w1=(0x3fff, 31, 36, 68), w2=(0x1fff, 30, 32, 67))[p]
                a(f"s_mov_b64 exec, {hex(m)}\nbuffer_load_dword v165, v{va}, s[{srd}:{srd+3}], s{so} offen{ntp}\ns_mov_b64 exec, -1")
            n += 1
            w = W if n < 20 else (WV if n <= lastV - self.NE else self.WE)
            if n <= lastV and n - (w - 1) > st["landed"]:
                a(f"s_waitcnt vmcnt({w-1})")
                old = st["landed"]; st["landed"] = n - (w - 1)
                if 'pst' in self.skip: self.stamp(11 + st["landed"])
                if old < 4 <= st["landed"]: self.setflag(F_WQ); self.stamp(1)
                for u in range(4):
                    if old < 8 + 4*u <= st["landed"]: self.setflag(F_KL + 16*u)
                if old < 20 <= st["landed"]: self.stamp(2)
        self.setflag(F_VI); self.stamp(3)
        assert st["landed"] >= 20
        c("PV: address prep")
        a(f"s_add_u32 s55, s55, {VL}")
        self.tr_addr(12, "s55", 16)
        a(f"""v_bfe_u32 v20, v0, 2, 1
        v_lshlrev_b32 v22, 6, v20
        v_lshl_add_u32 v22, v7, 4, v22
        v_add_u32 v22, {SP}, v22
        v_mov_b32 v21, {ZR}
        v_and_b32 v23, 11, v0""")
        for i in range(4):
            a(f"v_cmp_eq_u32 vcc, {i}, v23\ns_nop 1\nv_cndmask_b32 v{16+i}, v21, v22, vcc")
        a(f"""v_and_b32 v28, 15, v0
        v_lshlrev_b32 v28, 3, v28
        v_lshl_add_u32 v28, v7, 12, v28
        s_lshl_b32 s56, s48, 2
        s_add_u32 s56, s56, s50
        s_lshl_b32 s56, s56, 13
        s_lshr_b32 s57, s49, 4
        s_lshl_b32 s57, s57, 11
        s_add_u32 s56, s56, s57
        s_and_b32 s57, s49, 3
        s_lshl_b32 s57, s57, 9
        s_add_u32 s56, s56, s57
        s_bfe_u32 s57, s49, 0x20002
        s_lshl_b32 s57, s57, 7
        s_add_u32 s56, s56, s57
        s_add_u32 s56, s56, {OP}""")
        if 'sa' not in self.skip: self.waitflag(F_P)
        a("v_readfirstlane_b32 s57, v8")
        self.stamp(4)
        for ks in range(4):
            for i in range(4):
                r = 64 + (ks*4 + i)*4
                a(f"ds_read_b128 v[{r}:{r+3}], v{16+i} offset:{ks*128}")
        for ks in range(4):
            for half in range(2):
                rem = len(ops) - 1 - pos[('V', 4*ks + 2*half + 1)]
                if rem < len(ops) - st['landed']: a(f"s_waitcnt vmcnt({rem})")
                if ks == 3 and half == 1: self.stamp(5)
                for i in range(4):
                    r = 32 + (ks & 1)*16 + i*4 + half*2
                    a(f"ds_read_b64_tr_b16 v[{r}:{r+1}], v{12+i} offset:{ks*4096 + half*2048}")
            for i in range(4):
                a(f"s_waitcnt lgkmcnt({3-i})")
                rb = 32 + (ks & 1)*16 + i*4; ra = 64 + (ks*4 + i)*4
                cin = "0" if (ks == 0 and i == 0) else "v[128:131]"
                a(f"v_mfma_f32_16x16x32_bf16 v[128:131], v[{ra}:{ra+3}], v[{rb}:{rb+3}], {cin}")
        a("""s_mov_b32 exec_hi, 0
        s_cmp_eq_u32 s57, 1
        s_nop 5
        v_cvt_pk_bf16_f32 v24, v128, v129
        v_cvt_pk_bf16_f32 v25, v130, v131
        v_min_u32 v24, -2, v24
        s_cbranch_scc0 L_oglob
        buffer_store_dwordx2 v[24:25], v28, s[16:19], s56 offen
        L_odone:
        s_mov_b32 exec_hi, -1""")
        self.setflag(F_PV)
        self.stamp(6)
        for p in ('wo', 'w1', 'w2'):
            if self.pfpos[p] == 17:
                m, va, srd, so = dict(wo=(0x0fffffff, 30, 28, 66), w1=(0x3fff, 31, 36, 68), w2=(0x1fff, 30, 32, 67))[p]
                a(f"s_mov_b64 exec, {hex(m)}\nbuffer_load_dword v165, v{va}, s[{srd}:{srd+3}], s{so} offen{ntp}\ns_mov_b64 exec, -1")
        if self.tkp < 0: a("s_cmp_ge_u32 s49, 14\ns_cbranch_scc1 L_exit\ns_barrier")
        a("s_branch L_exit")
        a("L_oglob:\nbuffer_store_dwordx2 v[24:25], v28, s[16:19], s56 offen sc1\ns_branch L_odone")

    def swave_head(self):
        a, c = self.a, self.c
        c("================= S-wave head: clears / code prefetch =================")
        a("L_shead:")
        if 'touch' in self.skip:
            c("touch every page used later (address-translation warm-up) through the scalar path")
            a(f"""s_load_dwordx2 s[28:29], s[0:1], 32
            s_load_dwordx8 s[32:39], s[0:1], 48
            s_load_dwordx2 s[40:41], s[0:1], 80
            s_and_b32 s56, s2, 31
            s_lshl_b32 s56, s56, 21
            s_add_u32 s56, s56, {3072*512}
            s_mul_i32 s57, s48, {512*896}
            s_add_u32 s58, s57, {512*896-64}
            s_mov_b32 s59, {448*3584-64}
            s_waitcnt lgkmcnt(0)
            s_load_dword s60, s[8:9], s56
            s_load_dword s61, s[28:29], s57
            s_load_dword s62, s[28:29], s58
            s_load_dword s63, s[32:33], 0
            s_load_dword s64, s[32:33], s59
            s_load_dword s65, s[34:35], 0
            s_load_dword s66, s[36:37], 0
            s_load_dword s67, s[36:37], s59
            s_load_dword s68, s[38:39], 0
            s_load_dword s69, s[40:41], 0""")
        a(f"""v_mov_b32 v8, -1
        v_mov_b32 v9, -1
        v_mov_b32 v10, -1
        v_mov_b32 v11, -1
        v_mov_b32 v12, 0
        v_mov_b32 v13, 0
        v_lshlrev_b32 v15, 3, v0
        s_lshl_b32 s52, s48, 5
        s_add_u32 s52, s52, s49
        s_lshl_b32 s52, s52, 10
        s_add_u32 s52, s52, {OP}
        v_lshlrev_b32 v14, 4, v0
        s_lshl_b32 s53, s48, 2
        s_and_b32 s54, s49, 3
        s_add_u32 s53, s53, s54
        s_lshl_b32 s53, s53, 10
        s_lshr_b32 s54, s2, 5
        s_lshl_b32 s54, s54, 7
        s_add_u32 s53, s53, s54
        s_add_u32 s53, s53, {STAT}
        s_lshl_b32 s55, s2, 6
        s_add_u32 s55, s55, {HACC}
        {'s_waitcnt lgkmcnt(0)' if 'touch' not in self.skip else ''}
        {'s_branch L_nopart' if 'clr' in self.skip else ''}
        buffer_store_dwordx4 v[8:11], v14, s[16:19], s52 offen sc1
        s_mov_b64 exec, 0xff
        buffer_store_dwordx2 v[12:13], v15, s[16:19], s55 offen sc1
        s_mov_b64 exec, 3
        buffer_store_dwordx2 v[8:9], v15, s[16:19], s53 offen sc1
        s_cmp_lg_u32 s49, 0
        s_cbranch_scc1 L_notk
        s_lshl_b32 s55, s48, 7
        s_add_u32 s55, s55, {TK}
        buffer_store_dwordx2 v[12:13], v15, s[16:19], s55 offen sc1
        L_notk:
        s_mov_b64 exec, -1
        s_sub_u32 s54, s49, 21
        s_cmp_lt_u32 s54, 7
        s_cbranch_scc0 L_nopart
        s_mul_i32 s55, s48, 7
        s_add_u32 s55, s55, s54
        s_lshl_b32 s55, s55, 7
        s_add_u32 s55, s55, {PART}
        v_mul_u32_u24 v14, 7168, v6
        v_and_b32 v16, 7, v0
        v_lshl_add_u32 v14, v16, 4, v14""")
        for i in range(7):
            a(f"buffer_store_dwordx4 v[8:11], v14, s[16:19], s55 offen sc1")
            if i < 6: a(f"s_add_u32 s55, s55, {8*7168}")
        a("L_nopart:\ns_waitcnt vmcnt(0)")
        self.setflag(F_CLR, "v3")
        a("s_waitcnt lgkmcnt(0)\ns_branch L_swave")

    def dpp_allred16(self, op, regs):
        for rot in (8, 4, 2, 1):
            for r in regs:
                self.a(f"{op}_dpp v{r}, v{r}, v{r} row_ror:{rot} row_mask:0xf bank_mask:0xf")
            self.a("s_nop %d" % max(0, 2 - len(regs)))

    def ahead(self):
        a, c = self.a, self.c
        c("A-wave head: x loads first")
        a(f"""s_setprio 3
        v_and_b32 v12, 15, v0
        v_mul_u32_u24 v13, 896, v7
        v_lshl_add_u32 v13, v12, 3, v13
        s_lshr_b32 s52, s49, 3
        s_lshl_b32 s53, s52, 8
        s_mov_b32 s54, {EPO}
        s_barrier
        s_waitcnt lgkmcnt(0)""")
        for i in range(7):
            a(f"buffer_load_dwordx2 v[{16+2*i}:{17+2*i}], v13, s[20:23], 0 offen offset:{i*128}")
        a("buffer_load_dwordx2 v[30:31], v13, s[20:23], s53 offen\nbuffer_load_dwordx2 v[32:33], v13, s[20:23], s53 offen offset:128")
        a("buffer_load_dword v110, v8, s[16:19], s54 offen sc1\ns_branch L_awave")

    def awave(self):
        self.cur = 'A'
        a, c = self.a, self.c
        c("================= A-wave: LN1, q partial, q gather, softmax, stats =================")
        a("L_awave:")
        a(f"s_mov_b32 s54, {WQL}")
        self.tr_addr(100, "s54", 104)
        a(f"""v_bfe_u32 v104, v0, 2, 2
        v_lshlrev_b32 v104, 8, v104
        v_lshl_add_u32 v104, v7, 3, v104
        v_add_u32 v104, {XN}, v104
        v_lshlrev_b32 v105, 8, v7
        v_lshl_add_u32 v105, v12, 3, v105
        v_lshlrev_b32 v106, 14, v7
        v_lshl_add_u32 v106, v12, 4, v106
        v_lshlrev_b32 v108, 4, v0
        s_mov_b32 s60, 0xffff0000
        s_waitcnt vmcnt(1)""")
        self.stamp(1)
        c("unpack x (28 values: v36..v63), own 8 values v64..71")
        for i in range(14):
            a(f"v_lshlrev_b32 v{36+2*i}, 16, v{16+i}\nv_and_b32 v{37+2*i}, s60, v{16+i}")
        for i in range(4):
            a(f"v_lshlrev_b32 v{64+2*i}, 16, v{30+i}\nv_and_b32 v{65+2*i}, s60, v{30+i}")
        a("v_add_f32 v72, v36, v37\nv_add_f32 v73, v38, v39")
        for i in range(2, 14):
            a(f"v_add_f32 v72, v72, v{36+2*i}\nv_add_f32 v73, v73, v{37+2*i}")
        a("v_add_f32 v72, v72, v73\ns_nop 1")
        self.dpp_allred16("v_add_f32", [72])
        a(f"v_mul_f32 v72, {hex(f2u(1/448))}, v72")
        a("v_mov_b32 v73, 0\nv_mov_b32 v74, 0")
        for i in range(14):
            a(f"v_sub_f32 v75, v{36+2*i}, v72\nv_sub_f32 v76, v{37+2*i}, v72\nv_fmac_f32 v73, v75, v75\nv_fmac_f32 v74, v76, v76")
        a("v_add_f32 v73, v73, v74\ns_nop 1")
        self.dpp_allred16("v_add_f32", [73])
        a(f"""v_mul_f32 v73, {hex(f2u(1/448))}, v73
        v_cvt_pk_bf16_f32 v74, v72, v73
        v_lshlrev_b32 v72, 16, v74
        v_and_b32 v73, s60, v74
        v_add_f32 v73, {hex(f2u(1e-5))}, v73
        v_cvt_pk_bf16_f32 v73, v73, v73
        v_and_b32 v73, s60, v73
        v_sqrt_f32 v73, v73
        s_nop 0
        v_cvt_pk_bf16_f32 v73, v73, v73
        v_and_b32 v73, s60, v73
        v_rcp_f32 v73, v73""")
        for i in range(4):
            a(f"""v_sub_f32 v{64+2*i}, v{64+2*i}, v72
            v_sub_f32 v{65+2*i}, v{65+2*i}, v72
            v_cvt_pk_bf16_f32 v74, v{64+2*i}, v{65+2*i}
            v_lshlrev_b32 v75, 16, v74
            v_and_b32 v76, s60, v74
            v_mul_f32 v75, v75, v73
            v_mul_f32 v76, v76, v73
            v_cvt_pk_bf16_f32 v{30+i}, v75, v76""")
        a(f"ds_write_b64 v105, v[30:31] offset:{XN}\nds_write_b64 v105, v[32:33] offset:{XN+128}")
        for ks in range(4):
            a(f"ds_read2_b64 v[{16+4*ks}:{19+4*ks}], v104 offset0:{ks*8} offset1:{ks*8+4}")
        self.stamp(2)
        self.waitflag(F_WQ, n=4, t="v96")
        self.stamp(3)
        for ks in range(4):
            for i in range(4):
                for half in range(2):
                    r = 32 + (ks*4 + i)*4 + half*2
                    a(f"ds_read_b64_tr_b16 v[{r}:{r+1}], v{100+i} offset:{ks*4096 + half*2048}")
            if ks & 1:
                a("s_waitcnt lgkmcnt(0)")
                for k2 in (ks-1, ks):
                    for i in range(4):
                        r = 32 + (k2*4 + i)*4; d = 112 + 4*i
                        cin = "0" if k2 == 0 else f"v[{d}:{d+3}]"
                        a(f"v_mfma_f32_16x16x32_bf16 v[{d}:{d+3}], v[{16+4*k2}:{19+4*k2}], v[{r}:{r+3}], {cin}")
        self.waitflag(F_CLR)
        self.stamp(4)
        a(f"""s_waitcnt vmcnt(0)
        v_add_u32 v110, 1, v110
        s_mov_b32 s56, 0x07060500
        s_mov_b32 s57, 0x07060501
        s_mov_b32 s58, 0x07060502
        s_mov_b32 s59, 0x07060503
        ds_write_b32 v3, v110 offset:{F_TAG}
        v_perm_b32 v112, v112, v110, s56
        v_perm_b32 v113, v116, v110, s57
        v_perm_b32 v114, v120, v110, s58
        s_getreg_b32 s62, hwreg(HW_REG_XCC_ID, 0, 4)
        v_bfe_u32 v118, v110, 24, 4
        v_lshl_or_b32 v118, s62, 4, v118
        v_lshrrev_b32 v116, 8, v110
        v_lshrrev_b32 v117, 16, v110
        v_perm_b32 v115, v124, v118, s56
        s_lshl_b32 s53, s52, 16
        s_lshl_b32 s54, s48, 11
        s_add_u32 s53, s53, s54
        s_and_b32 s55, s49, 7
        s_lshl_b32 s55, s55, 8
        s_add_u32 s53, s53, s55
        {'' if 'qx' in self.skip else 'buffer_store_dwordx4 v[112:115], v106, s[16:19], s53 offen sc1'}
        s_and_b32 s55, s49, 3
        s_lshl_b32 s55, s55, 14
        s_add_u32 s54, s54, s55
        s_add_u32 s55, s54, 0x10000
        s_add_u32 s56, s54, 0x20000
        s_add_u32 s57, s54, 0x30000""")
        a("s_waitcnt vmcnt(0)")
        if self.qd: a(f"s_sleep {self.qd}")
        self.stamp(9)
        c("q gather")
        tg = [110, 116, 117, 118]
        if 'qx' in self.skip: a("s_branch L_qgskip")
        a("L_qg:")
        for rg in range(4):
            for z in range(2):
                r = 16 + (rg*2 + z)*4
                a(f"buffer_load_dwordx4 v[{r}:{r+3}], v108, s[16:19], s{54+rg} offen offset:{z*1024} sc1")
        a(f"s_waitcnt vmcnt(0)\nv_xor_b32 v8, v16, v110\nv_xor_b32 v119, v19, v118")
        for k in range(1, 32):
            if k == 3: continue
            d = 119 if (k & 3) == 3 else 8
            a(f"v_bitop3_b32 v{d}, v{d}, v{16+k}, v{tg[k & 3]} bitop3:0xf6")
        a("v_and_b32 v8, 0xff, v8\nv_and_or_b32 v8, v119, 15, v8\nv_cmp_ne_u32 vcc, 0, v8")
        self.retry("L_qg")
        a("L_qgskip:")
        for k in range(8):
            a(f"v_add_f32 v{80+k}, v{16+k}, v{24+k}\nv_add_f32 v{88+k}, v{32+k}, v{40+k}")
        self.stamp(5)
        for k in range(8):
            a(f"v_add_f32 v{80+k}, v{80+k}, v{88+k}")
        a(f"v_lshlrev_b32 v9, 7, v7\nv_lshl_add_u32 v9, v12, 1, v9")
        for k in range(4):
            a(f"v_cvt_pk_bf16_f32 v{88+k}, v{80+2*k}, v{81+2*k}")
        for k in range(4):
            z = k >> 1; i = (k & 1)*2
            a(f"ds_write_b16 v9, v{88+k} offset:{QB + z*512 + i*32}\nds_write_b16_d16_hi v9, v{88+k} offset:{QB + z*512 + i*32 + 32}")
        self.setflag(F_Q, "v3")
        a(f"v_and_b32 v119, 0xf0, v119\nv_cmp_ne_u32 vcc, 0, v119\ns_cmp_eq_u64 vcc, 0\ns_cselect_b32 s62, {2 if 'noloc' in self.skip else 1}, 2\nv_mov_b32 v119, s62")
        a(f"""s_cmp_lg_u32 s49, 31
        s_cbranch_scc1 L_nogr
        s_lshl_b32 s53, s48, 2
        s_add_u32 s53, s53, {GR}
        s_mov_b64 exec, 1
        buffer_store_dword v110, v108, s[16:19], s53 offen sc1
        s_mov_b64 exec, -1
        L_nogr:""")
        c("softmax over the 128 local keys, 2 heads")
        a(f"""s_lshl_b32 s53, s48, 2
        s_and_b32 s54, s49, 3
        s_add_u32 s53, s53, s54
        s_lshl_b32 s53, s53, 10
        s_add_u32 s53, s53, {STAT}
        s_lshr_b32 s54, s2, 5
        s_lshl_b32 s54, s54, 7
        s_add_u32 s54, s54, s53
        s_mov_b32 s61, {hex(f2u(1.4426950408889634/16))}
        v_and_b32 v30, 8, v0
        """)
        self.waitflag(F_S, n=4, t="v96", sleep=False)
        self.stamp(6)
        a(f"""ds_read_b64 v[16:17], v10 offset:{SP}
        s_waitcnt lgkmcnt(0)
        v_lshlrev_b32 v18, 16, v16
        v_and_b32 v19, s60, v16
        v_lshlrev_b32 v20, 16, v17
        v_and_b32 v21, s60, v17
        v_max_f32 v22, v18, v19
        v_max3_f32 v22, v22, v20, v21""")
        def red8x4(op, r, t):
            a(f"""s_nop 1
            {op}_dpp v{r}, v{r}, v{r} quad_perm:[1,0,3,2] row_mask:0xf bank_mask:0xf
            s_nop 1
            {op}_dpp v{r}, v{r}, v{r} quad_perm:[2,3,0,1] row_mask:0xf bank_mask:0xf
            s_nop 1
            {op}_dpp v{r}, v{r}, v{r} row_half_mirror row_mask:0xf bank_mask:0xf
            v_mov_b32 v{t}, v{r}
            s_nop 1
            v_permlane16_swap_b32 v{r}, v{t}
            {op} v{r}, v{r}, v{t}
            v_mov_b32 v{t}, v{r}
            s_nop 1
            v_permlane32_swap_b32 v{r}, v{t}
            {op} v{r}, v{r}, v{t}""")
        red8x4("v_max_f32", 22, 24)
        for k in range(4):
            a(f"v_sub_f32 v{18+k}, v{18+k}, v22\nv_mul_f32 v{18+k}, s61, v{18+k}\nv_exp_f32 v{18+k}, v{18+k}")
        a(f"""s_nop 0
        v_cvt_pk_bf16_f32 v16, v18, v19
        v_cvt_pk_bf16_f32 v17, v20, v21
        ds_write_b64 v10, v[16:17] offset:{SP}""")
        a(f"ds_write_b32 v3, v119 offset:{F_P}")
        a("v_add_f32 v23, v18, v19\nv_add_f32 v24, v20, v21\nv_add_f32 v23, v23, v24")
        red8x4("v_add_f32", 23, 24)
        a(f"""v_min_u32 v23, -2, v23
        s_mov_b64 exec, 0x180
        s_cmp_eq_u32 s62, 1
        s_cbranch_scc1 L_sloc
        buffer_store_dwordx2 v[22:23], v30, s[16:19], s54 offen sc1
        s_branch L_exit
        L_sloc:
        buffer_store_dwordx2 v[22:23], v30, s[16:19], s54 offen
        """)
        self.stamp(7)
        a("s_branch L_exit")

    def swave(self):
        self.cur = 'S'
        a, c = self.a, self.c
        c("================= S-wave: scores =================")
        a("L_swave:")
        a(f"""v_and_b32 v12, 15, v0
        v_xor_b32 v13, v7, v12
        v_lshlrev_b32 v13, 4, v13
        v_lshl_add_u32 v13, v12, 9, v13
        s_lshl_b32 s55, s50, 14
        s_add_u32 s55, s55, {KL}
        v_add_u32 v13, s55, v13
        v_xor_b32 v14, 64, v13
        v_xor_b32 v15, 0x80, v13
        v_xor_b32 v16, 0xc0, v13
        v_and_b32 v17, 1, v0
        v_lshlrev_b32 v18, 9, v17
        v_lshl_add_u32 v18, v7, 4, v18
        v_lshlrev_b32 v17, 6, v17
        v_lshl_add_u32 v17, v7, 4, v17
        s_lshl_b32 s56, s50, 7
        v_add_u32 v17, s56, v17""")
        c("weights prefetch addresses: u=0,1 wo ; u=2 w2 ; u=3 w1")
        self.srd(28, 32, 4096*896)
        self.srd(32, 64, 1792*896)
        self.srd(36, 48, 448*3584)
        self.srd(40, 56, 3584)
        if 'notouch2' not in self.skip:
            a("s_cmp_lg_u32 s50, 1\ns_cbranch_scc1 L_notouch\ns_cmp_lg_u32 s49, 30\ns_cbranch_scc1 L_notouch")
            a("s_load_dwordx4 s[72:75], s[0:1], 72")
            self.waitflag(F_KL, "v2")
            a(f"""s_load_dword s62, s[32:33], 0
            s_load_dword s64, s[40:41], 0
            s_load_dword s60, s[72:73], 0
            s_load_dword s61, s[74:75], 0
            L_notouch:""")
        a("s_lshl_b32 s56, s50, 4\nv_add_u32 v19, s56, v3")
        self.waitflag(F_KL, "v19", n=4)
        self.stamp(1)
        for ks in range(8):
            for T in range(2):
                r = 64 + (T*8 + ks)*4
                a(f"ds_read_b128 v[{r}:{r+3}], v{13 + (ks & 3)} offset:{(ks >> 2)*256 + T*8192}")
        if self.tkp == 100:
            a(f"""s_cmp_lg_u32 s50, 0
            s_cbranch_scc1 L_tki""")
            self.waitflag(F_Q)
            a(f"""s_lshl_b32 s56, s48, 7
            s_add_u32 s56, s56, {TK}
            v_mov_b32 v163, 1
            v_mov_b32 v9, 0
            s_mov_b64 exec, 1
            buffer_atomic_add v163, v9, s[16:19], s56 offen sc0 sc1
            s_mov_b64 exec, -1
            L_tki:""")
        self.waitflag(F_Q, sleep=False)
        self.stamp(2)
        a(f"ds_read_b32 v164, v3 offset:{F_TAG}")
        for ks in range(8):
            a(f"ds_read_b128 v[{32+4*ks}:{35+4*ks}], v18 offset:{QB + ks*64}")
        for ks in range(8):
            a(f"s_waitcnt lgkmcnt({7-ks})")
            for T in range(2):
                r = 64 + (T*8 + ks)*4; d = 20 + 4*T
                cin = "0" if ks == 0 else f"v[{d}:{d+3}]"
                a(f"v_mfma_f32_16x16x32_bf16 v[{d}:{d+3}], v[{r}:{r+3}], v[{32+4*ks}:{35+4*ks}], {cin}")
        a("s_nop 7")
        for k in range(4):
            a(f"v_cvt_pk_bf16_f32 v{28+k}, v{20+2*k}, v{21+2*k}")
        a(f"""s_mov_b32 exec_lo, 0x00030003
        s_mov_b32 exec_hi, 0x00030003
        ds_write_b128 v17, v[28:31] offset:{SP}
        s_mov_b64 exec, -1""")
        self.setflag(F_S)
        self.stamp(3)
        if 'roles' in self.skip: a("s_branch L_exit")
        if self.tkp == 100:
            a(f"""s_cmp_lg_u32 s50, 0
            s_cbranch_scc1 L_tkw
            s_mov_b64 exec, 1
            s_waitcnt vmcnt(0)
            v_add_u32 v8, 1, v163
            ds_write_b32 v3, v8 offset:{F_TK}
            s_mov_b64 exec, -1
            L_tkw:""")
            self.waitflag(F_TK)
            a("v_readfirstlane_b32 s49, v8\ns_nop 0\ns_sub_u32 s49, s49, 1")
            if self.prof: a("v_writelane_b32 v167, s49, 61")
        elif self.tkp >= 0:
            a("s_cmp_lg_u32 s50, 0\ns_cbranch_scc1 L_tkw")
            self.waitflag(F_V8, "v2")
            a(f"""s_lshl_b32 s56, s48, 7
            s_add_u32 s56, s56, {TK}
            v_mov_b32 v8, 1
            v_mov_b32 v9, 0
            s_mov_b64 exec, 1
            buffer_atomic_add v8, v9, s[16:19], s56 offen sc0 sc1
            s_waitcnt vmcnt(0)
            v_add_u32 v8, 1, v8
            ds_write_b32 v3, v8 offset:{F_TK}
            s_mov_b64 exec, -1
            L_tkw:""")
            self.waitflag(F_TK)
            a("v_readfirstlane_b32 s49, v8\ns_nop 0\ns_sub_u32 s49, s49, 1")
            if self.prof: a("v_writelane_b32 v167, s49, 61")
        a("""v_readfirstlane_b32 s70, v164
        s_cmp_lt_u32 s49, 14
        s_cbranch_scc1 L_wo
        s_mov_b32 s71, s70""")
        if 'nomlp' in self.skip: a("s_branch L_exit")
        if 'nomlpwg' in self.skip: a("s_cmp_lt_u32 s49, 21\ns_cbranch_scc1 L_exit")
        a("""s_cmp_lt_u32 s49, 21
        s_cbranch_scc1 L_mlp""")
        if 'nofin' in self.skip: a("s_branch L_exit")
        a("""s_cmp_lt_u32 s49, 28
        s_cbranch_scc0 L_exit
        s_cmp_ge_u32 s50, 2
        s_cbranch_scc1 L_fin
        s_branch L_exit""")

    def role_wo(self):
        self.cur = 'WO'
        a, c = self.a, self.c; ntw = (" " + self.ntw) if self.ntw else ""
        c("================= role WO =================")
        a("L_wo:")
        a(f"""s_cmp_ge_u32 s49, 7
        s_cselect_b32 s52, 1, 0
        s_mul_i32 s53, s52, 7
        s_sub_u32 s53, s49, s53
        s_lshr_b32 s68, s50, 1
        s_and_b32 s69, s50, 1
        s_lshl_b32 s56, s52, 1
        s_add_u32 s69, s69, s56
        s_lshl_b32 s54, s48, 1
        s_add_u32 s54, s54, s68
        s_lshl_b32 s54, s54, 2
        s_add_u32 s54, s54, s69
        s_mul_i32 s54, s54, {64*896}
        s_lshl_b32 s56, s53, 7
        s_add_u32 s54, s54, s56
        v_and_b32 v20, 3, v6
        v_lshlrev_b32 v20, 4, v20
        v_lshrrev_b32 v21, 5, v0
        v_lshl_add_u32 v20, v21, 1, v20
        v_mul_u32_u24 v20, 896, v20
        v_add_u32 v20, v20, v5
        s_mov_b32 m0, s55""")
        self.tr_addr(160, "s55", 21)
        a(f"""v_xor_b32 v21, v0, v6
        v_lshlrev_b32 v21, 4, v21
        v_and_b32 v22, 7, v0
        v_xor_b32 v12, v7, v22
        v_lshlrev_b32 v12, 4, v12
        v_and_b32 v22, 15, v0
        v_lshl_add_u32 v12, v22, 7, v12
        s_add_u32 s72, s55, 8192
        v_add_u32 v12, s72, v12
        v_xor_b32 v13, 64, v12
        v_and_b32 v22, 3, v0
        s_lshl_b32 s57, s48, 2
        s_add_u32 s57, s57, s69
        s_lshl_b32 s57, s57, 1
        s_add_u32 s57, s57, s68
        s_lshl_b32 s57, s57, 12
        s_add_u32 s57, s57, {OP}
        v_lshrrev_b32 v15, 1, v0
        v_lshlrev_b32 v15, 7, v15
        s_lshl_b32 s59, s48, 12
        s_lshl_b32 s56, s68, 3
        s_add_u32 s59, s59, s56
        s_add_u32 s59, s59, {STAT}
        s_mov_b32 s69, {hex(f2u(1.4426950408889634/16))}
        s_lshl_b32 s56, s50, 10
        v_lshlrev_b32 v23, 2, v0
        v_add_u32 v24, s56, v23
        v_add_u32 v24, {RED}, v24""")
        a(f"""v_lshrrev_b32 v25, 5, v0
        v_lshlrev_b32 v25, 8, v25
        v_bfe_u32 v26, v0, 2, 3
        v_lshl_add_u32 v25, v26, 3, v25
        v_and_b32 v26, 1, v0
        v_lshl_add_u32 v25, v26, 2, v25
        s_lshl_b32 s56, s50, 6
        s_add_u32 s56, s56, {RED}
        v_add_u32 v25, s56, v25
        v_cmp_eq_u32 vcc, 2, v22
        v_mov_b32 v26, 1.0
        s_lshl_b32 s58, s50, 12
        v_cndmask_b32 v26, 0, v26, vcc
        s_lshl_b32 s56, s53, 9
        s_add_u32 s58, s58, s56
        s_add_u32 s58, s58, {HACC}
        v_mov_b32 v27, v26""")
        a(f"""v_and_b32 v29, 28, v23
        s_mov_b32 s61, {GR}
        v_lshlrev_b32 v30, 10, v0
        s_lshl_b32 s60, s48, 2
        s_lshl_b32 s62, s52, 7
        s_add_u32 s60, s60, s62
        s_lshl_b32 s62, s53, 13
        s_add_u32 s60, s60, s62
        s_lshl_b32 s62, s50, 8
        s_add_u32 s60, s60, s62
        s_add_u32 s60, s60, {EW}""")
        a("buffer_load_dword v165, v15, s[16:19], s57 offen sc1")
        self.stamp(10)
        self.waitflag(F_VI, n=4, t="v8", sleep=False)
        a(f"""buffer_load_dwordx2 v[16:17], v15, s[16:19], s59 offen sc1
        buffer_load_dword v31, v29, s[16:19], s61 offen sc1""")
        for p in range(8):
            rows = 4*(p & 1) + ((p >> 1) & 1) + 8*(p >> 2)
            a(f"s_add_u32 m0, s55, {p*1024}\ns_add_u32 s56, s54, {rows*896}")
            a(f"buffer_load_dwordx4 v20, s[28:31], s56 offen{ntw} lds")
        a("s_waitcnt vmcnt(9)\nv_cmp_eq_u32 vcc, -1, v17\ns_cbranch_vccnz L_stwait\nL_stok:")
        c("combine weights w[b][h][j] = exp(m_j - M) / L")
        a("v_mov_b32 v19, v16\ns_nop 1")
        for rot in (8, 4, 2):
            a(f"v_max_f32_dpp v19, v19, v19 row_ror:{rot} row_mask:0xf bank_mask:0xf\ns_nop 1")
        a("v_sub_f32 v16, v16, v19\nv_mul_f32 v16, s69, v16\nv_exp_f32 v16, v16\ns_nop 0\nv_mul_f32 v17, v17, v16\ns_nop 1")
        for rot in (8, 4, 2):
            a(f"v_add_f32_dpp v17, v17, v17 row_ror:{rot} row_mask:0xf bank_mask:0xf\ns_nop 1")
        a("v_rcp_f32 v17, v17\ns_nop 0\nv_mul_f32 v16, v16, v17\ns_nop 1")
        for j in range(8):
            a(f"v_mov_b32_dpp v{96+j}, v16 row_newbcast:{2*j} row_mask:0xf bank_mask:0xf")
        if 'nopipe' in self.skip: a("s_waitcnt vmcnt(0)")
        else:
            a("s_mov_b32 m0, s72\ns_nop 0")
            for q in range(4): a(f"buffer_load_dwordx4 v21, s[16:19], s57 offen offset:{q*1024} sc1 lds")
            a("s_waitcnt vmcnt(4)")
        self.stamp(4)
        for z in range(2):
            for i in range(4):
                for half in range(2):
                    r = 128 + (z*4 + i)*4 + half*2
                    a(f"ds_read_b64_tr_b16 v[{r}:{r+1}], v{160+i} offset:{z*4096 + half*2048}")
        l = self.lab("OP")
        def osweep():
            for q in range(4):
                a(f"buffer_load_dwordx4 v21, s[16:19], s57 offen offset:{q*1024} sc1 lds")
        if 'nopipe' in self.skip:
            a(f"s_mov_b32 m0, s72\n{l}:\ns_nop 0"); osweep(); a("s_waitcnt vmcnt(0)")
        else:
            a(f"{l}:\ns_xor_b32 m0, m0, 0x1000\ns_nop 0"); osweep(); a("s_waitcnt vmcnt(4)")
        for z in range(2):
            for st_ in range(2):
                r = 32 + (z*2 + st_)*4
                a(f"ds_read_b128 v[{r}:{r+3}], v{12+z} offset:{st_*2048}")
        if 'nopipe' not in self.skip: a("v_xor_b32 v12, 0x1000, v12\nv_xor_b32 v13, 0x1000, v13")
        def ew(k):
            if self.ewp == k:
                a("s_mov_b64 exec, 0xff\nbuffer_store_dword v164, v30, s[16:19], s60 offen sc1\ns_mov_b64 exec, -1")
        def mf(i, z, st_):
            d = 64 + (i*2 + st_)*4; ra = 32 + (z*2 + st_)*4; rb = 128 + (z*4 + i)*4
            cin = "0" if z == 0 else f"v[{d}:{d+3}]"
            a(f"v_mfma_f32_16x16x32_bf16 v[{d}:{d+3}], v[{ra}:{ra+3}], v[{rb}:{rb+3}], {cin}")
        def fm(i, st_, r):
            d = 64 + (i*2 + st_)*4; acc = 48 + 4*i + st_
            if r == 0: a(f"v_mul_f32 v{acc}, v{d}, v{96+4*st_}")
            else: a(f"v_fmac_f32 v{acc}, v{d+r}, v{96+4*st_+r}")
        c("tile 0 starts speculatively while the sentinels are checked")
        a("s_waitcnt lgkmcnt(3)"); mf(0, 0, 0)
        a("s_waitcnt lgkmcnt(2)"); mf(0, 0, 1)
        a("v_max3_u32 v28, v32, v34, v36\ns_waitcnt lgkmcnt(1)"); mf(0, 1, 0)
        a("v_max3_u32 v14, v38, v40, v42\ns_waitcnt lgkmcnt(0)"); mf(0, 1, 1)
        a("v_max3_u32 v28, v28, v44, v46\nv_max_u32 v28, v28, v14\nv_cmp_eq_u32 vcc, -1, v28")
        mf(1, 0, 0)
        self.retry(l)
        if self.ewp in (0, 4): a("s_barrier")
        ew(0)
        self.stamp(5)
        seq = [(1, 0, 1), (1, 1, 0), (1, 1, 1)] + [(i, z, st_) for i in (2, 3) for z in range(2) for st_ in range(2)]
        fq = [(i, st_, r) for i in range(4) for r in range(4) for st_ in range(2)]
        for k, m in enumerate(seq):
            mf(*m)
            if k >= 3:
                for _ in range(2): fm(*fq.pop(0))
            if k == self.ewk: ew(4)
        a("v_add_f32 v48, v48, v49\nv_add_f32 v52, v52, v53")
        for _ in range(4): fm(*fq.pop(0))
        a("ds_write2st64_b32 v24, v48, v52 offset0:0 offset1:1")
        for _ in range(4): fm(*fq.pop(0))
        a("v_cmp_ne_u32 vcc, v31, v164\nv_add_f32 v56, v56, v57")
        while fq: fm(*fq.pop(0))
        a("v_add_f32 v60, v60, v61")
        a("ds_write2st64_b32 v24, v56, v60 offset0:2 offset1:3")
        a("s_cbranch_vccnz L_grwait\nL_grok:")
        ew(1)
        a("s_waitcnt lgkmcnt(0)\ns_barrier")
        ew(2)
        a("""ds_read2st64_b32 v[32:33], v25 offset0:0 offset1:4
        ds_read2st64_b32 v[34:35], v25 offset0:8 offset1:12
        ds_read2st64_b32 v[36:37], v25 offset0:2 offset1:6
        ds_read2st64_b32 v[38:39], v25 offset0:10 offset1:14
        s_mov_b32 exec_lo, 0x33333333
        s_mov_b32 exec_hi, 0x33333333
        s_waitcnt lgkmcnt(2)
        v_add_f32 v32, v32, v33
        v_add_f32 v34, v34, v35
        v_add_f32 v26, v32, v34
        s_waitcnt lgkmcnt(0)
        v_add_f32 v36, v36, v37
        v_add_f32 v38, v38, v39
        v_add_f32 v27, v36, v38
        s_mov_b64 exec, -1
        buffer_atomic_add_f32 v26, v23, s[16:19], s58 offen
        buffer_atomic_add_f32 v27, v23, s[16:19], s58 offen offset:256""")
        ew(3)
        self.stamp(6)
        a("s_branch L_exit")
        a("L_grwait:\nbuffer_load_dword v31, v29, s[16:19], s61 offen sc1\ns_waitcnt vmcnt(0)\nv_cmp_ne_u32 vcc, v31, v164")
        self.retry("L_grwait")
        a("s_branch L_grok")
        a("L_stwait:\ns_sleep 1\nbuffer_load_dwordx2 v[16:17], v15, s[16:19], s59 offen sc1\ns_waitcnt vmcnt(0)\nv_cmp_eq_u32 vcc, -1, v17")
        self.retry("L_stwait")
        a("s_branch L_stok")

    def wave_sum2(self, r0, r1, s0, s1):
        a = self.a
        for ctl in ("row_shr:1", "row_shr:2", "row_shr:4", "row_shr:8"):
            a(f"v_add_f32_dpp v{r0}, v{r0}, v{r0} {ctl} row_mask:0xf bank_mask:0xf bound_ctrl:0" if False else
              f"v_add_f32_dpp v{r0}, v{r0}, v{r0} {ctl.replace('shr','ror')} row_mask:0xf bank_mask:0xf")
            a(f"v_add_f32_dpp v{r1}, v{r1}, v{r1} {ctl.replace('shr','ror')} row_mask:0xf bank_mask:0xf\ns_nop 0")
        a(f"v_add_f32_dpp v{r0}, v{r0}, v{r0} row_bcast:15 row_mask:0xa bank_mask:0xf")
        a(f"v_add_f32_dpp v{r1}, v{r1}, v{r1} row_bcast:15 row_mask:0xa bank_mask:0xf\ns_nop 0")
        a(f"v_add_f32_dpp v{r0}, v{r0}, v{r0} row_bcast:31 row_mask:0xc bank_mask:0xf")
        a(f"v_add_f32_dpp v{r1}, v{r1}, v{r1} row_bcast:31 row_mask:0xc bank_mask:0xf")
        a(f"v_readlane_b32 s{s0}, v{r0}, 63\nv_readlane_b32 s{s1}, v{r1}, 63\ns_nop 1")

    def ew_gate(self, va):
        a = self.a
        l = self.lab("EW")
        a(f"v_lshlrev_b32 v{va}, 7, v12\ns_mov_b32 s63, {EW}")
        a(f"{l}:\nbuffer_load_dword v8, v{va}, s[16:19], s63 offen sc1\ns_waitcnt vmcnt(0)\nv_cmp_ne_u32 vcc, v8, v164")
        self.retry(l)

    def role_mlp(self):
        self.cur = 'MLP'
        a, c = self.a, self.c; ntw = (" " + self.ntw) if self.ntw else ""
        c("================= role MLP =================")
        a("L_mlp:")
        a(f"""s_mul_i32 s52, s48, 7
        s_add_u32 s52, s52, s49
        s_sub_u32 s52, s52, 14
        v_lshrrev_b32 v20, 2, v0
        v_mul_u32_u24 v20, 3584, v20
        v_and_b32 v22, 3, v0
        v_lshl_add_u32 v20, v22, 4, v20
        v_mul_u32_u24 v21, 896, v6
        v_add_u32 v21, v21, v5
        s_mul_i32 s53, s50, {7*16*3584}
        s_lshl_b32 s54, s52, 6
        s_add_u32 s53, s53, s54
        s_mul_i32 s56, s52, {32*896}
        s_lshl_b32 s57, s50, 7
        s_add_u32 s56, s56, s57
        v_lshlrev_b32 v23, 2, v0
        s_mul_i32 s57, s50, 896
        s_xor_b32 s59, s50, 2
        s_mul_i32 s59, s59, 896
        s_lshl_b32 s58, s50, 5
        s_add_u32 s54, s54, s58
        v_lshlrev_b32 v24, 1, v12""")
        self.waitflag(F_PV if 'w1pv' in self.skip else F_VI, n=4, t="v96", sleep=False)
        c("w1 tile (shared, 7 pieces per wave), w2 tile (private: quads u, u+4), x rows, b1")
        a("s_mov_b32 m0, s55\ns_nop 0")
        for x in range(7):
            if x == 4: a("s_add_u32 m0, s55, 4096\ns_add_u32 s53, s53, 4096")
            a(f"buffer_load_dwordx4 v20, s[36:39], s53 offen offset:{(x%4)*1024}{ntw} lds")
            a(f"s_add_u32 s53, s53, {16*3584 - 1024}")
        a("s_mov_b32 exec_hi, 0x00ffffff")
        for i in range(4):
            a(f"buffer_load_dword v{36+i}, v23, s[20:23], s57 offen offset:{i*224}")
        for i in range(4):
            a(f"buffer_load_dword v{156+i}, v23, s[20:23], s59 offen offset:{i*224}")
        a("s_mov_b32 exec_hi, -1\nbuffer_load_ushort v28, v24, s[40:43], s54 offen")
        a(f"s_add_u32 s57, s57, {YL}")
        for i in range(4):
            a(f"""v_add_u32 v25, {56*i}, v0
            v_lshrrev_b32 v26, 4, v25
            v_lshlrev_b32 v26, 6, v26
            v_bfe_u32 v27, v25, 1, 2
            v_lshl_add_u32 v26, v27, 4, v26
            v_and_b32 v27, 8, v25
            v_add_u32 v26, v26, v27
            v_and_b32 v27, 1, v25
            v_lshl_add_u32 v26, v27, 2, v26
            v_add_u32 v{32+i}, s57, v26""")
        a("s_add_u32 s53, s55, 8192")
        self.tr_addr(160, "s53", 25)
        a(f"""v_lshrrev_b32 v13, 2, v0
        v_lshlrev_b32 v13, 6, v13
        v_lshl_add_u32 v13, v22, 3, v13
        s_and_b32 s58, s58, 32
        s_add_u32 s58, s58, {KL}
        v_add_u32 v13, s58, v13
        v_bfe_u32 v15, v0, 2, 2
        v_mul_u32_u24 v16, 896, v15
        v_lshl_add_u32 v16, v7, 4, v16
        v_add_u32 v16, {YL}, v16
        v_lshlrev_b32 v17, 6, v7
        v_lshl_add_u32 v17, v15, 4, v17
        v_lshl_add_u32 v17, v22, 1, v17
        s_lshl_b32 s58, s50, 3
        s_add_u32 s53, s58, {H1L}
        v_add_u32 v17, s53, v17
        v_lshlrev_b32 v18, 6, v15
        v_lshl_add_u32 v18, v7, 4, v18
        v_add_u32 v18, {H1L}, v18
        v_mov_b32 v19, {ZR}
        v_lshlrev_b32 v14, 3, v7
        v_mov_b32 v15, s58""")
        for i in range(4):
            a(f"v_cmp_eq_u32 vcc, {i}, v22\ns_nop 1\nv_cndmask_b32 v{24+i}, v19, v18, vcc")
        a(f"""s_lshl_b32 s57, s50, 12
        s_add_u32 s57, s57, {HACC}
        s_xor_b32 s61, s57, 0x2000
        s_mul_i32 s58, s52, 7168
        s_lshl_b32 s59, s50, 10
        s_add_u32 s58, s58, s59
        s_add_u32 s58, s58, {PART}
        s_add_u32 s62, s58, 4096
        s_mov_b32 s59, {hex(f2u(16.0))}
        s_lshl_b32 s63, s52, 10
        s_add_u32 s63, s63, {EW}
        s_add_u32 s64, s16, s63
        s_addc_u32 s65, s17, 0
        v_lshrrev_b32 v19, 1, v0
        v_mul_u32_u24 v19, {7*512}, v19
        v_and_b32 v18, 1, v0
        v_lshl_add_u32 v19, v18, 7, v19
        s_sub_u32 s63, s49, 14
        s_lshl_b32 s63, s63, 9
        s_lshl_b32 s53, s48, 2
        s_add_u32 s63, s63, s53
        s_and_b32 s53, s50, 1
        s_lshl_b32 s53, s53, 8
        s_add_u32 s63, s63, s53
        s_add_u32 s63, s63, {FH}
        s_mov_b32 s60, 0xffff0000""")
        for i in range(4): a(f"v_mov_b32 v{88+i}, 0")
        self.waitflag(F_PV, n=4, t="v96", sleep=False)
        for p in range(8):
            a(f"s_add_u32 m0, s55, {8192 + p*1024}\ns_add_u32 s53, s56, {(p & 3)*8*896 + (p >> 2)*512}")
            a(f"buffer_load_dwordx4 v21, s[32:35], s53 offen{ntw} lds")
        a("v_lshlrev_b32 v21, 4, v0\ns_waitcnt vmcnt(8)")
        self.setflag(F_W1)
        a("s_mov_b32 exec_hi, 0x00ffffff")
        for i in range(4):
            a(f"v_lshlrev_b32 v{40+2*i}, 16, v{36+i}\nv_and_b32 v{41+2*i}, s60, v{36+i}")
        a("s_cmp_ge_u32 s50, 2\ns_cbranch_scc0 L_mlp_w1")
        for i in range(4):
            a(f"v_lshlrev_b32 v{104+2*i}, 16, v{156+i}\nv_and_b32 v{105+2*i}, s60, v{156+i}")
        a("s_branch L_mlp_w2\nL_mlp_w1:\ns_mov_b32 exec_hi, -1")
        c("waves 0,1: w1 B operands and their column sums")
        self.waitflag(F_W1, n=4, t="v96", sleep=False)
        for ks in range(14):
            for half in range(2):
                p = 2*ks + half
                r = 64 + ks*4 + half*2
                a(f"ds_read_b64_tr_b16 v[{r}:{r+1}], v13 offset:{(p//7)*16384 + (p%7)*1024}")
        for k in range(4): a(f"v_mov_b32 v{8+k}, 0x3f803f80")
        a("v_lshlrev_b32 v28, 16, v28")
        a("s_waitcnt lgkmcnt(0)")
        for ks in range(14):
            a(f"v_mfma_f32_16x16x32_bf16 v[152:155], v[8:11], v[{64+4*ks}:{67+4*ks}], {'0' if ks == 0 else 'v[152:155]'}")
        a("L_mlp_w2:\ns_mov_b32 exec_hi, -1")
        self.stamp(4)
        def w2rd(n):
            a(f"s_mov_b32 exec_hi, -1\ns_waitcnt vmcnt({n})")
            for qq in range(2):
                for i in range(4):
                    for half in range(2):
                        r = 120 + (qq*4 + i)*4 + half*2
                        a(f"ds_read_b64_tr_b16 v[{r}:{r+1}], v{160+i} offset:{qq*4096 + half*2048}")
            a("s_mov_b32 exec_hi, 0x00ffffff")
        def fh(k):
            if self.hp == k:
                a("s_mov_b64 exec, 0xffff\nbuffer_store_dword v164, v19, s[16:19], s63 offen sc1\ns_mov_b64 exec, -1")
        a("s_cmp_lg_u32 s50, 3\ns_cbranch_scc1 L_ewbar")
        self.phint(16)
        a("L_ewbar:\ns_barrier")
        if self.prof and not self.light: a("s_memrealtime s[94:95]")
        a("v_mov_b32 v29, v152")
        a("s_mov_b32 exec_hi, 0x00ffffff\ns_cmp_ge_u32 s50, 2\ns_cbranch_scc1 L_mlp_b")
        def own_row(after):
            a(f"s_waitcnt vmcnt({after})")
            for i in range(4):
                a(f"v_pk_add_f32 v[{48+4*i}:{49+4*i}], v[{48+4*i}:{49+4*i}], v[{40+2*i}:{41+2*i}]\nv_cvt_pk_bf16_f32 v{36+i}, v{48+4*i}, v{49+4*i}\nds_write_b32 v{32+i}, v{36+i}")
            a("v_min_f32 v8, v50, v54\nv_min3_f32 v8, v8, v58, v62")
        c("---- waves 0,1: h row -> LDS, then (h @ w1) while waves 2,3 compute the LayerNorm statistics ----")
        a("L_hpa:")
        for i in range(4):
            a(f"buffer_load_dwordx4 v[{48+4*i}:{51+4*i}], v21, s[16:19], s57 offen offset:{i*896} sc1")
        w2rd(4)
        own_row(0)
        a("v_cmp_neq_f32 vcc, s59, v8")
        self.retry("L_hpa")
        self.stamp(5)
        if self.prof and not self.light: a("v_writelane_b32 v167, s94, 9")
        a("s_mov_b32 exec_hi, -1\ns_waitcnt lgkmcnt(0)\ns_barrier")
        self.stamp(6)
        regs = [8, 32, 36, 40, 44, 48, 52, 56, 60, 156, 160, 8, 32, 36]
        for ks in range(11):
            a(f"ds_read_b128 v[{regs[ks]}:{regs[ks]+3}], v16 offset:{ks*64}")
        for ks in range(14):
            a(f"s_waitcnt lgkmcnt({10-ks if ks < 3 else 13-ks})")
            r = regs[ks]
            a(f"v_mfma_f32_16x16x32_bf16 v[152:155], v[{r}:{r+3}], v[{64+4*ks}:{67+4*ks}], {'0' if ks == 0 else 'v[152:155]'}")
            if ks == 2:
                for k2 in (11, 12, 13): a(f"ds_read_b128 v[{regs[k2]}:{regs[k2]+3}], v16 offset:{k2*64}")
        k1 = -2*1.4426950408889634*0.7978845608028654
        a(f"""s_barrier
        ds_read_b64 v[30:31], v14 offset:{STL}
        s_mov_b32 s64, {hex(f2u(k1*0.044715))}
        v_mov_b32 v9, {hex(f2u(k1))}
        s_waitcnt lgkmcnt(0)
        v_fma_f32 v28, -v31, v29, v28
        s_nop 1
        v_fmac_f32 v28, v152, v30
        v_mul_f32 v8, v28, v28
        v_fma_f32 v8, v8, s64, v9
        v_mul_f32 v8, v8, v28
        v_exp_f32 v8, v8
        s_nop 0
        v_add_f32 v8, 1.0, v8
        v_rcp_f32 v8, v8
        s_nop 0
        v_mul_f32 v8, v8, v28
        v_cvt_pk_bf16_f32 v8, v8, v8
        ds_write_b16 v17, v8
        s_waitcnt lgkmcnt(0)
        L_mlp2:
        s_barrier""")
        self.stamp(7)
        for i in range(4):
            a(f"ds_read_b128 v[{32+4*i}:{35+4*i}], v{24+i}")
        for i in range(4):
            a(f"s_waitcnt lgkmcnt({3-i})")
            for qq in range(2):
                d = 48 + 4*qq; r = 120 + (qq*4 + i)*4
                cin = "0" if i == 0 else f"v[{d}:{d+3}]"
                a(f"v_mfma_f32_16x16x32_bf16 v[{d}:{d+3}], v[{32+4*i}:{35+4*i}], v[{r}:{r+3}], {cin}")
        a("""s_nop 6
        v_min_u32 v48, -2, v48
        buffer_store_dwordx4 v[48:51], v21, s[16:19], s58 offen sc1
        s_cmp_eq_u32 s50, 3
        s_cbranch_scc1 L_exit
        v_min_u32 v52, -2, v52
        buffer_store_dwordx4 v[52:55], v21, s[16:19], s62 offen sc1""")
        self.stamp(8)
        a("s_branch L_exit")
        c("---- waves 2,3: own row -> LDS, statistics of rows u and u-2 ----")
        a("L_mlp_b:")
        for i in range(4):
            a(f"buffer_load_dwordx4 v[{48+4*i}:{51+4*i}], v21, s[16:19], s57 offen offset:{i*896} sc1")
        for i in range(4):
            a(f"buffer_load_dwordx4 v[{64+4*i}:{67+4*i}], v21, s[16:19], s61 offen offset:{i*896} sc1")
        w2rd(8)
        own_row(4)
        a("s_waitcnt vmcnt(0)\nv_min3_f32 v8, v8, v66, v70\nv_min3_f32 v8, v8, v74, v78\nv_cmp_neq_f32 vcc, s59, v8")
        self.retry("L_mlp_b")
        self.stamp(5)
        for i in range(4):
            a(f"v_pk_add_f32 v[{104+2*i}:{105+2*i}], v[{104+2*i}:{105+2*i}], v[{64+4*i}:{65+4*i}]")
        a("""v_pk_add_f32 v[80:81], v[48:49], v[52:53]
        v_pk_mul_f32 v[82:83], v[48:49], v[48:49]
        v_pk_add_f32 v[84:85], v[104:105], v[106:107]
        v_pk_mul_f32 v[86:87], v[104:105], v[104:105]
        s_waitcnt lgkmcnt(0)
        s_barrier
        v_pk_add_f32 v[80:81], v[80:81], v[56:57]
        v_pk_fma_f32 v[82:83], v[52:53], v[52:53], v[82:83]
        v_pk_add_f32 v[84:85], v[84:85], v[108:109]
        v_pk_fma_f32 v[86:87], v[106:107], v[106:107], v[86:87]
        v_pk_add_f32 v[80:81], v[80:81], v[60:61]
        v_pk_fma_f32 v[82:83], v[56:57], v[56:57], v[82:83]
        v_pk_add_f32 v[84:85], v[84:85], v[110:111]
        v_pk_fma_f32 v[86:87], v[108:109], v[108:109], v[86:87]
        v_pk_fma_f32 v[82:83], v[60:61], v[60:61], v[82:83]
        v_pk_fma_f32 v[86:87], v[110:111], v[110:111], v[86:87]
        v_add_f32 v88, v80, v81
        v_add_f32 v90, v84, v85
        v_add_f32 v89, v82, v83
        v_add_f32 v91, v86, v87
        s_mov_b32 exec_hi, -1""")
        fh(2)
        c("reduce-scatter the four sums over the wave: rows 0..3 end up with S(u), S(u-2), Q(u), Q(u-2)")
        a("""s_nop 0
        v_permlane32_swap_b32 v88, v89
        v_permlane32_swap_b32 v90, v91
        v_add_f32 v8, v88, v89
        v_add_f32 v10, v90, v91
        s_nop 1
        v_permlane16_swap_b32 v8, v10
        v_add_f32 v8, v8, v10
        s_nop 1""")
        self.dpp_allred16("v_add_f32", [8])
        c("LN(LN(h)) = (h - m) * rs1 * rs2 : rs1 = rsq(v + eps), second LN sees mean 0 and variance v*rs1^2")
        a(f"""v_mul_f32 v8, {hex(f2u(1/448))}, v8
        v_mov_b32 v9, v8
        s_mov_b32 s64, {hex(f2u(1e-5))}
        v_and_b32 v10, 16, v0
        v_permlane32_swap_b32 v8, v9
        v_fma_f32 v9, -v8, v8, v9
        v_max_f32 v9, 0, v9
        v_add_f32 v11, s64, v9
        v_rsq_f32 v11, v11
        v_xor_b32 v15, v15, v10
        v_mul_f32 v9, v9, v11
        v_fma_f32 v9, v9, v11, s64
        v_rsq_f32 v9, v9
        s_mov_b32 exec_lo, 0x00010001
        s_mov_b32 exec_hi, 0
        v_mul_f32 v30, v9, v11
        v_mul_f32 v31, v30, v8
        ds_write_b64 v15, v[30:31] offset:{STL}
        s_mov_b64 exec, -1""")
        fh(3)
        a("s_waitcnt lgkmcnt(0)\ns_barrier")
        fh(1)
        c("every workgroup has read the epoch by now: advance it for the next launch")
        a(f"""s_lshl_b32 s53, s52, 2
        s_add_u32 s53, s53, s50
        s_cmp_lg_u32 s53, 3
        s_cbranch_scc1 L_mlp2
        s_mov_b32 s53, {EPO}
        s_mov_b64 exec, 1
        buffer_store_dword v164, v21, s[16:19], s53 offen sc1
        s_mov_b64 exec, -1
        s_branch L_mlp2""")

    def role_fin(self):
        self.cur = 'FIN'
        a, c = self.a, self.c
        c("================= role FINAL =================")
        a("L_fin:")
        self.srd(40, 72, 896)
        self.srd(44, 80, 3584)
        a(f"""s_mul_i32 s52, s48, 7
        s_add_u32 s52, s52, s49
        s_lshl_b32 s52, s52, 1
        s_add_u32 s52, s52, s50
        s_sub_u32 s52, s52, 44
        s_lshl_b32 s53, s52, 6
        s_add_u32 s53, s53, {PART}
        s_add_u32 s54, s53, {16*7168}
        s_add_u32 s55, s53, {32*7168}
        s_add_u32 s56, s53, {48*7168}
        v_lshrrev_b32 v20, 2, v0
        v_mul_u32_u24 v20, 7168, v20
        v_and_b32 v22, 3, v0
        v_lshl_add_u32 v20, v22, 4, v20
        s_lshr_b32 s57, s52, 4
        s_lshl_b32 s57, s57, 6
        s_and_b32 s58, s52, 3
        s_lshl_b32 s58, s58, 2
        s_add_u32 s57, s57, s58
        v_and_b32 v23, 16, v0
        v_lshlrev_b32 v23, 1, v23
        v_lshrrev_b32 v24, 5, v0
        v_lshl_add_u32 v23, v24, 4, v23
        v_add3_u32 v23, v23, v22, s57
        v_lshlrev_b32 v24, 1, v23
        v_lshrrev_b32 v25, 1, v23
        v_lshlrev_b32 v25, 4, v25
        s_bfe_u32 s58, s52, 0x20002
        s_mul_i32 s59, s58, 896
        s_lshl_b32 s58, s58, 12
        s_add_u32 s58, s58, {HACC}
        s_mov_b32 s61, {hex(f2u(16.0))}
        v_mov_b32 v44, 0
        v_mov_b32 v45, 0
        v_mov_b32 v46, 0
        v_mov_b32 v47, 0
        s_waitcnt lgkmcnt(0)
        buffer_load_ushort v26, v24, s[20:23], s59 offen
        buffer_load_ushort v27, v24, s[40:43], 0 offen
        buffer_load_ushort v28, v24, s[44:47], s59 offen""")
        a(f"""s_lshr_b32 s63, s52, 1
        s_lshl_b32 s63, s63, 9
        s_add_u32 s63, s63, {FH}
        s_add_u32 s64, s16, s63
        s_addc_u32 s65, s17, 0
        v_and_b32 v8, 1, v0
        v_cmp_eq_u32 s[66:67], 1, v8
        s_waitcnt vmcnt(0)
        v_lshlrev_b32 v26, 16, v26
        v_lshlrev_b32 v27, 16, v27
        v_add_f32 v26, v26, v27""")
        a("s_cmp_lg_u32 s50, 3\ns_cbranch_scc1 L_fhbar")
        self.phint(8)
        a("L_fhbar:\ns_barrier")
        if self.prof and not self.light: a("s_memrealtime s[94:95]")
        l = self.lab("FP")
        a(f"""{l}:
        buffer_load_dwordx4 v[28:31], v25, s[16:19], s58 offen sc1
        buffer_load_dwordx4 v[32:35], v20, s[16:19], s53 offen sc1
        buffer_load_dwordx4 v[36:39], v20, s[16:19], s54 offen sc1
        buffer_load_dwordx4 v[40:43], v20, s[16:19], s55 offen sc1
        s_mov_b32 exec_hi, 0
        buffer_load_dwordx4 v[44:47], v20, s[16:19], s56 offen sc1
        s_mov_b32 exec_hi, -1
        s_waitcnt vmcnt(4)
        v_cndmask_b32 v28, v28, v29, s[66:67]
        v_add_f32 v27, v26, v28
        v_cmp_neq_f32 s[68:69], s61, v30
        s_waitcnt vmcnt(0)
        v_max_u32 v8, v32, v36
        v_max3_u32 v8, v8, v40, v44
        v_cmp_eq_u32 vcc, -1, v8
        s_or_b64 vcc, vcc, s[68:69]""")
        self.retry(l)
        self.stamp(6)
        if self.prof and not self.light: a("v_writelane_b32 v167, s94, 5")
        for k in range(4): a(f"v_add_f32 v{32+k}, v{32+k}, v{36+k}\nv_add_f32 v{40+k}, v{40+k}, v{44+k}")
        for k in range(4): a(f"v_add_f32 v{32+k}, v{32+k}, v{40+k}")
        a("""s_nop 0
        v_permlane32_swap_b32 v32, v33
        v_permlane32_swap_b32 v34, v35
        v_add_f32 v32, v32, v33
        v_add_f32 v34, v34, v35
        s_nop 1
        v_permlane16_swap_b32 v32, v34
        v_add_f32 v32, v32, v34
        s_nop 1
        v_add_f32_dpp v32, v32, v32 row_ror:4 row_mask:0xf bank_mask:0xf
        s_nop 1
        v_add_f32_dpp v32, v32, v32 row_ror:8 row_mask:0xf bank_mask:0xf
        v_add_f32 v32, v32, v27
        v_cvt_pk_bf16_f32 v32, v32, v32
        s_mov_b32 exec_lo, 0x000f000f
        s_mov_b32 exec_hi, 0x000f000f
        buffer_store_short v32, v24, s[44:47], s59 offen""")
        self.stamp(7)

def add_pads(text, gap=960, nchain=3):
    import subprocess, re, tempfile, os
    lines = text.split("\n")
    start = next(i for i, l in enumerate(lines) if l.startswith(NAME + "_kernel:"))
    end = next(i for i, l in enumerate(lines) if l.startswith("L_end:"))
    def addrs(ls):
        t = []
        for i, l in enumerate(ls):
            if start < i and l.startswith("    ") and not l.strip().startswith(";") and not l.strip().startswith("."):
                t.append(f"ZZ_{i}:")
            t.append(l)
        src = "\n".join(t)
        for k in range(nchain):
            if f"PADCHAIN_{k}:" not in src: src = src.replace(f"PADCHAIN_{k}", "L_end")
        src = re.sub(r"PADNEXT", "L_end", src)
        with tempfile.TemporaryDirectory() as d:
            open(d + "/a.s", "w").write(src)
            subprocess.check_call(["clang", "-x", "assembler", "-target", "amdgcn-amd-amdhsa", "-mcpu=gfx950", "-c", d + "/a.s", "-o", d + "/a.o"])
            out = subprocess.check_output(["llvm-objdump", "-t", d + "/a.o"], text=True)
        r = {}
        for l in out.splitlines():
            p = l.split()
            if not p: continue
            if p[-1].startswith("ZZ_"): r[int(p[-1][3:])] = int(p[0], 16)
            if p[-1] == NAME + "_kernel": base = int(p[0], 16)
        return {k: v - base for k, v in r.items()}
    ad = addrs(lines)
    pads = []; last = 0; shift = 0; noz = False
    for i in sorted(ad):
        if i >= end: break
        if "NOPAD_ON" in lines[i - 1]: noz = True
        if "NOPAD_OFF" in lines[i - 1]: noz = False
        x = ad[i] + shift
        if not noz and (x - last >= gap or (x >> 12) != (last >> 12)):
            pads.append(i); last = x; shift += 4
    n = len(pads)
    out = []
    for i, l in enumerate(lines):
        if i in pads:
            k = pads.index(i)
            if k < nchain: out.append(f"PADCHAIN_{k}:")
            out.append(f"PAD_{k}:")
            nxt = f"PAD_{k + nchain}" if k + nchain < n else "L_warmdone"
            out.append(f"    s_cbranch_execz {nxt}")
        out.append(l)
    return "\n".join(out)

if __name__ == "__main__":
    import argparse
    ap = argparse.ArgumentParser()
    ap.add_argument("-o", default="k.s"); ap.add_argument("-W", type=int, default=6); ap.add_argument("--WV", type=int, default=0); ap.add_argument("--WE", type=int, default=0); ap.add_argument("--NE", type=int, default=0); ap.add_argument("--pf64", action="store_true"); ap.add_argument("--ntp", default=""); ap.add_argument("--hd", type=int, default=4); ap.add_argument("--qd", type=int, default=12); ap.add_argument("--dly", default=None); ap.add_argument("--skip", default=""); ap.add_argument("--rot", type=int, default=1); ap.add_argument("--pw", default="1"); ap.add_argument("--ewp", type=int, default=2); ap.add_argument("--hp", type=int, default=2); ap.add_argument("--pft", type=int, default=3); ap.add_argument("--ww", type=int, default=8); ap.add_argument("--od", type=int, default=2); ap.add_argument("--dx", type=int, default=-1); ap.add_argument("--tkp", type=int, default=8); ap.add_argument("--ps", type=int, default=1); ap.add_argument("--light", action="store_true"); ap.add_argument("--ewk", type=int, default=4); ap.add_argument("--pwo", type=int, default=16); ap.add_argument("--pw1", type=int, default=16); ap.add_argument("--pw2", type=int, default=99)
    ap.add_argument("--prof", action="store_true"); ap.add_argument("--nt", default="nt"); ap.add_argument("--ntw", default="nt")
    x = ap.parse_args()
    open(x.o, "w").write(add_pads(G(W=x.W, WV=x.WV, WE=x.WE, NE=x.NE, pf64=x.pf64, ntp=x.ntp, hd=x.hd, qd=x.qd, dly=x.dly, skip=x.skip, rot=x.rot, pw=x.pw, ewp=x.ewp, hp=x.hp, pft=x.pft, ww=x.ww, od=x.od, dx=x.dx, tkp=x.tkp, ps=x.ps, light=x.light, ewk=x.ewk, pwo=x.pwo, pw1=x.pw1, pw2=x.pw2, prof=x.prof, nt=x.nt, ntw=x.ntw).build()))
```

```python
import sys, struct
NAME = "sequential_preLN__sliding_block_cached__mixer_channel_mlp__decode"

def f2u(x): return struct.unpack("<I", struct.pack("<f", x))[0]

QP   = 0x00000
HACC = 0x40000
STAT = 0x44000
OP   = 0xe0000
EW   = 0x50000
FH   = 0x60000
TK   = 0x70000
GR   = 0x71000
EPO  = 0x71100
PART = 0x72000
QPL  = 0x120000
PROF = 0x180000
WQL = 4096; KL = 24576; VL = KL + 65536
XN = 0
QB = XN + 1024
SP = QB + 1024
ZR = SP + 512
FL = ZR + 512
LDS_TOTAL = VL + 65536
RED = WQL
YL = WQL
H1L = WQL + 4096
STL = WQL + 4608
ONL = WQL + 5120
F_WQ, F_S, F_VI, F_Q, F_P, F_CLR, F_TAG, F_PV, F_V8, F_KL, F_TK, F_W1, F_GO = 0, 32, 48, 64, 68, 76, 88, 96, 112, 128, 72, 16, 80

class G:
    def __init__(self, W=6, WV=None, WE=None, NE=0, prof=False, nt="nt", ntw="nt", pf64=False, ntp="nt", hd=2, qd=0, dly=None, skip='', rot=0, pw='pv', ewp=1, hp=1, pft=0, ww=3, od=2, dx=-1, tkp=8, ps=2, light=False, ewk=4, pwo=0, pw1=0, pw2=99, qg=2, ord=0, hlp=''):
        self.hlp = hlp
        self.ord = ord
        self.qg = qg
        self.pfpos = dict(wo=pwo, w1=pw1, w2=pw2)
        self.light = light; self.ewk = ewk
        self.ps = ps
        self.tkp = tkp
        self.dx = dx
        self.ww = ww; self.od = od
        self.pw = pw; self.ewp = ewp; self.hp = hp; self.pft = pft
        self.rot = ['s_mov_b32 s59, 0', 's_mov_b32 s59, s49', 's_lshr_b32 s59, s2, 4', 's_mul_i32 s59, s2, 5', 's_add_u32 s59, s49, s2'][rot]
        self.skip = set(skip.split(','))
        self.dly = dly; self.cur = 'E'
        self.qd = qd
        self.hd = hd
        self.ntp = ntp
        self.WE = WE or WV or W; self.NE = NE; self.pf64 = pf64
        self.L = []; self.W = W; self.WV = WV or W; self.prof = prof; self.nt = nt; self.ntw = ntw; self.uid = 0
    def a(self, s):
        for line in s.split("\n"):
            line = line.strip()
            if line: self.L.append(("" if line.endswith(":") else "    ") + line)
    def c(self, s): self.L.append("    ; " + s)
    def lab(self, p="L"):
        self.uid += 1; return f"{p}_{self.uid}"
    def stamp(self, i):
        if self.dly == f"{self.cur}:{i}":
            self.a("s_memrealtime s[92:93]\ns_waitcnt lgkmcnt(0)\ns_mov_b32 s94, 1")
        if self.prof and (not self.light or (self.cur == 'L' and i == 6)):
            self.a(f"s_memrealtime s[90:91]\ns_waitcnt lgkmcnt(0)\nv_writelane_b32 v167, s90, {i}")
    def srd(self, r, karg, size):
        self.a(f"s_load_dwordx2 s[{r}:{r+1}], s[0:1], {karg}\ns_mov_b32 s{r+2}, {size}\ns_mov_b32 s{r+3}, 0x20000")
    def setflag(self, off, vaddr="v2"):
        self.a(f"ds_write_b32 {vaddr}, v4 offset:{off}")
    def waitflag(self, off, vaddr="v3", n=1, t="v8", sleep=True):
        l = self.lab("WF"); d = self.lab("WD")
        ti = int(t[1:])
        self.a(f"{l}:")
        if n == 1:
            self.a(f"ds_read_b32 {t}, {vaddr} offset:{off}\ns_waitcnt lgkmcnt(0)")
        else:
            self.a(f"ds_read_b128 v[{ti}:{ti+3}], {vaddr} offset:{off}\ns_waitcnt lgkmcnt(0)")
            self.a(f"v_and_b32 {t}, {t}, v{ti+1}\nv_and_b32 v{ti+2}, v{ti+2}, v{ti+3}\nv_and_b32 {t}, {t}, v{ti+2}")
        self.a(f"v_cmp_ne_u32 vcc, 0, {t}\ns_cbranch_vccnz {d}")
        if sleep: self.a("s_sleep 1")
        self.a(f"s_sub_u32 s88, s88, 1\ns_cbranch_scc0 {l}\ns_branch L_exit\n{d}:")
    def retry(self, l):
        d = self.lab("RD")
        self.a(f"s_cbranch_vccz {d}\ns_sub_u32 s88, s88, 1\ns_cbranch_scc0 {l}\ns_branch L_exit\n{d}:")

    def shint(self, n, base="s[64:65]"):
        a = self.a
        l = self.lab("SH"); d = self.lab("SD")
        a(f"{l}:\ns_sub_u32 s88, s88, 1\ns_cbranch_scc1 L_exit")
        if n == 8:
            a(f"s_load_dwordx8 s[72:79], {base}, 0 glc\ns_waitcnt lgkmcnt(0)")
            regs = [72, 74, 76, 78]
        elif n == 16:
            a(f"s_load_dwordx8 s[72:79], {base}, 0 glc\ns_load_dwordx8 s[80:87], {base}, 128 glc\ns_waitcnt lgkmcnt(0)")
            for k in range(4): a(f"s_xor_b64 s[{80+2*k}:{81+2*k}], s[{80+2*k}:{81+2*k}], s[{72+2*k}:{73+2*k}]")
            a("s_or_b64 s[80:81], s[80:81], s[82:83]\ns_or_b64 s[84:85], s[84:85], s[86:87]\ns_or_b64 s[80:81], s[80:81], s[84:85]")
            a(f"s_cbranch_scc1 {l}")
            regs = [72, 74, 76, 78]
        else:
            a(f"s_load_dwordx16 s[72:87], {base}, 0 glc\ns_load_dwordx16 s[28:43], {base}, 64 glc\ns_waitcnt lgkmcnt(0)")
            regs = list(range(72, 88, 2)) + list(range(28, 44, 2))
        for r in regs:
            a(f"s_cmp_lg_u64 s[{r}:{r+1}], s[70:71]\ns_cbranch_scc1 {l}")

    def phint(self, n, base="s[64:65]"):
        a = self.a; l = self.lab("PH"); step = 256 if n == 16 else 128
        def ld():
            a(f"s_load_dwordx8 s[72:79], {base}, s89 glc")
            if n == 16: a(f"s_load_dwordx8 s[80:87], s[68:69], s89 glc")
        if n == 16: a("s_add_u32 s68, s64, 128\ns_addc_u32 s69, s65, 0")
        a("s_mov_b32 s89, 0"); ld(); a("s_waitcnt lgkmcnt(0)")
        a(f"{l}:\ns_sub_u32 s88, s88, 1\ns_cbranch_scc1 L_exit\ns_add_u32 s89, s89, {step}\ns_and_b32 s89, s89, {4*step-1}")
        ld()
        if self.ps == 0: a("s_waitcnt lgkmcnt(0)")
        else:
            a(f"s_sleep {self.ps}")
        for r in range(72, 72 + n, 2):
            a(f"s_cmp_lg_u64 s[{r}:{r+1}], s[70:71]\ns_cbranch_scc1 {l}")

    def build(self):
        a, c = self.a, self.c
        W = self.W; nt = (" " + self.nt) if self.nt else ""; ntw = (" " + self.ntw) if self.ntw else ""
        self.L.append(f"; @launch grid=(256,1,1) block=(576,1,1) lds={LDS_TOTAL}")
        self.L.append('.amdgcn_target "amdgcn-amd-amdhsa--gfx950"\n.text')
        self.L.append(f".globl {NAME}_kernel\n.p2align 12\n.fill 832, 4, 0xbf810000\n.p2align 8\n.type {NAME}_kernel,@function\n{NAME}_kernel:")
        if self.prof: a("s_memrealtime s[92:93]")
        if self.dly: a("s_mov_b32 s94, 0"); self.stamp(0)
        a("s_cmp_ge_u32 s2, 256\ns_cbranch_scc1 L_end")
        a(f"""v_lshrrev_b32 v1, 6, v0
        v_and_b32 v0, 63, v0
        v_readfirstlane_b32 s3, v1
        v_mov_b32 v8, 0
        v_mov_b32 v9, 0
        v_lshlrev_b32 v10, 3, v0
        s_cmp_eq_u32 s3, 7
        s_cbranch_scc0 L_noinit
        ds_write_b64 v10, v[8:9] offset:{ZR}
        ds_write_b64 v10, v[8:9] offset:{FL}
        s_waitcnt lgkmcnt(0)
        L_noinit:""")
        self.srd(12, 24, 448*8192)
        self.srd(4, 8, 0x4000000)
        self.srd(8, 16, 0x4000000)
        self.srd(16, 96, 0x300000)
        self.srd(20, 0, 3584)
        c("instruction-cache warm-up: waves 5..7 hop through the code with EXEC=0")
        a(f"""s_sub_u32 s52, s3, 5
        s_cmp_lt_u32 s52, 3
        s_cbranch_scc0 L_warmdone
        s_barrier
        s_cmp_eq_u32 s3, 5
        s_cbranch_scc0 L_warm2
        s_getpc_b64 s[24:25]
        L_pc:
        s_mov_b32 s26, L_end-L_pc
        s_mov_b32 s27, 0x20000
        v_lshlrev_b32 v8, 7, v0
        s_movk_i32 s52, 0x2000
        {'' if 'nocpf' in self.skip else 'buffer_load_dword v165, v8, s[24:27], 0 offen'}
        {'' if 'nocpf' in self.skip else 'buffer_load_dword v165, v8, s[24:27], s52 offen'}
        s_mov_b64 exec, 0
        s_branch PADCHAIN_0
        L_warm2:
        s_mov_b64 exec, 0
        s_cmp_eq_u32 s3, 6
        s_cbranch_scc1 PADCHAIN_1
        s_branch PADCHAIN_2""")
        a("L_warmdone:\ns_mov_b64 exec, -1\ns_mov_b32 s88, 0x80000")
        a("s_and_b32 s48, s2, 7\ns_lshr_b32 s49, s2, 3")
        c("v5 = swizzled 16B chunk offset inside a 128B row; v6 = row (l>>3); v7 = g4")
        a("""v_and_b32 v5, 7, v0
        v_lshrrev_b32 v7, 4, v0
        v_lshlrev_b32 v5, 4, v5
        v_lshlrev_b32 v6, 5, v7
        v_xor_b32 v5, v5, v6
        v_lshrrev_b32 v6, 3, v0
        s_and_b32 s50, s3, 3""")
        a(f"v_mov_b32 v3, {FL}\ns_lshl_b32 s51, s50, 2\nv_add_u32 v2, s51, v3\nv_mov_b32 v4, 1")
        if self.prof: a("v_mov_b32 v167, 0")
        if 'sa' in self.skip: a("s_waitcnt lgkmcnt(0)\ns_cmp_ge_u32 s3, 4\ns_cbranch_scc1 L_exit")
        a("s_cmp_lt_u32 s3, 4\ns_cbranch_scc1 L_lwave\ns_cmp_eq_u32 s3, 8\ns_cbranch_scc1 L_ahead\ns_cmp_eq_u32 s3, 4\ns_cbranch_scc0 L_swave\ns_barrier\ns_branch L_shead\nL_ahead:")
        self.ahead()
        self.lwave()
        self.swave_head()
        self.awave()
        self.swave()
        self.role_wo()
        self.role_mlp()
        self.role_fin()
        a("L_exit:")
        if self.dly:
            if self.dly[0] in "ELAS": a("s_cmp_lt_u32 s2, 224\ns_cbranch_scc1 L_end")
            if self.dx >= 0: a(f"s_and_b32 s90, s2, 7\ns_cmp_lg_u32 s90, {self.dx}\ns_cbranch_scc1 L_end")
            a("""s_cmp_eq_u32 s94, 0
            s_cbranch_scc1 L_end
            L_dly:
            s_memrealtime s[90:91]
            s_waitcnt lgkmcnt(0)
            s_sub_u32 s90, s90, s92
            s_cmp_lt_u32 s90, 3000
            s_cbranch_scc1 L_dly""")
        if self.prof:
            a(f"""s_waitcnt lgkmcnt(0)
            s_mov_b64 exec, -1
            v_writelane_b32 v167, s92, 0
            s_memrealtime s[90:91]
            s_waitcnt lgkmcnt(0)
            v_writelane_b32 v167, s90, 63
            v_writelane_b32 v167, s88, 62
            s_lshl_b32 s90, s2, 4
            s_add_u32 s90, s90, s3
            s_lshl_b32 s90, s90, 8
            s_add_u32 s90, s90, {PROF}
            v_lshlrev_b32 v166, 2, v0
            buffer_store_dword v167, v166, s[16:19], s90 offen""")
        a("L_end:\ns_endpgm")
        self.L.append(f""".section .rodata,"a"
.p2align 6
.amdhsa_kernel {NAME}_kernel
  .amdhsa_next_free_vgpr 168
  .amdhsa_next_free_sgpr 96
  .amdhsa_accum_offset 168
  .amdhsa_group_segment_fixed_size 0
  .amdhsa_kernarg_size 104
  .amdhsa_user_sgpr_count 2
  .amdhsa_user_sgpr_kernarg_segment_ptr 1
  .amdhsa_system_sgpr_workgroup_id_x 1
.end_amdhsa_kernel""")
        return "\n".join(self.L) + "\n"

    def tr_addr(self, r, sbase, tmp):
        a = self.a
        a(f"""v_lshrrev_b32 v{tmp}, 2, v0
        v_lshlrev_b32 v{r}, 7, v{tmp}
        v_and_b32 v{tmp+1}, 3, v0
        v_lshl_add_u32 v{r}, v{tmp+1}, 3, v{r}
        v_bfe_u32 v{tmp}, v0, 3, 2
        v_lshl_add_u32 v{r}, v{tmp}, 5, v{r}
        v_add_u32 v{r}, {sbase}, v{r}
        v_xor_b32 v{r+1}, 32, v{r}
        v_xor_b32 v{r+2}, 64, v{r}
        v_xor_b32 v{r+3}, 0x60, v{r}""")

    def lwave(self):
        self.cur = 'L'
        a, c = self.a, self.c; W = self.W; nt = (" " + self.nt) if self.nt else ""
        c("================= L-wave: stream wq tile, K, V into LDS; PV =================")
        a("L_lwave:")
        a(f"""v_lshl_add_u32 v10, v6, 13, v5
        v_lshl_add_u32 v11, v6, 9, v5
        v_lshrrev_b32 v12, 5, v0
        v_xor_b32 v12, v12, v0
        v_lshlrev_b32 v12, 4, v12
        s_lshl_b32 s57, s50, 5
        v_xor_b32 v12, s57, v12
        v_xor_b32 v13, 0x80, v12
        s_lshr_b32 s52, s49, 3
        s_lshl_b32 s52, s52, 2
        s_add_u32 s52, s52, s50
        s_lshl_b32 s52, s52, 18
        s_lshl_b32 s53, s48, 10
        s_add_u32 s52, s52, s53
        s_and_b32 s53, s49, 7
        s_lshl_b32 s53, s53, 7
        s_add_u32 s52, s52, s53
        s_and_b32 s53, s2, 31
        s_lshl_b32 s53, s53, 21
        s_lshr_b32 s54, s2, 5
        s_lshl_b32 s54, s54, 16
        s_add_u32 s53, s53, s54
        s_add_u32 s53, s53, {3072*512}
        s_lshl_b32 s55, s50, 14
        s_lshl_b32 s58, s50, 10
        s_add_u32 s54, s53, s58
        {self.rot}
        s_lshl_b32 s59, s59, 12
        s_lshl_b32 s56, s50, 7
        s_add_u32 s53, s53, s56
        s_lshl_b32 s56, s50, 12
        s_add_u32 m0, s56, {WQL}
        s_barrier
        s_waitcnt lgkmcnt(0)""")
        if 'wqlin' in self.skip: a("v_lshlrev_b32 v10, 4, v0\ns_mul_i32 s52, s2, 14336\ns_lshl_b32 s57, s50, 10\ns_add_u32 s52, s52, s57")
        if 'nowq' in self.skip: a("s_mov_b32 s52, 0x1000000")
        if 'tk' in self.skip: a("s_load_dword s61, s[4:5], s54")
        if 'tv' in self.skip: a("s_load_dword s62, s[8:9], s54")
        if 'pst' in self.skip: self.stamp(11)
        WV = self.WV
        ops = [('wq', p) for p in range(4)] + [('K', p) for p in range(16)]
        if self.ord == 1: ops = [('K', 0), ('wq', 0), ('K', 1), ('wq', 1), ('K', 2), ('wq', 2), ('K', 3), ('wq', 3)] + [('K', p) for p in range(4, 16)]
        if self.ord == 2: ops = [('K', p) for p in range(4)] + [('wq', p) for p in range(4)] + [('K', p) for p in range(4, 16)]
        if self.ord == 3: ops = [('wq', 0), ('K', 0), ('K', 1), ('wq', 1), ('K', 2), ('K', 3), ('wq', 2), ('K', 4), ('K', 5), ('wq', 3)] + [('K', p) for p in range(6, 16)]
        for p in range(17):
            for kind in ('wo', 'w1', 'w2'):
                if self.pfpos[kind] == p: ops.append(('pf', kind))
            if p < 16: ops.append(('V', p))
        pos = {o: i for i, o in enumerate(ops)}
        lastV = pos[('V', 15)]
        st = dict(landed=0)
        ntp = (" " + self.ntp) if self.ntp else ""
        for n, (kind, p) in enumerate(ops):
            if kind == 'wq':
                if self.ord: a(f"s_add_u32 m0, s56, {WQL}\ns_nop 0")
                a(f"buffer_load_dwordx4 v10, s[12:15], s52 offen offset:{p*1024}{nt} lds")
                if p < 3: a(f"s_add_u32 s52, s52, {65536-1024}")
            elif kind == 'K':
                a(f"s_add_u32 m0, s58, {KL + p*4096}\ns_and_b32 s59, s59, 0xf000\ns_add_u32 s60, s54, s59")
                a(f"buffer_load_dwordx4 v{12 + (p & 1)}, s[4:7], s60 offen{nt} lds\ns_addk_i32 s59, 0x1000")
                if p == 4:
                    c("descriptors / offsets for the weight prefetch (one dword per 128B line into L2)")
                    self.srd(28, 32, 4096*896); self.srd(32, 64, 1792*896); self.srd(36, 48, 448*3584)
                    a(f"""s_lshl_b32 s66, s48, 5
                    s_add_u32 s66, s66, s49
                    s_mul_i32 s67, s66, 6272
                    s_mul_i32 s68, s50, {13*128}
                    s_add_u32 s67, s67, s68
                    s_lshl_b32 s66, s66, 2
                    s_add_u32 s66, s66, s50
                    s_mul_i32 s66, s66, 3584
                    s_mul_i32 s68, s49, {14*3584}
                    s_mul_i32 s69, s48, 448
                    s_andn2_b32 s69, s69, 127
                    s_add_u32 s68, s68, s69
                    s_mul_i32 s69, s50, 14
                    v_add_u32 v31, s69, v0
                    v_lshrrev_b32 v16, 2, v31
                    v_mul_u32_u24 v16, 3584, v16
                    v_and_b32 v31, 3, v31
                    v_lshl_add_u32 v31, v31, 7, v16
                    v_lshlrev_b32 v30, 7, v0""")
                if p == 8: a("s_waitcnt lgkmcnt(0)")
                if p == 5 and 'tvm' in self.skip: a("s_load_dword s62, s[8:9], s54")
            elif kind == 'V':
                a(f"s_add_u32 m0, s55, {VL + p*1024}\ns_and_b32 s59, s59, 0xf000\ns_add_u32 s60, s53, s59")
                a(f"buffer_load_dwordx4 v11, s[8:11], s60 offen{nt} lds")
                if p < 15: a("s_addk_i32 s59, 0x1000")
                if p == self.tkp: self.setflag(F_V8)
            else:
                m, va, srd, so = dict(wo=(0x0fffffff, 30, 28, 66), w1=(0x3fff, 31, 36, 68), w2=(0x1fff, 30, 32, 67))[p]
                a(f"s_mov_b64 exec, {hex(m)}\nbuffer_load_dword v165, v{va}, s[{srd}:{srd+3}], s{so} offen{ntp}\ns_mov_b64 exec, -1")
            n += 1
            w = W if n < 20 else (WV if n <= lastV - self.NE else self.WE)
            if n <= lastV and n - (w - 1) > st["landed"]:
                a(f"s_waitcnt vmcnt({w-1})")
                old = st["landed"]; st["landed"] = n - (w - 1)
                if 'pst' in self.skip: self.stamp(11 + st["landed"])
                if old < pos[('wq', 3)] + 1 <= st["landed"]: self.setflag(F_WQ); self.stamp(1)
                for u in range(4):
                    if old < pos[('K', 4*u + 3)] + 1 <= st["landed"]: self.setflag(F_KL + 16*u)
                if old < 20 <= st["landed"]: self.stamp(2)
        self.setflag(F_VI); self.stamp(3)
        assert st["landed"] >= 20
        c("PV: address prep")
        a(f"s_add_u32 s55, s55, {VL}")
        self.tr_addr(12, "s55", 16)
        a(f"""v_bfe_u32 v20, v0, 2, 1
        v_lshlrev_b32 v22, 6, v20
        v_lshl_add_u32 v22, v7, 4, v22
        v_add_u32 v22, {SP}, v22
        v_mov_b32 v21, {ZR}
        v_and_b32 v23, 11, v0""")
        for i in range(4):
            a(f"v_cmp_eq_u32 vcc, {i}, v23\ns_nop 1\nv_cndmask_b32 v{16+i}, v21, v22, vcc")
        a(f"""v_and_b32 v28, 15, v0
        v_lshlrev_b32 v28, 3, v28
        v_lshl_add_u32 v28, v7, 12, v28
        s_lshl_b32 s56, s48, 2
        s_add_u32 s56, s56, s50
        s_lshl_b32 s56, s56, 13
        s_lshr_b32 s57, s49, 4
        s_lshl_b32 s57, s57, 11
        s_add_u32 s56, s56, s57
        s_and_b32 s57, s49, 3
        s_lshl_b32 s57, s57, 9
        s_add_u32 s56, s56, s57
        s_bfe_u32 s57, s49, 0x20002
        s_lshl_b32 s57, s57, 7
        s_add_u32 s56, s56, s57
        s_add_u32 s56, s56, {OP}""")
        if 'sa' not in self.skip: self.waitflag(F_P)
        a("v_readfirstlane_b32 s57, v8")
        self.stamp(4)
        for ks in range(4):
            for i in range(4):
                r = 64 + (ks*4 + i)*4
                a(f"ds_read_b128 v[{r}:{r+3}], v{16+i} offset:{ks*128}")
        for ks in range(4):
            for half in range(2):
                rem = len(ops) - 1 - pos[('V', 4*ks + 2*half + 1)]
                if rem < len(ops) - st['landed']: a(f"s_waitcnt vmcnt({rem})")
                if ks == 3 and half == 1: self.stamp(5)
                for i in range(4):
                    r = 32 + (ks & 1)*16 + i*4 + half*2
                    a(f"ds_read_b64_tr_b16 v[{r}:{r+1}], v{12+i} offset:{ks*4096 + half*2048}")
            for i in range(4):
                a(f"s_waitcnt lgkmcnt({3-i})")
                rb = 32 + (ks & 1)*16 + i*4; ra = 64 + (ks*4 + i)*4
                cin = "0" if (ks == 0 and i == 0) else "v[128:131]"
                a(f"v_mfma_f32_16x16x32_bf16 v[128:131], v[{ra}:{ra+3}], v[{rb}:{rb+3}], {cin}")
        a("""s_mov_b32 exec_hi, 0
        s_cmp_eq_u32 s57, 1
        s_nop 5
        v_cvt_pk_bf16_f32 v24, v128, v129
        v_cvt_pk_bf16_f32 v25, v130, v131
        v_min_u32 v24, -2, v24
        s_cbranch_scc0 L_oglob
        buffer_store_dwordx2 v[24:25], v28, s[16:19], s56 offen
        L_odone:
        s_mov_b32 exec_hi, -1""")
        self.setflag(F_PV)
        self.stamp(6)
        for p in ('wo', 'w1', 'w2'):
            if self.pfpos[p] == 17:
                m, va, srd, so = dict(wo=(0x0fffffff, 30, 28, 66), w1=(0x3fff, 31, 36, 68), w2=(0x1fff, 30, 32, 67))[p]
                a(f"s_mov_b64 exec, {hex(m)}\nbuffer_load_dword v165, v{va}, s[{srd}:{srd+3}], s{so} offen{ntp}\ns_mov_b64 exec, -1")
        if self.tkp < 0: a("s_cmp_ge_u32 s49, 14\ns_cbranch_scc1 L_exit\ns_barrier")
        a("s_branch L_exit")
        a("L_oglob:\nbuffer_store_dwordx2 v[24:25], v28, s[16:19], s56 offen sc1\ns_branch L_odone")

    def swave_head(self):
        a, c = self.a, self.c
        c("================= S-wave head: clears / code prefetch =================")
        a("L_shead:")
        if 'touch' in self.skip:
            c("touch every page used later (address-translation warm-up) through the scalar path")
            a(f"""s_load_dwordx2 s[28:29], s[0:1], 32
            s_load_dwordx8 s[32:39], s[0:1], 48
            s_load_dwordx2 s[40:41], s[0:1], 80
            s_and_b32 s56, s2, 31
            s_lshl_b32 s56, s56, 21
            s_add_u32 s56, s56, {3072*512}
            s_mul_i32 s57, s48, {512*896}
            s_add_u32 s58, s57, {512*896-64}
            s_mov_b32 s59, {448*3584-64}
            s_waitcnt lgkmcnt(0)
            s_load_dword s60, s[8:9], s56
            s_load_dword s61, s[28:29], s57
            s_load_dword s62, s[28:29], s58
            s_load_dword s63, s[32:33], 0
            s_load_dword s64, s[32:33], s59
            s_load_dword s65, s[34:35], 0
            s_load_dword s66, s[36:37], 0
            s_load_dword s67, s[36:37], s59
            s_load_dword s68, s[38:39], 0
            s_load_dword s69, s[40:41], 0""")
        a(f"""v_mov_b32 v8, -1
        v_mov_b32 v9, -1
        v_mov_b32 v10, -1
        v_mov_b32 v11, -1
        v_mov_b32 v12, 0
        v_mov_b32 v13, 0
        v_lshlrev_b32 v15, 3, v0
        s_lshl_b32 s52, s48, 5
        s_add_u32 s52, s52, s49
        s_lshl_b32 s52, s52, 10
        s_add_u32 s52, s52, {OP}
        v_lshlrev_b32 v14, 4, v0
        s_lshl_b32 s53, s48, 2
        s_and_b32 s54, s49, 3
        s_add_u32 s53, s53, s54
        s_lshl_b32 s53, s53, 10
        s_lshr_b32 s54, s2, 5
        s_lshl_b32 s54, s54, 7
        s_add_u32 s53, s53, s54
        s_add_u32 s53, s53, {STAT}
        s_lshl_b32 s55, s2, 6
        s_add_u32 s55, s55, {HACC}
        {'s_waitcnt lgkmcnt(0)' if 'touch' not in self.skip else ''}
        {'s_branch L_nopart' if 'clr' in self.skip else ''}
        buffer_store_dwordx4 v[8:11], v14, s[16:19], s52 offen sc1
        s_mov_b64 exec, 0xff
        buffer_store_dwordx2 v[12:13], v15, s[16:19], s55 offen sc1
        s_mov_b64 exec, 3
        buffer_store_dwordx2 v[8:9], v15, s[16:19], s53 offen sc1
        s_cmp_lg_u32 s49, 0
        s_cbranch_scc1 L_notk
        s_lshl_b32 s55, s48, 7
        s_add_u32 s55, s55, {TK}
        buffer_store_dwordx2 v[12:13], v15, s[16:19], s55 offen sc1
        L_notk:
        s_mov_b64 exec, -1
        s_sub_u32 s54, s49, 21
        s_cmp_lt_u32 s54, 7
        s_cbranch_scc0 L_nopart
        s_mul_i32 s55, s48, 7
        s_add_u32 s55, s55, s54
        s_lshl_b32 s55, s55, 7
        s_add_u32 s55, s55, {PART}
        v_mul_u32_u24 v14, 7168, v6
        v_and_b32 v16, 7, v0
        v_lshl_add_u32 v14, v16, 4, v14""")
        for i in range(7):
            a(f"buffer_store_dwordx4 v[8:11], v14, s[16:19], s55 offen sc1")
            if i < 6: a(f"s_add_u32 s55, s55, {8*7168}")
        a("L_nopart:\ns_waitcnt vmcnt(0)")
        self.setflag(F_CLR, "v3")
        if 'nowarmop' not in self.skip:
            c("pull the freshly cleared lines into this XCD's L2 so that later polls hit")
            a("v_lshlrev_b32 v14, 7, v0\ns_mov_b64 exec, 0xff\nbuffer_load_dword v165, v14, s[16:19], s52 offen sc1\ns_mov_b64 exec, 1\nbuffer_load_dword v165, v14, s[16:19], s53 offen sc1\ns_mov_b64 exec, -1")
        a("s_waitcnt lgkmcnt(0)\ns_branch L_swave")

    def dpp_allred16(self, op, regs):
        for rot in (8, 4, 2, 1):
            for r in regs:
                self.a(f"{op}_dpp v{r}, v{r}, v{r} row_ror:{rot} row_mask:0xf bank_mask:0xf")
            self.a("s_nop %d" % max(0, 2 - len(regs)))

    def ahead(self):
        a, c = self.a, self.c
        c("A-wave head: x loads first")
        a(f"""s_setprio 3
        v_and_b32 v12, 15, v0
        v_mul_u32_u24 v13, 896, v7
        v_lshl_add_u32 v13, v12, 3, v13
        s_lshr_b32 s52, s49, 3
        s_lshl_b32 s53, s52, 8
        s_mov_b32 s54, {EPO}
        s_barrier
        s_waitcnt lgkmcnt(0)""")
        for i in range(7):
            a(f"buffer_load_dwordx2 v[{16+2*i}:{17+2*i}], v13, s[20:23], 0 offen offset:{i*128}")
        a("buffer_load_dwordx2 v[30:31], v13, s[20:23], s53 offen\nbuffer_load_dwordx2 v[32:33], v13, s[20:23], s53 offen offset:128")
        a("buffer_load_dword v110, v8, s[16:19], s54 offen sc1\ns_branch L_awave")

    def awave(self):
        self.cur = 'A'
        a, c = self.a, self.c
        c("================= A-wave: LN1, q partial, q gather, softmax, stats =================")
        a("L_awave:")
        a(f"s_mov_b32 s54, {WQL}")
        self.tr_addr(100, "s54", 104)
        a(f"""v_bfe_u32 v104, v0, 2, 2
        v_lshlrev_b32 v104, 8, v104
        v_lshl_add_u32 v104, v7, 3, v104
        v_add_u32 v104, {XN}, v104
        v_lshlrev_b32 v105, 8, v7
        v_lshl_add_u32 v105, v12, 3, v105
        v_lshlrev_b32 v106, 14, v7
        v_lshl_add_u32 v106, v12, 4, v106
        v_lshlrev_b32 v108, 4, v0
        s_mov_b32 s60, 0xffff0000
        s_waitcnt vmcnt(1)""")
        self.stamp(1)
        c("unpack x (28 values: v36..v63), own 8 values v64..71")
        for i in range(14):
            a(f"v_lshlrev_b32 v{36+2*i}, 16, v{16+i}\nv_and_b32 v{37+2*i}, s60, v{16+i}")
        for i in range(4):
            a(f"v_lshlrev_b32 v{64+2*i}, 16, v{30+i}\nv_and_b32 v{65+2*i}, s60, v{30+i}")
        a("v_add_f32 v72, v36, v37\nv_add_f32 v73, v38, v39")
        for i in range(2, 14):
            a(f"v_add_f32 v72, v72, v{36+2*i}\nv_add_f32 v73, v73, v{37+2*i}")
        a("v_add_f32 v72, v72, v73\ns_nop 1")
        self.dpp_allred16("v_add_f32", [72])
        a(f"v_mul_f32 v72, {hex(f2u(1/448))}, v72")
        a("v_mov_b32 v73, 0\nv_mov_b32 v74, 0")
        for i in range(14):
            a(f"v_sub_f32 v75, v{36+2*i}, v72\nv_sub_f32 v76, v{37+2*i}, v72\nv_fmac_f32 v73, v75, v75\nv_fmac_f32 v74, v76, v76")
        a("v_add_f32 v73, v73, v74\ns_nop 1")
        self.dpp_allred16("v_add_f32", [73])
        a(f"""v_mul_f32 v73, {hex(f2u(1/448))}, v73
        v_cvt_pk_bf16_f32 v74, v72, v73
        v_lshlrev_b32 v72, 16, v74
        v_and_b32 v73, s60, v74
        v_add_f32 v73, {hex(f2u(1e-5))}, v73
        v_cvt_pk_bf16_f32 v73, v73, v73
        v_and_b32 v73, s60, v73
        v_sqrt_f32 v73, v73
        s_nop 0
        v_cvt_pk_bf16_f32 v73, v73, v73
        v_and_b32 v73, s60, v73
        v_rcp_f32 v73, v73""")
        for i in range(4):
            a(f"""v_sub_f32 v{64+2*i}, v{64+2*i}, v72
            v_sub_f32 v{65+2*i}, v{65+2*i}, v72
            v_cvt_pk_bf16_f32 v74, v{64+2*i}, v{65+2*i}
            v_lshlrev_b32 v75, 16, v74
            v_and_b32 v76, s60, v74
            v_mul_f32 v75, v75, v73
            v_mul_f32 v76, v76, v73
            v_cvt_pk_bf16_f32 v{30+i}, v75, v76""")
        a(f"ds_write_b64 v105, v[30:31] offset:{XN}\nds_write_b64 v105, v[32:33] offset:{XN+128}")
        for ks in range(4):
            a(f"ds_read2_b64 v[{16+4*ks}:{19+4*ks}], v104 offset0:{ks*8} offset1:{ks*8+4}")
        self.stamp(2)
        self.waitflag(F_WQ, n=4, t="v96")
        self.stamp(3)
        for ks in range(4):
            for i in range(4):
                for half in range(2):
                    r = 32 + (ks*4 + i)*4 + half*2
                    a(f"ds_read_b64_tr_b16 v[{r}:{r+1}], v{100+i} offset:{ks*4096 + half*2048}")
            if ks & 1:
                a("s_waitcnt lgkmcnt(0)")
                for k2 in (ks-1, ks):
                    for i in range(4):
                        r = 32 + (k2*4 + i)*4; d = 112 + 4*i
                        cin = "0" if k2 == 0 else f"v[{d}:{d+3}]"
                        a(f"v_mfma_f32_16x16x32_bf16 v[{d}:{d+3}], v[{16+4*k2}:{19+4*k2}], v[{r}:{r+3}], {cin}")
        self.waitflag(F_CLR)
        self.stamp(4)
        a(f"""s_waitcnt vmcnt(0)
        v_add_u32 v110, 1, v110
        s_getreg_b32 s62, hwreg(HW_REG_XCC_ID, 0, 4)
        ds_write_b32 v3, v110 offset:{F_TAG}
        s_mov_b32 s58, 0xaaaaaaaa
        s_mov_b32 s59, 0xaaaaaaaa
        v_lshrrev_b32 v125, 4, v110
        v_lshrrev_b32 v126, 8, v110
        v_lshrrev_b32 v127, 16, v110
        v_cndmask_b32 v126, v126, v127, s[58:59]
        v_lshrrev_b32 v127, 12, v110
        v_mov_b32 v113, s62
        v_cndmask_b32 v127, v127, v113, s[58:59]
        v_add_u32 v112, 8, v112
        v_add_u32 v113, 8, v116
        v_add_u32 v114, 8, v120
        v_add_u32 v115, 8, v124
        v_bfi_b32 v112, 15, v110, v112
        v_bfi_b32 v113, 15, v125, v113
        v_bfi_b32 v114, 15, v126, v114
        v_bfi_b32 v115, 15, v127, v115
        s_lshl_b32 s53, s52, 16
        s_lshl_b32 s54, s48, 11
        s_add_u32 s53, s53, s54
        s_and_b32 s55, s49, 7
        s_lshl_b32 s55, s55, 8
        s_add_u32 s53, s53, s55
        s_add_u32 s55, s53, {QPL}
        {'' if 'noqloc' in self.skip else 'buffer_store_dwordx4 v[112:115], v106, s[16:19], s55 offen'}
        {'' if 'qx' in self.skip else 'buffer_store_dwordx4 v[112:115], v106, s[16:19], s53 offen sc1'}
        s_and_b32 s55, s49, 3
        s_lshl_b32 s55, s55, 14
        s_add_u32 s54, s54, s55
        s_add_u32 s55, s54, 0x10000
        s_add_u32 s56, s54, 0x20000
        s_add_u32 s57, s54, 0x30000""")
        if self.qg < 0:
            a(f"s_waitcnt vmcnt({1 if self.qg == -2 else 0})")
            if self.qd: a(f"s_sleep {self.qd}")
        else:
            c("gather once K is well under way: every member of the group has published by then")
            self.waitflag(F_KL + 16*self.qg)
        self.stamp(9)
        c("q gather")
        tg = [110, 125, 126, 127]
        if 'qx' in self.skip: a("s_branch L_qgskip")
        if 'noqloc' not in self.skip:
            c("first attempts read the L2-resident copy (complete only if the whole group sits on this XCD), then the write-through copy")
            a(f"v_add_u32 v108, {QPL}, v108\ns_mov_b32 s63, 3")
        a("L_qg:")
        if 'noqloc' not in self.skip:
            a(f"s_sub_u32 s63, s63, 1\ns_cbranch_scc0 L_qg2\nv_lshlrev_b32 v108, 4, v0\nL_qg2:")
        for rg in range(4):
            for z in range(2):
                r = 16 + (rg*2 + z)*4
                a(f"buffer_load_dwordx4 v[{r}:{r+3}], v108, s[16:19], s{54+rg} offen offset:{z*1024} sc1")
        a(f"s_waitcnt vmcnt(0)\nv_xor_b32 v8, v16, v110\nv_xor_b32 v119, v19, v127")
        for k in range(1, 32):
            if k == 3: continue
            d = 119 if (k & 3) == 3 else 8
            a(f"v_bitop3_b32 v{d}, v{d}, v{16+k}, v{tg[k & 3]} bitop3:0xf6")
        a("v_cndmask_b32 v9, v119, 0, s[58:59]\nv_or_b32 v8, v8, v9\nv_and_b32 v8, 15, v8\nv_cmp_ne_u32 vcc, 0, v8")
        self.retry("L_qg")
        a("L_qgskip:")
        for k in range(32): a(f"v_and_b32 v{16+k}, -16, v{16+k}")
        for k in range(8):
            a(f"v_add_f32 v{80+k}, v{16+k}, v{24+k}\nv_add_f32 v{88+k}, v{32+k}, v{40+k}")
        self.stamp(5)
        for k in range(8):
            a(f"v_add_f32 v{80+k}, v{80+k}, v{88+k}")
        a(f"v_lshlrev_b32 v9, 7, v7\nv_lshl_add_u32 v9, v12, 1, v9")
        for k in range(4):
            a(f"v_cvt_pk_bf16_f32 v{88+k}, v{80+2*k}, v{81+2*k}")
        for k in range(4):
            z = k >> 1; i = (k & 1)*2
            a(f"ds_write_b16 v9, v{88+k} offset:{QB + z*512 + i*32}\nds_write_b16_d16_hi v9, v{88+k} offset:{QB + z*512 + i*32 + 32}")
        self.setflag(F_Q, "v3")
        a(f"v_and_b32 v119, 15, v119\nv_cmp_ne_u32 vcc, 0, v119\ns_cmp_eq_u64 vcc, 0\ns_cselect_b32 s62, {2 if 'noloc' in self.skip else 1}, 2\nv_mov_b32 v119, s62")
        a(f"""s_cmp_lg_u32 s49, 31
        s_cbranch_scc1 L_nogr
        s_lshl_b32 s53, s48, 2
        s_add_u32 s53, s53, {GR}
        s_mov_b64 exec, 1
        buffer_store_dword v110, v10, s[16:19], s53 offen sc1
        s_mov_b64 exec, -1
        L_nogr:""")
        c("softmax over the 128 local keys, 2 heads")
        a(f"""s_lshl_b32 s53, s48, 2
        s_and_b32 s54, s49, 3
        s_add_u32 s53, s53, s54
        s_lshl_b32 s53, s53, 10
        s_add_u32 s53, s53, {STAT}
        s_lshr_b32 s54, s2, 5
        s_lshl_b32 s54, s54, 7
        s_add_u32 s54, s54, s53
        s_mov_b32 s61, {hex(f2u(1.4426950408889634/16))}
        v_and_b32 v30, 8, v0
        """)
        self.waitflag(F_S, n=4, t="v96", sleep=False)
        self.stamp(6)
        a(f"""ds_read_b64 v[16:17], v10 offset:{SP}
        s_waitcnt lgkmcnt(0)
        v_lshlrev_b32 v18, 16, v16
        v_and_b32 v19, s60, v16
        v_lshlrev_b32 v20, 16, v17
        v_and_b32 v21, s60, v17
        v_max_f32 v22, v18, v19
        v_max3_f32 v22, v22, v20, v21""")
        def red8x4(op, r, t):
            a(f"""s_nop 1
            {op}_dpp v{r}, v{r}, v{r} quad_perm:[1,0,3,2] row_mask:0xf bank_mask:0xf
            s_nop 1
            {op}_dpp v{r}, v{r}, v{r} quad_perm:[2,3,0,1] row_mask:0xf bank_mask:0xf
            s_nop 1
            {op}_dpp v{r}, v{r}, v{r} row_half_mirror row_mask:0xf bank_mask:0xf
            v_mov_b32 v{t}, v{r}
            s_nop 1
            v_permlane16_swap_b32 v{r}, v{t}
            {op} v{r}, v{r}, v{t}
            v_mov_b32 v{t}, v{r}
            s_nop 1
            v_permlane32_swap_b32 v{r}, v{t}
            {op} v{r}, v{r}, v{t}""")
        red8x4("v_max_f32", 22, 24)
        for k in range(4):
            a(f"v_sub_f32 v{18+k}, v{18+k}, v22\nv_mul_f32 v{18+k}, s61, v{18+k}\nv_exp_f32 v{18+k}, v{18+k}")
        a(f"""s_nop 0
        v_cvt_pk_bf16_f32 v16, v18, v19
        v_cvt_pk_bf16_f32 v17, v20, v21
        ds_write_b64 v10, v[16:17] offset:{SP}""")
        a(f"ds_write_b32 v3, v119 offset:{F_P}")
        a("v_add_f32 v23, v18, v19\nv_add_f32 v24, v20, v21\nv_add_f32 v23, v23, v24")
        red8x4("v_add_f32", 23, 24)
        a(f"""v_min_u32 v23, -2, v23
        s_mov_b64 exec, 0x180
        s_cmp_eq_u32 s62, 1
        s_cbranch_scc1 L_sloc
        buffer_store_dwordx2 v[22:23], v30, s[16:19], s54 offen sc1
        s_branch L_exit
        L_sloc:
        buffer_store_dwordx2 v[22:23], v30, s[16:19], s54 offen
        """)
        self.stamp(7)
        a("s_branch L_exit")

    def swave(self):
        self.cur = 'S'
        a, c = self.a, self.c
        c("================= S-wave: scores =================")
        a("L_swave:")
        a(f"""v_and_b32 v12, 15, v0
        v_xor_b32 v13, v7, v12
        v_lshlrev_b32 v13, 4, v13
        v_lshl_add_u32 v13, v12, 9, v13
        s_lshl_b32 s55, s50, 14
        s_add_u32 s55, s55, {KL}
        v_add_u32 v13, s55, v13
        v_xor_b32 v14, 64, v13
        v_xor_b32 v15, 0x80, v13
        v_xor_b32 v16, 0xc0, v13
        v_and_b32 v17, 1, v0
        v_lshlrev_b32 v18, 9, v17
        v_lshl_add_u32 v18, v7, 4, v18
        v_lshlrev_b32 v17, 6, v17
        v_lshl_add_u32 v17, v7, 4, v17
        s_lshl_b32 s56, s50, 7
        v_add_u32 v17, s56, v17""")
        c("weights prefetch addresses: u=0,1 wo ; u=2 w2 ; u=3 w1")
        self.srd(28, 32, 4096*896)
        self.srd(32, 64, 1792*896)
        self.srd(36, 48, 448*3584)
        self.srd(40, 56, 3584)
        if 'notouch2' not in self.skip:
            a("s_cmp_lg_u32 s50, 1\ns_cbranch_scc1 L_notouch\ns_cmp_lg_u32 s49, 30\ns_cbranch_scc1 L_notouch")
            a("s_load_dwordx4 s[72:75], s[0:1], 72")
            self.waitflag(F_KL, "v2")
            a(f"""s_load_dword s62, s[32:33], 0
            s_load_dword s64, s[40:41], 0
            s_load_dword s60, s[72:73], 0
            s_load_dword s61, s[74:75], 0
            L_notouch:""")
        a("s_lshl_b32 s56, s50, 4\nv_add_u32 v19, s56, v3")
        self.waitflag(F_KL, "v19", n=4)
        self.stamp(1)
        for ks in range(8):
            for T in range(2):
                r = 64 + (T*8 + ks)*4
                a(f"ds_read_b128 v[{r}:{r+3}], v{13 + (ks & 3)} offset:{(ks >> 2)*256 + T*8192}")
        if self.tkp == 100:
            a(f"""s_cmp_lg_u32 s50, 0
            s_cbranch_scc1 L_tki""")
            self.waitflag(F_Q)
            a(f"""s_lshl_b32 s56, s48, 7
            s_add_u32 s56, s56, {TK}
            v_mov_b32 v163, 1
            v_mov_b32 v9, 0
            s_mov_b64 exec, 1
            buffer_atomic_add v163, v9, s[16:19], s56 offen sc0 sc1
            s_mov_b64 exec, -1
            L_tki:""")
        self.waitflag(F_Q, sleep=False)
        self.stamp(2)
        a(f"ds_read_b32 v164, v3 offset:{F_TAG}")
        for ks in range(8):
            a(f"ds_read_b128 v[{32+4*ks}:{35+4*ks}], v18 offset:{QB + ks*64}")
        for ks in range(8):
            a(f"s_waitcnt lgkmcnt({7-ks})")
            for T in range(2):
                r = 64 + (T*8 + ks)*4; d = 20 + 4*T
                cin = "0" if ks == 0 else f"v[{d}:{d+3}]"
                a(f"v_mfma_f32_16x16x32_bf16 v[{d}:{d+3}], v[{r}:{r+3}], v[{32+4*ks}:{35+4*ks}], {cin}")
        a("s_nop 7")
        for k in range(4):
            a(f"v_cvt_pk_bf16_f32 v{28+k}, v{20+2*k}, v{21+2*k}")
        a(f"""s_mov_b32 exec_lo, 0x00030003
        s_mov_b32 exec_hi, 0x00030003
        ds_write_b128 v17, v[28:31] offset:{SP}
        s_mov_b64 exec, -1""")
        self.setflag(F_S)
        self.stamp(3)
        if 'roles' in self.skip: a("s_branch L_exit")
        c("role-independent part of the WO setup (hidden behind the ticket round trip)")
        a(f"""s_lshr_b32 s68, s50, 1
        s_and_b32 s69, s50, 1
        s_lshl_b32 s54, s48, 1
        s_add_u32 s54, s54, s68
        s_lshl_b32 s54, s54, 2
        s_add_u32 s54, s54, s69
        s_mul_i32 s54, s54, {64*896}
        v_and_b32 v20, 3, v6
        v_lshlrev_b32 v20, 4, v20
        v_lshrrev_b32 v21, 5, v0
        v_lshl_add_u32 v20, v21, 1, v20
        v_mul_u32_u24 v20, 896, v20
        v_add_u32 v20, v20, v5
        v_lshrrev_b32 v15, 1, v0
        v_lshlrev_b32 v15, 7, v15
        s_lshl_b32 s59, s48, 12
        s_lshl_b32 s56, s68, 3
        s_add_u32 s59, s59, s56
        s_add_u32 s59, s59, {STAT}""")
        if self.tkp == 100:
            a(f"""s_cmp_lg_u32 s50, 0
            s_cbranch_scc1 L_tkw
            s_mov_b64 exec, 1
            s_waitcnt vmcnt(0)
            v_add_u32 v8, 1, v163
            ds_write_b32 v3, v8 offset:{F_TK}
            s_mov_b64 exec, -1
            L_tkw:""")
            self.waitflag(F_TK, sleep=False)
            a("v_readfirstlane_b32 s49, v8\ns_nop 0\ns_sub_u32 s49, s49, 1")
            if self.prof: a("v_writelane_b32 v167, s49, 61")
        elif self.tkp >= 0:
            a("s_cmp_lg_u32 s50, 0\ns_cbranch_scc1 L_tkw")
            self.waitflag(F_V8, "v2")
            a(f"""s_lshl_b32 s56, s48, 7
            s_add_u32 s56, s56, {TK}
            v_mov_b32 v8, 1
            v_mov_b32 v9, 0
            s_mov_b64 exec, 1
            buffer_atomic_add v8, v9, s[16:19], s56 offen sc0 sc1
            s_waitcnt vmcnt(0)
            v_add_u32 v8, 1, v8
            ds_write_b32 v3, v8 offset:{F_TK}
            s_mov_b64 exec, -1
            L_tkw:""")
            self.waitflag(F_TK, sleep=False)
            a("v_readfirstlane_b32 s49, v8\ns_nop 0\ns_sub_u32 s49, s49, 1")
            if self.prof: a("v_writelane_b32 v167, s49, 61")
        a("""v_readfirstlane_b32 s70, v164
        s_cmp_lt_u32 s49, 14
        s_cbranch_scc1 L_wo
        s_mov_b32 s71, s70""")
        if self.hlp:
            if 'B' in self.hlp:
                a("s_cmp_ge_u32 s49, 28\ns_cbranch_scc1 L_exit\ns_cmp_lt_u32 s49, 21\ns_cselect_b32 s56, 7, -7\ns_add_u32 s49, s49, s56")
            elif 'C' in self.hlp:
                a("s_cmp_ge_u32 s49, 30\ns_cbranch_scc1 L_exit\ns_cmp_lt_u32 s49, 23\ns_cselect_b32 s56, 7, -9\ns_add_u32 s49, s49, s56")
            else:
                a("s_cmp_lt_u32 s49, 25\ns_cselect_b32 s56, 7, -11\ns_add_u32 s49, s49, s56")
            if self.prof: a("v_writelane_b32 v167, s49, 61")
        if 'nomlp' in self.skip: a("s_branch L_exit")
        if 'nomlpwg' in self.skip: a("s_cmp_lt_u32 s49, 21\ns_cbranch_scc1 L_exit")
        a("""s_cmp_lt_u32 s49, 21
        s_cbranch_scc1 L_mlp""")
        if self.hlp:
            c("helpers: pull this XCD's share of w1 / w2 into L2")
            ntp = (" " + self.ntp) if self.ntp else ""
            n1, n2 = (64, 56) if 'B' in self.hlp else (50, 44) if 'C' in self.hlp else (41, 36)
            a(f"""s_sub_u32 s56, s49, 21
            s_lshl_b32 s56, s56, 2
            s_add_u32 s56, s56, s50
            s_mul_i32 s57, s56, {n1}
            v_add_u32 v9, s57, v0
            v_lshrrev_b32 v10, 2, v9
            v_mul_u32_u24 v10, 3584, v10
            v_and_b32 v9, 3, v9
            v_lshl_add_u32 v14, v9, 7, v10
            s_mul_i32 s57, s48, 448
            s_andn2_b32 s57, s57, 127
            v_lshlrev_b32 v13, 7, v0
            s_mul_i32 s56, s56, {n2*128}
            s_mul_i32 s58, s48, {224*896}
            s_add_u32 s56, s56, s58""")
            if 'o' in self.hlp: self.waitflag(F_PV, "v2", sleep=False)
            else: self.waitflag(F_PV if 'p' in self.hlp else F_VI, n=4, t="v8", sleep=False)
            if '1' in self.hlp: a(f"s_mov_b32 exec_hi, {hex((1 << (n1 - 32)) - 1)}\nbuffer_load_dword v165, v14, s[36:39], s57 offen{ntp}")
            if '2' in self.hlp: a(f"s_mov_b32 exec_hi, {hex((1 << (n2 - 32)) - 1)}\nbuffer_load_dword v165, v13, s[32:35], s56 offen{ntp}")
            a("s_mov_b32 exec_hi, -1")
        if 'nofin' in self.skip: a("s_branch L_exit")
        a("""s_cmp_lt_u32 s49, 28
        s_cbranch_scc0 L_exit
        s_cmp_ge_u32 s50, 2
        s_cbranch_scc1 L_fin
        s_branch L_exit""")

    def role_wo(self):
        self.cur = 'WO'
        a, c = self.a, self.c; ntw = (" " + self.ntw) if self.ntw else ""
        c("================= role WO =================")
        a("L_wo:")
        a(f"""s_cmp_ge_u32 s49, 7
        s_cselect_b32 s52, 1, 0
        s_mul_i32 s53, s52, 7
        s_sub_u32 s53, s49, s53
        s_mul_i32 s56, s52, {128*896}
        s_add_u32 s54, s54, s56
        s_lshl_b32 s56, s53, 7
        s_add_u32 s54, s54, s56""")
        self.stamp(10)
        self.waitflag(F_VI, n=4, t="v8", sleep=False)
        a("buffer_load_dwordx2 v[16:17], v15, s[16:19], s59 offen sc1")
        for p in range(8):
            rows = 4*(p & 1) + ((p >> 1) & 1) + 8*(p >> 2)
            a(f"s_add_u32 m0, s55, {p*1024}\ns_add_u32 s56, s54, {rows*896}")
            a(f"buffer_load_dwordx4 v20, s[28:31], s56 offen{ntw} lds")
        a(f"""v_lshlrev_b32 v23, 2, v0
        v_and_b32 v29, 28, v23
        s_mov_b32 s61, {GR}
        buffer_load_dword v31, v29, s[16:19], s61 offen sc1""")
        self.tr_addr(160, "s55", 21)
        a(f"""v_xor_b32 v21, v0, v6
        v_lshlrev_b32 v21, 4, v21
        v_and_b32 v22, 7, v0
        v_xor_b32 v12, v7, v22
        v_lshlrev_b32 v12, 4, v12
        v_and_b32 v22, 15, v0
        v_lshl_add_u32 v12, v22, 7, v12
        s_add_u32 s72, s55, 8192
        v_add_u32 v12, s72, v12
        v_xor_b32 v13, 64, v12
        v_and_b32 v22, 3, v0
        s_lshl_b32 s57, s48, 2
        s_lshl_b32 s56, s52, 1
        s_add_u32 s57, s57, s56
        s_add_u32 s57, s57, s69
        s_lshl_b32 s57, s57, 1
        s_add_u32 s57, s57, s68
        s_lshl_b32 s57, s57, 12
        s_add_u32 s57, s57, {OP}
        s_mov_b32 s69, {hex(f2u(1.4426950408889634/16))}
        s_lshl_b32 s56, s50, 10
        v_add_u32 v24, s56, v23
        v_add_u32 v24, {RED}, v24""")
        a(f"""v_lshrrev_b32 v25, 5, v0
        v_lshlrev_b32 v25, 8, v25
        v_bfe_u32 v26, v0, 2, 3
        v_lshl_add_u32 v25, v26, 3, v25
        v_and_b32 v26, 1, v0
        v_lshl_add_u32 v25, v26, 2, v25
        s_lshl_b32 s56, s50, 6
        s_add_u32 s56, s56, {RED}
        v_add_u32 v25, s56, v25
        v_cmp_eq_u32 vcc, 2, v22
        v_mov_b32 v26, 1.0
        s_lshl_b32 s58, s50, 12
        v_cndmask_b32 v26, 0, v26, vcc
        s_lshl_b32 s56, s53, 9
        s_add_u32 s58, s58, s56
        s_add_u32 s58, s58, {HACC}
        v_mov_b32 v27, v26
        v_lshlrev_b32 v30, 10, v0
        s_lshl_b32 s60, s48, 2
        s_lshl_b32 s62, s52, 7
        s_add_u32 s60, s60, s62
        s_lshl_b32 s62, s53, 13
        s_add_u32 s60, s60, s62
        s_lshl_b32 s62, s50, 8
        s_add_u32 s60, s60, s62
        s_add_u32 s60, s60, {EW}""")
        a("s_waitcnt vmcnt(9)\nv_cmp_eq_u32 vcc, -1, v17\ns_cbranch_vccnz L_stwait\nL_stok:")
        c("combine weights w[b][h][j] = exp(m_j - M) / L")
        a("v_mov_b32 v19, v16\ns_nop 1")
        for rot in (8, 4, 2):
            a(f"v_max_f32_dpp v19, v19, v19 row_ror:{rot} row_mask:0xf bank_mask:0xf\ns_nop 1")
        a("v_sub_f32 v16, v16, v19\nv_mul_f32 v16, s69, v16\nv_exp_f32 v16, v16\ns_nop 0\nv_mul_f32 v17, v17, v16\ns_nop 1")
        for rot in (8, 4, 2):
            a(f"v_add_f32_dpp v17, v17, v17 row_ror:{rot} row_mask:0xf bank_mask:0xf\ns_nop 1")
        a("v_rcp_f32 v17, v17\ns_nop 0\nv_mul_f32 v16, v16, v17\ns_nop 1")
        for j in range(8):
            a(f"v_mov_b32_dpp v{96+j}, v16 row_newbcast:{2*j} row_mask:0xf bank_mask:0xf")
        if 'nopipe' in self.skip: a("s_waitcnt vmcnt(0)")
        else:
            a("s_mov_b32 m0, s72\ns_nop 0")
            for q in range(4): a(f"buffer_load_dwordx4 v21, s[16:19], s57 offen offset:{q*1024} sc1 lds")
            a("s_waitcnt vmcnt(5)")
        self.stamp(4)
        for z in range(2):
            for i in range(4):
                for half in range(2):
                    r = 128 + (z*4 + i)*4 + half*2
                    a(f"ds_read_b64_tr_b16 v[{r}:{r+1}], v{160+i} offset:{z*4096 + half*2048}")
        l = self.lab("OP")
        def osweep():
            for q in range(4):
                a(f"buffer_load_dwordx4 v21, s[16:19], s57 offen offset:{q*1024} sc1 lds")
        if 'nopipe' in self.skip:
            a(f"s_mov_b32 m0, s72\n{l}:\ns_nop 0"); osweep(); a("s_waitcnt vmcnt(0)")
        else:
            a(f"{l}:\ns_xor_b32 m0, m0, 0x1000\ns_nop 0"); osweep(); a("s_waitcnt vmcnt(4)")
        for z in range(2):
            for st_ in range(2):
                r = 32 + (z*2 + st_)*4
                a(f"ds_read_b128 v[{r}:{r+3}], v{12+z} offset:{st_*2048}")
        if 'nopipe' not in self.skip: a("v_xor_b32 v12, 0x1000, v12\nv_xor_b32 v13, 0x1000, v13")
        def ew(k):
            if self.ewp == k:
                a("s_mov_b64 exec, 0xff\nbuffer_store_dword v164, v30, s[16:19], s60 offen sc1\ns_mov_b64 exec, -1")
        def mf(i, z, st_):
            d = 64 + (i*2 + st_)*4; ra = 32 + (z*2 + st_)*4; rb = 128 + (z*4 + i)*4
            cin = "0" if z == 0 else f"v[{d}:{d+3}]"
            a(f"v_mfma_f32_16x16x32_bf16 v[{d}:{d+3}], v[{ra}:{ra+3}], v[{rb}:{rb+3}], {cin}")
        def fm(i, st_, r):
            d = 64 + (i*2 + st_)*4; acc = 48 + 4*i + st_
            if r == 0: a(f"v_mul_f32 v{acc}, v{d}, v{96+4*st_}")
            else: a(f"v_fmac_f32 v{acc}, v{d+r}, v{96+4*st_+r}")
        c("tile 0 starts speculatively while the sentinels are checked")
        a("s_waitcnt lgkmcnt(3)"); mf(0, 0, 0)
        a("s_waitcnt lgkmcnt(2)"); mf(0, 0, 1)
        a("v_max3_u32 v28, v32, v34, v36\ns_waitcnt lgkmcnt(1)"); mf(0, 1, 0)
        a("v_max3_u32 v14, v38, v40, v42\ns_waitcnt lgkmcnt(0)"); mf(0, 1, 1)
        a("v_max3_u32 v28, v28, v44, v46\nv_max_u32 v28, v28, v14\nv_cmp_eq_u32 vcc, -1, v28")
        mf(1, 0, 0)
        self.retry(l)
        if self.ewp in (0, 4): a("s_barrier")
        ew(0)
        self.stamp(5)
        seq = [(1, 0, 1), (1, 1, 0), (1, 1, 1)] + [(i, z, st_) for i in (2, 3) for z in range(2) for st_ in range(2)]
        fq = [(i, st_, r) for i in range(4) for r in range(4) for st_ in range(2)]
        for k, m in enumerate(seq):
            mf(*m)
            if k >= 3:
                for _ in range(2): fm(*fq.pop(0))
            if k == self.ewk: ew(4)
        a("v_add_f32 v48, v48, v49\nv_add_f32 v52, v52, v53")
        for _ in range(4): fm(*fq.pop(0))
        a("ds_write2st64_b32 v24, v48, v52 offset0:0 offset1:1")
        for _ in range(4): fm(*fq.pop(0))
        a("v_cmp_ne_u32 vcc, v31, v164\nv_add_f32 v56, v56, v57")
        while fq: fm(*fq.pop(0))
        a("v_add_f32 v60, v60, v61")
        a("ds_write2st64_b32 v24, v56, v60 offset0:2 offset1:3")
        a("s_cbranch_vccnz L_grwait\nL_grok:")
        ew(1)
        a("s_waitcnt lgkmcnt(0)\ns_barrier")
        ew(2)
        a("""ds_read2st64_b32 v[32:33], v25 offset0:0 offset1:4
        ds_read2st64_b32 v[34:35], v25 offset0:8 offset1:12
        ds_read2st64_b32 v[36:37], v25 offset0:2 offset1:6
        ds_read2st64_b32 v[38:39], v25 offset0:10 offset1:14
        s_mov_b32 exec_lo, 0x33333333
        s_mov_b32 exec_hi, 0x33333333
        s_waitcnt lgkmcnt(2)
        v_add_f32 v32, v32, v33
        v_add_f32 v34, v34, v35
        v_add_f32 v26, v32, v34
        s_waitcnt lgkmcnt(0)
        v_add_f32 v36, v36, v37
        v_add_f32 v38, v38, v39
        v_add_f32 v27, v36, v38
        s_mov_b64 exec, -1
        buffer_atomic_add_f32 v26, v23, s[16:19], s58 offen
        buffer_atomic_add_f32 v27, v23, s[16:19], s58 offen offset:256""")
        ew(3)
        self.stamp(6)
        a("s_branch L_exit")
        a("L_grwait:\nbuffer_load_dword v31, v29, s[16:19], s61 offen sc1\ns_waitcnt vmcnt(0)\nv_cmp_ne_u32 vcc, v31, v164")
        self.retry("L_grwait")
        a("s_branch L_grok")
        a("L_stwait:\ns_sleep 1\nbuffer_load_dwordx2 v[16:17], v15, s[16:19], s59 offen sc1\ns_waitcnt vmcnt(0)\nv_cmp_eq_u32 vcc, -1, v17")
        self.retry("L_stwait")
        a("s_branch L_stok")

    def wave_sum2(self, r0, r1, s0, s1):
        a = self.a
        for ctl in ("row_shr:1", "row_shr:2", "row_shr:4", "row_shr:8"):
            a(f"v_add_f32_dpp v{r0}, v{r0}, v{r0} {ctl} row_mask:0xf bank_mask:0xf bound_ctrl:0" if False else
              f"v_add_f32_dpp v{r0}, v{r0}, v{r0} {ctl.replace('shr','ror')} row_mask:0xf bank_mask:0xf")
            a(f"v_add_f32_dpp v{r1}, v{r1}, v{r1} {ctl.replace('shr','ror')} row_mask:0xf bank_mask:0xf\ns_nop 0")
        a(f"v_add_f32_dpp v{r0}, v{r0}, v{r0} row_bcast:15 row_mask:0xa bank_mask:0xf")
        a(f"v_add_f32_dpp v{r1}, v{r1}, v{r1} row_bcast:15 row_mask:0xa bank_mask:0xf\ns_nop 0")
        a(f"v_add_f32_dpp v{r0}, v{r0}, v{r0} row_bcast:31 row_mask:0xc bank_mask:0xf")
        a(f"v_add_f32_dpp v{r1}, v{r1}, v{r1} row_bcast:31 row_mask:0xc bank_mask:0xf")
        a(f"v_readlane_b32 s{s0}, v{r0}, 63\nv_readlane_b32 s{s1}, v{r1}, 63\ns_nop 1")

    def ew_gate(self, va):
        a = self.a
        l = self.lab("EW")
        a(f"v_lshlrev_b32 v{va}, 7, v12\ns_mov_b32 s63, {EW}")
        a(f"{l}:\nbuffer_load_dword v8, v{va}, s[16:19], s63 offen sc1\ns_waitcnt vmcnt(0)\nv_cmp_ne_u32 vcc, v8, v164")
        self.retry(l)

    def role_mlp(self):
        self.cur = 'MLP'
        a, c = self.a, self.c; ntw = (" " + self.ntw) if self.ntw else ""
        c("================= role MLP =================")
        a("L_mlp:")
        a(f"""s_mul_i32 s52, s48, 7
        s_add_u32 s52, s52, s49
        s_sub_u32 s52, s52, 14
        v_and_b32 v22, 3, v0
        v_mul_u32_u24 v21, 896, v6
        v_add_u32 v21, v21, v5
        s_mul_i32 s56, s52, {32*896}
        s_lshl_b32 s57, s50, 7
        s_add_u32 s56, s56, s57
        s_add_u32 s54, s55, {VL - KL}
        v_bfe_u32 v15, v0, 2, 2
        v_lshlrev_b32 v18, 6, v15
        v_lshl_add_u32 v18, v7, 4, v18
        v_add_u32 v18, {H1L}, v18
        v_mov_b32 v19, {ZR}""")
        for i in range(4):
            a(f"v_cmp_eq_u32 vcc, {i}, v22\ns_nop 1\nv_cndmask_b32 v{24+i}, v19, v18, vcc")
        self.tr_addr(160, "s54", 8)
        a(f"""s_mul_i32 s58, s52, 7168
        s_lshl_b32 s59, s50, 10
        s_add_u32 s58, s58, s59
        s_add_u32 s58, s58, {PART}
        s_add_u32 s62, s58, 4096
        v_lshlrev_b32 v23, 4, v0
        s_cmp_ge_u32 s50, 2
        s_cbranch_scc1 L_mlp_b""")
        def w2ld():
            for p in range(8):
                a(f"s_add_u32 m0, s54, {p*1024}\ns_add_u32 s53, s56, {(p & 3)*8*896 + (p >> 2)*512}")
                a(f"buffer_load_dwordx4 v21, s[32:35], s53 offen{ntw} lds")
        def w2rd():
            for qq in range(2):
                for i in range(4):
                    for half in range(2):
                        r = 120 + (qq*4 + i)*4 + half*2
                        a(f"ds_read_b64_tr_b16 v[{r}:{r+1}], v{160+i} offset:{qq*4096 + half*2048}")
        c("---- waves 0,1: w1 tile (14 pieces each), then h @ w1 (row 4b+1 of A = ones gives the column sums) ----")
        a(f"""v_lshrrev_b32 v13, 2, v0
        v_mul_u32_u24 v20, 3584, v13
        v_lshl_add_u32 v20, v22, 4, v20
        v_lshlrev_b32 v13, 6, v13
        v_lshl_add_u32 v13, v22, 3, v13
        s_lshl_b32 s57, s50, 5
        s_add_u32 s53, s57, {KL}
        v_add_u32 v13, s53, v13
        s_lshl_b32 s59, s52, 6
        s_add_u32 s57, s57, s59
        s_mul_i32 s53, s50, {14*16*3584}
        s_add_u32 s59, s59, s53
        v_lshlrev_b32 v9, 1, v12
        buffer_load_ushort v28, v9, s[40:43], s57 offen
        v_mul_u32_u24 v16, 896, v15
        v_lshl_add_u32 v16, v7, 4, v16
        v_add_u32 v16, {YL}, v16
        v_cmp_eq_u32 vcc, 1, v22
        v_mov_b32 v9, {ONL}
        v_lshlrev_b32 v17, 6, v7
        v_cndmask_b32 v16, v16, v9, vcc
        v_lshl_add_u32 v17, v15, 4, v17
        v_lshl_add_u32 v17, v22, 1, v17
        s_lshl_b32 s53, s50, 3
        s_add_u32 s53, s53, {H1L}
        v_add_u32 v17, s53, v17
        v_lshlrev_b32 v14, 3, v7
        v_mov_b32 v8, 0x3f803f80
        v_mov_b32 v9, v8
        v_mov_b32 v10, v8
        v_mov_b32 v11, v8
        ds_write_b128 v23, v[8:11] offset:{ONL}""")
        self.waitflag(F_VI if 'w1vi' in self.skip else F_PV, n=4, t="v96", sleep=False)
        for x in range(14):
            a(f"s_add_u32 m0, s55, {x*1024}\ns_add_u32 s53, s59, {x*16*3584}")
            a(f"buffer_load_dwordx4 v20, s[36:39], s53 offen{ntw} lds")
        if 'w1vi' in self.skip: self.waitflag(F_PV, n=4, t="v96", sleep=False)
        w2ld()
        a("s_waitcnt vmcnt(8)")
        self.setflag(F_W1)
        a("v_xor_b32 v9, 4, v2")
        self.waitflag(F_W1, "v9", sleep=False)
        for ks in range(14):
            for half in range(2):
                p = 2*ks + half
                r = 64 + ks*4 + half*2
                a(f"ds_read_b64_tr_b16 v[{r}:{r+1}], v13 offset:{(p//14)*16384 + (p%14)*1024}")
        a("v_lshlrev_b32 v28, 16, v28\ns_waitcnt vmcnt(0)")
        w2rd()
        self.stamp(4)
        a("s_waitcnt lgkmcnt(0)\ns_barrier")
        self.stamp(6)
        regs = [8, 32, 36, 40, 44, 48, 52, 56, 60, 156, 160, 8, 32, 36]
        for ks in range(11):
            a(f"ds_read_b128 v[{regs[ks]}:{regs[ks]+3}], v16 offset:{ks*64}")
        for ks in range(14):
            a(f"s_waitcnt lgkmcnt({10-ks if ks < 3 else 13-ks})")
            r = regs[ks]
            a(f"v_mfma_f32_16x16x32_bf16 v[152:155], v[{r}:{r+3}], v[{64+4*ks}:{67+4*ks}], {'0' if ks == 0 else 'v[152:155]'}")
            if ks == 2:
                for k2 in (11, 12, 13): a(f"ds_read_b128 v[{regs[k2]}:{regs[k2]+3}], v16 offset:{k2*64}")
        k1 = -2*1.4426950408889634*0.7978845608028654
        a(f"""s_barrier
        ds_read_b64 v[30:31], v14 offset:{STL}
        s_mov_b32 s64, {hex(f2u(k1*0.044715))}
        v_mov_b32 v9, {hex(f2u(k1))}
        s_nop 2
        s_waitcnt lgkmcnt(0)
        v_fma_f32 v28, -v31, v153, v28
        v_fmac_f32 v28, v152, v30
        v_mul_f32 v8, v28, v28
        v_fma_f32 v8, v8, s64, v9
        v_mul_f32 v8, v8, v28
        v_exp_f32 v8, v8
        s_nop 0
        v_add_f32 v8, 1.0, v8
        v_rcp_f32 v8, v8
        s_nop 0
        v_mul_f32 v8, v8, v28
        v_cvt_pk_bf16_f32 v8, v8, v8
        ds_write_b16 v17, v8
        s_waitcnt lgkmcnt(0)
        L_mlp2:
        s_barrier""")
        self.stamp(7)
        for i in range(4):
            a(f"ds_read_b128 v[{32+4*i}:{35+4*i}], v{24+i}")
        for i in range(4):
            a(f"s_waitcnt lgkmcnt({3-i})")
            for qq in range(2):
                d = 48 + 4*qq; r = 120 + (qq*4 + i)*4
                cin = "0" if i == 0 else f"v[{d}:{d+3}]"
                a(f"v_mfma_f32_16x16x32_bf16 v[{d}:{d+3}], v[{32+4*i}:{35+4*i}], v[{r}:{r+3}], {cin}")
        a("""s_nop 6
        v_min_u32 v48, -2, v48
        buffer_store_dwordx4 v[48:51], v23, s[16:19], s58 offen sc1
        s_cmp_eq_u32 s50, 3
        s_cbranch_scc1 L_exit
        v_min_u32 v52, -2, v52
        buffer_store_dwordx4 v[52:55], v23, s[16:19], s62 offen sc1""")
        self.stamp(8)
        a("s_branch L_exit")

        c("---- waves 2,3: rows u and u-2 of h -> LDS and their LayerNorm statistics ----")
        a(f"""L_mlp_b:
        v_lshlrev_b32 v9, 2, v0
        s_mul_i32 s57, s50, 896
        s_sub_u32 s59, s57, 1792
        s_mov_b32 exec_hi, 0x00ffffff""")
        for i in range(4):
            a(f"buffer_load_dword v{36+i}, v9, s[20:23], s57 offen offset:{i*224}")
        for i in range(4):
            a(f"buffer_load_dword v{156+i}, v9, s[20:23], s59 offen offset:{i*224}")
        a(f"s_mov_b32 exec_hi, -1\ns_add_u32 s59, s59, {YL}")
        for i in range(4):
            a(f"""v_add_u32 v8, {56*i}, v0
            v_lshrrev_b32 v9, 4, v8
            v_lshlrev_b32 v9, 6, v9
            v_bfe_u32 v10, v8, 1, 2
            v_lshl_add_u32 v9, v10, 4, v9
            v_and_b32 v10, 8, v8
            v_add_u32 v9, v9, v10
            v_and_b32 v10, 1, v8
            v_lshl_add_u32 v9, v10, 2, v9
            v_add_u32 v{32+i}, s59, v9""")
        a(f"""s_lshl_b32 s53, s50, 3
        v_mov_b32 v15, s53
        s_lshl_b32 s57, s50, 12
        s_add_u32 s57, s57, {HACC}
        s_xor_b32 s61, s57, 0x2000
        s_mov_b32 s59, {hex(f2u(16.0))}
        s_lshl_b32 s63, s52, 10
        s_add_u32 s63, s63, {EW}
        s_add_u32 s64, s16, s63
        s_addc_u32 s65, s17, 0
        v_lshrrev_b32 v19, 1, v0
        v_mul_u32_u24 v19, {7*512}, v19
        v_and_b32 v18, 1, v0
        v_lshl_add_u32 v19, v18, 7, v19
        s_sub_u32 s63, s49, 14
        s_lshl_b32 s63, s63, 9
        s_lshl_b32 s53, s48, 2
        s_add_u32 s63, s63, s53
        s_and_b32 s53, s50, 1
        s_lshl_b32 s53, s53, 8
        s_add_u32 s63, s63, s53
        s_add_u32 s63, s63, {FH}
        s_mov_b32 s60, 0xffff0000""")
        for i in range(4): a(f"v_mov_b32 v{88+i}, 0")
        self.waitflag(F_PV, n=4, t="v96", sleep=False)
        w2ld()
        a("s_waitcnt vmcnt(8)")
        for i in range(4):
            a(f"v_lshlrev_b32 v{40+2*i}, 16, v{36+i}\nv_and_b32 v{41+2*i}, s60, v{36+i}\nv_lshlrev_b32 v{104+2*i}, 16, v{156+i}\nv_and_b32 v{105+2*i}, s60, v{156+i}")
        def fh(k):
            if self.hp == k:
                a("s_mov_b64 exec, 0xffff\nbuffer_store_dword v164, v19, s[16:19], s63 offen sc1\ns_mov_b64 exec, -1")
        a("s_cmp_lg_u32 s50, 3\ns_cbranch_scc1 L_gow")
        self.phint(16)
        self.setflag(F_GO, "v3")
        a("s_branch L_hp\nL_gow:")
        self.waitflag(F_GO, sleep=False)
        a("L_hp:")
        if self.prof and not self.light: a("s_memrealtime s[94:95]")
        a("s_mov_b32 exec_hi, 0x00ffffff")
        for i in range(4):
            a(f"buffer_load_dwordx4 v[{48+4*i}:{51+4*i}], v23, s[16:19], s57 offen offset:{i*896} sc1")
        for i in range(4):
            a(f"buffer_load_dwordx4 v[{64+4*i}:{67+4*i}], v23, s[16:19], s61 offen offset:{i*896} sc1")
        a("s_mov_b32 exec_hi, -1\ns_waitcnt vmcnt(8)")
        w2rd()
        a("s_mov_b32 exec_hi, 0x00ffffff\ns_waitcnt vmcnt(4)")
        for i in range(4):
            a(f"v_pk_add_f32 v[{48+4*i}:{49+4*i}], v[{48+4*i}:{49+4*i}], v[{40+2*i}:{41+2*i}]\nv_cvt_pk_bf16_f32 v{36+i}, v{48+4*i}, v{49+4*i}\nds_write_b32 v{32+i}, v{36+i} offset:1792")
        a("v_min_f32 v8, v50, v54\nv_min3_f32 v8, v8, v58, v62\ns_waitcnt vmcnt(0)")
        for i in range(4):
            a(f"v_pk_add_f32 v[{64+4*i}:{65+4*i}], v[{64+4*i}:{65+4*i}], v[{104+2*i}:{105+2*i}]\nv_cvt_pk_bf16_f32 v{156+i}, v{64+4*i}, v{65+4*i}\nds_write_b32 v{32+i}, v{156+i}")
        a("v_min3_f32 v8, v8, v66, v70\nv_min3_f32 v8, v8, v74, v78\nv_cmp_neq_f32 vcc, s59, v8")
        self.retry("L_hp")
        self.stamp(5)
        if self.prof and not self.light: a("v_writelane_b32 v167, s94, 9")
        a("""v_pk_add_f32 v[80:81], v[48:49], v[52:53]
        v_pk_mul_f32 v[82:83], v[48:49], v[48:49]
        v_pk_add_f32 v[84:85], v[64:65], v[68:69]
        v_pk_mul_f32 v[86:87], v[64:65], v[64:65]
        s_waitcnt lgkmcnt(0)
        s_barrier
        v_pk_add_f32 v[80:81], v[80:81], v[56:57]
        v_pk_fma_f32 v[82:83], v[52:53], v[52:53], v[82:83]
        v_pk_add_f32 v[84:85], v[84:85], v[72:73]
        v_pk_fma_f32 v[86:87], v[68:69], v[68:69], v[86:87]
        v_pk_add_f32 v[80:81], v[80:81], v[60:61]
        v_pk_fma_f32 v[82:83], v[56:57], v[56:57], v[82:83]
        v_pk_add_f32 v[84:85], v[84:85], v[76:77]
        v_pk_fma_f32 v[86:87], v[72:73], v[72:73], v[86:87]
        v_pk_fma_f32 v[82:83], v[60:61], v[60:61], v[82:83]
        v_pk_fma_f32 v[86:87], v[76:77], v[76:77], v[86:87]
        v_add_f32 v88, v80, v81
        v_add_f32 v90, v84, v85
        v_add_f32 v89, v82, v83
        v_add_f32 v91, v86, v87
        s_mov_b32 exec_hi, -1""")
        fh(2)
        c("reduce-scatter the four sums over the wave: rows 0..3 end up with S(u), S(u-2), Q(u), Q(u-2)")
        a("""s_nop 0
        v_permlane32_swap_b32 v88, v89
        v_permlane32_swap_b32 v90, v91
        v_add_f32 v8, v88, v89
        v_add_f32 v10, v90, v91
        s_nop 1
        v_permlane16_swap_b32 v8, v10
        v_add_f32 v8, v8, v10
        s_nop 1""")
        self.dpp_allred16("v_add_f32", [8])
        c("LN(LN(h)) = (h - m) * rs1 * rs2 : rs1 = rsq(v + eps), second LN sees mean 0 and variance v*rs1^2")
        a(f"""v_mul_f32 v8, {hex(f2u(1/448))}, v8
        v_mov_b32 v9, v8
        s_mov_b32 s64, {hex(f2u(1e-5))}
        v_and_b32 v10, 16, v0
        v_permlane32_swap_b32 v8, v9
        v_fma_f32 v9, -v8, v8, v9
        v_max_f32 v9, 0, v9
        v_add_f32 v11, s64, v9
        v_rsq_f32 v11, v11
        v_xor_b32 v15, v15, v10
        v_mul_f32 v9, v9, v11
        v_fma_f32 v9, v9, v11, s64
        v_rsq_f32 v9, v9
        s_mov_b32 exec_lo, 0x00010001
        s_mov_b32 exec_hi, 0
        v_mul_f32 v30, v9, v11
        v_mul_f32 v31, v30, v8
        ds_write_b64 v15, v[30:31] offset:{STL}
        s_mov_b64 exec, -1""")
        fh(3)
        a("s_waitcnt lgkmcnt(0)\ns_barrier")
        fh(1)
        c("every workgroup has read the epoch by now: advance it for the next launch")
        a(f"""s_lshl_b32 s53, s52, 2
        s_add_u32 s53, s53, s50
        s_cmp_lg_u32 s53, 3
        s_cbranch_scc1 L_mlp2
        s_mov_b32 s53, {EPO}
        s_mov_b64 exec, 1
        buffer_store_dword v164, v23, s[16:19], s53 offen sc1
        s_mov_b64 exec, -1
        s_branch L_mlp2""")

    def role_fin(self):
        self.cur = 'FIN'
        a, c = self.a, self.c
        c("================= role FINAL =================")
        a("L_fin:")
        self.srd(40, 72, 896)
        self.srd(44, 80, 3584)
        a(f"""s_mul_i32 s52, s48, 7
        s_add_u32 s52, s52, s49
        s_lshl_b32 s52, s52, 1
        s_add_u32 s52, s52, s50
        s_sub_u32 s52, s52, 44
        s_lshl_b32 s53, s52, 6
        s_add_u32 s53, s53, {PART}
        s_add_u32 s54, s53, {16*7168}
        s_add_u32 s55, s53, {32*7168}
        s_add_u32 s56, s53, {48*7168}
        v_lshrrev_b32 v20, 2, v0
        v_mul_u32_u24 v20, 7168, v20
        v_and_b32 v22, 3, v0
        v_lshl_add_u32 v20, v22, 4, v20
        s_lshr_b32 s57, s52, 4
        s_lshl_b32 s57, s57, 6
        s_and_b32 s58, s52, 3
        s_lshl_b32 s58, s58, 2
        s_add_u32 s57, s57, s58
        v_and_b32 v23, 16, v0
        v_lshlrev_b32 v23, 1, v23
        v_lshrrev_b32 v24, 5, v0
        v_lshl_add_u32 v23, v24, 4, v23
        v_add3_u32 v23, v23, v22, s57
        v_lshlrev_b32 v24, 1, v23
        v_lshrrev_b32 v25, 1, v23
        v_lshlrev_b32 v25, 4, v25
        s_bfe_u32 s58, s52, 0x20002
        s_mul_i32 s59, s58, 896
        s_lshl_b32 s58, s58, 12
        s_add_u32 s58, s58, {HACC}
        s_mov_b32 s61, {hex(f2u(16.0))}
        v_mov_b32 v44, 0
        v_mov_b32 v45, 0
        v_mov_b32 v46, 0
        v_mov_b32 v47, 0
        s_waitcnt lgkmcnt(0)
        buffer_load_ushort v26, v24, s[20:23], s59 offen
        buffer_load_ushort v27, v24, s[40:43], 0 offen
        buffer_load_ushort v28, v24, s[44:47], s59 offen""")
        a(f"""s_lshr_b32 s63, s52, 1
        s_lshl_b32 s63, s63, 9
        s_add_u32 s63, s63, {FH}
        s_add_u32 s64, s16, s63
        s_addc_u32 s65, s17, 0
        v_and_b32 v8, 1, v0
        v_cmp_eq_u32 s[66:67], 1, v8
        s_waitcnt vmcnt(0)
        v_lshlrev_b32 v26, 16, v26
        v_lshlrev_b32 v27, 16, v27
        v_add_f32 v26, v26, v27""")
        a("s_cmp_lg_u32 s50, 3\ns_cbranch_scc1 L_fhbar")
        self.phint(8)
        a("L_fhbar:\ns_barrier")
        if self.prof and not self.light: a("s_memrealtime s[94:95]")
        l = self.lab("FP")
        a(f"""{l}:
        buffer_load_dwordx4 v[28:31], v25, s[16:19], s58 offen sc1
        buffer_load_dwordx4 v[32:35], v20, s[16:19], s53 offen sc1
        buffer_load_dwordx4 v[36:39], v20, s[16:19], s54 offen sc1
        buffer_load_dwordx4 v[40:43], v20, s[16:19], s55 offen sc1
        s_mov_b32 exec_hi, 0
        buffer_load_dwordx4 v[44:47], v20, s[16:19], s56 offen sc1
        s_mov_b32 exec_hi, -1
        s_waitcnt vmcnt(4)
        v_cndmask_b32 v28, v28, v29, s[66:67]
        v_add_f32 v27, v26, v28
        v_cmp_neq_f32 s[68:69], s61, v30
        s_waitcnt vmcnt(0)
        v_max_u32 v8, v32, v36
        v_max3_u32 v8, v8, v40, v44
        v_cmp_eq_u32 vcc, -1, v8
        s_or_b64 vcc, vcc, s[68:69]""")
        self.retry(l)
        self.stamp(6)
        if self.prof and not self.light: a("v_writelane_b32 v167, s94, 5")
        for k in range(4): a(f"v_add_f32 v{32+k}, v{32+k}, v{36+k}\nv_add_f32 v{40+k}, v{40+k}, v{44+k}")
        for k in range(4): a(f"v_add_f32 v{32+k}, v{32+k}, v{40+k}")
        a("""s_nop 0
        v_permlane32_swap_b32 v32, v33
        v_permlane32_swap_b32 v34, v35
        v_add_f32 v32, v32, v33
        v_add_f32 v34, v34, v35
        s_nop 1
        v_permlane16_swap_b32 v32, v34
        v_add_f32 v32, v32, v34
        s_nop 1
        v_add_f32_dpp v32, v32, v32 row_ror:4 row_mask:0xf bank_mask:0xf
        s_nop 1
        v_add_f32_dpp v32, v32, v32 row_ror:8 row_mask:0xf bank_mask:0xf
        v_add_f32 v32, v32, v27
        v_cvt_pk_bf16_f32 v32, v32, v32
        s_mov_b32 exec_lo, 0x000f000f
        s_mov_b32 exec_hi, 0x000f000f
        buffer_store_short v32, v24, s[44:47], s59 offen""" + (' sc1' if 'outsc1' in self.skip else '') + (' nt' if 'outnt' in self.skip else ''))
        self.stamp(7)

def add_pads(text, gap=960, nchain=3):
    import subprocess, re, tempfile, os
    lines = text.split("\n")
    start = next(i for i, l in enumerate(lines) if l.startswith(NAME + "_kernel:"))
    end = next(i for i, l in enumerate(lines) if l.startswith("L_end:"))
    def addrs(ls):
        t = []
        for i, l in enumerate(ls):
            if start < i and l.startswith("    ") and not l.strip().startswith(";") and not l.strip().startswith("."):
                t.append(f"ZZ_{i}:")
            t.append(l)
        src = "\n".join(t)
        for k in range(nchain):
            if f"PADCHAIN_{k}:" not in src: src = src.replace(f"PADCHAIN_{k}", "L_end")
        src = re.sub(r"PADNEXT", "L_end", src)
        with tempfile.TemporaryDirectory() as d:
            open(d + "/a.s", "w").write(src)
            subprocess.check_call(["clang", "-x", "assembler", "-target", "amdgcn-amd-amdhsa", "-mcpu=gfx950", "-c", d + "/a.s", "-o", d + "/a.o"])
            out = subprocess.check_output(["llvm-objdump", "-t", d + "/a.o"], text=True)
        r = {}
        for l in out.splitlines():
            p = l.split()
            if not p: continue
            if p[-1].startswith("ZZ_"): r[int(p[-1][3:])] = int(p[0], 16)
            if p[-1] == NAME + "_kernel": base = int(p[0], 16)
        return {k: v - base for k, v in r.items()}
    ad = addrs(lines)
    pads = []; last = 0; shift = 0; noz = False
    for i in sorted(ad):
        if i >= end: break
        if "NOPAD_ON" in lines[i - 1]: noz = True
        if "NOPAD_OFF" in lines[i - 1]: noz = False
        x = ad[i] + shift
        if not noz and (x - last >= gap or (x >> 12) != (last >> 12)):
            pads.append(i); last = x; shift += 4
    n = len(pads)
    out = []
    for i, l in enumerate(lines):
        if i in pads:
            k = pads.index(i)
            if k < nchain: out.append(f"PADCHAIN_{k}:")
            out.append(f"PAD_{k}:")
            nxt = f"PAD_{k + nchain}" if k + nchain < n else "L_warmdone"
            out.append(f"    s_cbranch_execz {nxt}")
        out.append(l)
    return "\n".join(out)

if __name__ == "__main__":
    import argparse
    ap = argparse.ArgumentParser()
    ap.add_argument("-o", default="k.s"); ap.add_argument("-W", type=int, default=6); ap.add_argument("--WV", type=int, default=0); ap.add_argument("--WE", type=int, default=0); ap.add_argument("--NE", type=int, default=0); ap.add_argument("--pf64", action="store_true"); ap.add_argument("--ntp", default=""); ap.add_argument("--hd", type=int, default=4); ap.add_argument("--qd", type=int, default=0); ap.add_argument("--dly", default=None); ap.add_argument("--skip", default=""); ap.add_argument("--rot", type=int, default=1); ap.add_argument("--pw", default="1"); ap.add_argument("--ewp", type=int, default=2); ap.add_argument("--hp", type=int, default=2); ap.add_argument("--pft", type=int, default=3); ap.add_argument("--ww", type=int, default=8); ap.add_argument("--od", type=int, default=2); ap.add_argument("--dx", type=int, default=-1); ap.add_argument("--tkp", type=int, default=11); ap.add_argument("--ps", type=int, default=1); ap.add_argument("--light", action="store_true"); ap.add_argument("--ewk", type=int, default=4); ap.add_argument("--pwo", type=int, default=16); ap.add_argument("--pw1", type=int, default=99); ap.add_argument("--pw2", type=int, default=99); ap.add_argument("--qg", type=int, default=1); ap.add_argument("--ord", type=int, default=0); ap.add_argument("--hlp", default="12p")
    ap.add_argument("--prof", action="store_true"); ap.add_argument("--nt", default="nt"); ap.add_argument("--ntw", default="nt")
    x = ap.parse_args()
    open(x.o, "w").write(add_pads(G(W=x.W, WV=x.WV, WE=x.WE, NE=x.NE, pf64=x.pf64, ntp=x.ntp, hd=x.hd, qd=x.qd, dly=x.dly, skip=x.skip, rot=x.rot, pw=x.pw, ewp=x.ewp, hp=x.hp, pft=x.pft, ww=x.ww, od=x.od, dx=x.dx, tkp=x.tkp, ps=x.ps, light=x.light, ewk=x.ewk, pwo=x.pwo, pw1=x.pw1, pw2=x.pw2, qg=x.qg, ord=x.ord, hlp=x.hlp, prof=x.prof, nt=x.nt, ntw=x.ntw).build()))
```

```python
import sys, struct
NAME = "sequential_preLN__sliding_block_cached__mixer_channel_mlp__decode"

def f2u(x): return struct.unpack("<I", struct.pack("<f", x))[0]

QP   = 0x00000
HACC = 0x160000
HS = 10
STAT = 0x44000
OP   = 0xe0000
EW   = 0x50000
FH   = 0x60000
TK   = 0x70000
GR   = 0x71000
EPO  = 0x71100
PART = 0x72000
QPL  = 0x120000
PROF = 0x180000
WQL = 4096; KL = 24576; VL = KL + 65536
XN = 0
QB = XN + 1024
SP = QB + 1024
ZR = SP + 512
FL = ZR + 512
LDS_TOTAL = VL + 65536
RED = WQL
YL = WQL
H1L = WQL + 4096
STL = WQL + 4608
ONL = WQL + 5120
F_WQ, F_S, F_VI, F_Q, F_P, F_CLR, F_TAG, F_PV, F_V8, F_KL, F_TK, F_W1, F_GO = 0, 32, 48, 64, 68, 76, 88, 96, 112, 128, 72, 16, 80


HEADER = """; Fused decode layer: LN -> q -> sliding-window GQA attention -> wo -> +x -> LN(LN) -> w1/GELU/w2 -> +h
; kernarg: 0 x | 8 K | 16 V | 24 wq | 32 wo | 40 (unused) | 48 w1 | 56 b1 | 64 w2 | 72 b2 | 80 out | 88 debug | 96 ws
;
;   waves 0-3 (L): stream the wq tile, K and V into LDS (LDS-DMA, sliding window), then P.V
; scalar-polled "hint" words only say when a read is worth issuing.  Plain (L2 resident) stores are used only
"""

class G:
    def __init__(self, W=6, WV=None, WE=None, NE=0, prof=False, nt="nt", ntw="nt", pf64=False, ntp="nt", hd=2, qd=0, dly=None, skip='', rot=0, pw='pv', ewp=1, hp=1, pft=0, ww=3, od=2, dx=-1, tkp=8, ps=2, light=False, ewk=4, pwo=0, pw1=0, pw2=99, qg=2, ord=0, hlp=''):
        self.hlp = hlp
        self.ord = ord
        self.qg = qg
        self.pfpos = dict(wo=pwo, w1=pw1, w2=pw2)
        self.light = light; self.ewk = ewk
        self.ps = ps
        self.tkp = tkp
        self.dx = dx
        self.ww = ww; self.od = od
        self.pw = pw; self.ewp = ewp; self.hp = hp; self.pft = pft
        self.rot = ['s_mov_b32 s59, 0', 's_mov_b32 s59, s49', 's_lshr_b32 s59, s2, 4', 's_mul_i32 s59, s2, 5', 's_add_u32 s59, s49, s2'][rot]
        self.skip = set(skip.split(','))
        self.dly = dly; self.cur = 'E'
        self.qd = qd
        self.hd = hd
        self.ntp = ntp
        self.WE = WE or WV or W; self.NE = NE; self.pf64 = pf64
        self.stubs = []
        self.L = []; self.W = W; self.WV = WV or W; self.prof = prof; self.nt = nt; self.ntw = ntw; self.uid = 0
    def a(self, s):
        for line in s.split("\n"):
            line = line.strip()
            if line: self.L.append(("" if line.endswith(":") else "    ") + line)
    def c(self, s): self.L.append("    ; " + s)
    def lab(self, p="L"):
        self.uid += 1; return f"{p}_{self.uid}"
    def stamp(self, i):
        if self.dly == f"{self.cur}:{i}":
            self.a("s_memrealtime s[92:93]\ns_waitcnt lgkmcnt(0)\ns_mov_b32 s94, 1")
        if self.prof and (not self.light or (self.cur == 'L' and i == 6)):
            self.a(f"s_memrealtime s[90:91]\ns_waitcnt lgkmcnt(0)\nv_writelane_b32 v167, s90, {i}")
    def srd(self, r, karg, size):
        self.a(f"s_load_dwordx2 s[{r}:{r+1}], s[0:1], {karg}\ns_mov_b32 s{r+2}, {size}\ns_mov_b32 s{r+3}, 0x20000")
    def setflag(self, off, vaddr="v2"):
        self.a(f"ds_write_b32 {vaddr}, v4 offset:{off}")
    def waitflag(self, off, vaddr="v3", n=1, t="v8", sleep=True):
        l = self.lab("WF"); d = self.lab("WD")
        ti = int(t[1:])
        self.a(f"{l}:")
        if not sleep: self.a("s_sub_u32 s88, s88, 1\ns_cbranch_scc1 L_exit")
        if n == 1:
            self.a(f"ds_read_b32 {t}, {vaddr} offset:{off}\ns_waitcnt lgkmcnt(0)")
        else:
            self.a(f"ds_read_b128 v[{ti}:{ti+3}], {vaddr} offset:{off}\ns_waitcnt lgkmcnt(0)")
            self.a(f"v_and_b32 {t}, {t}, v{ti+1}\nv_and_b32 v{ti+2}, v{ti+2}, v{ti+3}\nv_and_b32 {t}, {t}, v{ti+2}")
        if not sleep:
            self.a(f"v_cmp_ne_u32 vcc, 0, {t}\ns_cbranch_vccz {l}")
            return
        self.a(f"v_cmp_ne_u32 vcc, 0, {t}\ns_cbranch_vccnz {d}")
        if sleep: self.a("s_sleep 1")
        self.a(f"s_sub_u32 s88, s88, 1\ns_cbranch_scc0 {l}\ns_branch L_exit\n{d}:")
    def retry(self, l):
        d = self.lab("RD")
        self.a(f"s_cbranch_vccnz {d}")
        self.stubs.append(f"{d}:\ns_sub_u32 s88, s88, 1\ns_cbranch_scc0 {l}\ns_branch L_exit")
    def flush(self):
        for st in self.stubs: self.a(st)
        self.stubs = []
    def shint(self, n, base="s[64:65]"):
        a = self.a
        l = self.lab("SH"); d = self.lab("SD")
        a(f"{l}:\ns_sub_u32 s88, s88, 1\ns_cbranch_scc1 L_exit")
        if n == 8:
            a(f"s_load_dwordx8 s[72:79], {base}, 0 glc\ns_waitcnt lgkmcnt(0)")
            regs = [72, 74, 76, 78]
        elif n == 16:
            a(f"s_load_dwordx8 s[72:79], {base}, 0 glc\ns_load_dwordx8 s[80:87], {base}, 128 glc\ns_waitcnt lgkmcnt(0)")
            for k in range(4): a(f"s_xor_b64 s[{80+2*k}:{81+2*k}], s[{80+2*k}:{81+2*k}], s[{72+2*k}:{73+2*k}]")
            a("s_or_b64 s[80:81], s[80:81], s[82:83]\ns_or_b64 s[84:85], s[84:85], s[86:87]\ns_or_b64 s[80:81], s[80:81], s[84:85]")
            a(f"s_cbranch_scc1 {l}")
            regs = [72, 74, 76, 78]
        else:
            a(f"s_load_dwordx16 s[72:87], {base}, 0 glc\ns_load_dwordx16 s[28:43], {base}, 64 glc\ns_waitcnt lgkmcnt(0)")
            regs = list(range(72, 88, 2)) + list(range(28, 44, 2))
        for r in regs:
            a(f"s_cmp_lg_u64 s[{r}:{r+1}], s[70:71]\ns_cbranch_scc1 {l}")

    def phint(self, n, base="s[64:65]"):
        a = self.a; l = self.lab("PH"); step = 256 if n == 16 else 128
        def ld():
            a(f"s_load_dwordx8 s[72:79], {base}, s89 glc")
            if n == 16: a(f"s_load_dwordx8 s[80:87], s[68:69], s89 glc")
        if n == 16: a("s_add_u32 s68, s64, 128\ns_addc_u32 s69, s65, 0")
        a("s_mov_b32 s89, 0"); ld(); a("s_waitcnt lgkmcnt(0)")
        a(f"{l}:\ns_sub_u32 s88, s88, 1\ns_cbranch_scc1 L_exit\ns_add_u32 s89, s89, {step}\ns_and_b32 s89, s89, {4*step-1}")
        ld()
        if self.ps == 0: a("s_waitcnt lgkmcnt(0)")
        else:
            a(f"s_sleep {self.ps}")
        for r in range(72, 72 + n, 2):
            a(f"s_cmp_lg_u64 s[{r}:{r+1}], s[70:71]\ns_cbranch_scc1 {l}")

    def build(self):
        a, c = self.a, self.c
        W = self.W; nt = (" " + self.nt) if self.nt else ""; ntw = (" " + self.ntw) if self.ntw else ""
        self.L.append(HEADER + f"; @launch grid=(256,1,1) block=(576,1,1) lds={LDS_TOTAL}")
        self.L.append('.amdgcn_target "amdgcn-amd-amdhsa--gfx950"\n.text')
        self.L.append(f".globl {NAME}_kernel\n.p2align 12\n.fill 832, 4, 0xbf810000\n.p2align 8\n.type {NAME}_kernel,@function\n{NAME}_kernel:")
        if self.prof: a("s_memrealtime s[92:93]")
        if self.dly: a("s_mov_b32 s94, 0"); self.stamp(0)
        a("s_cmp_ge_u32 s2, 256\ns_cbranch_scc1 L_end")
        a(f"""v_lshrrev_b32 v1, 6, v0
        v_and_b32 v0, 63, v0
        v_readfirstlane_b32 s3, v1
        v_mov_b32 v8, 0
        v_mov_b32 v9, 0
        v_lshlrev_b32 v10, 3, v0
        s_cmp_eq_u32 s3, 7
        s_cbranch_scc0 L_noinit
        ds_write_b64 v10, v[8:9] offset:{ZR}
        ds_write_b64 v10, v[8:9] offset:{FL}
        s_waitcnt lgkmcnt(0)
        L_noinit:""")
        self.srd(12, 24, 448*8192)
        self.srd(4, 8, 0x4000000)
        self.srd(8, 16, 0x4000000)
        self.srd(16, 96, 0x300000)
        self.srd(20, 0, 3584)
        c("instruction-cache warm-up: waves 5..7 hop through the code with EXEC=0")
        b0 = 'bar1' not in self.skip
        a(f"""{'s_barrier' if b0 else ''}
        s_sub_u32 s52, s3, 5
        s_cmp_lt_u32 s52, 3
        s_cbranch_scc0 L_warmdone
        s_cmp_eq_u32 s3, 5
        s_cbranch_scc0 L_warm2
        s_getpc_b64 s[24:25]
        L_pc:
        s_mov_b32 s26, L_end-L_pc
        s_mov_b32 s27, 0x20000
        v_lshlrev_b32 v8, 7, v0
        s_movk_i32 s52, 0x2000
        {'' if 'nocpf' in self.skip else 'buffer_load_dword v165, v8, s[24:27], 0 offen'}
        {'' if 'nocpf' in self.skip else 'buffer_load_dword v165, v8, s[24:27], s52 offen'}
        {'' if b0 else 's_barrier'}
        s_mov_b64 exec, 0
        s_branch PADCHAIN_0
        L_warm2:
        {'' if b0 else 's_barrier'}
        s_mov_b64 exec, 0
        s_cmp_eq_u32 s3, 6
        s_cbranch_scc1 PADCHAIN_1
        s_branch PADCHAIN_2""")
        a("L_warmdone:\ns_mov_b64 exec, -1\ns_mov_b32 s88, 0x80000")
        a("s_and_b32 s48, s2, 7\ns_lshr_b32 s49, s2, 3")
        c("v5 = swizzled 16B chunk offset inside a 128B row; v6 = row (l>>3); v7 = g4")
        a("""v_and_b32 v5, 7, v0
        v_lshrrev_b32 v7, 4, v0
        v_lshlrev_b32 v5, 4, v5
        v_lshlrev_b32 v6, 5, v7
        v_xor_b32 v5, v5, v6
        v_lshrrev_b32 v6, 3, v0
        s_and_b32 s50, s3, 3""")
        a(f"v_mov_b32 v3, {FL}\ns_lshl_b32 s51, s50, 2\nv_add_u32 v2, s51, v3\nv_mov_b32 v4, 1")
        if self.prof: a("v_mov_b32 v167, 0")
        if 'sa' in self.skip: a("s_waitcnt lgkmcnt(0)\ns_cmp_ge_u32 s3, 4\ns_cbranch_scc1 L_exit")
        a("s_cmp_lt_u32 s3, 4\ns_cbranch_scc1 L_lwave\ns_cmp_eq_u32 s3, 8\ns_cbranch_scc1 L_ahead\ns_cmp_eq_u32 s3, 4\ns_cbranch_scc0 L_swave\n" + ('' if b0 else 's_barrier\n') + "s_branch L_shead\nL_ahead:")
        self.ahead()
        self.lwave()
        if 'nosplit' not in self.skip: self.L = self.Lmain
        self.swave_head()
        self.awave(); self.flush()
        if 'nosplit' not in self.skip: self.L += self.Lpv
        self.swave()
        self.role_wo(); self.flush()
        self.role_mlp(); self.flush()
        mark = len(self.L)
        self.role_fin()
        tail = self.L[mark:]; del self.L[mark:]
        self.flush(); self.L += tail
        a("L_exit:")
        if self.dly:
            if self.dly[0] in "ELAS": a("s_cmp_lt_u32 s2, 224\ns_cbranch_scc1 L_end")
            if self.dx >= 0: a(f"s_and_b32 s90, s2, 7\ns_cmp_lg_u32 s90, {self.dx}\ns_cbranch_scc1 L_end")
            a("""s_cmp_eq_u32 s94, 0
            s_cbranch_scc1 L_end
            L_dly:
            s_memrealtime s[90:91]
            s_waitcnt lgkmcnt(0)
            s_sub_u32 s90, s90, s92
            s_cmp_lt_u32 s90, 3000
            s_cbranch_scc1 L_dly""")
        if self.prof:
            a(f"""s_waitcnt lgkmcnt(0)
            s_mov_b64 exec, -1
            v_writelane_b32 v167, s92, 0
            s_memrealtime s[90:91]
            s_waitcnt lgkmcnt(0)
            v_writelane_b32 v167, s90, 63
            v_writelane_b32 v167, s88, 62
            s_lshl_b32 s90, s2, 4
            s_add_u32 s90, s90, s3
            s_lshl_b32 s90, s90, 8
            s_add_u32 s90, s90, {PROF}
            v_lshlrev_b32 v166, 2, v0
            buffer_store_dword v167, v166, s[16:19], s90 offen""")
        a("L_end:\ns_endpgm")
        self.L.append(f""".section .rodata,"a"
.p2align 6
.amdhsa_kernel {NAME}_kernel
  .amdhsa_next_free_vgpr 168
  .amdhsa_next_free_sgpr 96
  .amdhsa_accum_offset 168
  .amdhsa_group_segment_fixed_size 0
  .amdhsa_kernarg_size 104
  .amdhsa_user_sgpr_count 2
  .amdhsa_user_sgpr_kernarg_segment_ptr 1
  .amdhsa_system_sgpr_workgroup_id_x 1
.end_amdhsa_kernel""")
        return "\n".join(self.L) + "\n"

    def tr_addr(self, r, sbase, tmp):
        a = self.a
        a(f"""v_lshrrev_b32 v{tmp}, 2, v0
        v_lshlrev_b32 v{r}, 7, v{tmp}
        v_and_b32 v{tmp+1}, 3, v0
        v_lshl_add_u32 v{r}, v{tmp+1}, 3, v{r}
        v_bfe_u32 v{tmp}, v0, 3, 2
        v_lshl_add_u32 v{r}, v{tmp}, 5, v{r}
        v_add_u32 v{r}, {sbase}, v{r}
        v_xor_b32 v{r+1}, 32, v{r}
        v_xor_b32 v{r+2}, 64, v{r}
        v_xor_b32 v{r+3}, 0x60, v{r}""")

    def lwave(self):
        self.cur = 'L'
        a, c = self.a, self.c; W = self.W; nt = (" " + self.nt) if self.nt else ""
        c("================= L-wave: stream wq tile, K, V into LDS; PV =================")
        a("L_lwave:")
        a(f"""v_lshl_add_u32 v10, v6, 13, v5
        v_lshl_add_u32 v11, v6, 9, v5
        v_lshrrev_b32 v12, 5, v0
        v_xor_b32 v12, v12, v0
        v_lshlrev_b32 v12, 4, v12
        s_lshl_b32 s57, s50, 5
        v_xor_b32 v12, s57, v12
        v_xor_b32 v13, 0x80, v12
        s_lshr_b32 s52, s49, 3
        s_lshl_b32 s52, s52, 2
        s_add_u32 s52, s52, s50
        s_lshl_b32 s52, s52, 18
        s_lshl_b32 s53, s48, 10
        s_add_u32 s52, s52, s53
        s_and_b32 s53, s49, 7
        s_lshl_b32 s53, s53, 7
        s_add_u32 s52, s52, s53
        s_and_b32 s53, s2, 31
        s_lshl_b32 s53, s53, 21
        s_lshr_b32 s54, s2, 5
        s_lshl_b32 s54, s54, 16
        s_add_u32 s53, s53, s54
        s_add_u32 s53, s53, {3072*512}
        s_lshl_b32 s55, s50, 14
        s_lshl_b32 s58, s50, 10
        s_add_u32 s54, s53, s58
        {self.rot}
        s_lshl_b32 s59, s59, 12
        s_lshl_b32 s56, s50, 7
        s_add_u32 s53, s53, s56
        s_lshl_b32 s56, s50, 12
        s_add_u32 m0, s56, {WQL}
        {'s_barrier' if 'bar1' in self.skip else ''}
        s_waitcnt lgkmcnt(0)""")
        if 'wqlin' in self.skip: a("v_lshlrev_b32 v10, 4, v0\ns_mul_i32 s52, s2, 14336\ns_lshl_b32 s57, s50, 10\ns_add_u32 s52, s52, s57")
        if 'nowq' in self.skip: a("s_mov_b32 s52, 0x1000000")
        if 'tk' in self.skip: a("s_load_dword s61, s[4:5], s54")
        if 'tv' in self.skip: a("s_load_dword s62, s[8:9], s54")
        if 'pst' in self.skip: self.stamp(11)
        WV = self.WV
        ops = [('wq', p) for p in range(4)] + [('K', p) for p in range(16)]
        if self.ord == 1: ops = [('K', 0), ('wq', 0), ('K', 1), ('wq', 1), ('K', 2), ('wq', 2), ('K', 3), ('wq', 3)] + [('K', p) for p in range(4, 16)]
        if self.ord == 2: ops = [('K', p) for p in range(4)] + [('wq', p) for p in range(4)] + [('K', p) for p in range(4, 16)]
        if self.ord == 3: ops = [('wq', 0), ('K', 0), ('K', 1), ('wq', 1), ('K', 2), ('K', 3), ('wq', 2), ('K', 4), ('K', 5), ('wq', 3)] + [('K', p) for p in range(6, 16)]
        for p in range(17):
            for kind in ('wo', 'w1', 'w2'):
                if self.pfpos[kind] == p: ops.append(('pf', kind))
            if p < 16: ops.append(('V', p))
        pos = {o: i for i, o in enumerate(ops)}
        lastV = pos[('V', 15)]
        st = dict(landed=0)
        ntp = (" " + self.ntp) if self.ntp else ""
        for n, (kind, p) in enumerate(ops):
            if kind == 'wq':
                if self.ord: a(f"s_add_u32 m0, s56, {WQL}\ns_nop 0")
                a(f"buffer_load_dwordx4 v10, s[12:15], s52 offen offset:{p*1024}{nt} lds")
                if p < 3: a(f"s_add_u32 s52, s52, {65536-1024}")
            elif kind == 'K':
                a(f"s_add_u32 m0, s58, {KL + p*4096}\ns_and_b32 s59, s59, 0xf000\ns_add_u32 s60, s54, s59")
                a(f"buffer_load_dwordx4 v{12 + (p & 1)}, s[4:7], s60 offen{nt} lds\ns_addk_i32 s59, 0x1000")
                if p == 4:
                    c("descriptors / offsets for the weight prefetch (one dword per 128B line into L2)")
                    self.srd(28, 32, 4096*896); self.srd(32, 64, 1792*896); self.srd(36, 48, 448*3584)
                    a(f"""s_lshl_b32 s66, s48, 5
                    s_add_u32 s66, s66, s49
                    s_mul_i32 s67, s66, 6272
                    s_mul_i32 s68, s50, {13*128}
                    s_add_u32 s67, s67, s68
                    s_lshl_b32 s66, s66, 2
                    s_add_u32 s66, s66, s50
                    s_mul_i32 s66, s66, 3584
                    s_mul_i32 s68, s49, {14*3584}
                    s_mul_i32 s69, s48, 448
                    s_andn2_b32 s69, s69, 127
                    s_add_u32 s68, s68, s69
                    s_mul_i32 s69, s50, 14
                    v_add_u32 v31, s69, v0
                    v_lshrrev_b32 v16, 2, v31
                    v_mul_u32_u24 v16, 3584, v16
                    v_and_b32 v31, 3, v31
                    v_lshl_add_u32 v31, v31, 7, v16
                    v_lshlrev_b32 v30, 7, v0""")
                if p == 8: a("s_waitcnt lgkmcnt(0)")
                if p == 5 and 'tvm' in self.skip: a("s_load_dword s62, s[8:9], s54")
            elif kind == 'V':
                a(f"s_add_u32 m0, s55, {VL + p*1024}\ns_and_b32 s59, s59, 0xf000\ns_add_u32 s60, s53, s59")
                a(f"buffer_load_dwordx4 v11, s[8:11], s60 offen{nt} lds")
                if p < 15: a("s_addk_i32 s59, 0x1000")
                if p == self.tkp: self.setflag(F_V8)
            else:
                m, va, srd, so = dict(wo=(0x0fffffff, 30, 28, 66), w1=(0x3fff, 31, 36, 68), w2=(0x1fff, 30, 32, 67))[p]
                a(f"s_mov_b64 exec, {hex(m)}\nbuffer_load_dword v165, v{va}, s[{srd}:{srd+3}], s{so} offen{ntp}\ns_mov_b64 exec, -1")
            n += 1
            w = W if n < 20 else (WV if n <= lastV - self.NE else self.WE)
            if n <= lastV and n - (w - 1) > st["landed"]:
                a(f"s_waitcnt vmcnt({w-1})")
                old = st["landed"]; st["landed"] = n - (w - 1)
                if 'pst' in self.skip: self.stamp(11 + st["landed"])
                if old < pos[('wq', 3)] + 1 <= st["landed"]: self.setflag(F_WQ); self.stamp(1)
                for u in range(4):
                    if old < pos[('K', 4*u + 3)] + 1 <= st["landed"]: self.setflag(F_KL + 16*u)
                if old < 20 <= st["landed"]: self.stamp(2)
        self.setflag(F_VI); self.stamp(3)
        assert st["landed"] >= 20
        if 'nosplit' not in self.skip:
            a("s_branch L_pv")
            self.Lmain = self.L; self.L = []; self.Lpv = self.L
            a("L_pv:")
        c("PV: address prep")
        a(f"s_add_u32 s55, s55, {VL}")
        self.tr_addr(12, "s55", 16)
        a(f"""v_bfe_u32 v20, v0, 2, 1
        v_lshlrev_b32 v22, 6, v20
        v_lshl_add_u32 v22, v7, 4, v22
        v_add_u32 v22, {SP}, v22
        v_mov_b32 v21, {ZR}
        v_and_b32 v23, 11, v0""")
        for i in range(4):
            a(f"v_cmp_eq_u32 vcc, {i}, v23\ns_nop 1\nv_cndmask_b32 v{16+i}, v21, v22, vcc")
        a(f"""v_and_b32 v28, 15, v0
        v_lshlrev_b32 v28, 3, v28
        v_lshl_add_u32 v28, v7, 12, v28
        s_lshl_b32 s56, s48, 2
        s_add_u32 s56, s56, s50
        s_lshl_b32 s56, s56, 13
        s_lshr_b32 s57, s49, 4
        s_lshl_b32 s57, s57, 11
        s_add_u32 s56, s56, s57
        s_and_b32 s57, s49, 3
        s_lshl_b32 s57, s57, 9
        s_add_u32 s56, s56, s57
        s_bfe_u32 s57, s49, 0x20002
        s_lshl_b32 s57, s57, 7
        s_add_u32 s56, s56, s57
        s_add_u32 s56, s56, {OP}""")
        if 'sa' not in self.skip: self.waitflag(F_P)
        a("v_readfirstlane_b32 s57, v8")
        self.stamp(4)
        for ks in range(4):
            for i in range(4):
                r = 64 + (ks*4 + i)*4
                a(f"ds_read_b128 v[{r}:{r+3}], v{16+i} offset:{ks*128}")
        for ks in range(4):
            for half in range(2):
                rem = len(ops) - 1 - pos[('V', 4*ks + 2*half + 1)]
                if rem < len(ops) - st['landed']: a(f"s_waitcnt vmcnt({rem})")
                if ks == 3 and half == 1: self.stamp(5)
                for i in range(4):
                    r = 32 + (ks & 1)*16 + i*4 + half*2
                    a(f"ds_read_b64_tr_b16 v[{r}:{r+1}], v{12+i} offset:{ks*4096 + half*2048}")
            for i in range(4):
                a(f"s_waitcnt lgkmcnt({3-i})")
                rb = 32 + (ks & 1)*16 + i*4; ra = 64 + (ks*4 + i)*4
                cin = "0" if (ks == 0 and i == 0) else "v[128:131]"
                a(f"v_mfma_f32_16x16x32_bf16 v[128:131], v[{ra}:{ra+3}], v[{rb}:{rb+3}], {cin}")
        a("""s_mov_b32 exec_hi, 0
        s_cmp_eq_u32 s57, 1
        s_nop 5
        v_cvt_pk_bf16_f32 v24, v128, v129
        v_cvt_pk_bf16_f32 v25, v130, v131
        v_min_u32 v24, -2, v24
        s_cbranch_scc0 L_oglob
        buffer_store_dwordx2 v[24:25], v28, s[16:19], s56 offen
        L_odone:
        s_mov_b32 exec_hi, -1""")
        self.setflag(F_PV)
        self.stamp(6)
        for p in ('wo', 'w1', 'w2'):
            if self.pfpos[p] == 17:
                m, va, srd, so = dict(wo=(0x0fffffff, 30, 28, 66), w1=(0x3fff, 31, 36, 68), w2=(0x1fff, 30, 32, 67))[p]
                a(f"s_mov_b64 exec, {hex(m)}\nbuffer_load_dword v165, v{va}, s[{srd}:{srd+3}], s{so} offen{ntp}\ns_mov_b64 exec, -1")
        if self.tkp < 0: a("s_cmp_ge_u32 s49, 14\ns_cbranch_scc1 L_exit\ns_barrier")
        a("s_branch L_exit")
        a("L_oglob:\nbuffer_store_dwordx2 v[24:25], v28, s[16:19], s56 offen sc1\ns_branch L_odone")

    def swave_head(self):
        a, c = self.a, self.c
        c("================= S-wave head: clears / code prefetch =================")
        a("L_shead:")
        if 'touch' in self.skip:
            c("touch every page used later (address-translation warm-up) through the scalar path")
            a(f"""s_load_dwordx2 s[28:29], s[0:1], 32
            s_load_dwordx8 s[32:39], s[0:1], 48
            s_load_dwordx2 s[40:41], s[0:1], 80
            s_and_b32 s56, s2, 31
            s_lshl_b32 s56, s56, 21
            s_add_u32 s56, s56, {3072*512}
            s_mul_i32 s57, s48, {512*896}
            s_add_u32 s58, s57, {512*896-64}
            s_mov_b32 s59, {448*3584-64}
            s_waitcnt lgkmcnt(0)
            s_load_dword s60, s[8:9], s56
            s_load_dword s61, s[28:29], s57
            s_load_dword s62, s[28:29], s58
            s_load_dword s63, s[32:33], 0
            s_load_dword s64, s[32:33], s59
            s_load_dword s65, s[34:35], 0
            s_load_dword s66, s[36:37], 0
            s_load_dword s67, s[36:37], s59
            s_load_dword s68, s[38:39], 0
            s_load_dword s69, s[40:41], 0""")
        a(f"""v_mov_b32 v8, -1
        v_mov_b32 v9, -1
        v_mov_b32 v10, -1
        v_mov_b32 v11, -1
        v_mov_b32 v12, 0
        v_mov_b32 v13, 0
        v_lshlrev_b32 v15, 3, v0
        s_lshl_b32 s52, s48, 5
        s_add_u32 s52, s52, s49
        s_lshl_b32 s52, s52, 10
        s_add_u32 s52, s52, {OP}
        v_lshlrev_b32 v14, 4, v0
        s_lshl_b32 s53, s48, 2
        s_and_b32 s54, s49, 3
        s_add_u32 s53, s53, s54
        s_lshl_b32 s53, s53, 10
        s_lshr_b32 s54, s2, 5
        s_lshl_b32 s54, s54, 7
        s_add_u32 s53, s53, s54
        s_add_u32 s53, s53, {STAT}
        s_lshr_b32 s55, s2, 1
        s_lshl_b32 s55, s55, {HS}
        s_and_b32 s56, s2, 1
        s_lshl_b32 s56, s56, 6
        s_add_u32 s55, s55, s56
        s_add_u32 s55, s55, {HACC}
        {'s_waitcnt lgkmcnt(0)' if 'touch' not in self.skip else ''}
        {'s_branch L_nopart' if 'clr' in self.skip else ''}
        buffer_store_dwordx4 v[8:11], v14, s[16:19], s52 offen sc1
        s_mov_b64 exec, 0xff
        buffer_store_dwordx2 v[12:13], v15, s[16:19], s55 offen sc1
        s_mov_b64 exec, 3
        buffer_store_dwordx2 v[8:9], v15, s[16:19], s53 offen sc1
        s_cmp_lg_u32 s49, 0
        s_cbranch_scc1 L_notk
        s_lshl_b32 s55, s48, 7
        s_add_u32 s55, s55, {TK}
        buffer_store_dwordx2 v[12:13], v15, s[16:19], s55 offen sc1
        L_notk:
        s_mov_b64 exec, -1
        s_sub_u32 s54, s49, 21
        s_cmp_lt_u32 s54, 7
        s_cbranch_scc0 L_nopart
        s_mul_i32 s55, s48, 7
        s_add_u32 s55, s55, s54
        s_lshl_b32 s55, s55, 7
        s_add_u32 s55, s55, {PART}
        v_mul_u32_u24 v14, 7168, v6
        v_and_b32 v16, 7, v0
        v_lshl_add_u32 v14, v16, 4, v14""")
        for i in range(7):
            a(f"buffer_store_dwordx4 v[8:11], v14, s[16:19], s55 offen sc1")
            if i < 6: a(f"s_add_u32 s55, s55, {8*7168}")
        if 'clrall' not in self.skip:
            c("q may be published once the group-level clears are done; the PART clear only has to precede this workgroup's scores")
            a("s_waitcnt vmcnt(7)")
            self.setflag(F_CLR, "v3")
        a("L_nopart:\ns_waitcnt vmcnt(0)")
        self.setflag(F_CLR, "v3")
        if 'nowarmop' not in self.skip:
            c("pull the freshly cleared lines into this XCD's L2 so that later polls hit")
            a("v_lshlrev_b32 v14, 7, v0\ns_mov_b64 exec, 0xff\nbuffer_load_dword v165, v14, s[16:19], s52 offen sc1\ns_mov_b64 exec, 1\nbuffer_load_dword v165, v14, s[16:19], s53 offen sc1\ns_mov_b64 exec, -1")
        a("s_waitcnt lgkmcnt(0)\ns_branch L_swave")

    def dpp_allred16(self, op, regs):
        for rot in (8, 4, 2, 1):
            for r in regs:
                self.a(f"{op}_dpp v{r}, v{r}, v{r} row_ror:{rot} row_mask:0xf bank_mask:0xf")
            self.a("s_nop %d" % max(0, 2 - len(regs)))

    def ahead(self):
        a, c = self.a, self.c
        c("A-wave head: x loads first")
        a(f"""{'' if 'noprio' in self.skip else 's_setprio 3'}
        v_and_b32 v12, 15, v0
        v_mul_u32_u24 v13, 896, v7
        v_lshl_add_u32 v14, v12, 3, v13
        v_lshl_add_u32 v13, v12, 4, v13
        s_lshr_b32 s52, s49, 3
        s_lshl_b32 s53, s52, 8
        s_mov_b32 s54, {EPO}
        {'s_barrier' if 'bar1' in self.skip else ''}
        s_waitcnt lgkmcnt(0)
        {'s_load_dword s56, s[20:21], 0' if 'xtouch' in self.skip else ''}
        {'s_load_dword s57, s[16:17], s54' if 'xtouch' in self.skip else ''}
        {'s_sleep 1' if 'x1' in self.skip else ''}
        {'s_sleep 3' if 'x3' in self.skip else ''}
        {'s_waitcnt lgkmcnt(0)' if 'xwait' in self.skip else ''}
        buffer_load_dwordx4 v[16:19], v13, s[20:23], 0 offen
        buffer_load_dwordx4 v[20:23], v13, s[20:23], 0 offen offset:256
        buffer_load_dwordx4 v[24:27], v13, s[20:23], 0 offen offset:512
        buffer_load_dwordx2 v[28:29], v14, s[20:23], 0 offen offset:768
        buffer_load_dwordx4 v[30:33], v13, s[20:23], s53 offen
        {'s_barrier' if 'abar1' in self.skip else ''}
        buffer_load_dword v110, v8, s[16:19], s54 offen sc1
        s_branch L_awave""")

    def awave(self):
        self.cur = 'A'
        a, c = self.a, self.c
        c("================= A-wave: LN1, q partial, q gather, softmax, stats =================")
        a("L_awave:")
        a(f"s_mov_b32 s54, {WQL}")
        self.tr_addr(100, "s54", 104)
        a(f"""v_bfe_u32 v104, v0, 2, 2
        v_lshlrev_b32 v104, 8, v104
        v_lshl_add_u32 v104, v7, 3, v104
        v_add_u32 v104, {XN}, v104
        v_lshlrev_b32 v106, 14, v7
        v_lshl_add_u32 v106, v12, 4, v106
        v_lshlrev_b32 v108, 4, v0
        s_mov_b32 s60, 0xffff0000
        v_mov_b32 v109, 0x3f803f80
        s_waitcnt vmcnt(1)""")
        self.stamp(1)
        c("row sums and sums of squares (16 lanes per batch row), own 8 values -> v64..71")
        for i in range(14):
            a(f"v_dot2_f32_bf16 v72, v{16+i}, v109, {'0' if i == 0 else 'v72'}\nv_dot2_f32_bf16 v73, v{16+i}, v{16+i}, {'0' if i == 0 else 'v73'}")
        for i in range(4):
            a(f"v_lshlrev_b32 v{64+2*i}, 16, v{30+i}\nv_and_b32 v{65+2*i}, s60, v{30+i}")
        self.dpp_allred16("v_add_f32", [72, 73])
        a(f"""v_mul_f32 v72, {hex(f2u(1/448))}, v72
        v_mul_f32 v73, {hex(f2u(1/448))}, v73
        v_fma_f32 v73, -v72, v72, v73
        v_max_f32 v73, 0, v73
        v_cvt_pk_bf16_f32 v74, v72, v73
        v_lshlrev_b32 v72, 16, v74
        v_and_b32 v73, s60, v74
        v_add_f32 v73, {hex(f2u(1e-5))}, v73
        v_cvt_pk_bf16_f32 v73, v73, v73
        v_and_b32 v73, s60, v73
        v_sqrt_f32 v73, v73
        s_nop 0
        v_cvt_pk_bf16_f32 v73, v73, v73
        v_and_b32 v73, s60, v73
        v_rcp_f32 v73, v73""")
        for i in range(4):
            a(f"""v_sub_f32 v{64+2*i}, v{64+2*i}, v72
            v_sub_f32 v{65+2*i}, v{65+2*i}, v72
            v_cvt_pk_bf16_f32 v74, v{64+2*i}, v{65+2*i}
            v_lshlrev_b32 v75, 16, v74
            v_and_b32 v76, s60, v74
            v_mul_f32 v75, v75, v73
            v_mul_f32 v76, v76, v73
            v_cvt_pk_bf16_f32 v{30+i}, v75, v76""")
        a(f"ds_write_b128 v108, v[30:33] offset:{XN}")
        for ks in range(4):
            a(f"ds_read2_b64 v[{16+4*ks}:{19+4*ks}], v104 offset0:{ks*8} offset1:{ks*8+4}")
        self.stamp(2)
        self.waitflag(F_WQ, n=4, t="v96", sleep=False)
        self.stamp(3)
        for ks in range(4):
            for i in range(4):
                for half in range(2):
                    r = 32 + (ks*4 + i)*4 + half*2
                    a(f"ds_read_b64_tr_b16 v[{r}:{r+1}], v{100+i} offset:{ks*4096 + half*2048}")
            if ks & 1:
                a("s_waitcnt lgkmcnt(0)")
                for k2 in (ks-1, ks):
                    for i in range(4):
                        r = 32 + (k2*4 + i)*4; d = 112 + 4*i
                        cin = "0" if k2 == 0 else f"v[{d}:{d+3}]"
                        a(f"v_mfma_f32_16x16x32_bf16 v[{d}:{d+3}], v[{16+4*k2}:{19+4*k2}], v[{r}:{r+3}], {cin}")
        self.waitflag(F_CLR)
        self.stamp(4)
        a(f"""s_waitcnt vmcnt(0)
        v_add_u32 v110, 1, v110
        s_getreg_b32 s62, hwreg(HW_REG_XCC_ID, 0, 4)
        ds_write_b32 v3, v110 offset:{F_TAG}
        s_mov_b32 s58, 0xaaaaaaaa
        s_mov_b32 s59, 0xaaaaaaaa
        v_lshrrev_b32 v125, 4, v110
        v_lshrrev_b32 v126, 8, v110
        v_lshrrev_b32 v127, 16, v110
        v_cndmask_b32 v126, v126, v127, s[58:59]
        v_lshrrev_b32 v127, 12, v110
        v_mov_b32 v113, s62
        v_cndmask_b32 v127, v127, v113, s[58:59]
        v_add_u32 v112, 8, v112
        v_add_u32 v113, 8, v116
        v_add_u32 v114, 8, v120
        v_add_u32 v115, 8, v124
        v_bfi_b32 v112, 15, v110, v112
        v_bfi_b32 v113, 15, v125, v113
        v_bfi_b32 v114, 15, v126, v114
        v_bfi_b32 v115, 15, v127, v115
        s_lshl_b32 s53, s52, 16
        s_lshl_b32 s54, s48, 11
        s_add_u32 s53, s53, s54
        s_and_b32 s55, s49, 7
        s_lshl_b32 s55, s55, 8
        s_add_u32 s53, s53, s55
        s_add_u32 s55, s53, {QPL}
        {'' if 'noqloc' in self.skip else 'buffer_store_dwordx4 v[112:115], v106, s[16:19], s55 offen'}
        {'' if 'qx' in self.skip else 'buffer_store_dwordx4 v[112:115], v106, s[16:19], s53 offen sc1'}
        s_and_b32 s55, s49, 3
        s_lshl_b32 s55, s55, 14
        s_add_u32 s54, s54, s55
        s_add_u32 s55, s54, 0x10000
        s_add_u32 s56, s54, 0x20000
        s_add_u32 s57, s54, 0x30000""")
        if self.qg < 0:
            a(f"s_waitcnt vmcnt({1 if self.qg == -2 else 0})")
            if self.qd: a(f"s_sleep {self.qd}")
        else:
            c("gather once K is well under way: every member of the group has published by then")
            self.waitflag(F_KL + 16*self.qg)
        self.stamp(9)
        c("q gather")
        tg = [110, 125, 126, 127]
        if 'qx' in self.skip: a("s_branch L_qgskip")
        if 'noqloc' not in self.skip:
            c("first attempts read the L2-resident copy (complete only if the whole group sits on this XCD), then the write-through copy")
            a(f"v_add_u32 v108, {QPL}, v108\ns_mov_b32 s63, 3")
        a("L_qg:")
        if 'noqloc' not in self.skip:
            a(f"s_sub_u32 s63, s63, 1\ns_cbranch_scc0 L_qg2\nv_lshlrev_b32 v108, 4, v0\nL_qg2:")
        for rg in range(4):
            for z in range(2):
                r = 16 + (rg*2 + z)*4
                a(f"buffer_load_dwordx4 v[{r}:{r+3}], v108, s[16:19], s{54+rg} offen offset:{z*1024} sc1")
        a(f"s_waitcnt vmcnt(0)\nv_xor_b32 v8, v16, v110\nv_xor_b32 v119, v19, v127")
        for k in range(1, 32):
            if k == 3: continue
            d = 119 if (k & 3) == 3 else 8
            a(f"v_bitop3_b32 v{d}, v{d}, v{16+k}, v{tg[k & 3]} bitop3:0xf6")
        a("v_cndmask_b32 v9, v119, 0, s[58:59]\nv_or_b32 v8, v8, v9\nv_and_b32 v8, 15, v8\nv_cmp_ne_u32 vcc, 0, v8")
        self.retry("L_qg")
        a("L_qgskip:")
        for k in range(32): a(f"v_and_b32 v{16+k}, -16, v{16+k}")
        for k in range(8):
            a(f"v_add_f32 v{80+k}, v{16+k}, v{24+k}\nv_add_f32 v{88+k}, v{32+k}, v{40+k}")
        self.stamp(5)
        for k in range(8):
            a(f"v_add_f32 v{80+k}, v{80+k}, v{88+k}")
        a(f"v_lshlrev_b32 v9, 7, v7\nv_lshl_add_u32 v9, v12, 1, v9")
        for k in range(4):
            a(f"v_cvt_pk_bf16_f32 v{88+k}, v{80+2*k}, v{81+2*k}")
        for k in range(4):
            z = k >> 1; i = (k & 1)*2
            a(f"ds_write_b16 v9, v{88+k} offset:{QB + z*512 + i*32}\nds_write_b16_d16_hi v9, v{88+k} offset:{QB + z*512 + i*32 + 32}")
        self.setflag(F_Q, "v3")
        a(f"v_and_b32 v119, 15, v119\nv_cmp_ne_u32 vcc, 0, v119\ns_cmp_eq_u64 vcc, 0\ns_cselect_b32 s62, {2 if 'noloc' in self.skip else 1}, 2\nv_mov_b32 v119, s62")
        a(f"""s_cmp_lg_u32 s49, 31
        s_cbranch_scc1 L_nogr
        s_lshl_b32 s53, s48, 2
        s_add_u32 s53, s53, {GR}
        s_mov_b64 exec, 1
        buffer_store_dword v110, v10, s[16:19], s53 offen sc1
        s_mov_b64 exec, -1
        L_nogr:""")
        c("softmax over the 128 local keys, 2 heads")
        a(f"""s_lshl_b32 s53, s48, 2
        s_and_b32 s54, s49, 3
        s_add_u32 s53, s53, s54
        s_lshl_b32 s53, s53, 10
        s_add_u32 s53, s53, {STAT}
        s_lshr_b32 s54, s2, 5
        s_lshl_b32 s54, s54, 7
        s_add_u32 s54, s54, s53
        s_mov_b32 s61, {hex(f2u(1.4426950408889634/16))}
        v_and_b32 v30, 8, v0
        """)
        self.waitflag(F_S, n=4, t="v96", sleep=False)
        self.stamp(6)
        a(f"""ds_read_b64 v[16:17], v10 offset:{SP}
        s_waitcnt lgkmcnt(0)
        v_lshlrev_b32 v18, 16, v16
        v_and_b32 v19, s60, v16
        v_lshlrev_b32 v20, 16, v17
        v_and_b32 v21, s60, v17
        v_max_f32 v22, v18, v19
        v_max3_f32 v22, v22, v20, v21""")
        def red8x4(op, r, t):
            a(f"""s_nop 1
            {op}_dpp v{r}, v{r}, v{r} quad_perm:[1,0,3,2] row_mask:0xf bank_mask:0xf
            s_nop 1
            {op}_dpp v{r}, v{r}, v{r} quad_perm:[2,3,0,1] row_mask:0xf bank_mask:0xf
            s_nop 1
            {op}_dpp v{r}, v{r}, v{r} row_half_mirror row_mask:0xf bank_mask:0xf
            v_mov_b32 v{t}, v{r}
            s_nop 1
            v_permlane16_swap_b32 v{r}, v{t}
            {op} v{r}, v{r}, v{t}
            v_mov_b32 v{t}, v{r}
            s_nop 1
            v_permlane32_swap_b32 v{r}, v{t}
            {op} v{r}, v{r}, v{t}""")
        red8x4("v_max_f32", 22, 24)
        for k in range(4):
            a(f"v_sub_f32 v{18+k}, v{18+k}, v22\nv_mul_f32 v{18+k}, s61, v{18+k}\nv_exp_f32 v{18+k}, v{18+k}")
        a(f"""s_nop 0
        v_cvt_pk_bf16_f32 v16, v18, v19
        v_cvt_pk_bf16_f32 v17, v20, v21
        ds_write_b64 v10, v[16:17] offset:{SP}""")
        a(f"ds_write_b32 v3, v119 offset:{F_P}")
        a("v_add_f32 v23, v18, v19\nv_add_f32 v24, v20, v21\nv_add_f32 v23, v23, v24")
        red8x4("v_add_f32", 23, 24)
        a(f"""v_min_u32 v23, -2, v23
        s_mov_b64 exec, 0x180
        s_cmp_eq_u32 s62, 1
        s_cbranch_scc1 L_sloc
        buffer_store_dwordx2 v[22:23], v30, s[16:19], s54 offen sc1
        s_branch L_exit
        L_sloc:
        buffer_store_dwordx2 v[22:23], v30, s[16:19], s54 offen
        """)
        self.stamp(7)
        a("s_branch L_exit")

    def swave(self):
        self.cur = 'S'
        a, c = self.a, self.c
        c("================= S-wave: scores =================")
        a("L_swave:")
        a(f"""v_and_b32 v12, 15, v0
        v_xor_b32 v13, v7, v12
        v_lshlrev_b32 v13, 4, v13
        v_lshl_add_u32 v13, v12, 9, v13
        s_lshl_b32 s55, s50, 14
        s_add_u32 s55, s55, {KL}
        v_add_u32 v13, s55, v13
        v_xor_b32 v14, 64, v13
        v_xor_b32 v15, 0x80, v13
        v_xor_b32 v16, 0xc0, v13
        v_and_b32 v17, 1, v0
        v_lshlrev_b32 v18, 9, v17
        v_lshl_add_u32 v18, v7, 4, v18
        v_lshlrev_b32 v17, 6, v17
        v_lshl_add_u32 v17, v7, 4, v17
        s_lshl_b32 s56, s50, 7
        v_add_u32 v17, s56, v17""")
        c("weights prefetch addresses: u=0,1 wo ; u=2 w2 ; u=3 w1")
        self.srd(28, 32, 4096*896)
        self.srd(32, 64, 1792*896)
        self.srd(36, 48, 448*3584)
        self.srd(40, 56, 3584)
        if 'notouch2' not in self.skip:
            a("s_cmp_lg_u32 s50, 1\ns_cbranch_scc1 L_notouch\ns_cmp_lg_u32 s49, 30\ns_cbranch_scc1 L_notouch")
            a("s_load_dwordx4 s[72:75], s[0:1], 72")
            self.waitflag(F_KL, "v2")
            a(f"""s_load_dword s62, s[32:33], 0
            s_load_dword s64, s[40:41], 0
            s_load_dword s60, s[72:73], 0
            s_load_dword s61, s[74:75], 0
            L_notouch:""")
        a("s_lshl_b32 s56, s50, 4\nv_add_u32 v19, s56, v3")
        self.waitflag(F_KL, "v19", n=4)
        self.stamp(1)
        for ks in range(8):
            for T in range(2):
                r = 64 + (T*8 + ks)*4
                a(f"ds_read_b128 v[{r}:{r+3}], v{13 + (ks & 3)} offset:{(ks >> 2)*256 + T*8192}")
        if self.tkp == 100:
            a(f"""s_cmp_lg_u32 s50, 0
            s_cbranch_scc1 L_tki""")
            self.waitflag(F_Q)
            a(f"""s_lshl_b32 s56, s48, 7
            s_add_u32 s56, s56, {TK}
            v_mov_b32 v163, 1
            v_mov_b32 v9, 0
            s_mov_b64 exec, 1
            buffer_atomic_add v163, v9, s[16:19], s56 offen sc0 sc1
            s_mov_b64 exec, -1
            L_tki:""")
        self.waitflag(F_Q, sleep=False)
        self.stamp(2)
        a(f"ds_read_b32 v164, v3 offset:{F_TAG}")
        for ks in range(8):
            a(f"ds_read_b128 v[{32+4*ks}:{35+4*ks}], v18 offset:{QB + ks*64}")
        for ks in range(8):
            a(f"s_waitcnt lgkmcnt({7-ks})")
            for T in range(2):
                r = 64 + (T*8 + ks)*4; d = 20 + 4*T
                cin = "0" if ks == 0 else f"v[{d}:{d+3}]"
                a(f"v_mfma_f32_16x16x32_bf16 v[{d}:{d+3}], v[{r}:{r+3}], v[{32+4*ks}:{35+4*ks}], {cin}")
        a("s_nop 7")
        for k in range(4):
            a(f"v_cvt_pk_bf16_f32 v{28+k}, v{20+2*k}, v{21+2*k}")
        a(f"""s_mov_b32 exec_lo, 0x00030003
        s_mov_b32 exec_hi, 0x00030003
        ds_write_b128 v17, v[28:31] offset:{SP}
        s_mov_b64 exec, -1""")
        self.setflag(F_S)
        self.stamp(3)
        if 'roles' in self.skip: a("s_branch L_exit")
        c("role-independent part of the WO setup (hidden behind the ticket round trip)")
        a(f"""s_lshr_b32 s68, s50, 1
        s_and_b32 s69, s50, 1
        s_lshl_b32 s54, s48, 1
        s_add_u32 s54, s54, s68
        s_lshl_b32 s54, s54, 2
        s_add_u32 s54, s54, s69
        s_mul_i32 s54, s54, {64*896}
        v_and_b32 v20, 3, v6
        v_lshlrev_b32 v20, 4, v20
        v_lshrrev_b32 v21, 5, v0
        v_lshl_add_u32 v20, v21, 1, v20
        v_mul_u32_u24 v20, 896, v20
        v_add_u32 v20, v20, v5
        v_lshrrev_b32 v15, 1, v0
        v_lshlrev_b32 v15, 7, v15
        s_lshl_b32 s59, s48, 12
        s_lshl_b32 s56, s68, 3
        s_add_u32 s59, s59, s56
        s_add_u32 s59, s59, {STAT}""")
        if self.tkp == 100:
            a(f"""s_cmp_lg_u32 s50, 0
            s_cbranch_scc1 L_tkw
            s_mov_b64 exec, 1
            s_waitcnt vmcnt(0)
            v_add_u32 v8, 1, v163
            ds_write_b32 v3, v8 offset:{F_TK}
            s_mov_b64 exec, -1
            L_tkw:""")
            self.waitflag(F_TK, sleep=False)
            a("v_readfirstlane_b32 s49, v8\ns_nop 0\ns_sub_u32 s49, s49, 1")
            if self.prof: a("v_writelane_b32 v167, s49, 61")
        elif self.tkp >= 0:
            a("s_cmp_lg_u32 s50, 0\ns_cbranch_scc1 L_tkw")
            self.waitflag(F_V8, "v2")
            a(f"""s_lshl_b32 s56, s48, 7
            s_add_u32 s56, s56, {TK}
            v_mov_b32 v8, 1
            v_mov_b32 v9, 0
            s_mov_b64 exec, 1
            buffer_atomic_add v8, v9, s[16:19], s56 offen sc0 sc1
            s_waitcnt vmcnt(0)
            v_add_u32 v8, 1, v8
            ds_write_b32 v3, v8 offset:{F_TK}
            s_mov_b64 exec, -1
            L_tkw:""")
            self.waitflag(F_TK, sleep=False)
            a("v_readfirstlane_b32 s49, v8\ns_nop 0\ns_sub_u32 s49, s49, 1")
            if self.prof: a("v_writelane_b32 v167, s49, 61")
        a("""v_readfirstlane_b32 s70, v164
        s_cmp_lt_u32 s49, 14
        s_cbranch_scc1 L_wo
        s_mov_b32 s71, s70""")
        if self.hlp:
            if 'B' in self.hlp:
                a("s_cmp_ge_u32 s49, 28\ns_cbranch_scc1 L_exit\ns_cmp_lt_u32 s49, 21\ns_cselect_b32 s56, 7, -7\ns_add_u32 s49, s49, s56")
            elif 'C' in self.hlp:
                a("s_cmp_ge_u32 s49, 30\ns_cbranch_scc1 L_exit\ns_cmp_lt_u32 s49, 23\ns_cselect_b32 s56, 7, -9\ns_add_u32 s49, s49, s56")
            else:
                a("s_cmp_lt_u32 s49, 25\ns_cselect_b32 s56, 7, -11\ns_add_u32 s49, s49, s56")
            if self.prof: a("v_writelane_b32 v167, s49, 61")
        if 'nomlp' in self.skip: a("s_branch L_exit")
        if 'nomlpwg' in self.skip: a("s_cmp_lt_u32 s49, 21\ns_cbranch_scc1 L_exit")
        a("""s_cmp_lt_u32 s49, 21
        s_cbranch_scc1 L_mlp""")
        if self.hlp:
            c("helpers: pull this XCD's share of w1 / w2 into L2")
            ntp = (" " + self.ntp) if self.ntp else ""
            n1, n2 = (64, 56) if 'B' in self.hlp else (50, 44) if 'C' in self.hlp else (41, 36)
            a(f"""s_sub_u32 s56, s49, 21
            s_lshl_b32 s56, s56, 2
            s_add_u32 s56, s56, s50
            s_mul_i32 s57, s56, {n1}
            v_add_u32 v9, s57, v0
            v_lshrrev_b32 v10, 2, v9
            v_mul_u32_u24 v10, 3584, v10
            v_and_b32 v9, 3, v9
            v_lshl_add_u32 v14, v9, 7, v10
            s_mul_i32 s57, s48, 448
            s_andn2_b32 s57, s57, 127
            v_lshlrev_b32 v13, 7, v0
            s_mul_i32 s56, s56, {n2*128}
            s_mul_i32 s58, s48, {224*896}
            s_add_u32 s56, s56, s58""")
            if 'o' in self.hlp: self.waitflag(F_PV, "v2", sleep=False)
            else: self.waitflag(F_PV if 'p' in self.hlp else F_VI, n=4, t="v8", sleep=False)
            if '1' in self.hlp: a(f"s_mov_b32 exec_hi, {hex((1 << (n1 - 32)) - 1)}\nbuffer_load_dword v165, v14, s[36:39], s57 offen{ntp}")
            if 'x' in self.hlp:
                a("s_mov_b32 exec_hi, -1"); self.waitflag(F_PV, n=4, t="v8", sleep=False)
            if '2' in self.hlp: a(f"s_mov_b32 exec_hi, {hex((1 << (n2 - 32)) - 1)}\nbuffer_load_dword v165, v13, s[32:35], s56 offen{ntp}")
            a("s_mov_b32 exec_hi, -1")
        if 'nofin' in self.skip: a("s_branch L_exit")
        a("""s_cmp_lt_u32 s49, 28
        s_cbranch_scc0 L_exit
        s_cmp_ge_u32 s50, 2
        s_cbranch_scc1 L_fin
        s_branch L_exit""")

    def role_wo(self):
        self.cur = 'WO'
        a, c = self.a, self.c; ntw = (" " + self.ntw) if self.ntw else ""
        c("================= role WO =================")
        a("L_wo:")
        a(f"""s_cmp_ge_u32 s49, 7
        s_cselect_b32 s52, 1, 0
        s_mul_i32 s53, s52, 7
        s_sub_u32 s53, s49, s53
        s_mul_i32 s56, s52, {128*896}
        s_add_u32 s54, s54, s56
        s_lshl_b32 s56, s53, 7
        s_add_u32 s54, s54, s56""")
        self.stamp(10)
        self.waitflag(F_VI, n=4, t="v8", sleep=False)
        a("buffer_load_dwordx2 v[16:17], v15, s[16:19], s59 offen sc1")
        for p in range(8):
            rows = 4*(p & 1) + ((p >> 1) & 1) + 8*(p >> 2)
            a(f"s_add_u32 m0, s55, {p*1024}\ns_add_u32 s56, s54, {rows*896}")
            a(f"buffer_load_dwordx4 v20, s[28:31], s56 offen{ntw} lds")
        a(f"""v_lshlrev_b32 v23, 2, v0
        v_and_b32 v29, 28, v23
        s_mov_b32 s61, {GR}
        buffer_load_dword v31, v29, s[16:19], s61 offen sc1""")
        self.tr_addr(160, "s55", 21)
        a(f"""v_xor_b32 v21, v0, v6
        v_lshlrev_b32 v21, 4, v21
        v_and_b32 v22, 7, v0
        v_xor_b32 v12, v7, v22
        v_lshlrev_b32 v12, 4, v12
        v_and_b32 v22, 15, v0
        v_lshl_add_u32 v12, v22, 7, v12
        s_add_u32 s72, s55, 8192
        v_add_u32 v12, s72, v12
        v_xor_b32 v13, 64, v12
        v_and_b32 v22, 3, v0
        s_lshl_b32 s57, s48, 2
        s_lshl_b32 s56, s52, 1
        s_add_u32 s57, s57, s56
        s_add_u32 s57, s57, s69
        s_lshl_b32 s57, s57, 1
        s_add_u32 s57, s57, s68
        s_lshl_b32 s57, s57, 12
        s_add_u32 s57, s57, {OP}
        s_mov_b32 s69, {hex(f2u(1.4426950408889634/16))}
        s_lshl_b32 s56, s50, 10
        v_add_u32 v24, s56, v23
        v_add_u32 v24, {RED}, v24""")
        a(f"""v_lshrrev_b32 v25, 5, v0
        v_lshlrev_b32 v25, 8, v25
        v_bfe_u32 v26, v0, 2, 3
        v_lshl_add_u32 v25, v26, 3, v25
        v_and_b32 v26, 1, v0
        v_lshl_add_u32 v25, v26, 2, v25
        s_lshl_b32 s56, s50, 6
        s_add_u32 s56, s56, {RED}
        v_add_u32 v25, s56, v25
        v_cmp_eq_u32 vcc, 2, v22
        v_mov_b32 v26, 1.0
        s_lshl_b32 s58, s50, {HS+5}
        v_cndmask_b32 v26, 0, v26, vcc
        s_lshl_b32 s56, s53, {HS+2}
        s_add_u32 s58, s58, s56
        s_add_u32 s58, s58, {HACC}
        v_and_b32 v23, 0x7c, v23
        v_lshrrev_b32 v22, 5, v0
        v_lshl_add_u32 v23, v22, {HS}, v23
        v_mov_b32 v27, v26
        v_lshlrev_b32 v30, 10, v0
        s_lshl_b32 s60, s48, 2
        s_lshl_b32 s62, s52, 7
        s_add_u32 s60, s60, s62
        s_lshl_b32 s62, s53, 13
        s_add_u32 s60, s60, s62
        s_lshl_b32 s62, s50, 8
        s_add_u32 s60, s60, s62
        s_add_u32 s60, s60, {EW}""")
        a("s_waitcnt vmcnt(9)\nv_cmp_eq_u32 vcc, -1, v17\ns_cbranch_vccnz L_stwait\nL_stok:")
        c("combine weights w[b][h][j] = exp(m_j - M) / L")
        a("v_mov_b32 v19, v16\ns_nop 1")
        for rot in (8, 4, 2):
            a(f"v_max_f32_dpp v19, v19, v19 row_ror:{rot} row_mask:0xf bank_mask:0xf\ns_nop 1")
        a("v_sub_f32 v16, v16, v19\nv_mul_f32 v16, s69, v16\nv_exp_f32 v16, v16\ns_nop 0\nv_mul_f32 v17, v17, v16\ns_nop 1")
        for rot in (8, 4, 2):
            a(f"v_add_f32_dpp v17, v17, v17 row_ror:{rot} row_mask:0xf bank_mask:0xf\ns_nop 1")
        a("v_rcp_f32 v17, v17\ns_nop 0\nv_mul_f32 v16, v16, v17\ns_nop 1")
        for j in range(8):
            a(f"v_mov_b32_dpp v{96+j}, v16 row_newbcast:{2*j} row_mask:0xf bank_mask:0xf")
        if 'nopipe' in self.skip: a("s_waitcnt vmcnt(0)")
        else:
            a("s_mov_b32 m0, s72\ns_nop 0")
            for q in range(4): a(f"buffer_load_dwordx4 v21, s[16:19], s57 offen offset:{q*1024} sc1 lds")
            a("s_waitcnt vmcnt(5)")
        self.stamp(4)
        for z in range(2):
            for i in range(4):
                for half in range(2):
                    r = 128 + (z*4 + i)*4 + half*2
                    a(f"ds_read_b64_tr_b16 v[{r}:{r+1}], v{160+i} offset:{z*4096 + half*2048}")
        l = self.lab("OP")
        def osweep():
            for q in range(4):
                a(f"buffer_load_dwordx4 v21, s[16:19], s57 offen offset:{q*1024} sc1 lds")
        if 'nopipe' in self.skip:
            a(f"s_mov_b32 m0, s72\n{l}:\ns_nop 0"); osweep(); a("s_waitcnt vmcnt(0)")
        else:
            a(f"{l}:\ns_xor_b32 m0, m0, 0x1000\ns_nop 0"); osweep(); a("s_waitcnt vmcnt(4)")
        for z in range(2):
            for st_ in range(2):
                r = 32 + (z*2 + st_)*4
                a(f"ds_read_b128 v[{r}:{r+3}], v{12+z} offset:{st_*2048}")
        if 'nopipe' not in self.skip: a("v_xor_b32 v12, 0x1000, v12\nv_xor_b32 v13, 0x1000, v13")
        def ew(k):
            if self.ewp == k:
                a("s_mov_b64 exec, 0xff\nbuffer_store_dword v164, v30, s[16:19], s60 offen sc1\ns_mov_b64 exec, -1")
        def mf(i, z, st_):
            d = 64 + (i*2 + st_)*4; ra = 32 + (z*2 + st_)*4; rb = 128 + (z*4 + i)*4
            cin = "0" if z == 0 else f"v[{d}:{d+3}]"
            a(f"v_mfma_f32_16x16x32_bf16 v[{d}:{d+3}], v[{ra}:{ra+3}], v[{rb}:{rb+3}], {cin}")
        def fm(i, st_, r):
            d = 64 + (i*2 + st_)*4; acc = 48 + 4*i + st_
            if r == 0: a(f"v_mul_f32 v{acc}, v{d}, v{96+4*st_}")
            else: a(f"v_fmac_f32 v{acc}, v{d+r}, v{96+4*st_+r}")
        c("tile 0 starts speculatively while the sentinels are checked")
        a("s_waitcnt lgkmcnt(3)"); mf(0, 0, 0)
        a("s_waitcnt lgkmcnt(2)"); mf(0, 0, 1)
        a("v_max3_u32 v28, v32, v34, v36\ns_waitcnt lgkmcnt(1)"); mf(0, 1, 0)
        a("v_max3_u32 v14, v38, v40, v42\ns_waitcnt lgkmcnt(0)"); mf(0, 1, 1)
        a("v_max3_u32 v28, v28, v44, v46\nv_max_u32 v28, v28, v14\nv_cmp_eq_u32 vcc, -1, v28")
        mf(1, 0, 0)
        self.retry(l)
        if self.ewp in (0, 4): a("s_barrier")
        ew(0)
        self.stamp(5)
        seq = [(1, 0, 1), (1, 1, 0), (1, 1, 1)] + [(i, z, st_) for i in (2, 3) for z in range(2) for st_ in range(2)]
        fq = [(i, st_, r) for i in range(4) for r in range(4) for st_ in range(2)]
        for k, m in enumerate(seq):
            mf(*m)
            if k >= 3:
                for _ in range(2): fm(*fq.pop(0))
            if k == self.ewk: ew(4)
        a("v_add_f32 v48, v48, v49\nv_add_f32 v52, v52, v53")
        for _ in range(4): fm(*fq.pop(0))
        a("ds_write2st64_b32 v24, v48, v52 offset0:0 offset1:1")
        for _ in range(4): fm(*fq.pop(0))
        a("v_cmp_ne_u32 vcc, v31, v164\nv_add_f32 v56, v56, v57")
        while fq: fm(*fq.pop(0))
        a("v_add_f32 v60, v60, v61")
        a("ds_write2st64_b32 v24, v56, v60 offset0:2 offset1:3")
        a("s_cbranch_vccnz L_grwait\nL_grok:")
        ew(1)
        a("s_waitcnt lgkmcnt(0)\ns_barrier")
        ew(2)
        a("""ds_read2st64_b32 v[32:33], v25 offset0:0 offset1:4
        ds_read2st64_b32 v[34:35], v25 offset0:8 offset1:12
        ds_read2st64_b32 v[36:37], v25 offset0:2 offset1:6
        ds_read2st64_b32 v[38:39], v25 offset0:10 offset1:14
        s_mov_b32 exec_lo, 0x33333333
        s_mov_b32 exec_hi, 0x33333333
        s_waitcnt lgkmcnt(2)
        v_add_f32 v32, v32, v33
        v_add_f32 v34, v34, v35
        v_add_f32 v26, v32, v34
        s_waitcnt lgkmcnt(0)
        v_add_f32 v36, v36, v37
        v_add_f32 v38, v38, v39
        v_add_f32 v27, v36, v38
        s_mov_b64 exec, -1
        buffer_atomic_add_f32 v26, v23, s[16:19], s58 offen
        buffer_atomic_add_f32 v27, v23, s[16:19], s58 offen offset:%d""" % (2 << HS))
        ew(3)
        self.stamp(6)
        a("s_branch L_exit")
        a("L_grwait:\nbuffer_load_dword v31, v29, s[16:19], s61 offen sc1\ns_waitcnt vmcnt(0)\nv_cmp_ne_u32 vcc, v31, v164")
        self.retry("L_grwait")
        a("s_branch L_grok")
        a("L_stwait:\ns_sleep 1\nbuffer_load_dwordx2 v[16:17], v15, s[16:19], s59 offen sc1\ns_waitcnt vmcnt(0)\nv_cmp_eq_u32 vcc, -1, v17")
        self.retry("L_stwait")
        a("s_branch L_stok")

    def wave_sum2(self, r0, r1, s0, s1):
        a = self.a
        for ctl in ("row_shr:1", "row_shr:2", "row_shr:4", "row_shr:8"):
            a(f"v_add_f32_dpp v{r0}, v{r0}, v{r0} {ctl} row_mask:0xf bank_mask:0xf bound_ctrl:0" if False else
              f"v_add_f32_dpp v{r0}, v{r0}, v{r0} {ctl.replace('shr','ror')} row_mask:0xf bank_mask:0xf")
            a(f"v_add_f32_dpp v{r1}, v{r1}, v{r1} {ctl.replace('shr','ror')} row_mask:0xf bank_mask:0xf\ns_nop 0")
        a(f"v_add_f32_dpp v{r0}, v{r0}, v{r0} row_bcast:15 row_mask:0xa bank_mask:0xf")
        a(f"v_add_f32_dpp v{r1}, v{r1}, v{r1} row_bcast:15 row_mask:0xa bank_mask:0xf\ns_nop 0")
        a(f"v_add_f32_dpp v{r0}, v{r0}, v{r0} row_bcast:31 row_mask:0xc bank_mask:0xf")
        a(f"v_add_f32_dpp v{r1}, v{r1}, v{r1} row_bcast:31 row_mask:0xc bank_mask:0xf")
        a(f"v_readlane_b32 s{s0}, v{r0}, 63\nv_readlane_b32 s{s1}, v{r1}, 63\ns_nop 1")

    def ew_gate(self, va):
        a = self.a
        l = self.lab("EW")
        a(f"v_lshlrev_b32 v{va}, 7, v12\ns_mov_b32 s63, {EW}")
        a(f"{l}:\nbuffer_load_dword v8, v{va}, s[16:19], s63 offen sc1\ns_waitcnt vmcnt(0)\nv_cmp_ne_u32 vcc, v8, v164")
        self.retry(l)

    def role_mlp(self):
        self.cur = 'MLP'
        a, c = self.a, self.c; ntw = (" " + self.ntw) if self.ntw else ""
        c("================= role MLP =================")
        a("L_mlp:")
        a(f"""s_mul_i32 s52, s48, 7
        s_add_u32 s52, s52, s49
        s_sub_u32 s52, s52, 14
        v_and_b32 v22, 3, v0
        v_mul_u32_u24 v21, 896, v6
        v_add_u32 v21, v21, v5
        s_mul_i32 s56, s52, {32*896}
        s_lshl_b32 s57, s50, 7
        s_add_u32 s56, s56, s57
        s_add_u32 s54, s55, {VL - KL}
        v_bfe_u32 v15, v0, 2, 2
        v_lshlrev_b32 v18, 6, v15
        v_lshl_add_u32 v18, v7, 4, v18
        v_add_u32 v18, {H1L}, v18
        v_mov_b32 v19, {ZR}""")
        for i in range(4):
            a(f"v_cmp_eq_u32 vcc, {i}, v22\ns_nop 1\nv_cndmask_b32 v{24+i}, v19, v18, vcc")
        self.tr_addr(160, "s54", 8)
        a(f"""s_mul_i32 s58, s52, 7168
        s_lshl_b32 s59, s50, 10
        s_add_u32 s58, s58, s59
        s_add_u32 s58, s58, {PART}
        s_add_u32 s62, s58, 4096
        v_lshlrev_b32 v23, 4, v0
        s_cmp_ge_u32 s50, 2
        s_cbranch_scc1 L_mlp_b""")
        def w2ld(skip3=False):
            for p in range(8):
                if p == 4 and skip3: a("s_cmp_eq_u32 s50, 3\ns_cselect_b32 s56, 0x7f000000, s56")
                a(f"s_add_u32 m0, s54, {p*1024}\ns_add_u32 s53, s56, {(p & 3)*8*896 + (p >> 2)*512}")
                a(f"buffer_load_dwordx4 v21, s[32:35], s53 offen{ntw} lds")
        def w2rd():
            for qq in range(2):
                for i in range(4):
                    for half in range(2):
                        r = 120 + (qq*4 + i)*4 + half*2
                        a(f"ds_read_b64_tr_b16 v[{r}:{r+1}], v{160+i} offset:{qq*4096 + half*2048}")
        c("---- waves 0,1: w1 tile (14 pieces each), then h @ w1 (row 4b+1 of A = ones gives the column sums) ----")
        a(f"""v_lshrrev_b32 v13, 2, v0
        v_mul_u32_u24 v20, 3584, v13
        v_lshl_add_u32 v20, v22, 4, v20
        v_lshlrev_b32 v13, 6, v13
        v_lshl_add_u32 v13, v22, 3, v13
        s_lshl_b32 s57, s50, 5
        s_add_u32 s53, s57, {KL}
        v_add_u32 v13, s53, v13
        s_lshl_b32 s59, s52, 6
        s_add_u32 s57, s57, s59
        s_mul_i32 s53, s50, {14*16*3584}
        s_add_u32 s59, s59, s53
        v_lshlrev_b32 v9, 1, v12
        buffer_load_ushort v28, v9, s[40:43], s57 offen
        v_mul_u32_u24 v16, 896, v15
        v_lshl_add_u32 v16, v7, 4, v16
        v_add_u32 v16, {YL}, v16
        v_cmp_eq_u32 vcc, 1, v22
        v_mov_b32 v9, {ONL}
        v_lshlrev_b32 v17, 6, v7
        v_cndmask_b32 v16, v16, v9, vcc
        v_lshl_add_u32 v17, v15, 4, v17
        v_lshl_add_u32 v17, v22, 1, v17
        s_lshl_b32 s53, s50, 3
        s_add_u32 s53, s53, {H1L}
        v_add_u32 v17, s53, v17
        v_lshlrev_b32 v14, 3, v7
        v_mov_b32 v8, 0x3f803f80
        v_mov_b32 v9, v8
        v_mov_b32 v10, v8
        v_mov_b32 v11, v8
        ds_write_b128 v23, v[8:11] offset:{ONL}""")
        self.waitflag(F_VI if 'w1vi' in self.skip else F_PV, n=4, t="v96", sleep=False)
        for x in range(14):
            a(f"s_add_u32 m0, s55, {x*1024}\ns_add_u32 s53, s59, {x*16*3584}")
            a(f"buffer_load_dwordx4 v20, s[36:39], s53 offen{ntw} lds")
        if 'w1vi' in self.skip: self.waitflag(F_PV, n=4, t="v96", sleep=False)
        w2ld()
        a("s_waitcnt vmcnt(8)")
        self.setflag(F_W1)
        a("v_xor_b32 v9, 4, v2")
        self.waitflag(F_W1, "v9", sleep=False)
        for ks in range(14):
            for half in range(2):
                p = 2*ks + half
                r = 64 + ks*4 + half*2
                a(f"ds_read_b64_tr_b16 v[{r}:{r+1}], v13 offset:{(p//14)*16384 + (p%14)*1024}")
        a("v_lshlrev_b32 v28, 16, v28\ns_waitcnt vmcnt(0)")
        w2rd()
        self.stamp(4)
        a("s_waitcnt lgkmcnt(0)\ns_barrier")
        self.stamp(6)
        regs = [8, 32, 36, 40, 44, 48, 52, 56, 60, 156, 160, 8, 32, 36]
        for ks in range(11):
            a(f"ds_read_b128 v[{regs[ks]}:{regs[ks]+3}], v16 offset:{ks*64}")
        early = 'latest' not in self.skip
        for ks in range(14):
            if not early or ks < 11: a(f"s_waitcnt lgkmcnt({10-ks if ks < 3 else 13-ks})")
            if early and ks == 11: a(f"s_waitcnt lgkmcnt(0)\ns_barrier\nds_read_b64 v[30:31], v14 offset:{STL}")
            r = regs[ks]
            a(f"v_mfma_f32_16x16x32_bf16 v[152:155], v[{r}:{r+3}], v[{64+4*ks}:{67+4*ks}], {'0' if ks == 0 else 'v[152:155]'}")
            if ks == 2:
                for k2 in (11, 12, 13): a(f"ds_read_b128 v[{regs[k2]}:{regs[k2]+3}], v16 offset:{k2*64}")
        k1 = -2*1.4426950408889634*0.7978845608028654
        if not early: a(f"s_barrier\nds_read_b64 v[30:31], v14 offset:{STL}")
        a(f"""s_mov_b32 s64, {hex(f2u(k1*0.044715))}
        v_mov_b32 v9, {hex(f2u(k1))}
        s_nop {4 if early else 2}
        s_waitcnt lgkmcnt(0)
        v_fma_f32 v28, -v31, v153, v28
        v_fmac_f32 v28, v152, v30
        v_mul_f32 v8, v28, v28
        v_fma_f32 v8, v8, s64, v9
        v_mul_f32 v8, v8, v28
        v_exp_f32 v8, v8
        s_nop 0
        v_add_f32 v8, 1.0, v8
        v_rcp_f32 v8, v8
        s_nop 0
        v_mul_f32 v8, v8, v28
        v_cvt_pk_bf16_f32 v8, v8, v8
        ds_write_b16 v17, v8
        s_waitcnt lgkmcnt(0)
        L_mlp2:
        s_barrier""")
        self.stamp(7)
        for i in range(4):
            a(f"ds_read_b128 v[{32+4*i}:{35+4*i}], v{24+i}")
        for i in range(4):
            a(f"s_waitcnt lgkmcnt({3-i})")
            for qq in range(2):
                d = 48 + 4*qq; r = 120 + (qq*4 + i)*4
                cin = "0" if i == 0 else f"v[{d}:{d+3}]"
                a(f"v_mfma_f32_16x16x32_bf16 v[{d}:{d+3}], v[{32+4*i}:{35+4*i}], v[{r}:{r+3}], {cin}")
        a("""s_nop 6
        v_min_u32 v48, -2, v48
        buffer_store_dwordx4 v[48:51], v23, s[16:19], s58 offen sc1
        s_cmp_eq_u32 s50, 3
        s_cbranch_scc1 L_exit
        v_min_u32 v52, -2, v52
        buffer_store_dwordx4 v[52:55], v23, s[16:19], s62 offen sc1""")
        self.stamp(8)
        a("s_branch L_exit")

        c("---- waves 2,3: rows u and u-2 of h -> LDS and their LayerNorm statistics ----")
        a(f"""L_mlp_b:
        v_lshlrev_b32 v9, 2, v0
        s_mul_i32 s57, s50, 896
        s_sub_u32 s59, s57, 1792
        s_mov_b32 exec_hi, 0x00ffffff""")
        for i in range(4):
            a(f"buffer_load_dword v{36+i}, v9, s[20:23], s57 offen offset:{i*224}")
        for i in range(4):
            a(f"buffer_load_dword v{156+i}, v9, s[20:23], s59 offen offset:{i*224}")
        a(f"s_mov_b32 exec_hi, -1\ns_add_u32 s59, s59, {YL}")
        for i in range(4):
            a(f"""v_add_u32 v8, {56*i}, v0
            v_lshrrev_b32 v9, 4, v8
            v_lshlrev_b32 v9, 6, v9
            v_bfe_u32 v10, v8, 1, 2
            v_lshl_add_u32 v9, v10, 4, v9
            v_and_b32 v10, 8, v8
            v_add_u32 v9, v9, v10
            v_and_b32 v10, 1, v8
            v_lshl_add_u32 v9, v10, 2, v9
            v_add_u32 v{32+i}, s59, v9""")
        a(f"""s_lshl_b32 s53, s50, 3
        v_mov_b32 v15, s53
        s_lshl_b32 s57, s50, {HS+5}
        s_add_u32 s57, s57, {HACC}
        s_sub_u32 s61, s57, {64 << HS}
        v_and_b32 v92, 0x70, v23
        v_lshl_add_u32 v92, v6, {HS}, v92
        v_add_u32 v93, {7 << HS}, v92
        v_add_u32 v94, {14 << HS}, v92
        v_add_u32 v95, {21 << HS}, v92
        v_and_b32 v16, 32, v0
        v_add_u32 v16, v16, v0
        v_lshlrev_b32 v16, {HS}, v16
        s_mov_b32 s66, {HACC}
        s_mov_b32 s67, {HACC + (32 << HS)}
        s_mov_b32 s59, {hex(f2u(16.0))}
        s_lshl_b32 s63, s52, 10
        s_add_u32 s63, s63, {EW}
        s_add_u32 s64, s16, s63
        s_addc_u32 s65, s17, 0
        v_lshrrev_b32 v19, 1, v0
        v_mul_u32_u24 v19, {7*512}, v19
        v_and_b32 v18, 1, v0
        v_lshl_add_u32 v19, v18, 7, v19
        s_sub_u32 s63, s49, 14
        s_lshl_b32 s63, s63, 9
        s_lshl_b32 s53, s48, 2
        s_add_u32 s63, s63, s53
        s_and_b32 s53, s50, 1
        s_lshl_b32 s53, s53, 8
        s_add_u32 s63, s63, s53
        s_add_u32 s63, s63, {FH}
        s_mov_b32 s60, 0xffff0000""")
        for i in range(4): a(f"v_mov_b32 v{88+i}, 0")
        self.waitflag(F_PV, n=4, t="v96", sleep=False)
        w2ld(True)
        a("s_waitcnt vmcnt(8)")
        for i in range(4):
            a(f"v_lshlrev_b32 v{40+2*i}, 16, v{36+i}\nv_and_b32 v{41+2*i}, s60, v{36+i}\nv_lshlrev_b32 v{104+2*i}, 16, v{156+i}\nv_and_b32 v{105+2*i}, s60, v{156+i}")
        def fh(k):
            if self.hp == k:
                a("s_mov_b64 exec, 0xffff\nbuffer_store_dword v164, v19, s[16:19], s63 offen sc1\ns_mov_b64 exec, -1")
        a("s_cmp_lg_u32 s50, 3\ns_cbranch_scc1 L_gow")
        self.phint(16)
        self.setflag(F_GO, "v3")
        if 'nokick' not in self.skip:
            a("s_mov_b32 exec_lo, 0x0fffffff\ns_mov_b32 exec_hi, 0x0fffffff\nbuffer_load_dword v165, v16, s[16:19], s66 offen sc1")
            if 'kick2' in self.skip: a("buffer_load_dword v165, v16, s[16:19], s67 offen sc1")
            a("s_mov_b32 exec_lo, -1")
        a("s_branch L_hp\nL_gow:")
        self.waitflag(F_GO, sleep=False)
        a("L_hp:")
        if self.prof and not self.light: a("s_memrealtime s[94:95]")
        a("s_mov_b32 exec_hi, 0x00ffffff")
        for i in range(4):
            a(f"buffer_load_dwordx4 v[{48+4*i}:{51+4*i}], v{92+i}, s[16:19], s57 offen sc1")
        for i in range(4):
            a(f"buffer_load_dwordx4 v[{64+4*i}:{67+4*i}], v{92+i}, s[16:19], s61 offen sc1")
        a("s_mov_b32 exec_hi, -1\ns_waitcnt vmcnt(8)")
        w2rd()
        a("s_mov_b32 exec_hi, 0x00ffffff\ns_waitcnt vmcnt(4)")
        for i in range(4):
            a(f"v_pk_add_f32 v[{48+4*i}:{49+4*i}], v[{48+4*i}:{49+4*i}], v[{40+2*i}:{41+2*i}]\nv_cvt_pk_bf16_f32 v{36+i}, v{48+4*i}, v{49+4*i}\nds_write_b32 v{32+i}, v{36+i} offset:1792")
        a("v_min_f32 v8, v50, v54\nv_min3_f32 v8, v8, v58, v62\ns_waitcnt vmcnt(0)")
        for i in range(4):
            a(f"v_pk_add_f32 v[{64+4*i}:{65+4*i}], v[{64+4*i}:{65+4*i}], v[{104+2*i}:{105+2*i}]\nv_cvt_pk_bf16_f32 v{156+i}, v{64+4*i}, v{65+4*i}\nds_write_b32 v{32+i}, v{156+i}")
        a("v_min3_f32 v8, v8, v66, v70\nv_min3_f32 v8, v8, v74, v78\nv_cmp_neq_f32 vcc, s59, v8")
        self.retry("L_hp")
        self.stamp(5)
        if self.prof and not self.light: a("v_writelane_b32 v167, s94, 9")
        a("""v_pk_add_f32 v[80:81], v[48:49], v[52:53]
        v_pk_mul_f32 v[82:83], v[48:49], v[48:49]
        v_pk_add_f32 v[84:85], v[64:65], v[68:69]
        v_pk_mul_f32 v[86:87], v[64:65], v[64:65]
        s_waitcnt lgkmcnt(0)
        s_barrier
        v_pk_add_f32 v[80:81], v[80:81], v[56:57]
        v_pk_fma_f32 v[82:83], v[52:53], v[52:53], v[82:83]
        v_pk_add_f32 v[84:85], v[84:85], v[72:73]
        v_pk_fma_f32 v[86:87], v[68:69], v[68:69], v[86:87]
        v_pk_add_f32 v[80:81], v[80:81], v[60:61]
        v_pk_fma_f32 v[82:83], v[56:57], v[56:57], v[82:83]
        v_pk_add_f32 v[84:85], v[84:85], v[76:77]
        v_pk_fma_f32 v[86:87], v[72:73], v[72:73], v[86:87]
        v_pk_fma_f32 v[82:83], v[60:61], v[60:61], v[82:83]
        v_pk_fma_f32 v[86:87], v[76:77], v[76:77], v[86:87]
        v_add_f32 v88, v80, v81
        v_add_f32 v90, v84, v85
        v_add_f32 v89, v82, v83
        v_add_f32 v91, v86, v87
        s_mov_b32 exec_hi, -1""")
        fh(2)
        c("reduce-scatter the four sums over the wave: rows 0..3 end up with S(u), S(u-2), Q(u), Q(u-2)")
        a("""s_nop 0
        v_permlane32_swap_b32 v88, v89
        v_permlane32_swap_b32 v90, v91
        v_add_f32 v8, v88, v89
        v_add_f32 v10, v90, v91
        s_nop 1
        v_permlane16_swap_b32 v8, v10
        v_add_f32 v8, v8, v10
        s_nop 1""")
        self.dpp_allred16("v_add_f32", [8])
        c("LN(LN(h)) = (h - m) * rs1 * rs2 : rs1 = rsq(v + eps), second LN sees mean 0 and variance v*rs1^2")
        a(f"""v_mul_f32 v8, {hex(f2u(1/448))}, v8
        v_mov_b32 v9, v8
        s_mov_b32 s64, {hex(f2u(1e-5))}
        v_and_b32 v10, 16, v0
        v_permlane32_swap_b32 v8, v9
        v_fma_f32 v9, -v8, v8, v9
        v_max_f32 v9, 0, v9
        v_add_f32 v11, s64, v9
        v_rsq_f32 v11, v11
        v_xor_b32 v15, v15, v10
        v_mul_f32 v9, v9, v11
        v_fma_f32 v9, v9, v11, s64
        v_rsq_f32 v9, v9
        s_mov_b32 exec_lo, 0x00010001
        s_mov_b32 exec_hi, 0
        v_mul_f32 v30, v9, v11
        v_mul_f32 v31, v30, v8
        ds_write_b64 v15, v[30:31] offset:{STL}
        s_mov_b64 exec, -1""")
        fh(3)
        a("s_waitcnt lgkmcnt(0)\ns_barrier")
        fh(1)
        c("every workgroup has read the epoch by now: advance it for the next launch")
        a(f"""s_lshl_b32 s53, s52, 2
        s_add_u32 s53, s53, s50
        s_cmp_lg_u32 s53, 3
        s_cbranch_scc1 L_mlp2
        s_mov_b32 s53, {EPO}
        s_mov_b64 exec, 1
        buffer_store_dword v164, v23, s[16:19], s53 offen sc1
        s_mov_b64 exec, -1
        s_branch L_mlp2""")

    def role_fin(self):
        self.cur = 'FIN'
        a, c = self.a, self.c
        c("================= role FINAL =================")
        a("L_fin:")
        self.srd(40, 72, 896)
        self.srd(44, 80, 3584)
        a(f"""s_mul_i32 s52, s48, 7
        s_add_u32 s52, s52, s49
        s_lshl_b32 s52, s52, 1
        s_add_u32 s52, s52, s50
        s_sub_u32 s52, s52, 44
        s_lshl_b32 s53, s52, 6
        s_add_u32 s53, s53, {PART}
        s_add_u32 s54, s53, {16*7168}
        s_add_u32 s55, s53, {32*7168}
        s_add_u32 s56, s53, {48*7168}
        v_lshrrev_b32 v20, 2, v0
        v_mul_u32_u24 v20, 7168, v20
        v_and_b32 v22, 3, v0
        v_lshl_add_u32 v20, v22, 4, v20
        s_lshr_b32 s57, s52, 4
        s_lshl_b32 s57, s57, 6
        s_and_b32 s58, s52, 3
        s_lshl_b32 s58, s58, 2
        s_add_u32 s57, s57, s58
        v_and_b32 v23, 16, v0
        v_lshlrev_b32 v23, 1, v23
        v_lshrrev_b32 v24, 5, v0
        v_lshl_add_u32 v23, v24, 4, v23
        v_add3_u32 v23, v23, v22, s57
        v_lshlrev_b32 v24, 1, v23
        v_bfe_u32 v25, v23, 1, 3
        v_lshlrev_b32 v25, 4, v25
        v_lshrrev_b32 v26, 4, v23
        v_lshl_add_u32 v25, v26, {HS}, v25
        s_bfe_u32 s58, s52, 0x20002
        s_mul_i32 s59, s58, 896
        s_lshl_b32 s58, s58, {HS+5}
        s_add_u32 s58, s58, {HACC}
        s_mov_b32 s61, {hex(f2u(16.0))}
        v_mov_b32 v44, 0
        v_mov_b32 v45, 0
        v_mov_b32 v46, 0
        v_mov_b32 v47, 0
        s_waitcnt lgkmcnt(0)
        buffer_load_ushort v26, v24, s[20:23], s59 offen
        buffer_load_ushort v27, v24, s[40:43], 0 offen
        buffer_load_ushort v28, v24, s[44:47], s59 offen""")
        a(f"""s_lshr_b32 s63, s52, 1
        s_lshl_b32 s63, s63, 9
        s_add_u32 s63, s63, {FH}
        s_add_u32 s64, s16, s63
        s_addc_u32 s65, s17, 0
        v_and_b32 v8, 1, v0
        v_cmp_eq_u32 s[66:67], 1, v8
        s_waitcnt vmcnt(0)
        v_lshlrev_b32 v26, 16, v26
        v_lshlrev_b32 v27, 16, v27
        v_add_f32 v26, v26, v27""")
        a("s_cmp_lg_u32 s50, 3\ns_cbranch_scc1 L_fhbar")
        self.phint(8)
        a("L_fhbar:\ns_barrier")
        if self.prof and not self.light: a("s_memrealtime s[94:95]")
        l = self.lab("FP")
        a(f"""{l}:
        buffer_load_dwordx4 v[28:31], v25, s[16:19], s58 offen sc1
        buffer_load_dwordx4 v[32:35], v20, s[16:19], s53 offen sc1
        buffer_load_dwordx4 v[36:39], v20, s[16:19], s54 offen sc1
        buffer_load_dwordx4 v[40:43], v20, s[16:19], s55 offen sc1
        s_mov_b32 exec_hi, 0
        buffer_load_dwordx4 v[44:47], v20, s[16:19], s56 offen sc1
        s_mov_b32 exec_hi, -1
        s_waitcnt vmcnt(4)
        v_cndmask_b32 v28, v28, v29, s[66:67]
        v_add_f32 v27, v26, v28
        v_cmp_neq_f32 s[68:69], s61, v30
        s_waitcnt vmcnt(2)
        v_max_u32 v8, v32, v36
        v_pk_add_f32 v[32:33], v[32:33], v[36:37]
        v_pk_add_f32 v[34:35], v[34:35], v[38:39]
        s_waitcnt vmcnt(1)
        v_pk_add_f32 v[32:33], v[32:33], v[40:41]
        v_pk_add_f32 v[34:35], v[34:35], v[42:43]
        s_waitcnt vmcnt(0)
        v_pk_add_f32 v[32:33], v[32:33], v[44:45]
        v_pk_add_f32 v[34:35], v[34:35], v[46:47]
        v_max3_u32 v8, v8, v40, v44
        v_cmp_eq_u32 vcc, -1, v8
        s_or_b64 vcc, vcc, s[68:69]""")
        self.retry(l)
        self.stamp(6)
        if self.prof and not self.light: a("v_writelane_b32 v167, s94, 5")
        a("""
        v_permlane32_swap_b32 v32, v33
        v_permlane32_swap_b32 v34, v35
        v_add_f32 v32, v32, v33
        v_add_f32 v34, v34, v35
        s_nop 1
        v_permlane16_swap_b32 v32, v34
        v_add_f32 v32, v32, v34
        s_nop 1
        v_add_f32_dpp v32, v32, v32 row_ror:4 row_mask:0xf bank_mask:0xf
        s_nop 1
        v_add_f32_dpp v32, v32, v32 row_ror:8 row_mask:0xf bank_mask:0xf
        v_add_f32 v32, v32, v27
        v_cvt_pk_bf16_f32 v32, v32, v32
        s_mov_b32 exec_lo, 0x000f000f
        s_mov_b32 exec_hi, 0x000f000f
        buffer_store_short v32, v24, s[44:47], s59 offen""" + (' sc1' if 'outsc1' in self.skip else '') + (' nt' if 'outnt' in self.skip else ''))
        self.stamp(7)

def add_pads(text, gap=960, nchain=3):
    import subprocess, re, tempfile, os
    lines = text.split("\n")
    start = next(i for i, l in enumerate(lines) if l.startswith(NAME + "_kernel:"))
    end = next(i for i, l in enumerate(lines) if l.startswith("L_end:"))
    def addrs(ls):
        t = []
        for i, l in enumerate(ls):
            if start < i and l.startswith("    ") and not l.strip().startswith(";") and not l.strip().startswith("."):
                t.append(f"ZZ_{i}:")
            t.append(l)
        src = "\n".join(t)
        for k in range(nchain):
            if f"PADCHAIN_{k}:" not in src: src = src.replace(f"PADCHAIN_{k}", "L_end")
        src = re.sub(r"PADNEXT", "L_end", src)
        with tempfile.TemporaryDirectory() as d:
            open(d + "/a.s", "w").write(src)
            subprocess.check_call(["clang", "-x", "assembler", "-target", "amdgcn-amd-amdhsa", "-mcpu=gfx950", "-c", d + "/a.s", "-o", d + "/a.o"])
            out = subprocess.check_output(["llvm-objdump", "-t", d + "/a.o"], text=True)
        r = {}
        for l in out.splitlines():
            p = l.split()
            if not p: continue
            if p[-1].startswith("ZZ_"): r[int(p[-1][3:])] = int(p[0], 16)
            if p[-1] == NAME + "_kernel": base = int(p[0], 16)
        return {k: v - base for k, v in r.items()}
    ad = addrs(lines)
    pads = []; last = 0; shift = 0; noz = False
    for i in sorted(ad):
        if i >= end: break
        if "NOPAD_ON" in lines[i - 1]: noz = True
        if "NOPAD_OFF" in lines[i - 1]: noz = False
        x = ad[i] + shift
        if not noz and (x - last >= gap or (x >> 12) != (last >> 12)):
            pads.append(i); last = x; shift += 4
    n = len(pads)
    out = []
    for i, l in enumerate(lines):
        if i in pads:
            k = pads.index(i)
            if k < nchain: out.append(f"PADCHAIN_{k}:")
            out.append(f"PAD_{k}:")
            nxt = f"PAD_{k + nchain}" if k + nchain < n else "L_warmdone"
            out.append(f"    s_cbranch_execz {nxt}")
        out.append(l)
    return "\n".join(out)

if __name__ == "__main__":
    import argparse
    ap = argparse.ArgumentParser()
    ap.add_argument("-o", default="k.s"); ap.add_argument("-W", type=int, default=6); ap.add_argument("--WV", type=int, default=0); ap.add_argument("--WE", type=int, default=0); ap.add_argument("--NE", type=int, default=0); ap.add_argument("--pf64", action="store_true"); ap.add_argument("--ntp", default=""); ap.add_argument("--hd", type=int, default=4); ap.add_argument("--qd", type=int, default=0); ap.add_argument("--dly", default=None); ap.add_argument("--skip", default=""); ap.add_argument("--rot", type=int, default=1); ap.add_argument("--pw", default="1"); ap.add_argument("--ewp", type=int, default=2); ap.add_argument("--hp", type=int, default=2); ap.add_argument("--pft", type=int, default=3); ap.add_argument("--ww", type=int, default=8); ap.add_argument("--od", type=int, default=2); ap.add_argument("--dx", type=int, default=-1); ap.add_argument("--tkp", type=int, default=11); ap.add_argument("--ps", type=int, default=1); ap.add_argument("--light", action="store_true"); ap.add_argument("--ewk", type=int, default=4); ap.add_argument("--pwo", type=int, default=16); ap.add_argument("--pw1", type=int, default=99); ap.add_argument("--pw2", type=int, default=99); ap.add_argument("--qg", type=int, default=1); ap.add_argument("--ord", type=int, default=0); ap.add_argument("--hlp", default="12vxC")
    ap.add_argument("--prof", action="store_true"); ap.add_argument("--nt", default="nt"); ap.add_argument("--ntw", default="nt")
    ap.add_argument('--hs', type=int, default=10)
    x = ap.parse_args()
    HS = x.hs
    open(x.o, "w").write(add_pads(G(W=x.W, WV=x.WV, WE=x.WE, NE=x.NE, pf64=x.pf64, ntp=x.ntp, hd=x.hd, qd=x.qd, dly=x.dly, skip=x.skip, rot=x.rot, pw=x.pw, ewp=x.ewp, hp=x.hp, pft=x.pft, ww=x.ww, od=x.od, dx=x.dx, tkp=x.tkp, ps=x.ps, light=x.light, ewk=x.ewk, pwo=x.pwo, pw1=x.pw1, pw2=x.pw2, qg=x.qg, ord=x.ord, hlp=x.hlp, prof=x.prof, nt=x.nt, ntw=x.ntw).build()))
```

```python
import sys
NAME = "sequential_preLN__sliding_block_cached__mixer_channel_mlp__decode"
HDR = """.amdgcn_target "amdgcn-amd-amdhsa--gfx950"
.text
.globl %s_kernel
.p2align 8
.type %s_kernel,@function
%s_kernel:""" % (NAME, NAME, NAME)
def ftr(nv=256, ns=96):
    return f""".section .rodata,"a"
.p2align 6
.amdhsa_kernel {NAME}_kernel
  .amdhsa_next_free_vgpr {nv}
  .amdhsa_next_free_sgpr {ns}
  .amdhsa_accum_offset {nv}
  .amdhsa_group_segment_fixed_size 0
  .amdhsa_kernarg_size 104
  .amdhsa_user_sgpr_count 2
  .amdhsa_user_sgpr_kernarg_segment_ptr 1
  .amdhsa_system_sgpr_workgroup_id_x 1
.end_amdhsa_kernel
"""
def gen(waves=4, vmode="contig", flags="nt", window=8, interleave=False):
    L = []
    a = L.append
    a(f"; @launch grid=(256,1,1) block=({waves*64},1,1) lds=131072")
    a(HDR)
    a("s_memrealtime s[40:41]")
    a("s_cmp_ge_u32 s2, 256")
    a("s_cbranch_scc1 L_end")
    a("s_load_dwordx4 s[4:7], s[0:1], 8")
    a("s_load_dwordx2 s[20:21], s[0:1], 96")
    a("v_lshrrev_b32 v1, 6, v0")
    a("v_and_b32 v2, 63, v0")
    a("v_mov_b32 v10, 0")
    a("v_readfirstlane_b32 s3, v1")
    a("s_and_b32 s30, s2, 31")
    a("s_lshr_b32 s31, s2, 5")
    a("s_lshl_b32 s32, s30, 21")
    a("s_add_u32 s32, s32, %d" % (3072*512))
    n = 64 // waves
    a("s_lshl_b32 s33, s31, 16")
    a("s_add_u32 s33, s33, s32")
    if interleave:
        a("s_mul_i32 s34, s3, 1024")
        kstep = 1024*waves
    else:
        a("s_mul_i32 s34, s3, %d" % (n*1024))
        kstep = 1024
    a("s_add_u32 s33, s33, s34")
    a("v_lshlrev_b32 v3, 4, v2")
    if vmode == "contig":
        a("s_mov_b32 s35, s33")
        a("v_mov_b32 v4, v3")
        vstep = kstep
    else:
        a("s_lshl_b32 s35, s31, 6")
        a("s_add_u32 s35, s35, s32")
        if interleave:
            a("s_mul_i32 s36, s3, %d" % (16*512))
            vstep = 16*512*waves
        else:
            a("s_mul_i32 s36, s3, %d" % (n*16*512))
            vstep = 16*512
        a("s_add_u32 s35, s35, s36")
        a("v_lshrrev_b32 v4, 2, v2")
        a("v_lshlrev_b32 v4, 9, v4")
        a("v_and_b32 v5, 3, v2")
        a("v_lshlrev_b32 v5, 4, v5")
        a("v_add_u32 v4, v4, v5")
    a("s_waitcnt lgkmcnt(0)")
    a("s_memrealtime s[42:43]")
    a("s_mov_b32 s8, s4"); a("s_mov_b32 s9, s5"); a("s_mov_b32 s10, 0x4000000"); a("s_mov_b32 s11, 0x20000")
    a("s_mov_b32 s12, s6"); a("s_mov_b32 s13, s7"); a("s_mov_b32 s14, 0x4000000"); a("s_mov_b32 s15, 0x20000")
    a("s_mov_b32 s22, 0x10000000"); a("s_mov_b32 s23, 0x20000")
    a("s_mov_b32 s37, s34")
    fl = (" " + flags) if flags else ""
    landed = 0
    def stamp(i):
        a("s_memrealtime s[44:45]")
        a("s_waitcnt lgkmcnt(0)")
        a(f"v_writelane_b32 v10, s44, {i+2}")
    tot = 2*n
    for i in range(tot):
        if i == n: a("s_add_u32 s37, s34, 65536")
        a("s_mov_b32 m0, s37")
        a(f"s_add_u32 s37, s37, {kstep if False else 1024 if not interleave else kstep}")
        if i < n:
            a(f"buffer_load_dwordx4 v3, s[8:11], s33 offen{fl} lds")
            a(f"s_add_u32 s33, s33, {kstep}")
        else:
            a(f"buffer_load_dwordx4 v4, s[12:15], s35 offen{fl} lds")
            a(f"s_add_u32 s35, s35, {vstep}")
        if i + 1 >= window:
            a(f"s_waitcnt vmcnt({window-1})")
            stamp(landed); landed += 1
    for r in range(window-2, -1, -1):
        a(f"s_waitcnt vmcnt({r})")
        stamp(landed); landed += 1
    assert landed == tot
    a("v_writelane_b32 v10, s40, 0")
    a("v_writelane_b32 v10, s42, 1")
    a("s_lshl_b32 s38, s2, 4")
    a("s_add_u32 s38, s38, s3")
    a("s_lshl_b32 s38, s38, 8")
    a("v_lshlrev_b32 v11, 2, v2")
    a("buffer_store_dword v10, v11, s[20:23], s38 offen")
    a("s_waitcnt vmcnt(0)")
    a("L_end:")
    a("s_endpgm")
    a(ftr(64))
    return "\n".join(L) + "\n"

if __name__ == "__main__":
    cfgs = {
     "t_w4_nt_win4": dict(window=4),
     "t_w4_nt_win8": dict(window=8),
     "t_w4_nt_win16": dict(window=16),
     "t_w4_nt_win8_il": dict(window=8, interleave=True),
     "t_w4_sc1nt_win8": dict(window=8, flags="sc1 nt"),
     "t_w4_sc0sc1_win8": dict(window=8, flags="sc0 sc1"),
     "t_w4_sc0sc1nt_win8": dict(window=8, flags="sc0 sc1 nt"),
     "t_w4_def_win8": dict(window=8, flags=""),
     "t_w8_nt_win8": dict(waves=8, window=8),
     "t_w4_nt_win8_strid": dict(window=8, vmode="strid"),
    }
    for k, c in cfgs.items():
        open(f"work/{k}.s", "w").write(gen(**c))
    print(" ".join(k + ".s" for k in cfgs))
```

```python
from gen_stream2 import HDR, ftr, NAME
PART = 1 << 20
def gen(delay=-1, ld="sc1", st="sc1", bf16=False, clear=True, pre=0):
    L = []; a = L.append
    a(f"; @launch grid=(256,1,1) block=(256,1,1) lds=0")
    a(HDR)
    a("s_load_dwordx2 s[16:17], s[0:1], 96")
    a("s_load_dwordx2 s[24:25], s[0:1], 88")
    a("v_lshrrev_b32 v1, 6, v0"); a("v_and_b32 v0, 63, v0"); a("v_mov_b32 v10, 0"); a("v_readfirstlane_b32 s50, v1")
    a("s_mov_b32 s18, 0x10000000"); a("s_mov_b32 s19, 0x20000"); a("s_mov_b32 s26, 256"); a("s_mov_b32 s27, 0x20000")
    a("s_and_b32 s48, s2, 7"); a("s_lshr_b32 s49, s2, 3")
    a("s_waitcnt lgkmcnt(0)")
    a("s_or_b32 s4, s2, s50"); a("s_cmp_eq_u32 s4, 0"); a("s_cbranch_scc0 L_nt")
    a("s_memrealtime s[44:45]"); a("s_waitcnt lgkmcnt(0)"); a("s_add_u32 s44, s44, 800"); a("s_or_b32 s44, s44, 1"); a("v_mov_b32 v4, s44"); a("v_mov_b32 v5, 0")
    a("buffer_store_dword v4, v5, s[24:27], 0 offen sc1")
    a("L_nt:")
    a("s_sub_u32 s4, s49, 14"); a("s_cmp_lt_u32 s4, 14"); a("s_cbranch_scc0 L_end")
    a("v_mov_b32 v5, 0"); a("s_mov_b32 s5, 0")
    a("L_gt:")
    a("buffer_load_dword v4, v5, s[24:27], 0 offen sc1"); a("s_add_u32 s5, s5, 1"); a("s_cmp_gt_u32 s5, 5000"); a("s_cbranch_scc1 L_end")
    a("s_waitcnt vmcnt(0)"); a("v_readfirstlane_b32 s7, v4"); a("s_cmp_eq_u32 s7, 0"); a("s_cbranch_scc1 L_gt")
    RS = 3584 if bf16 else 7168
    a("s_cmp_lt_u32 s4, 7"); a("s_cbranch_scc0 L_cons")
    a("s_mul_i32 s52, s48, 7"); a("s_add_u32 s52, s52, s4"); a(f"s_mul_i32 s58, s52, {RS}")
    a(f"s_lshl_b32 s59, s50, {9 if bf16 else 10}"); a("s_add_u32 s58, s58, s59"); a(f"s_add_u32 s58, s58, {PART}"); a(f"s_add_u32 s62, s58, {2048 if bf16 else 4096}")
    a(f"v_lshlrev_b32 v21, {3 if bf16 else 4}, v0")
    for i in range(4): a(f"v_mov_b32 v{48+i}, 1.0")
    a("L_tw:"); a("s_memrealtime s[44:45]"); a("s_waitcnt lgkmcnt(0)"); a("s_sub_u32 s44, s44, s7"); a("s_cmp_lt_i32 s44, 0"); a("s_cbranch_scc1 L_tw")
    sf = (" " + st) if st else ""
    op = "buffer_store_dwordx2 v[48:49]" if bf16 else "buffer_store_dwordx4 v[48:51]"
    a(f"{op}, v21, s[16:19], s58 offen{sf}")
    a("s_cmp_eq_u32 s50, 3"); a("s_cbranch_scc1 L_pd")
    a(f"{op}, v21, s[16:19], s62 offen{sf}")
    a("L_pd:"); a("s_waitcnt vmcnt(0)"); a("s_branch L_rec")
    a("L_cons:")
    a(f"s_cmp_lt_u32 s50, {3 if bf16 else 2}"); a("s_cbranch_scc1 L_end")
    a("s_mul_i32 s52, s48, 7"); a("s_add_u32 s52, s52, s49")
    if bf16:
        a("s_sub_u32 s52, s52, 21")
    else:
        a("s_lshl_b32 s52, s52, 1"); a("s_add_u32 s52, s52, s50"); a("s_sub_u32 s52, s52, 44")
    a("s_lshl_b32 s53, s52, 6"); a(f"s_add_u32 s53, s53, {PART}"); a(f"s_add_u32 s54, s53, {16*RS}"); a(f"s_add_u32 s55, s53, {32*RS}"); a(f"s_add_u32 s56, s53, {48*RS}")
    a("v_lshrrev_b32 v20, 2, v0"); a(f"v_mul_u32_u24 v20, {RS}, v20"); a("v_and_b32 v22, 3, v0"); a("v_lshl_add_u32 v20, v22, 4, v20")
    if pre:
        a("buffer_load_dwordx4 v[32:35], v20, s[16:19], s53 offen"); a("buffer_load_dwordx4 v[32:35], v20, s[16:19], s54 offen"); a("buffer_load_dwordx4 v[32:35], v20, s[16:19], s55 offen"); a("buffer_load_dwordx4 v[32:35], v20, s[16:19], s56 offen"); a("s_waitcnt vmcnt(0)")
    for i in range(4): a(f"v_mov_b32 v{32+i}, -1")
    a("buffer_store_dwordx4 v[32:35], v20, s[16:19], s53 offen sc1"); a("buffer_store_dwordx4 v[32:35], v20, s[16:19], s54 offen sc1"); a("buffer_store_dwordx4 v[32:35], v20, s[16:19], s55 offen sc1")
    a("s_mov_b32 exec_hi, 0"); a("buffer_store_dwordx4 v[32:35], v20, s[16:19], s56 offen sc1"); a("s_mov_b32 exec_hi, -1")
    a("s_waitcnt vmcnt(0)")
    a("v_mov_b32 v44, 0")
    if delay >= 0:
        a(f"s_add_u32 s8, s7, {delay}")
        a("L_cw:"); a("s_memrealtime s[44:45]"); a("s_waitcnt lgkmcnt(0)"); a("s_sub_u32 s44, s44, s8"); a("s_cmp_lt_i32 s44, 0"); a("s_cbranch_scc1 L_cw")
    lf = (" " + ld) if ld else ""
    a("s_mov_b32 s5, 0")
    a("L_sp:")
    a(f"buffer_load_dwordx4 v[32:35], v20, s[16:19], s53 offen{lf}"); a(f"buffer_load_dwordx4 v[36:39], v20, s[16:19], s54 offen{lf}"); a(f"buffer_load_dwordx4 v[40:43], v20, s[16:19], s55 offen{lf}")
    a("s_mov_b32 exec_hi, 0"); a(f"buffer_load_dwordx4 v[44:47], v20, s[16:19], s56 offen{lf}"); a("s_mov_b32 exec_hi, -1")
    a("s_add_u32 s5, s5, 1"); a("s_cmp_gt_u32 s5, 5000"); a("s_cbranch_scc1 L_rec")
    a("s_waitcnt vmcnt(0)"); a("v_max_u32 v8, v32, v36"); a("v_max3_u32 v8, v8, v40, v44"); a("v_cmp_eq_u32 vcc, -1, v8"); a("s_cbranch_vccnz L_sp")
    a("L_rec:")
    a("s_memrealtime s[44:45]"); a("s_waitcnt lgkmcnt(0)"); a("s_sub_u32 s44, s44, s7")
    a("v_writelane_b32 v10, s44, 0"); a("v_writelane_b32 v10, s5, 1")
    a("s_lshl_b32 s38, s2, 2"); a("s_add_u32 s38, s38, s50"); a("s_lshl_b32 s38, s38, 8"); a("v_lshlrev_b32 v11, 2, v0")
    a("buffer_store_dword v10, v11, s[16:19], s38 offen")
    a("L_end:"); a("s_endpgm")
    a(ftr(64))
    return "\n".join(L) + "\n"
if __name__ == "__main__":
    cfgs = {}
    for pre in (0, 1):
        for d in (10, 20, 50): cfgs[f"h_pre{pre}_d{d}"] = dict(delay=d, pre=pre)
    for k, c in cfgs.items():
        open(f"work/{k}.s", "w").write(gen(**c))
    print(" ".join(k + ".s" for k in cfgs))
```

```python
import sys, struct
NAME = "sequential_preLN__sliding_block_cached__mixer_channel_mlp__decode"

def f2u(x): return struct.unpack("<I", struct.pack("<f", x))[0]

QP   = 0x00000
HACC = 0x160000
HS = 10
STAT = 0x44000
OP   = 0xe0000
EW   = 0x50000
FH   = 0x60000
TK   = 0x70000
GR   = 0x71000
EPO  = 0x71100
PART = 0x72000
QPL  = 0x120000
OPG  = 0x180000
RDY  = 0x4c000
PROF = 0x200000
WQL = 4096; KL = 24576; VL = KL + 65536
XN = 0
QB = XN + 1024
SP = QB + 1024
ZR = SP + 512
FL = ZR + 512
LDS_TOTAL = VL + 65536
RED = WQL
YL = WQL
H1L = WQL + 4096
STL = WQL + 4608
ONL = WQL + 5120
F_WQ, F_S, F_VI, F_Q, F_P, F_CLR, F_TAG, F_PV, F_V8, F_KL, F_TK, F_W1, F_GO = 0, 32, 48, 64, 68, 76, 88, 96, 112, 128, 72, 16, 80


HEADER = """; Fused decode layer: LN -> q -> sliding-window GQA attention -> wo -> +x -> LN(LN) -> w1/GELU/w2 -> +h
; kernarg: 0 x | 8 K | 16 V | 24 wq | 32 wo | 40 (unused) | 48 w1 | 56 b1 | 64 w2 | 72 b2 | 80 out | 88 debug | 96 ws
;
; One persistent launch, 256 workgroups (one per CU), 9 waves each.  w = workgroup id, g = w&7 (kv head),
;   waves 0-3 (L): stream the wq tile, K and V into LDS (LDS-DMA, sliding window), then P.V
;                  WO  (o partials x softmax weights x wo tile -> atomic add into h),
; Hand-offs through d_ws: every buffer is either tagged with this launch's epoch (epoch word found in d_ws + 1)
; scalar-polled "hint" words only say when a read is worth issuing.  Plain (L2 resident) stores are used only
"""

class G:
    def __init__(self, W=6, WV=None, WE=None, NE=0, prof=False, nt="nt", ntw="nt", pf64=False, ntp="nt", hd=2, qd=0, dly=None, skip='', rot=0, pw='pv', ewp=1, hp=1, pft=0, ww=3, od=2, dx=-1, tkp=8, ps=2, light=False, ewk=4, pwo=0, pw1=0, pw2=99, qg=2, ord=0, hlp='', hb=0):
        self.hb = hb
        self.hlp = hlp
        self.ord = ord
        self.qg = qg
        self.pfpos = dict(wo=pwo, w1=pw1, w2=pw2)
        self.light = light; self.ewk = ewk
        self.ps = ps
        self.tkp = tkp
        self.dx = dx
        self.ww = ww; self.od = od
        self.pw = pw; self.ewp = ewp; self.hp = hp; self.pft = pft
        self.rot = ['s_mov_b32 s59, 0', 's_mov_b32 s59, s49', 's_lshr_b32 s59, s2, 4', 's_mul_i32 s59, s2, 5', 's_add_u32 s59, s49, s2'][rot]
        self.skip = set(skip.split(','))
        self.dly = dly; self.cur = 'E'
        self.qd = qd
        self.hd = hd
        self.ntp = ntp
        self.WE = WE or WV or W; self.NE = NE; self.pf64 = pf64
        self.stubs = []
        self.L = []; self.W = W; self.WV = WV or W; self.prof = prof; self.nt = nt; self.ntw = ntw; self.uid = 0
    def a(self, s):
        for line in s.split("\n"):
            line = line.strip()
            if line: self.L.append(("" if line.endswith(":") else "    ") + line)
    def c(self, s): self.L.append("    ; " + s)
    def lab(self, p="L"):
        self.uid += 1; return f"{p}_{self.uid}"
    def stamp(self, i):
        if self.dly == f"{self.cur}:{i}":
            self.a("s_memrealtime s[92:93]\ns_waitcnt lgkmcnt(0)\ns_mov_b32 s94, 1")
        if self.prof and (not self.light or (self.cur == 'L' and i == 6)):
            self.a(f"s_memrealtime s[90:91]\ns_waitcnt lgkmcnt(0)\nv_writelane_b32 v167, s90, {i}")
    def srd(self, r, karg, size):
        self.a(f"s_load_dwordx2 s[{r}:{r+1}], s[0:1], {karg}\ns_mov_b32 s{r+2}, {size}\ns_mov_b32 s{r+3}, 0x20000")
    def setflag(self, off, vaddr="v2"):
        self.a(f"ds_write_b32 {vaddr}, v4 offset:{off}")
    def waitflag(self, off, vaddr="v3", n=1, t="v8", sleep=True):
        l = self.lab("WF"); d = self.lab("WD")
        ti = int(t[1:])
        self.a(f"{l}:")
        if not sleep: self.a("s_sub_u32 s88, s88, 1\ns_cbranch_scc1 L_exit")
        if n == 1:
            self.a(f"ds_read_b32 {t}, {vaddr} offset:{off}\ns_waitcnt lgkmcnt(0)")
        else:
            self.a(f"ds_read_b128 v[{ti}:{ti+3}], {vaddr} offset:{off}\ns_waitcnt lgkmcnt(0)")
            self.a(f"v_and_b32 {t}, {t}, v{ti+1}\nv_and_b32 v{ti+2}, v{ti+2}, v{ti+3}\nv_and_b32 {t}, {t}, v{ti+2}")
        if not sleep:
            self.a(f"v_cmp_ne_u32 vcc, 0, {t}\ns_cbranch_vccz {l}")
            return
        self.a(f"v_cmp_ne_u32 vcc, 0, {t}\ns_cbranch_vccnz {d}")
        if sleep: self.a("s_sleep 1")
        self.a(f"s_sub_u32 s88, s88, 1\ns_cbranch_scc0 {l}\ns_branch L_exit\n{d}:")
    def retry(self, l, back=0):
        d = self.lab("RD")
        self.a(f"s_cbranch_vccnz {d}")
        self.stubs.append(f"{d}:\n" + (f"s_sleep {back}\n" if back else "") + f"s_sub_u32 s88, s88, 1\ns_cbranch_scc0 {l}\ns_branch L_exit")
    def flush(self):
        for st in self.stubs: self.a(st)
        self.stubs = []
    def shint(self, n, base="s[64:65]"):
        a = self.a
        l = self.lab("SH"); d = self.lab("SD")
        a(f"{l}:\ns_sub_u32 s88, s88, 1\ns_cbranch_scc1 L_exit")
        if n == 8:
            a(f"s_load_dwordx8 s[72:79], {base}, 0 glc\ns_waitcnt lgkmcnt(0)")
            regs = [72, 74, 76, 78]
        elif n == 16:
            a(f"s_load_dwordx8 s[72:79], {base}, 0 glc\ns_load_dwordx8 s[80:87], {base}, 128 glc\ns_waitcnt lgkmcnt(0)")
            for k in range(4): a(f"s_xor_b64 s[{80+2*k}:{81+2*k}], s[{80+2*k}:{81+2*k}], s[{72+2*k}:{73+2*k}]")
            a("s_or_b64 s[80:81], s[80:81], s[82:83]\ns_or_b64 s[84:85], s[84:85], s[86:87]\ns_or_b64 s[80:81], s[80:81], s[84:85]")
            a(f"s_cbranch_scc1 {l}")
            regs = [72, 74, 76, 78]
        else:
            a(f"s_load_dwordx16 s[72:87], {base}, 0 glc\ns_load_dwordx16 s[28:43], {base}, 64 glc\ns_waitcnt lgkmcnt(0)")
            regs = list(range(72, 88, 2)) + list(range(28, 44, 2))
        for r in regs:
            a(f"s_cmp_lg_u64 s[{r}:{r+1}], s[70:71]\ns_cbranch_scc1 {l}")

    def phint(self, n, base="s[64:65]"):
        a = self.a; l = self.lab("PH"); step = 256 if n == 16 else 128
        def ld():
            a(f"s_load_dwordx8 s[72:79], {base}, s89 glc")
            if n == 16: a(f"s_load_dwordx8 s[80:87], s[68:69], s89 glc")
        if n == 16: a("s_add_u32 s68, s64, 128\ns_addc_u32 s69, s65, 0")
        a("s_mov_b32 s89, 0"); ld(); a("s_waitcnt lgkmcnt(0)")
        a(f"{l}:\ns_sub_u32 s88, s88, 1\ns_cbranch_scc1 L_exit\ns_add_u32 s89, s89, {step}\ns_and_b32 s89, s89, {4*step-1}")
        ld()
        if self.ps == 0: a("s_waitcnt lgkmcnt(0)")
        else:
            a(f"s_sleep {self.ps}")
        for r in range(72, 72 + n, 2):
            a(f"s_cmp_lg_u64 s[{r}:{r+1}], s[70:71]\ns_cbranch_scc1 {l}")

    def build(self):
        a, c = self.a, self.c
        W = self.W; nt = (" " + self.nt) if self.nt else ""; ntw = (" " + self.ntw) if self.ntw else ""
        self.L.append(HEADER + f"; @launch grid=(256,1,1) block=(576,1,1) lds={LDS_TOTAL}")
        self.L.append('.amdgcn_target "amdgcn-amd-amdhsa--gfx950"\n.text')
        self.L.append(f".globl {NAME}_kernel\n.p2align 12\n.fill 832, 4, 0xbf810000\n.p2align 8\n.type {NAME}_kernel,@function\n{NAME}_kernel:")
        if self.prof: a("s_memrealtime s[92:93]")
        if self.dly: a("s_mov_b32 s94, 0"); self.stamp(0)
        a(f"""s_load_dwordx2 s[12:13], s[0:1], 24
        s_load_dwordx2 s[4:5], s[0:1], 8
        v_lshrrev_b32 v1, 6, v0
        v_and_b32 v0, 63, v0
        v_readfirstlane_b32 s3, v1
        s_load_dwordx2 s[20:21], s[0:1], 0
        s_load_dwordx2 s[16:17], s[0:1], 96
        s_load_dwordx2 s[8:9], s[0:1], 16
        s_cmp_ge_u32 s2, 256
        s_cbranch_scc1 L_end
        s_sub_u32 s52, s3, 5
        s_cmp_lt_u32 s52, 3
        {'' if 'sa' in self.skip else 's_cbranch_scc1 L_warm'}
        L_warmdone:
        s_mov_b64 exec, -1
        s_mov_b32 s15, 0x20000
        s_mov_b32 s14, {448*8192}
        s_mov_b32 s7, s15
        s_mov_b32 s6, 0x4000000
        s_mov_b32 s23, s15
        s_movk_i32 s22, 3584
        s_mov_b32 s19, s15
        s_mov_b32 s18, 0x300000
        s_and_b32 s48, s2, 7
        s_lshr_b32 s49, s2, 3
        s_and_b32 s50, s3, 3""")
        c("v5 = swizzled 16B chunk offset inside a 128B row; v6 = row (l>>3); v7 = g4")
        a("""v_and_b32 v5, 7, v0
        v_lshrrev_b32 v7, 4, v0
        v_lshlrev_b32 v5, 4, v5
        v_lshlrev_b32 v6, 5, v7
        v_xor_b32 v5, v5, v6
        v_lshrrev_b32 v6, 3, v0""")
        if self.prof: a("v_mov_b32 v167, 0")
        if 'sa' in self.skip: a("s_cmp_lt_u32 s3, 4\ns_cbranch_scc0 L_end")
        a("s_cmp_lt_u32 s3, 4\ns_cbranch_scc0 L_other")
        self.lwave()
        if 'nosplit' not in self.skip: self.L = self.Lmain
        self.swave_head()
        self.awave(); self.flush()
        if 'nosplit' not in self.skip: self.L += self.Lpv
        self.swave()
        self.role_wo(); self.flush()
        self.role_mlp(); self.flush()
        mark = len(self.L)
        self.role_fin()
        tail = self.L[mark:]; del self.L[mark:]
        self.flush(); self.L += tail
        a("L_exit:")
        if self.dly:
            if self.dly[0] in "ELAS": a("s_cmp_lt_u32 s2, 224\ns_cbranch_scc1 L_end")
            if self.dx >= 0: a(f"s_and_b32 s90, s2, 7\ns_cmp_lg_u32 s90, {self.dx}\ns_cbranch_scc1 L_end")
            a("""s_cmp_eq_u32 s94, 0
            s_cbranch_scc1 L_end
            L_dly:
            s_memrealtime s[90:91]
            s_waitcnt lgkmcnt(0)
            s_sub_u32 s90, s90, s92
            s_cmp_lt_u32 s90, 3000
            s_cbranch_scc1 L_dly""")
        if self.prof:
            a(f"""s_waitcnt lgkmcnt(0)
            s_mov_b64 exec, -1
            v_writelane_b32 v167, s92, 0
            s_memrealtime s[90:91]
            s_waitcnt lgkmcnt(0)
            v_writelane_b32 v167, s90, 63
            v_writelane_b32 v167, s88, 62
            s_lshl_b32 s90, s2, 4
            s_add_u32 s90, s90, s3
            s_lshl_b32 s90, s90, 8
            s_add_u32 s90, s90, {PROF}
            v_lshlrev_b32 v166, 2, v0
            buffer_store_dword v167, v166, s[16:19], s90 offen""")
        a("L_end:\ns_endpgm")
        self.L.append(f""".section .rodata,"a"
.p2align 6
.amdhsa_kernel {NAME}_kernel
  .amdhsa_next_free_vgpr 168
  .amdhsa_next_free_sgpr 96
  .amdhsa_accum_offset 168
  .amdhsa_group_segment_fixed_size 0
  .amdhsa_kernarg_size 104
  .amdhsa_user_sgpr_count 2
  .amdhsa_user_sgpr_kernarg_segment_ptr 1
  .amdhsa_system_sgpr_workgroup_id_x 1
.end_amdhsa_kernel""")
        return "\n".join(self.L) + "\n"

    def tr_addr(self, r, sbase, tmp):
        a = self.a
        a(f"""v_lshrrev_b32 v{tmp}, 2, v0
        v_lshlrev_b32 v{r}, 7, v{tmp}
        v_and_b32 v{tmp+1}, 3, v0
        v_lshl_add_u32 v{r}, v{tmp+1}, 3, v{r}
        v_bfe_u32 v{tmp}, v0, 3, 2
        v_lshl_add_u32 v{r}, v{tmp}, 5, v{r}
        v_add_u32 v{r}, {sbase}, v{r}
        v_xor_b32 v{r+1}, 32, v{r}
        v_xor_b32 v{r+2}, 64, v{r}
        v_xor_b32 v{r+3}, 0x60, v{r}""")

    def lwave(self):
        self.cur = 'L'
        a, c = self.a, self.c; W = self.W; nt = (" " + self.nt) if self.nt else ""
        c("================= L-wave: stream wq tile, K, V into LDS; PV =================")
        a(f"""v_lshl_add_u32 v10, v6, 13, v5
        s_lshr_b32 s52, s49, 3
        s_lshl_b32 s52, s52, 2
        s_add_u32 s52, s52, s50
        s_lshl_b32 s52, s52, 18
        s_lshl_b32 s53, s48, 10
        s_add_u32 s52, s52, s53
        s_and_b32 s53, s49, 7
        s_lshl_b32 s53, s53, 7
        s_add_u32 s52, s52, s53
        s_lshl_b32 s56, s50, 12
        s_add_u32 m0, s56, {WQL}
        v_lshrrev_b32 v12, 5, v0
        v_xor_b32 v12, v12, v0
        v_lshlrev_b32 v12, 4, v12
        s_lshl_b32 s57, s50, 5
        v_xor_b32 v12, s57, v12
        v_xor_b32 v13, 0x80, v12
        s_and_b32 s53, s2, 31
        s_lshl_b32 s53, s53, 5
        s_lshr_b32 s54, s2, 5
        s_add_u32 s53, s53, s54
        s_add_u32 s53, s53, {3072*512 >> 16}
        s_lshl_b32 s53, s53, 16
        s_lshl_b32 s58, s50, 10
        s_add_u32 s54, s53, s58
        s_lshl_b32 s59, s49, 12
        s_waitcnt lgkmcnt(0)""")
        if 'nowq' in self.skip: a("s_mov_b32 s52, 0x1000000")
        if 'pst' in self.skip: self.stamp(11)
        if 'tq' in self.skip: a("s_min_u32 s64, s52, %d\ns_load_dword s64, s[12:13], s64" % (448*8192 - 64))
        if 'tk' in self.skip: a("s_load_dword s61, s[4:5], s54")
        if 'tx' in self.skip: a("s_load_dword s65, s[20:21], 0")
        if 'tw' in self.skip: a("s_load_dword s63, s[16:17], 0")
        if 'tv' in self.skip: a("s_load_dword s62, s[8:9], s54")
        def common2():
            a(f"s_mov_b32 s88, 0x80000\nv_mov_b32 v3, {FL}\ns_lshl_b32 s51, s50, 2\nv_add_u32 v2, s51, v3\nv_mov_b32 v4, 1\ns_mov_b32 s11, s15\ns_mov_b32 s10, s6")
        def heads():
            a("s_branch L_lcont")
            c("instruction-cache warm-up: waves 5..7 hop through the code with EXEC=0")
            a(f"""L_warm:
            s_cmp_eq_u32 s3, 5
            s_cbranch_scc0 L_warm2
            s_getpc_b64 s[24:25]
            L_pc:
            s_mov_b32 s26, L_end-L_pc
            s_mov_b32 s27, 0x20000
            v_lshlrev_b32 v8, 7, v0
            s_movk_i32 s52, 0x2000
            buffer_load_dword v165, v8, s[24:27], 0 offen
            buffer_load_dword v165, v8, s[24:27], s52 offen
            s_mov_b64 exec, 0
            s_branch PADCHAIN_0
            L_warm2:
            s_mov_b64 exec, 0
            s_cmp_eq_u32 s3, 6
            s_cbranch_scc1 PADCHAIN_1
            s_branch PADCHAIN_2
            WB_0:
            s_barrier
            s_branch PADSECOND_0
            WB_1:
            s_barrier
            s_branch PADSECOND_1
            WB_2:
            s_barrier
            s_branch PADSECOND_2
            L_other:""")
            a("v_mov_b32 v8, 0\nv_mov_b32 v9, 0\nv_lshlrev_b32 v10, 3, v0\ns_cmp_eq_u32 s3, 8\ns_cbranch_scc1 L_ahead")
            common2()
            a("s_cmp_eq_u32 s3, 4\ns_cbranch_scc0 L_swave\ns_branch L_shead\nL_ahead:")
            self.ahead()
            a("L_lcont:")
            common2()
            a(f"""v_lshl_add_u32 v11, v6, 9, v5
            s_lshl_b32 s55, s50, 14
            s_lshl_b32 s56, s50, 7
            s_add_u32 s53, s53, s56
            s_barrier""")
            if 'vlin' in self.skip: a("v_lshlrev_b32 v11, 4, v0\ns_mov_b32 s53, s54")
        self.common2 = common2
        WV = self.WV
        ops = [('wq', p) for p in range(4)] + [('K', p) for p in range(16)]
        if self.ord == 1: ops = [('K', 0), ('wq', 0), ('K', 1), ('wq', 1), ('K', 2), ('wq', 2), ('K', 3), ('wq', 3)] + [('K', p) for p in range(4, 16)]
        if self.ord == 2: ops = [('K', p) for p in range(4)] + [('wq', p) for p in range(4)] + [('K', p) for p in range(4, 16)]
        if self.ord == 3: ops = [('wq', 0), ('K', 0), ('K', 1), ('wq', 1), ('K', 2), ('K', 3), ('wq', 2), ('K', 4), ('K', 5), ('wq', 3)] + [('K', p) for p in range(6, 16)]
        for p in range(17):
            for kind in ('wo', 'w1', 'w2'):
                if self.pfpos[kind] == p: ops.append(('pf', kind))
            if p < 16: ops.append(('V', p))
        pos = {o: i for i, o in enumerate(ops)}
        lastV = pos[('V', 15)]
        st = dict(landed=0)
        ntp = " nt" if 'wont' in self.skip else (" " + self.ntp) if self.ntp else ""
        for n, (kind, p) in enumerate(ops):
            if kind == 'wq':
                if self.ord: a(f"s_add_u32 m0, s56, {WQL}\ns_nop 0")
                a(f"buffer_load_dwordx4 v10, s[12:15], s52 offen offset:{p*1024}{nt} lds")
                if p < 3: a(f"s_add_u32 s52, s52, {65536-1024}")
            elif kind == 'K':
                a(f"s_add_u32 m0, s58, {KL + p*4096}\ns_and_b32 s59, s59, 0xf000\ns_add_u32 s60, s54, s59")
                a(f"buffer_load_dwordx4 v{12 + (p & 1)}, s[4:7], s60 offen{nt} lds\ns_addk_i32 s59, 0x1000")
                if p == 4:
                    wofix = "" if 'wonw' not in self.skip else f"s_lshl_b32 s66, s49, 2\ns_add_u32 s66, s66, s50\ns_mul_i32 s66, s66, {50*128}\ns_mul_i32 s69, s48, {512*896}\ns_add_u32 s66, s66, s69\ns_cmp_lt_u32 s49, 18\ns_cselect_b32 s66, s66, 0x7f000000"
                    c("descriptors / offsets for the weight prefetch (one dword per 128B line into L2)")
                    self.srd(28, 32, 4096*896); self.srd(32, 64, 1792*896); self.srd(36, 48, 448*3584)
                    a(f"""s_lshl_b32 s66, s48, 5
                    s_add_u32 s66, s66, s49
                    s_mul_i32 s67, s66, 6272
                    s_mul_i32 s68, s50, {13*128}
                    s_add_u32 s67, s67, s68
                    s_lshl_b32 s66, s66, 2
                    s_add_u32 s66, s66, s50
                    s_mul_i32 s66, s66, 3584
                    {wofix}
                    s_mul_i32 s68, s49, {14*3584}
                    s_mul_i32 s69, s48, 448
                    s_andn2_b32 s69, s69, 127
                    s_add_u32 s68, s68, s69
                    s_mul_i32 s69, s50, 14
                    v_add_u32 v31, s69, v0
                    v_lshrrev_b32 v16, 2, v31
                    v_mul_u32_u24 v16, 3584, v16
                    v_and_b32 v31, 3, v31
                    v_lshl_add_u32 v31, v31, 7, v16
                    v_lshlrev_b32 v30, 7, v0""")
                if p == 8: a("s_waitcnt lgkmcnt(0)")
                if p == 5 and 'tvm' in self.skip: a("s_load_dword s62, s[8:9], s54")
            elif kind == 'V':
                a(f"s_add_u32 m0, s55, {VL + p*1024}\ns_and_b32 s59, s59, 0xf000\ns_add_u32 s60, s53, s59")
                a(f"buffer_load_dwordx4 v11, s[8:11], s60 offen{nt} lds")
                if p < 15: a("s_addk_i32 s59, 0x1000")
                if p == self.tkp: self.setflag(F_V8)
            else:
                m, va, srd, so = dict(wo=(0x0fffffff, 30, 28, 66), w1=(0x3fff, 31, 36, 68), w2=(0x1fff, 30, 32, 67))[p]
                if p == 'wo' and 'wonw' in self.skip: a(f"s_mov_b32 exec_hi, 0x3ffff\nbuffer_load_dword v165, v{va}, s[{srd}:{srd+3}], s{so} offen{ntp}\ns_mov_b64 exec, -1")
                else: a(f"s_mov_b64 exec, {hex(m)}\nbuffer_load_dword v165, v{va}, s[{srd}:{srd+3}], s{so} offen{ntp}\ns_mov_b64 exec, -1")
            n += 1
            if n == W: heads()
            w = W if n < 20 else (WV if n <= lastV - self.NE else self.WE)
            if n <= lastV and n - (w - 1) > st["landed"]:
                a(f"s_waitcnt vmcnt({w-1})")
                old = st["landed"]; st["landed"] = n - (w - 1)
                if 'pst' in self.skip: self.stamp(11 + st["landed"])
                if old < pos[('wq', 3)] + 1 <= st["landed"]: self.setflag(F_WQ); self.stamp(1)
                for u in range(4):
                    if old < pos[('K', 4*u + 3)] + 1 <= st["landed"]: self.setflag(F_KL + 16*u)
                if old < 20 <= st["landed"]: self.stamp(2)
        self.setflag(F_VI); self.stamp(3)
        assert st["landed"] >= 20
        if 'nosplit' not in self.skip:
            a("s_branch L_pv")
            self.Lmain = self.L; self.L = []; self.Lpv = self.L
            a("L_pv:")
        c("PV: address prep")
        a(f"s_add_u32 s55, s55, {VL}")
        self.tr_addr(12, "s55", 16)
        a(f"""v_bfe_u32 v20, v0, 2, 1
        v_lshlrev_b32 v22, 6, v20
        v_lshl_add_u32 v22, v7, 4, v22
        v_add_u32 v22, {SP}, v22
        v_mov_b32 v21, {ZR}
        v_and_b32 v23, 11, v0""")
        for i in range(4):
            a(f"v_cmp_eq_u32 vcc, {i}, v23\ns_nop 1\nv_cndmask_b32 v{16+i}, v21, v22, vcc")
        a(f"""v_and_b32 v28, 15, v0
        v_lshlrev_b32 v28, 3, v28
        v_lshl_add_u32 v28, v7, 12, v28
        s_lshl_b32 s56, s48, 2
        s_add_u32 s56, s56, s50
        s_lshl_b32 s56, s56, 13
        s_lshr_b32 s57, s49, 4
        s_lshl_b32 s57, s57, 11
        s_add_u32 s56, s56, s57
        s_and_b32 s57, s49, 3
        s_lshl_b32 s57, s57, 9
        s_add_u32 s56, s56, s57
        s_bfe_u32 s57, s49, 0x20002
        s_lshl_b32 s57, s57, 7
        s_add_u32 s56, s56, s57
        s_add_u32 s56, s56, {OP}""")
        if 'sa' not in self.skip: self.waitflag(F_P)
        a("v_readfirstlane_b32 s57, v8")
        self.stamp(4)
        for ks in range(4):
            for i in range(4):
                r = 64 + (ks*4 + i)*4
                a(f"ds_read_b128 v[{r}:{r+3}], v{16+i} offset:{ks*128}")
        for ks in range(4):
            for half in range(2):
                rem = len(ops) - 1 - pos[('V', 4*ks + 2*half + 1)]
                if rem < len(ops) - st['landed']: a(f"s_waitcnt vmcnt({rem})")
                if ks == 3 and half == 1: self.stamp(5)
                if self.pfpos['wo'] == 20 + 2*ks + half:
                    a(f"s_mov_b64 exec, 0x0fffffff\nbuffer_load_dword v165, v30, s[28:31], s66 offen{ntp}\ns_mov_b64 exec, -1")
                    ops.append(('pf', 'wo'))
                for i in range(4):
                    r = 32 + (ks & 1)*16 + i*4 + half*2
                    a(f"ds_read_b64_tr_b16 v[{r}:{r+1}], v{12+i} offset:{ks*4096 + half*2048}")
            for i in range(4):
                a(f"s_waitcnt lgkmcnt({3-i})")
                rb = 32 + (ks & 1)*16 + i*4; ra = 64 + (ks*4 + i)*4
                cin = "0" if (ks == 0 and i == 0) else "v[128:131]"
                a(f"v_mfma_f32_16x16x32_bf16 v[128:131], v[{ra}:{ra+3}], v[{rb}:{rb+3}], {cin}")
        a("""s_mov_b32 exec_hi, 0
        s_cmp_eq_u32 s57, 1
        s_nop 5
        v_cvt_pk_bf16_f32 v24, v128, v129
        v_cvt_pk_bf16_f32 v25, v130, v131
        v_min_u32 v24, -2, v24
        s_cbranch_scc0 L_oglob
        buffer_store_dwordx2 v[24:25], v28, s[16:19], s56 offen
        L_odone:
        s_mov_b32 exec_hi, -1""")
        self.setflag(F_PV)
        self.stamp(6)
        for p in ('wo', 'w1', 'w2'):
            if self.pfpos[p] == 17:
                m, va, srd, so = dict(wo=(0x0fffffff, 30, 28, 66), w1=(0x3fff, 31, 36, 68), w2=(0x1fff, 30, 32, 67))[p]
                a(f"s_mov_b64 exec, {hex(m)}\nbuffer_load_dword v165, v{va}, s[{srd}:{srd+3}], s{so} offen{ntp}\ns_mov_b64 exec, -1")
        if self.tkp < 0: a(("s_cmp_lt_u32 s49, 18" if 'rev' in self.skip else "s_cmp_ge_u32 s49, 14") + "\ns_cbranch_scc1 L_exit\ns_barrier")
        a("s_branch L_exit")
        a(f"""L_oglob:
        s_add_u32 s56, s56, {OPG-OP}
        buffer_store_dwordx2 v[24:25], v28, s[16:19], s56 offen sc1
        ds_read_b32 v26, v3 offset:{F_TAG}
        s_lshl_b32 s56, s48, 2
        s_add_u32 s56, s56, s50
        s_lshl_b32 s56, s56, 5
        s_add_u32 s56, s56, s49
        s_lshl_b32 s56, s56, 2
        s_add_u32 s56, s56, {RDY}
        s_mov_b64 exec, 1
        s_waitcnt vmcnt(0) lgkmcnt(0)
        buffer_store_dword v26, v28, s[16:19], s56 offen sc1
        s_mov_b64 exec, -1
        s_branch L_odone""")

    def swave_head(self):
        a, c = self.a, self.c
        c("================= S-wave 0 head: clears =================")
        a(f"""L_shead:
        v_mov_b32 v8, -1
        v_mov_b32 v9, -1
        v_mov_b32 v10, -1
        v_mov_b32 v11, -1
        v_mov_b32 v12, 0
        v_mov_b32 v13, 0
        v_lshlrev_b32 v15, 3, v0
        s_lshl_b32 s52, s48, 5
        s_add_u32 s52, s52, s49
        s_lshl_b32 s52, s52, 10
        s_add_u32 s52, s52, {OP}
        v_lshlrev_b32 v14, 4, v0
        s_lshl_b32 s55, s2, {HS}
        s_add_u32 s55, s55, {HACC}
        s_lshl_b32 s56, s48, 7
        s_add_u32 s56, s56, {TK}
        s_cmp_eq_u32 s49, 31
        s_cselect_b32 s55, s56, s55
        s_waitcnt lgkmcnt(0)""")
        if 'warmpre' in self.skip:
            a("v_lshlrev_b32 v16, 7, v0\ns_mov_b64 exec, 0xff\nbuffer_load_dword v165, v16, s[16:19], s52 offen sc1\ns_mov_b64 exec, -1")
        else: a("buffer_store_dwordx4 v[8:11], v14, s[16:19], s52 offen")
        if 'wst' in self.skip:
            c("allocate the lines this workgroup publishes later (stats, q partial) in L2: contents are not used")
            a(f"""s_lshl_b32 s53, s48, 2
            s_and_b32 s54, s49, 3
            s_add_u32 s53, s53, s54
            s_lshl_b32 s53, s53, 3
            s_lshr_b32 s54, s2, 5
            s_add_u32 s53, s53, s54
            s_lshl_b32 s53, s53, 7
            s_add_u32 s53, s53, {STAT}
            s_mov_b64 exec, 1
            buffer_load_dword v165, v12, s[16:19], s53 offen sc1
            s_mov_b64 exec, -1""")
        if 'wqp' in self.skip:
            a(f"""s_lshr_b32 s53, s49, 3
            s_lshl_b32 s53, s53, 16
            s_lshl_b32 s54, s48, 11
            s_add_u32 s53, s53, s54
            s_and_b32 s54, s49, 7
            s_lshl_b32 s54, s54, 8
            s_add_u32 s53, s53, s54
            s_add_u32 s53, s53, {QPL}
            v_lshrrev_b32 v16, 1, v0
            v_lshlrev_b32 v16, 14, v16
            v_and_b32 v17, 1, v0
            v_lshl_add_u32 v16, v17, 7, v16
            s_mov_b64 exec, 0xff
            buffer_load_dword v165, v16, s[16:19], s53 offen sc1
            s_mov_b64 exec, -1""")
        a(f"""s_sub_u32 s54, s49, 16
        s_cmp_lt_u32 s54, 15
        s_cbranch_scc1 L_noz
        s_mov_b64 exec, 0xffff
        buffer_store_dwordx2 v[12:13], v15, s[16:19], s55 offen sc1
        s_mov_b64 exec, -1
        L_noz:
        s_barrier
        s_waitcnt vmcnt(0)""")
        if 'warmpre' in self.skip: a("buffer_store_dwordx4 v[8:11], v14, s[16:19], s52 offen\ns_waitcnt vmcnt(0)")
        self.setflag(F_CLR, "v3")
        if 'nowarmpost' not in self.skip:
            a("v_lshlrev_b32 v16, 7, v0\ns_mov_b64 exec, 0xff\nbuffer_load_dword v165, v16, s[16:19], s52 offen sc1\ns_mov_b64 exec, -1")
        a("s_branch L_swave")

    def dpp_allred16(self, op, regs):
        for rot in (8, 4, 2, 1):
            for r in regs:
                self.a(f"{op}_dpp v{r}, v{r}, v{r} row_ror:{rot} row_mask:0xf bank_mask:0xf")
            self.a("s_nop %d" % max(0, 2 - len(regs)))

    def ahead(self):
        a, c = self.a, self.c
        c("A-wave head: x loads first")
        a(f"""{'' if 'noprio' in self.skip else 's_setprio 3'}
        v_and_b32 v12, 15, v0
        v_mul_u32_u24 v13, 896, v7
        v_lshl_add_u32 v14, v12, 3, v13
        v_lshl_add_u32 v13, v12, 4, v13
        s_lshr_b32 s52, s49, 3
        s_lshl_b32 s53, s52, 8
        s_mov_b32 s54, {EPO}
        {'s_barrier' if 'bar1' in self.skip else ''}
        s_waitcnt lgkmcnt(0)
        {'s_load_dword s56, s[20:21], 0' if 'xtouch' in self.skip else ''}
        {'s_load_dword s57, s[16:17], s54' if 'xtouch' in self.skip else ''}
        {'s_sleep 1' if 'x1' in self.skip else ''}
        {'s_sleep 3' if 'x3' in self.skip else ''}
        {'s_waitcnt lgkmcnt(0)' if 'xwait' in self.skip else ''}
        buffer_load_dwordx4 v[16:19], v13, s[20:23], 0 offen
        buffer_load_dwordx4 v[20:23], v13, s[20:23], 0 offen offset:256
        buffer_load_dwordx4 v[24:27], v13, s[20:23], 0 offen offset:512
        buffer_load_dwordx2 v[28:29], v14, s[20:23], 0 offen offset:768
        buffer_load_dwordx4 v[30:33], v13, s[20:23], s53 offen
        {'s_barrier' if 'abar1' in self.skip else ''}
        buffer_load_dword v110, v8, s[16:19], s54 offen sc1
        s_branch L_awave""")

    def awave(self):
        self.cur = 'A'
        a, c = self.a, self.c
        c("================= A-wave: LN1, q partial, q gather, softmax, stats =================")
        a("L_awave:")
        a(f"ds_write_b64 v10, v[8:9] offset:{ZR}\nds_write_b64 v10, v[8:9] offset:{FL}")
        self.common2()
        a("s_waitcnt lgkmcnt(0)\ns_barrier")
        a(f"s_mov_b32 s54, {WQL}")
        self.tr_addr(100, "s54", 104)
        a(f"""v_bfe_u32 v104, v0, 2, 2
        v_lshlrev_b32 v104, 8, v104
        v_lshl_add_u32 v104, v7, 3, v104
        v_add_u32 v104, {XN}, v104
        v_lshlrev_b32 v106, 14, v7
        v_lshl_add_u32 v106, v12, 4, v106
        v_lshlrev_b32 v108, 4, v0
        s_mov_b32 s60, 0xffff0000
        v_mov_b32 v109, 0x3f803f80
        s_waitcnt vmcnt(1)""")
        self.stamp(1)
        c("row sums and sums of squares (16 lanes per batch row), own 8 values -> v64..71")
        for i in range(14):
            a(f"v_dot2_f32_bf16 v72, v{16+i}, v109, {'0' if i == 0 else 'v72'}\nv_dot2_f32_bf16 v73, v{16+i}, v{16+i}, {'0' if i == 0 else 'v73'}")
        for i in range(4):
            a(f"v_lshlrev_b32 v{64+2*i}, 16, v{30+i}\nv_and_b32 v{65+2*i}, s60, v{30+i}")
        self.dpp_allred16("v_add_f32", [72, 73])
        a(f"""v_mul_f32 v72, {hex(f2u(1/448))}, v72
        v_mul_f32 v73, {hex(f2u(1/448))}, v73
        v_fma_f32 v73, -v72, v72, v73
        v_max_f32 v73, 0, v73
        v_cvt_pk_bf16_f32 v74, v72, v73
        v_lshlrev_b32 v72, 16, v74
        v_and_b32 v73, s60, v74
        v_add_f32 v73, {hex(f2u(1e-5))}, v73
        v_cvt_pk_bf16_f32 v73, v73, v73
        v_and_b32 v73, s60, v73
        v_sqrt_f32 v73, v73
        s_nop 0
        v_cvt_pk_bf16_f32 v73, v73, v73
        v_and_b32 v73, s60, v73
        v_rcp_f32 v73, v73""")
        for i in range(4):
            a(f"""v_sub_f32 v{64+2*i}, v{64+2*i}, v72
            v_sub_f32 v{65+2*i}, v{65+2*i}, v72
            v_cvt_pk_bf16_f32 v74, v{64+2*i}, v{65+2*i}
            v_lshlrev_b32 v75, 16, v74
            v_and_b32 v76, s60, v74
            v_mul_f32 v75, v75, v73
            v_mul_f32 v76, v76, v73
            v_cvt_pk_bf16_f32 v{30+i}, v75, v76""")
        a(f"ds_write_b128 v108, v[30:33] offset:{XN}")
        for ks in range(4):
            a(f"ds_read2_b64 v[{16+4*ks}:{19+4*ks}], v104 offset0:{ks*8} offset1:{ks*8+4}")
        self.stamp(2)
        self.waitflag(F_WQ, n=4, t="v96", sleep=False)
        self.stamp(3)
        for ks in range(4):
            for i in range(4):
                for half in range(2):
                    r = 32 + (ks*4 + i)*4 + half*2
                    a(f"ds_read_b64_tr_b16 v[{r}:{r+1}], v{100+i} offset:{ks*4096 + half*2048}")
            if ks & 1:
                a("s_waitcnt lgkmcnt(0)")
                for k2 in (ks-1, ks):
                    for i in range(4):
                        r = 32 + (k2*4 + i)*4; d = 112 + 4*i
                        cin = "0" if k2 == 0 else f"v[{d}:{d+3}]"
                        a(f"v_mfma_f32_16x16x32_bf16 v[{d}:{d+3}], v[{16+4*k2}:{19+4*k2}], v[{r}:{r+3}], {cin}")
        self.waitflag(F_CLR)
        self.stamp(4)
        a(f"""s_waitcnt vmcnt(0)
        v_add_u32 v110, 1, v110
        s_getreg_b32 s62, hwreg(HW_REG_XCC_ID, 0, 4)
        ds_write_b32 v3, v110 offset:{F_TAG}
        s_mov_b32 s58, 0xaaaaaaaa
        s_mov_b32 s59, 0xaaaaaaaa
        v_lshrrev_b32 v125, 4, v110
        v_lshrrev_b32 v126, 8, v110
        v_lshrrev_b32 v127, 16, v110
        v_cndmask_b32 v126, v126, v127, s[58:59]
        v_lshrrev_b32 v127, 12, v110
        v_mov_b32 v113, s62
        v_cndmask_b32 v127, v127, v113, s[58:59]
        v_add_u32 v112, 8, v112
        v_add_u32 v113, 8, v116
        v_add_u32 v114, 8, v120
        v_add_u32 v115, 8, v124
        v_bfi_b32 v112, 15, v110, v112
        v_bfi_b32 v113, 15, v125, v113
        v_bfi_b32 v114, 15, v126, v114
        v_bfi_b32 v115, 15, v127, v115
        s_lshl_b32 s53, s52, 16
        s_lshl_b32 s54, s48, 11
        s_add_u32 s53, s53, s54
        s_and_b32 s55, s49, 7
        s_lshl_b32 s55, s55, 8
        s_add_u32 s53, s53, s55
        s_add_u32 s55, s53, {QPL}
        buffer_store_dwordx4 v[112:115], v106, s[16:19], s55 offen
        s_and_b32 s55, s49, 3
        s_lshl_b32 s55, s55, 14
        s_add_u32 s54, s54, s55
        s_add_u32 s55, s54, 0x10000
        s_add_u32 s56, s54, 0x20000
        s_add_u32 s57, s54, 0x30000""")
        if self.qg < 0:
            a(f"s_waitcnt vmcnt({1 if self.qg == -2 else 0})")
            if self.qd: a(f"s_sleep {self.qd}")
        else:
            c("gather once K is well under way: every member of the group has published by then")
            self.waitflag(F_KL + 16*self.qg)
        self.stamp(9)
        c("q gather")
        tg = [110, 125, 126, 127]
        c("the L2-resident copy is complete only if the whole group sits on this XCD; after three misses publish a")
        c("write-through copy as well and alternate between the two")
        a(f"""v_add_u32 v108, {QPL}, v108
        s_mov_b32 s63, 0
        L_qg:
        s_add_u32 s63, s63, 1
        s_cmp_lt_u32 s63, 4
        s_cbranch_scc1 L_qg2
        v_xor_b32 v108, {QPL}, v108
        s_cmp_lg_u32 s63, 4
        s_cbranch_scc1 L_qg2
        buffer_store_dwordx4 v[112:115], v106, s[16:19], s53 offen sc1
        L_qg2:""")
        for rg in range(4):
            for z in range(2):
                r = 16 + (rg*2 + z)*4
                a(f"buffer_load_dwordx4 v[{r}:{r+3}], v108, s[16:19], s{54+rg} offen offset:{z*1024} sc1")
        a(f"s_waitcnt vmcnt(0)\nv_xor_b32 v8, v16, v110\nv_xor_b32 v119, v19, v127")
        for k in range(1, 32):
            if k == 3: continue
            d = 119 if (k & 3) == 3 else 8
            a(f"v_bitop3_b32 v{d}, v{d}, v{16+k}, v{tg[k & 3]} bitop3:0xf6")
        a("v_cndmask_b32 v9, v119, 0, s[58:59]\nv_or_b32 v8, v8, v9\nv_and_b32 v8, 15, v8\nv_cmp_ne_u32 vcc, 0, v8")
        self.retry("L_qg")
        a("L_qgskip:")
        for k in range(32): a(f"v_and_b32 v{16+k}, -16, v{16+k}")
        for k in range(8):
            a(f"v_add_f32 v{80+k}, v{16+k}, v{24+k}\nv_add_f32 v{88+k}, v{32+k}, v{40+k}")
        self.stamp(5)
        for k in range(8):
            a(f"v_add_f32 v{80+k}, v{80+k}, v{88+k}")
        a(f"v_lshlrev_b32 v9, 7, v7\nv_lshl_add_u32 v9, v12, 1, v9")
        for k in range(4):
            a(f"v_cvt_pk_bf16_f32 v{88+k}, v{80+2*k}, v{81+2*k}")
        for k in range(4):
            z = k >> 1; i = (k & 1)*2
            a(f"ds_write_b16 v9, v{88+k} offset:{QB + z*512 + i*32}\nds_write_b16_d16_hi v9, v{88+k} offset:{QB + z*512 + i*32 + 32}")
        self.setflag(F_Q, "v3")
        a(f"v_and_b32 v119, 15, v119\nv_cmp_ne_u32 vcc, 0, v119\ns_cmp_eq_u64 vcc, 0\ns_cselect_b32 s62, {2 if 'noloc' in self.skip else 1}, 2\nv_mov_b32 v119, s62")
        a("s_cbranch_scc1 L_quni\nbuffer_store_dwordx4 v[112:115], v106, s[16:19], s53 offen sc1\nL_quni:")
        a(f"""s_cmp_lg_u32 s49, 31
        s_cbranch_scc1 L_nogr
        s_lshl_b32 s53, s48, 2
        s_add_u32 s53, s53, {GR}
        s_mov_b64 exec, 1
        buffer_store_dword v110, v10, s[16:19], s53 offen sc1
        s_mov_b64 exec, -1
        L_nogr:""")
        c("softmax over the 128 local keys, 2 heads")
        a(f"""s_lshl_b32 s53, s48, 2
        s_and_b32 s54, s49, 3
        s_add_u32 s53, s53, s54
        s_lshl_b32 s53, s53, 10
        s_add_u32 s53, s53, {STAT}
        s_lshr_b32 s54, s2, 5
        s_lshl_b32 s54, s54, 7
        s_add_u32 s54, s54, s53
        s_mov_b32 s61, {hex(f2u(1.4426950408889634/16))}
        v_add_u32 v30, -4, v0
        v_lshlrev_b32 v30, 4, v30
        """)
        self.waitflag(F_S, n=4, t="v96", sleep=False)
        self.stamp(6)
        a(f"""ds_read_b64 v[16:17], v10 offset:{SP}
        s_waitcnt lgkmcnt(0)
        v_lshlrev_b32 v18, 16, v16
        v_and_b32 v19, s60, v16
        v_lshlrev_b32 v20, 16, v17
        v_and_b32 v21, s60, v17
        v_max_f32 v22, v18, v19
        v_max3_f32 v22, v22, v20, v21""")
        def red8x4(op, r, t):
            a(f"""s_nop 1
            {op}_dpp v{r}, v{r}, v{r} quad_perm:[1,0,3,2] row_mask:0xf bank_mask:0xf
            s_nop 1
            {op}_dpp v{r}, v{r}, v{r} quad_perm:[2,3,0,1] row_mask:0xf bank_mask:0xf
            s_nop 1
            {op}_dpp v{r}, v{r}, v{r} row_half_mirror row_mask:0xf bank_mask:0xf
            v_mov_b32 v{t}, v{r}
            s_nop 1
            v_permlane16_swap_b32 v{r}, v{t}
            {op} v{r}, v{r}, v{t}
            v_mov_b32 v{t}, v{r}
            s_nop 1
            v_permlane32_swap_b32 v{r}, v{t}
            {op} v{r}, v{r}, v{t}""")
        red8x4("v_max_f32", 22, 24)
        for k in range(4):
            a(f"v_sub_f32 v{18+k}, v{18+k}, v22\nv_mul_f32 v{18+k}, s61, v{18+k}\nv_exp_f32 v{18+k}, v{18+k}")
        a(f"""s_nop 0
        v_cvt_pk_bf16_f32 v16, v18, v19
        v_cvt_pk_bf16_f32 v17, v20, v21
        ds_write_b64 v10, v[16:17] offset:{SP}""")
        a(f"ds_write_b32 v3, v119 offset:{F_P}")
        a("v_add_f32 v23, v18, v19\nv_add_f32 v24, v20, v21\nv_add_f32 v23, v23, v24")
        red8x4("v_add_f32", 23, 24)
        a(f"""v_mov_b32 v24, v110
        v_mov_b32 v25, 0
        s_mov_b64 exec, 0xff0
        s_cmp_eq_u32 s62, 1
        s_cbranch_scc1 L_sloc
        buffer_store_dwordx4 v[22:25], v30, s[16:19], s54 offen sc1
        s_branch L_exit
        L_sloc:
        buffer_store_dwordx4 v[22:25], v30, s[16:19], s54 offen
        """)
        self.stamp(7)
        a("s_branch L_exit")

    def swave(self):
        self.cur = 'S'
        a, c = self.a, self.c
        c("================= S-wave: scores =================")
        a("L_swave:")
        a(f"""v_and_b32 v12, 15, v0
        v_xor_b32 v13, v7, v12
        v_lshlrev_b32 v13, 4, v13
        v_lshl_add_u32 v13, v12, 9, v13
        s_lshl_b32 s55, s50, 14
        s_add_u32 s55, s55, {KL}
        v_add_u32 v13, s55, v13
        v_xor_b32 v14, 64, v13
        v_xor_b32 v15, 0x80, v13
        v_xor_b32 v16, 0xc0, v13
        v_and_b32 v17, 1, v0
        v_lshlrev_b32 v18, 9, v17
        v_lshl_add_u32 v18, v7, 4, v18
        v_lshlrev_b32 v17, 6, v17
        v_lshl_add_u32 v17, v7, 4, v17
        s_lshl_b32 s56, s50, 7
        v_add_u32 v17, s56, v17""")
        c("weights prefetch addresses: u=0,1 wo ; u=2 w2 ; u=3 w1")
        self.srd(28, 32, 4096*896)
        self.srd(32, 64, 1792*896)
        self.srd(36, 48, 448*3584)
        self.srd(40, 56, 3584)
        if 'notouch2' not in self.skip:
            a("s_cmp_lg_u32 s50, 1\ns_cbranch_scc1 L_notouch\ns_cmp_lg_u32 s49, 30\ns_cbranch_scc1 L_notouch")
            a("s_load_dwordx4 s[72:75], s[0:1], 72")
            self.waitflag(F_KL, "v2")
            if 'tall' in self.skip:
                a(f"s_mul_i32 s57, s48, {512*896}\ns_load_dword s65, s[28:29], s57\ns_add_u32 s57, s57, {512*896-64}\ns_load_dword s66, s[28:29], s57\ns_load_dword s67, s[36:37], 0")
            a(f"""s_load_dword s62, s[32:33], 0
            s_load_dword s64, s[40:41], 0
            s_load_dword s60, s[72:73], 0
            s_load_dword s61, s[74:75], 0
            L_notouch:""")
        a("s_lshl_b32 s56, s50, 4\nv_add_u32 v19, s56, v3")
        self.waitflag(F_KL, "v19", n=4)
        self.stamp(1)
        for ks in range(8):
            for T in range(2):
                r = 64 + (T*8 + ks)*4
                a(f"ds_read_b128 v[{r}:{r+3}], v{13 + (ks & 3)} offset:{(ks >> 2)*256 + T*8192}")
        if self.tkp == 100:
            a(f"""s_cmp_lg_u32 s50, 0
            s_cbranch_scc1 L_tki""")
            self.waitflag(F_Q)
            a(f"""s_lshl_b32 s56, s48, 7
            s_add_u32 s56, s56, {TK}
            v_mov_b32 v163, 1
            v_mov_b32 v9, 0
            s_mov_b64 exec, 1
            buffer_atomic_add v163, v9, s[16:19], s56 offen sc0 sc1
            s_mov_b64 exec, -1
            L_tki:""")
        self.waitflag(F_Q, sleep=False)
        self.stamp(2)
        a(f"ds_read_b32 v164, v3 offset:{F_TAG}")
        for ks in range(8):
            a(f"ds_read_b128 v[{32+4*ks}:{35+4*ks}], v18 offset:{QB + ks*64}")
        for ks in range(8):
            a(f"s_waitcnt lgkmcnt({7-ks})")
            for T in range(2):
                r = 64 + (T*8 + ks)*4; d = 20 + 4*T
                cin = "0" if ks == 0 else f"v[{d}:{d+3}]"
                a(f"v_mfma_f32_16x16x32_bf16 v[{d}:{d+3}], v[{r}:{r+3}], v[{32+4*ks}:{35+4*ks}], {cin}")
        a("s_nop 7")
        for k in range(4):
            a(f"v_cvt_pk_bf16_f32 v{28+k}, v{20+2*k}, v{21+2*k}")
        a(f"""s_mov_b32 exec_lo, 0x00030003
        s_mov_b32 exec_hi, 0x00030003
        ds_write_b128 v17, v[28:31] offset:{SP}
        s_mov_b64 exec, -1""")
        self.setflag(F_S)
        self.stamp(3)
        if 'roles' in self.skip: a("s_branch L_exit")
        if 'warmlate' in self.skip:
            c("keep this workgroup's share of the cleared o lines in L2 until they are polled")
            a(f"""s_cmp_lg_u32 s50, 1
            s_cbranch_scc1 L_nowm
            s_lshl_b32 s56, s48, 5
            s_add_u32 s56, s56, s49
            s_lshl_b32 s56, s56, 10
            s_add_u32 s56, s56, {OP}
            v_lshlrev_b32 v9, 7, v0
            s_mov_b64 exec, 0xff
            buffer_load_dword v165, v9, s[16:19], s56 offen sc1
            s_mov_b64 exec, -1
            L_nowm:""")
        c("role-independent part of the WO setup (hidden behind the ticket round trip)")
        a(f"""s_lshr_b32 s68, s50, 1
        s_and_b32 s69, s50, 1
        s_lshl_b32 s54, s48, 1
        s_add_u32 s54, s54, s68
        s_lshl_b32 s54, s54, 2
        s_add_u32 s54, s54, s69
        s_mul_i32 s54, s54, {64*896}
        v_and_b32 v20, 3, v6
        v_lshlrev_b32 v20, 4, v20
        v_lshrrev_b32 v21, 5, v0
        v_lshl_add_u32 v20, v21, 1, v20
        v_mul_u32_u24 v20, 896, v20
        v_add_u32 v20, v20, v5
        v_lshrrev_b32 v15, 1, v0
        v_lshlrev_b32 v15, 7, v15
        s_lshl_b32 s59, s48, 12
        s_lshl_b32 s56, s68, 6
        s_add_u32 s59, s59, s56
        s_add_u32 s59, s59, {STAT}""")
        if self.tkp == 100:
            a(f"""s_cmp_lg_u32 s50, 0
            s_cbranch_scc1 L_tkw
            s_mov_b64 exec, 1
            s_waitcnt vmcnt(0)
            v_add_u32 v8, 1, v163
            ds_write_b32 v3, v8 offset:{F_TK}
            s_mov_b64 exec, -1
            L_tkw:""")
            self.waitflag(F_TK, sleep=False)
            a("v_readfirstlane_b32 s49, v8\ns_nop 0\ns_sub_u32 s49, s49, 1")
            if self.prof: a("v_writelane_b32 v167, s49, 61")
        elif self.tkp >= 0:
            a("s_cmp_lg_u32 s50, 0\ns_cbranch_scc1 L_tkw")
            self.waitflag(F_V8, "v2")
            a(f"""s_lshl_b32 s56, s48, 7
            s_add_u32 s56, s56, {TK}
            v_mov_b32 v8, 1
            v_mov_b32 v9, 0
            s_mov_b64 exec, 1
            buffer_atomic_add v8, v9, s[16:19], s56 offen sc0 sc1
            s_waitcnt vmcnt(0)
            v_add_u32 v8, 1, v8
            ds_write_b32 v3, v8 offset:{F_TK}
            s_mov_b64 exec, -1
            L_tkw:""")
            self.waitflag(F_TK, sleep=False)
            a("v_readfirstlane_b32 s49, v8\ns_nop 0\ns_sub_u32 s49, s49, 1")
            if self.prof: a("v_writelane_b32 v167, s49, 61")
        if 'rev' in self.skip: a("s_sub_u32 s49, 31, s49")
        if 'rev' in self.skip and self.prof: a("v_writelane_b32 v167, s49, 61")
        a("""v_readfirstlane_b32 s70, v164
        s_cmp_lt_u32 s49, 14
        s_cbranch_scc1 L_wo
        s_mov_b32 s71, s70""")
        if self.hlp:
            if 'B' in self.hlp:
                a("s_cmp_ge_u32 s49, 28\ns_cbranch_scc1 L_exit\ns_cmp_lt_u32 s49, 21\ns_cselect_b32 s56, 7, -7\ns_add_u32 s49, s49, s56")
            elif 'C' in self.hlp:
                a("s_cmp_ge_u32 s49, 30\ns_cbranch_scc1 L_exit\ns_cmp_lt_u32 s49, 23\ns_cselect_b32 s56, 7, -9\ns_add_u32 s49, s49, s56")
            else:
                a("s_cmp_lt_u32 s49, 25\ns_cselect_b32 s56, 7, -11\ns_add_u32 s49, s49, s56")
            if self.prof: a("v_writelane_b32 v167, s49, 61")
        if 'nomlp' in self.skip: a("s_branch L_exit")
        if 'nomlpwg' in self.skip: a("s_cmp_lt_u32 s49, 21\ns_cbranch_scc1 L_exit")
        a("""s_cmp_lt_u32 s49, 21
        s_cbranch_scc1 L_mlp""")
        if self.hlp:
            c("helpers: pull this XCD's share of w1 / w2 into L2")
            ntp = (" " + self.ntp) if self.ntp else ""
            n1, n2 = (64, 56) if 'B' in self.hlp else (50, 44) if 'C' in self.hlp else (41, 36)
            a(f"""s_sub_u32 s56, s49, 21
            s_lshl_b32 s56, s56, 2
            s_add_u32 s56, s56, s50
            s_mul_i32 s57, s56, {n1}
            v_add_u32 v9, s57, v0
            v_lshrrev_b32 v10, 2, v9
            v_mul_u32_u24 v10, 3584, v10
            v_and_b32 v9, 3, v9
            v_lshl_add_u32 v14, v9, 7, v10
            s_mul_i32 s57, s48, 448
            s_andn2_b32 s57, s57, 127
            v_lshlrev_b32 v13, 7, v0
            s_mul_i32 s56, s56, {n2*128}
            s_mul_i32 s58, s48, {224*896}
            s_add_u32 s56, s56, s58""")
            if 'o' in self.hlp: self.waitflag(F_PV, "v2", sleep=False)
            else: self.waitflag(F_PV if 'p' in self.hlp else F_VI, n=4, t="v8", sleep=False)
            if '1' in self.hlp: a(f"s_mov_b32 exec_hi, {hex((1 << (n1 - 32)) - 1)}\nbuffer_load_dword v165, v14, s[36:39], s57 offen{ntp}")
            if 'x' in self.hlp:
                a("s_mov_b32 exec_hi, -1"); self.waitflag(F_PV, n=4, t="v8", sleep=False)
            if '2' in self.hlp: a(f"s_mov_b32 exec_hi, {hex((1 << (n2 - 32)) - 1)}\nbuffer_load_dword v165, v13, s[32:35], s56 offen{ntp}")
            a("s_mov_b32 exec_hi, -1")
        if 'nofin' in self.skip: a("s_branch L_exit")
        a("""s_cmp_lt_u32 s49, 28
        s_cbranch_scc0 L_exit
        s_cmp_ge_u32 s50, 2
        s_cbranch_scc1 L_fin
        s_branch L_exit""")

    def role_wo(self):
        self.cur = 'WO'
        a, c = self.a, self.c; ntw = (" " + self.ntw) if self.ntw else ""
        c("================= role WO =================")
        a("L_wo:")
        a(f"""s_cmp_ge_u32 s49, 7
        s_cselect_b32 s52, 1, 0
        s_mul_i32 s53, s52, 7
        s_sub_u32 s53, s49, s53
        s_mul_i32 s56, s52, {128*896}
        s_add_u32 s54, s54, s56
        s_lshl_b32 s56, s53, 7
        s_add_u32 s54, s54, s56""")
        self.stamp(10)
        self.waitflag(F_VI, n=4, t="v8", sleep=False)
        a("buffer_load_dwordx3 v[16:18], v15, s[16:19], s59 offen sc1")
        for p in range(8):
            rows = 4*(p & 1) + ((p >> 1) & 1) + 8*(p >> 2)
            a(f"s_add_u32 m0, s55, {p*1024}\ns_add_u32 s56, s54, {rows*896}")
            a(f"buffer_load_dwordx4 v20, s[28:31], s56 offen{ntw} lds")
        a(f"""v_lshlrev_b32 v23, 2, v0
        v_and_b32 v29, 28, v23
        s_mov_b32 s61, {GR}
        buffer_load_dword v31, v29, s[16:19], s61 offen sc1""")
        self.tr_addr(160, "s55", 21)
        a(f"""v_xor_b32 v21, v0, v6
        v_lshlrev_b32 v21, 4, v21
        v_and_b32 v22, 7, v0
        v_xor_b32 v12, v7, v22
        v_lshlrev_b32 v12, 4, v12
        v_and_b32 v22, 15, v0
        v_lshl_add_u32 v12, v22, 7, v12
        s_add_u32 s72, s55, 8192
        v_add_u32 v12, s72, v12
        v_xor_b32 v13, 64, v12
        v_and_b32 v22, 3, v0
        s_lshl_b32 s57, s48, 2
        s_lshl_b32 s56, s52, 1
        s_add_u32 s57, s57, s56
        s_add_u32 s57, s57, s69
        s_lshl_b32 s57, s57, 1
        s_add_u32 s57, s57, s68
        s_lshl_b32 s57, s57, 12
        s_add_u32 s57, s57, {OP}
        s_mov_b32 s69, {hex(f2u(1.4426950408889634/16))}
        s_lshl_b32 s56, s50, 10
        v_add_u32 v24, s56, v23
        v_add_u32 v24, {RED}, v24""")
        a(f"""v_lshrrev_b32 v25, 5, v0
        v_lshlrev_b32 v25, 8, v25
        v_bfe_u32 v26, v0, 2, 3
        v_lshl_add_u32 v25, v26, 3, v25
        v_and_b32 v26, 1, v0
        v_lshl_add_u32 v25, v26, 2, v25
        s_lshl_b32 s56, s50, 6
        s_add_u32 s56, s56, {RED}
        v_add_u32 v25, s56, v25
        v_cmp_eq_u32 vcc, 2, v22
        v_mov_b32 v26, 1.0
        s_lshl_b32 s58, s50, {HS+5}
        v_cndmask_b32 v26, 0, v26, vcc
        s_lshl_b32 s56, s53, {HS+2}
        s_add_u32 s58, s58, s56
        s_add_u32 s58, s58, {HACC}
        v_and_b32 v23, 0x7c, v23
        v_lshrrev_b32 v22, 5, v0
        v_lshl_add_u32 v23, v22, {HS}, v23
        v_mov_b32 v27, v26
        v_lshlrev_b32 v30, 10, v0
        s_lshl_b32 s60, s48, 2
        s_lshl_b32 s62, s52, 7
        s_add_u32 s60, s60, s62
        s_lshl_b32 s62, s53, 13
        s_add_u32 s60, s60, s62
        s_lshl_b32 s62, s50, 8
        s_add_u32 s60, s60, s62
        s_add_u32 s60, s60, {EW}""")
        a("s_waitcnt vmcnt(9)\nv_cmp_ne_u32 vcc, v18, v164\ns_cbranch_vccnz L_stwait\nL_stok:")
        c("combine weights w[b][h][j] = exp(m_j - M) / L")
        a("v_mov_b32 v19, v16\ns_nop 1")
        for rot in (8, 4, 2):
            a(f"v_max_f32_dpp v19, v19, v19 row_ror:{rot} row_mask:0xf bank_mask:0xf\ns_nop 1")
        a("v_sub_f32 v16, v16, v19\nv_mul_f32 v16, s69, v16\nv_exp_f32 v16, v16\ns_nop 0\nv_mul_f32 v17, v17, v16\ns_nop 1")
        for rot in (8, 4, 2):
            a(f"v_add_f32_dpp v17, v17, v17 row_ror:{rot} row_mask:0xf bank_mask:0xf\ns_nop 1")
        a("v_rcp_f32 v17, v17\ns_nop 0\nv_mul_f32 v16, v16, v17\ns_nop 1")
        for j in range(8):
            a(f"v_mov_b32_dpp v{96+j}, v16 row_newbcast:{2*j} row_mask:0xf bank_mask:0xf")
        a(f"ds_read_b32 v8, v3 offset:{F_P}\ns_waitcnt lgkmcnt(0)\nv_cmp_ne_u32 vcc, 1, v8\ns_cbranch_vccnz L_wglob\nL_wgok:")
        if 'nopipe' in self.skip: a("s_waitcnt vmcnt(0)")
        else:
            a("s_mov_b32 m0, s72\ns_nop 0")
            for q in range(4): a(f"buffer_load_dwordx4 v21, s[16:19], s57 offen offset:{q*1024} sc1 lds")
            a("s_waitcnt vmcnt(5)")
        self.stamp(4)
        for z in range(2):
            for i in range(4):
                for half in range(2):
                    r = 128 + (z*4 + i)*4 + half*2
                    a(f"ds_read_b64_tr_b16 v[{r}:{r+1}], v{160+i} offset:{z*4096 + half*2048}")
        l = self.lab("OP")
        def osweep():
            for q in range(4):
                a(f"buffer_load_dwordx4 v21, s[16:19], s57 offen offset:{q*1024} sc1 lds")
        if 'nopipe' in self.skip:
            a(f"s_mov_b32 m0, s72\n{l}:\ns_nop 0"); osweep(); a("s_waitcnt vmcnt(0)")
        else:
            a(f"{l}:\ns_xor_b32 m0, m0, 0x1000\ns_nop 0"); osweep(); a("s_waitcnt vmcnt(4)")
        for z in range(2):
            for st_ in range(2):
                r = 32 + (z*2 + st_)*4
                a(f"ds_read_b128 v[{r}:{r+3}], v{12+z} offset:{st_*2048}")
        if 'nopipe' not in self.skip: a("v_xor_b32 v12, 0x1000, v12\nv_xor_b32 v13, 0x1000, v13")
        def ew(k):
            if self.ewp == k:
                a("s_mov_b64 exec, 0xff\nbuffer_store_dword v164, v30, s[16:19], s60 offen sc1\ns_mov_b64 exec, -1")
        def mf(i, z, st_):
            d = 64 + (i*2 + st_)*4; ra = 32 + (z*2 + st_)*4; rb = 128 + (z*4 + i)*4
            cin = "0" if z == 0 else f"v[{d}:{d+3}]"
            a(f"v_mfma_f32_16x16x32_bf16 v[{d}:{d+3}], v[{ra}:{ra+3}], v[{rb}:{rb+3}], {cin}")
        def fm(i, st_, r):
            d = 64 + (i*2 + st_)*4; acc = 48 + 4*i + st_
            if r == 0: a(f"v_mul_f32 v{acc}, v{d}, v{96+4*st_}")
            else: a(f"v_fmac_f32 v{acc}, v{d+r}, v{96+4*st_+r}")
        c("tile 0 starts speculatively while the sentinels are checked")
        a("s_waitcnt lgkmcnt(3)"); mf(0, 0, 0)
        a("s_waitcnt lgkmcnt(2)"); mf(0, 0, 1)
        a("v_max3_u32 v28, v32, v34, v36\ns_waitcnt lgkmcnt(1)"); mf(0, 1, 0)
        a("v_max3_u32 v14, v38, v40, v42\ns_waitcnt lgkmcnt(0)"); mf(0, 1, 1)
        a("v_max3_u32 v28, v28, v44, v46\nv_max_u32 v28, v28, v14\nv_cmp_eq_u32 vcc, -1, v28")
        mf(1, 0, 0)
        self.retry(l)
        if self.ewp in (0, 4): a("s_barrier")
        ew(0)
        self.stamp(5)
        seq = [(1, 0, 1), (1, 1, 0), (1, 1, 1)] + [(i, z, st_) for i in (2, 3) for z in range(2) for st_ in range(2)]
        fq = [(i, st_, r) for i in range(4) for r in range(4) for st_ in range(2)]
        for k, m in enumerate(seq):
            mf(*m)
            if k >= 1:
                for _ in range(2): fm(*fq.pop(0))
            if k == 5: a("v_add_f32 v48, v48, v49")
            if k == self.ewk: ew(4)
        a("v_add_f32 v52, v52, v53")
        for _ in range(2): fm(*fq.pop(0))
        a("ds_write2st64_b32 v24, v48, v52 offset0:0 offset1:1")
        for _ in range(2): fm(*fq.pop(0))
        a("v_cmp_ne_u32 vcc, v31, v164\nv_add_f32 v56, v56, v57")
        while fq: fm(*fq.pop(0))
        a("v_add_f32 v60, v60, v61")
        a("ds_write2st64_b32 v24, v56, v60 offset0:2 offset1:3")
        a("s_cbranch_vccnz L_grwait\nL_grok:")
        ew(1)
        a("s_waitcnt lgkmcnt(0)\ns_barrier")
        a("""ds_read2st64_b32 v[32:33], v25 offset0:0 offset1:4
        ds_read2st64_b32 v[34:35], v25 offset0:8 offset1:12
        ds_read2st64_b32 v[36:37], v25 offset0:2 offset1:6
        ds_read2st64_b32 v[38:39], v25 offset0:10 offset1:14""")
        ew(2)
        a("""s_mov_b32 exec_lo, 0x33333333
        s_mov_b32 exec_hi, 0x33333333
        s_waitcnt lgkmcnt(2)
        v_add_f32 v32, v32, v33
        v_add_f32 v34, v34, v35
        v_add_f32 v26, v32, v34
        s_waitcnt lgkmcnt(0)
        v_add_f32 v36, v36, v37
        v_add_f32 v38, v38, v39
        v_add_f32 v27, v36, v38
        s_mov_b64 exec, -1
        buffer_atomic_add_f32 v26, v23, s[16:19], s58 offen
        buffer_atomic_add_f32 v27, v23, s[16:19], s58 offen offset:%d""" % (2 << HS))
        ew(3)
        self.stamp(6)
        a("s_branch L_exit")
        a("L_grwait:\nbuffer_load_dword v31, v29, s[16:19], s61 offen sc1\ns_waitcnt vmcnt(0)\nv_cmp_ne_u32 vcc, v31, v164")
        self.retry("L_grwait")
        a("s_branch L_grok")
        a("L_stwait:\ns_sleep 1\nbuffer_load_dwordx3 v[16:18], v15, s[16:19], s59 offen sc1\ns_waitcnt vmcnt(0)\nv_cmp_ne_u32 vcc, v18, v164")
        self.retry("L_stwait")
        a("s_branch L_stok")
        a(f"""L_wglob:
        s_sub_u32 s56, s57, {OP}
        s_lshr_b32 s56, s56, 13
        s_lshl_b32 s56, s56, 7
        s_add_u32 s56, s56, {RDY}
        s_add_u32 s57, s57, {OPG-OP}
        v_lshlrev_b32 v9, 2, v0
        v_and_b32 v9, 0x7c, v9
        L_wg2:
        buffer_load_dword v8, v9, s[16:19], s56 offen sc1
        s_waitcnt vmcnt(0)
        v_cmp_ne_u32 vcc, v8, v164""")
        self.retry("L_wg2")
        a("s_branch L_wgok")

    def wave_sum2(self, r0, r1, s0, s1):
        a = self.a
        for ctl in ("row_shr:1", "row_shr:2", "row_shr:4", "row_shr:8"):
            a(f"v_add_f32_dpp v{r0}, v{r0}, v{r0} {ctl} row_mask:0xf bank_mask:0xf bound_ctrl:0" if False else
              f"v_add_f32_dpp v{r0}, v{r0}, v{r0} {ctl.replace('shr','ror')} row_mask:0xf bank_mask:0xf")
            a(f"v_add_f32_dpp v{r1}, v{r1}, v{r1} {ctl.replace('shr','ror')} row_mask:0xf bank_mask:0xf\ns_nop 0")
        a(f"v_add_f32_dpp v{r0}, v{r0}, v{r0} row_bcast:15 row_mask:0xa bank_mask:0xf")
        a(f"v_add_f32_dpp v{r1}, v{r1}, v{r1} row_bcast:15 row_mask:0xa bank_mask:0xf\ns_nop 0")
        a(f"v_add_f32_dpp v{r0}, v{r0}, v{r0} row_bcast:31 row_mask:0xc bank_mask:0xf")
        a(f"v_add_f32_dpp v{r1}, v{r1}, v{r1} row_bcast:31 row_mask:0xc bank_mask:0xf")
        a(f"v_readlane_b32 s{s0}, v{r0}, 63\nv_readlane_b32 s{s1}, v{r1}, 63\ns_nop 1")

    def ew_gate(self, va):
        a = self.a
        l = self.lab("EW")
        a(f"v_lshlrev_b32 v{va}, 7, v12\ns_mov_b32 s63, {EW}")
        a(f"{l}:\nbuffer_load_dword v8, v{va}, s[16:19], s63 offen sc1\ns_waitcnt vmcnt(0)\nv_cmp_ne_u32 vcc, v8, v164")
        self.retry(l)

    def role_mlp(self):
        self.cur = 'MLP'
        a, c = self.a, self.c; ntw = (" " + self.ntw) if self.ntw else ""
        c("================= role MLP =================")
        a("L_mlp:")
        a(f"""s_mul_i32 s52, s48, 7
        s_add_u32 s52, s52, s49
        s_sub_u32 s52, s52, 14
        v_and_b32 v22, 3, v0
        v_mul_u32_u24 v21, 896, v6
        v_add_u32 v21, v21, v5
        s_mul_i32 s56, s52, {32*896}
        s_lshl_b32 s57, s50, 7
        s_add_u32 s56, s56, s57
        s_add_u32 s54, s55, {VL - KL}
        v_bfe_u32 v15, v0, 2, 2
        v_lshlrev_b32 v18, 6, v15
        v_lshl_add_u32 v18, v7, 4, v18
        v_add_u32 v18, {H1L}, v18
        v_mov_b32 v19, {ZR}""")
        for i in range(4):
            a(f"v_cmp_eq_u32 vcc, {i}, v22\ns_nop 1\nv_cndmask_b32 v{24+i}, v19, v18, vcc")
        self.tr_addr(160, "s54", 8)
        a(f"""s_mul_i32 s58, s52, 7168
        s_lshl_b32 s59, s50, 10
        s_add_u32 s58, s58, s59
        s_add_u32 s58, s58, {PART}
        s_add_u32 s62, s58, 4096
        v_lshlrev_b32 v23, 4, v0""")
        if 'warmpart' in self.skip:
            c("bring the lines this wave will publish into the memory-side cache")
            a("v_lshlrev_b32 v9, 7, v0\ns_mov_b64 exec, 0xff\nbuffer_load_dword v165, v9, s[16:19], s58 offen\nbuffer_load_dword v165, v9, s[16:19], s62 offen\ns_mov_b64 exec, -1")
        a("s_cmp_ge_u32 s50, 2\ns_cbranch_scc1 L_mlp_b")
        def w2ld(skip3=False):
            for p in range(8):
                if p == 4 and skip3: a("s_cmp_eq_u32 s50, 3\ns_cselect_b32 s56, 0x7f000000, s56")
                a(f"s_add_u32 m0, s54, {p*1024}\ns_add_u32 s53, s56, {(p & 3)*8*896 + (p >> 2)*512}")
                a(f"buffer_load_dwordx4 v21, s[32:35], s53 offen{ntw} lds")
        def w2rd():
            for qq in range(2):
                for i in range(4):
                    for half in range(2):
                        r = 120 + (qq*4 + i)*4 + half*2
                        a(f"ds_read_b64_tr_b16 v[{r}:{r+1}], v{160+i} offset:{qq*4096 + half*2048}")
        c("---- waves 0,1: w1 tile (14 pieces each), then h @ w1 (row 4b+1 of A = ones gives the column sums) ----")
        a(f"""v_lshrrev_b32 v13, 2, v0
        v_mul_u32_u24 v20, 3584, v13
        v_lshl_add_u32 v20, v22, 4, v20
        v_lshlrev_b32 v13, 6, v13
        v_lshl_add_u32 v13, v22, 3, v13
        s_lshl_b32 s57, s50, 5
        s_add_u32 s53, s57, {KL}
        v_add_u32 v13, s53, v13
        s_lshl_b32 s59, s52, 6
        s_add_u32 s57, s57, s59
        s_mul_i32 s53, s50, {14*16*3584}
        s_add_u32 s59, s59, s53
        v_lshlrev_b32 v9, 1, v12
        buffer_load_ushort v28, v9, s[40:43], s57 offen
        v_mul_u32_u24 v16, 896, v15
        v_lshl_add_u32 v16, v7, 4, v16
        v_add_u32 v16, {YL}, v16
        v_cmp_eq_u32 vcc, 1, v22
        v_mov_b32 v9, {ONL}
        v_lshlrev_b32 v17, 6, v7
        v_cndmask_b32 v16, v16, v9, vcc
        v_lshl_add_u32 v17, v15, 4, v17
        v_lshl_add_u32 v17, v22, 1, v17
        s_lshl_b32 s53, s50, 3
        s_add_u32 s53, s53, {H1L}
        v_add_u32 v17, s53, v17
        v_lshlrev_b32 v14, 3, v7
        v_mov_b32 v8, 0x3f803f80
        v_mov_b32 v9, v8
        v_mov_b32 v10, v8
        v_mov_b32 v11, v8
        ds_write_b128 v23, v[8:11] offset:{ONL}""")
        self.waitflag(F_VI if 'w1vi' in self.skip else F_PV, n=4, t="v96", sleep=False)
        for x in range(14):
            a(f"s_add_u32 m0, s55, {x*1024}\ns_add_u32 s53, s59, {x*16*3584}")
            a(f"buffer_load_dwordx4 v20, s[36:39], s53 offen{ntw} lds")
        if 'w1vi' in self.skip: self.waitflag(F_PV, n=4, t="v96", sleep=False)
        w2ld()
        a("s_waitcnt vmcnt(8)")
        self.setflag(F_W1)
        a("v_xor_b32 v9, 4, v2")
        self.waitflag(F_W1, "v9", sleep=False)
        for ks in range(14):
            for half in range(2):
                p = 2*ks + half
                r = 64 + ks*4 + half*2
                a(f"ds_read_b64_tr_b16 v[{r}:{r+1}], v13 offset:{(p//14)*16384 + (p%14)*1024}")
        a("v_lshlrev_b32 v28, 16, v28\ns_waitcnt vmcnt(0)")
        w2rd()
        self.stamp(4)
        a("s_waitcnt lgkmcnt(0)\ns_barrier")
        self.stamp(6)
        regs = [8, 32, 36, 40, 44, 48, 52, 56, 60, 156, 160, 8, 32, 36]
        for ks in range(11):
            a(f"ds_read_b128 v[{regs[ks]}:{regs[ks]+3}], v16 offset:{ks*64}")
        early = 'latest' not in self.skip
        for ks in range(14):
            if not early or ks < 11: a(f"s_waitcnt lgkmcnt({10-ks if ks < 3 else 13-ks})")
            if early and ks == 11: a(f"s_waitcnt lgkmcnt(0)\ns_barrier\nds_read_b64 v[30:31], v14 offset:{STL}")
            r = regs[ks]
            a(f"v_mfma_f32_16x16x32_bf16 v[152:155], v[{r}:{r+3}], v[{64+4*ks}:{67+4*ks}], {'0' if ks == 0 else 'v[152:155]'}")
            if ks == 2:
                for k2 in (11, 12, 13): a(f"ds_read_b128 v[{regs[k2]}:{regs[k2]+3}], v16 offset:{k2*64}")
        k1 = -2*1.4426950408889634*0.7978845608028654
        if not early: a(f"s_barrier\nds_read_b64 v[30:31], v14 offset:{STL}")
        a(f"""s_mov_b32 s64, {hex(f2u(k1*0.044715))}
        v_mov_b32 v9, {hex(f2u(k1))}
        s_nop {4 if early else 2}
        s_waitcnt lgkmcnt(0)
        v_fma_f32 v28, -v31, v153, v28
        v_fmac_f32 v28, v152, v30
        v_mul_f32 v8, v28, v28
        v_fma_f32 v8, v8, s64, v9
        v_mul_f32 v8, v8, v28
        v_exp_f32 v8, v8
        s_nop 0
        v_add_f32 v8, 1.0, v8
        v_rcp_f32 v8, v8
        s_nop 0
        v_mul_f32 v8, v8, v28
        v_cvt_pk_bf16_f32 v8, v8, v8
        ds_write_b16 v17, v8
        s_waitcnt lgkmcnt(0)
        L_mlp2:
        s_barrier""")
        self.stamp(7)
        for i in range(4):
            a(f"ds_read_b128 v[{32+4*i}:{35+4*i}], v{24+i}")
        for i in range(4):
            a(f"s_waitcnt lgkmcnt({3-i})")
            for qq in range(2):
                d = 48 + 4*qq; r = 120 + (qq*4 + i)*4
                cin = "0" if i == 0 else f"v[{d}:{d+3}]"
                a(f"v_mfma_f32_16x16x32_bf16 v[{d}:{d+3}], v[{32+4*i}:{35+4*i}], v[{r}:{r+3}], {cin}")
        a("""v_mov_b32 v58, v164
        v_mov_b32 v59, v164
        v_mov_b32 v62, v164
        v_mov_b32 v63, v164
        s_nop 2
        v_cvt_pk_bf16_f32 v56, v48, v49
        v_cvt_pk_bf16_f32 v57, v50, v51
        buffer_store_dwordx4 v[56:59], v23, s[16:19], s58 offen sc1
        s_cmp_eq_u32 s50, 3
        s_cbranch_scc1 L_exit
        v_cvt_pk_bf16_f32 v60, v52, v53
        v_cvt_pk_bf16_f32 v61, v54, v55
        buffer_store_dwordx4 v[60:63], v23, s[16:19], s62 offen sc1""")
        self.stamp(8)
        a("s_branch L_exit")

        c("---- waves 2,3: rows u and u-2 of h -> LDS and their LayerNorm statistics ----")
        a(f"""L_mlp_b:
        v_lshlrev_b32 v9, 2, v0
        s_mul_i32 s57, s50, 896
        s_sub_u32 s59, s57, 1792
        s_mov_b32 exec_hi, 0x00ffffff""")
        for i in range(4):
            a(f"buffer_load_dword v{36+i}, v9, s[20:23], s57 offen offset:{i*224}")
        for i in range(4):
            a(f"buffer_load_dword v{156+i}, v9, s[20:23], s59 offen offset:{i*224}")
        a(f"s_mov_b32 exec_hi, -1\ns_add_u32 s59, s59, {YL}")
        for i in range(4):
            a(f"""v_add_u32 v8, {56*i}, v0
            v_lshrrev_b32 v9, 4, v8
            v_lshlrev_b32 v9, 6, v9
            v_bfe_u32 v10, v8, 1, 2
            v_lshl_add_u32 v9, v10, 4, v9
            v_and_b32 v10, 8, v8
            v_add_u32 v9, v9, v10
            v_and_b32 v10, 1, v8
            v_lshl_add_u32 v9, v10, 2, v9
            v_add_u32 v{32+i}, s59, v9""")
        a(f"""s_lshl_b32 s53, s50, 3
        v_mov_b32 v15, s53
        s_lshl_b32 s57, s50, {HS+5}
        s_add_u32 s57, s57, {HACC}
        s_sub_u32 s61, s57, {64 << HS}
        v_and_b32 v92, 0x70, v23
        v_lshl_add_u32 v92, v6, {HS}, v92
        v_add_u32 v93, {7 << HS}, v92
        v_add_u32 v94, {14 << HS}, v92
        v_add_u32 v95, {21 << HS}, v92
        v_and_b32 v16, 32, v0
        v_add_u32 v16, v16, v0
        v_lshlrev_b32 v16, {HS}, v16
        s_mov_b32 s66, {HACC}
        s_mov_b32 s67, {HACC + (32 << HS)}
        s_mov_b32 s59, {hex(f2u(16.0))}
        s_lshl_b32 s63, s52, 10
        s_add_u32 s63, s63, {EW}
        s_add_u32 s64, s16, s63
        s_addc_u32 s65, s17, 0
        v_lshrrev_b32 v19, 1, v0
        v_mul_u32_u24 v19, {7*512}, v19
        v_and_b32 v18, 1, v0
        v_lshl_add_u32 v19, v18, 7, v19
        s_sub_u32 s63, s49, 14
        s_lshl_b32 s63, s63, 9
        s_lshl_b32 s53, s48, 2
        s_add_u32 s63, s63, s53
        s_and_b32 s53, s50, 1
        s_lshl_b32 s53, s53, 8
        s_add_u32 s63, s63, s53
        s_add_u32 s63, s63, {FH}
        s_mov_b32 s60, 0xffff0000""")
        for i in range(4): a(f"v_mov_b32 v{88+i}, 0")
        self.waitflag(F_PV, n=4, t="v96", sleep=False)
        w2ld(True)
        a("s_waitcnt vmcnt(8)")
        for i in range(4):
            a(f"v_lshlrev_b32 v{40+2*i}, 16, v{36+i}\nv_and_b32 v{41+2*i}, s60, v{36+i}\nv_lshlrev_b32 v{104+2*i}, 16, v{156+i}\nv_and_b32 v{105+2*i}, s60, v{156+i}")
        def fh(k):
            if self.hp == k:
                a("s_mov_b64 exec, 0xffff\nbuffer_store_dword v164, v19, s[16:19], s63 offen sc1\ns_mov_b64 exec, -1")
        a("s_cmp_lg_u32 s50, 3\ns_cbranch_scc1 L_gow")
        self.phint(16)
        self.setflag(F_GO, "v3")
        if 'nokick' not in self.skip:
            a("s_mov_b32 exec_lo, 0x0fffffff\ns_mov_b32 exec_hi, 0x0fffffff\nbuffer_load_dword v165, v16, s[16:19], s66 offen sc1")
            if 'kick2' in self.skip: a("buffer_load_dword v165, v16, s[16:19], s67 offen sc1")
            a("s_mov_b32 exec_lo, -1")
        a("s_branch L_hp\nL_gow:")
        self.waitflag(F_GO, sleep=False)
        a("L_hp:")
        if self.prof and not self.light: a("s_memrealtime s[94:95]")
        a("s_mov_b32 exec_hi, 0x00ffffff")
        for i in range(4):
            a(f"buffer_load_dwordx4 v[{48+4*i}:{51+4*i}], v{92+i}, s[16:19], s57 offen sc1")
        for i in range(4):
            a(f"buffer_load_dwordx4 v[{64+4*i}:{67+4*i}], v{92+i}, s[16:19], s61 offen sc1")
        a("s_mov_b32 exec_hi, -1\ns_waitcnt vmcnt(8)")
        w2rd()
        a("s_mov_b32 exec_hi, 0x00ffffff\ns_waitcnt vmcnt(4)")
        for i in range(4):
            a(f"v_pk_add_f32 v[{48+4*i}:{49+4*i}], v[{48+4*i}:{49+4*i}], v[{40+2*i}:{41+2*i}]\nv_cvt_pk_bf16_f32 v{36+i}, v{48+4*i}, v{49+4*i}\nds_write_b32 v{32+i}, v{36+i} offset:1792")
        a("v_min_f32 v8, v50, v54\nv_min3_f32 v8, v8, v58, v62\ns_waitcnt vmcnt(0)")
        for i in range(4):
            a(f"v_pk_add_f32 v[{64+4*i}:{65+4*i}], v[{64+4*i}:{65+4*i}], v[{104+2*i}:{105+2*i}]\nv_cvt_pk_bf16_f32 v{156+i}, v{64+4*i}, v{65+4*i}\nds_write_b32 v{32+i}, v{156+i}")
        a("v_min3_f32 v8, v8, v66, v70\nv_min3_f32 v8, v8, v74, v78\nv_cmp_neq_f32 vcc, s59, v8")
        self.retry("L_hp", self.hb)
        self.stamp(5)
        if self.prof and not self.light: a("v_writelane_b32 v167, s94, 9")
        a("""v_pk_add_f32 v[80:81], v[48:49], v[52:53]
        v_pk_mul_f32 v[82:83], v[48:49], v[48:49]
        v_pk_add_f32 v[84:85], v[64:65], v[68:69]
        v_pk_mul_f32 v[86:87], v[64:65], v[64:65]
        s_waitcnt lgkmcnt(0)
        s_barrier
        v_pk_add_f32 v[80:81], v[80:81], v[56:57]
        v_pk_fma_f32 v[82:83], v[52:53], v[52:53], v[82:83]
        v_pk_add_f32 v[84:85], v[84:85], v[72:73]
        v_pk_fma_f32 v[86:87], v[68:69], v[68:69], v[86:87]
        v_pk_add_f32 v[80:81], v[80:81], v[60:61]
        v_pk_fma_f32 v[82:83], v[56:57], v[56:57], v[82:83]
        v_pk_add_f32 v[84:85], v[84:85], v[76:77]
        v_pk_fma_f32 v[86:87], v[72:73], v[72:73], v[86:87]
        v_pk_fma_f32 v[82:83], v[60:61], v[60:61], v[82:83]
        v_pk_fma_f32 v[86:87], v[76:77], v[76:77], v[86:87]
        v_add_f32 v88, v80, v81
        v_add_f32 v90, v84, v85
        v_add_f32 v89, v82, v83
        v_add_f32 v91, v86, v87
        s_mov_b32 exec_hi, -1""")
        fh(2)
        c("reduce-scatter the four sums over the wave: rows 0..3 end up with S(u), S(u-2), Q(u), Q(u-2)")
        a("""s_nop 0
        v_permlane32_swap_b32 v88, v89
        v_permlane32_swap_b32 v90, v91
        v_add_f32 v8, v88, v89
        v_add_f32 v10, v90, v91
        s_nop 1
        v_permlane16_swap_b32 v8, v10
        v_add_f32 v8, v8, v10
        s_nop 1""")
        self.dpp_allred16("v_add_f32", [8])
        c("LN(LN(h)) = (h - m) * rs1 * rs2 : rs1 = rsq(v + eps), second LN sees mean 0 and variance v*rs1^2")
        a(f"""v_mul_f32 v8, {hex(f2u(1/448))}, v8
        v_mov_b32 v9, v8
        s_mov_b32 s64, {hex(f2u(1e-5))}
        v_and_b32 v10, 16, v0
        v_permlane32_swap_b32 v8, v9
        v_fma_f32 v9, -v8, v8, v9
        v_max_f32 v9, 0, v9
        v_add_f32 v11, s64, v9
        v_rsq_f32 v11, v11
        v_xor_b32 v15, v15, v10
        v_mul_f32 v9, v9, v11
        v_fma_f32 v9, v9, v11, s64
        v_rsq_f32 v9, v9
        s_mov_b32 exec_lo, 0x00010001
        s_mov_b32 exec_hi, 0
        v_mul_f32 v30, v9, v11
        v_mul_f32 v31, v30, v8
        ds_write_b64 v15, v[30:31] offset:{STL}
        s_mov_b64 exec, -1""")
        fh(3)
        a("s_waitcnt lgkmcnt(0)\ns_barrier")
        fh(1)
        c("every workgroup has read the epoch by now: advance it for the next launch")
        a(f"""s_lshl_b32 s53, s52, 2
        s_add_u32 s53, s53, s50
        s_cmp_lg_u32 s53, 3
        s_cbranch_scc1 L_mlp2
        s_mov_b32 s53, {EPO}
        s_mov_b64 exec, 1
        buffer_store_dword v164, v23, s[16:19], s53 offen sc1
        s_mov_b64 exec, -1
        s_branch L_mlp2""")

    def role_fin(self):
        self.cur = 'FIN'
        a, c = self.a, self.c
        c("================= role FINAL =================")
        a("L_fin:")
        self.srd(40, 72, 896)
        self.srd(44, 80, 3584)
        a(f"""s_mul_i32 s52, s48, 7
        s_add_u32 s52, s52, s49
        s_lshl_b32 s52, s52, 1
        s_add_u32 s52, s52, s50
        s_sub_u32 s52, s52, 44
        s_lshl_b32 s53, s52, 6
        s_add_u32 s53, s53, {PART}
        s_add_u32 s54, s53, {16*7168}
        s_add_u32 s55, s53, {32*7168}
        s_add_u32 s56, s53, {48*7168}
        v_lshrrev_b32 v20, 2, v0
        v_mul_u32_u24 v20, 7168, v20
        v_and_b32 v22, 3, v0
        v_lshl_add_u32 v20, v22, 4, v20
        s_lshr_b32 s57, s52, 4
        s_lshl_b32 s57, s57, 6
        s_and_b32 s58, s52, 3
        s_lshl_b32 s58, s58, 2
        s_add_u32 s57, s57, s58
        v_and_b32 v23, 16, v0
        v_lshlrev_b32 v23, 1, v23
        v_lshrrev_b32 v24, 5, v0
        v_lshl_add_u32 v23, v24, 4, v23
        v_add3_u32 v23, v23, v22, s57
        v_lshlrev_b32 v24, 1, v23
        v_bfe_u32 v25, v23, 1, 3
        v_lshlrev_b32 v25, 4, v25
        v_lshrrev_b32 v26, 4, v23
        v_lshl_add_u32 v25, v26, {HS}, v25
        s_bfe_u32 s58, s52, 0x20002
        s_mul_i32 s59, s58, 896
        s_lshl_b32 s58, s58, {HS+5}
        s_add_u32 s58, s58, {HACC}
        s_mov_b32 s61, {hex(f2u(16.0))}
        v_mov_b32 v44, 0
        v_mov_b32 v45, 0
        v_mov_b32 v46, v164
        s_mov_b32 s60, 0xffff0000
        s_waitcnt lgkmcnt(0)
        buffer_load_ushort v26, v24, s[20:23], s59 offen
        buffer_load_ushort v27, v24, s[40:43], 0 offen
        buffer_load_ushort v28, v24, s[44:47], s59 offen""")
        a(f"""s_lshr_b32 s63, s52, 1
        s_lshl_b32 s63, s63, 9
        s_add_u32 s63, s63, {FH}
        s_add_u32 s64, s16, s63
        s_addc_u32 s65, s17, 0
        v_and_b32 v8, 1, v0
        v_cmp_eq_u32 s[66:67], 1, v8
        s_waitcnt vmcnt(0)
        v_lshlrev_b32 v26, 16, v26
        v_lshlrev_b32 v27, 16, v27
        v_add_f32 v26, v26, v27""")
        a("s_cmp_lg_u32 s50, 3\ns_cbranch_scc1 L_fhbar")
        self.phint(8)
        a("L_fhbar:\ns_barrier")
        if self.prof and not self.light: a("s_memrealtime s[94:95]")
        l = self.lab("FP")
        a(f"""{l}:
        buffer_load_dwordx4 v[28:31], v25, s[16:19], s58 offen sc1
        buffer_load_dwordx4 v[32:35], v20, s[16:19], s53 offen sc1
        buffer_load_dwordx4 v[36:39], v20, s[16:19], s54 offen sc1
        buffer_load_dwordx4 v[40:43], v20, s[16:19], s55 offen sc1
        s_mov_b32 exec_hi, 0
        buffer_load_dwordx4 v[44:47], v20, s[16:19], s56 offen sc1
        s_mov_b32 exec_hi, -1
        s_waitcnt vmcnt(4)
        v_cndmask_b32 v28, v28, v29, s[66:67]
        v_add_f32 v27, v26, v28
        v_cmp_neq_f32 s[68:69], s61, v30
        s_waitcnt vmcnt(3)
        v_lshlrev_b32 v48, 16, v32
        v_and_b32 v49, s60, v32
        v_lshlrev_b32 v50, 16, v33
        v_and_b32 v51, s60, v33
        v_xor_b32 v8, v34, v164
        s_waitcnt vmcnt(2)
        v_lshlrev_b32 v52, 16, v36
        v_and_b32 v53, s60, v36
        v_lshlrev_b32 v54, 16, v37
        v_and_b32 v55, s60, v37
        v_bitop3_b32 v8, v8, v38, v164 bitop3:0xf6
        v_pk_add_f32 v[48:49], v[48:49], v[52:53]
        v_pk_add_f32 v[50:51], v[50:51], v[54:55]
        s_waitcnt vmcnt(1)
        v_lshlrev_b32 v52, 16, v40
        v_and_b32 v53, s60, v40
        v_lshlrev_b32 v54, 16, v41
        v_and_b32 v55, s60, v41
        v_bitop3_b32 v8, v8, v42, v164 bitop3:0xf6
        v_pk_add_f32 v[48:49], v[48:49], v[52:53]
        v_pk_add_f32 v[50:51], v[50:51], v[54:55]
        s_waitcnt vmcnt(0)
        v_lshlrev_b32 v52, 16, v44
        v_and_b32 v53, s60, v44
        v_lshlrev_b32 v54, 16, v45
        v_and_b32 v55, s60, v45
        v_pk_add_f32 v[32:33], v[48:49], v[52:53]
        v_pk_add_f32 v[34:35], v[50:51], v[54:55]
        v_bitop3_b32 v8, v8, v46, v164 bitop3:0xf6
        v_cmp_ne_u32 vcc, 0, v8
        s_or_b64 vcc, vcc, s[68:69]""")
        self.retry(l)
        self.stamp(6)
        if self.prof and not self.light: a("v_writelane_b32 v167, s94, 5")
        a("""
        v_permlane32_swap_b32 v32, v33
        v_permlane32_swap_b32 v34, v35
        v_add_f32 v32, v32, v33
        v_add_f32 v34, v34, v35
        s_nop 1
        v_permlane16_swap_b32 v32, v34
        v_add_f32 v32, v32, v34
        s_nop 1
        v_add_f32_dpp v32, v32, v32 row_ror:4 row_mask:0xf bank_mask:0xf
        s_nop 1
        v_add_f32_dpp v32, v32, v32 row_ror:8 row_mask:0xf bank_mask:0xf
        v_add_f32 v32, v32, v27
        v_cvt_pk_bf16_f32 v32, v32, v32
        s_mov_b32 exec_lo, 0x000f000f
        s_mov_b32 exec_hi, 0x000f000f
        buffer_store_short v32, v24, s[44:47], s59 offen""" + (' sc1' if 'outsc1' in self.skip else '') + (' nt' if 'outnt' in self.skip else ''))
        self.stamp(7)

def add_pads(text, gap=960, nchain=3):
    import subprocess, re, tempfile, os
    lines = text.split("\n")
    start = next(i for i, l in enumerate(lines) if l.startswith(NAME + "_kernel:"))
    end = next(i for i, l in enumerate(lines) if l.startswith("L_end:"))
    def addrs(ls):
        t = []
        for i, l in enumerate(ls):
            if start < i and l.startswith("    ") and not l.strip().startswith(";") and not l.strip().startswith("."):
                t.append(f"ZZ_{i}:")
            t.append(l)
        src = "\n".join(t)
        for k in range(nchain):
            if f"PADCHAIN_{k}:" not in src: src = src.replace(f"PADCHAIN_{k}", "L_end").replace(f"PADSECOND_{k}", "L_end")
        src = re.sub(r"PADNEXT", "L_end", src)
        with tempfile.TemporaryDirectory() as d:
            open(d + "/a.s", "w").write(src)
            subprocess.check_call(["clang", "-x", "assembler", "-target", "amdgcn-amd-amdhsa", "-mcpu=gfx950", "-c", d + "/a.s", "-o", d + "/a.o"])
            out = subprocess.check_output(["llvm-objdump", "-t", d + "/a.o"], text=True)
        r = {}
        for l in out.splitlines():
            p = l.split()
            if not p: continue
            if p[-1].startswith("ZZ_"): r[int(p[-1][3:])] = int(p[0], 16)
            if p[-1] == NAME + "_kernel": base = int(p[0], 16)
        return {k: v - base for k, v in r.items()}
    ad = addrs(lines)
    pads = []; last = 0; shift = 0; noz = False
    for i in sorted(ad):
        if i >= end: break
        if "NOPAD_ON" in lines[i - 1]: noz = True
        if "NOPAD_OFF" in lines[i - 1]: noz = False
        x = ad[i] + shift
        if not noz and (x - last >= gap or (x >> 12) != (last >> 12)):
            pads.append(i); last = x; shift += 4
    n = len(pads)
    out = []
    for i, l in enumerate(lines):
        if i in pads:
            k = pads.index(i)
            if k < nchain: out.append(f"PADCHAIN_{k}:")
            out.append(f"PAD_{k}:")
            if nchain <= k < 2*nchain: out.append(f"PADSECOND_{k - nchain}:")
            nxt = f"WB_{k}" if k < nchain else f"PAD_{k + nchain}" if k + nchain < n else "L_warmdone"
            out.append(f"    s_cbranch_execz {nxt}")
        out.append(l)
    return "\n".join(out)

if __name__ == "__main__":
    import argparse
    ap = argparse.ArgumentParser()
    ap.add_argument("-o", default="k.s"); ap.add_argument("-W", type=int, default=6); ap.add_argument("--WV", type=int, default=0); ap.add_argument("--WE", type=int, default=0); ap.add_argument("--NE", type=int, default=0); ap.add_argument("--pf64", action="store_true"); ap.add_argument("--ntp", default=""); ap.add_argument("--hd", type=int, default=4); ap.add_argument("--qd", type=int, default=0); ap.add_argument("--dly", default=None); ap.add_argument("--skip", default=""); ap.add_argument("--rot", type=int, default=1); ap.add_argument("--pw", default="1"); ap.add_argument("--ewp", type=int, default=2); ap.add_argument("--hp", type=int, default=2); ap.add_argument("--pft", type=int, default=3); ap.add_argument("--ww", type=int, default=8); ap.add_argument("--od", type=int, default=2); ap.add_argument("--dx", type=int, default=-1); ap.add_argument("--tkp", type=int, default=11); ap.add_argument("--ps", type=int, default=1); ap.add_argument("--light", action="store_true"); ap.add_argument("--ewk", type=int, default=4); ap.add_argument("--pwo", type=int, default=16); ap.add_argument("--pw1", type=int, default=99); ap.add_argument("--pw2", type=int, default=99); ap.add_argument("--qg", type=int, default=1); ap.add_argument("--ord", type=int, default=0); ap.add_argument("--hlp", default="12vxC")
    ap.add_argument("--prof", action="store_true"); ap.add_argument("--nt", default="nt"); ap.add_argument("--ntw", default="nt")
    ap.add_argument('--hb', type=int, default=0)
    ap.add_argument('--hs', type=int, default=10)
    x = ap.parse_args()
    HS = x.hs
    open(x.o, "w").write(add_pads(G(W=x.W, WV=x.WV, WE=x.WE, NE=x.NE, pf64=x.pf64, ntp=x.ntp, hd=x.hd, qd=x.qd, dly=x.dly, skip=x.skip, rot=x.rot, pw=x.pw, ewp=x.ewp, hp=x.hp, pft=x.pft, ww=x.ww, od=x.od, dx=x.dx, tkp=x.tkp, ps=x.ps, light=x.light, ewk=x.ewk, pwo=x.pwo, pw1=x.pw1, pw2=x.pw2, qg=x.qg, ord=x.ord, hlp=x.hlp, hb=x.hb, prof=x.prof, nt=x.nt, ntw=x.ntw).build()))
```

```python
import sys, struct
NAME = "sequential_preLN__sliding_block_cached__mixer_channel_mlp__decode"

def f2u(x): return struct.unpack("<I", struct.pack("<f", x))[0]

QP   = 0x00000
HACC = 0x160000
HS = 10
STAT = 0x44000
OP   = 0xe0000
EW   = 0x50000
FH   = 0x60000
TK   = 0x70000
GR   = 0x71000
EPO  = 0x71100
PART = 0x72000
QPL  = 0x120000
OPG  = 0x180000
RDY  = 0x4c000
PROF = 0x200000
WQL = 4096; KL = 24576; VL = KL + 65536
XN = 0
QB = XN + 1024
SP = QB + 1024
ZR = SP + 512
FL = ZR + 512
LDS_TOTAL = VL + 65536
RED = WQL
YL = WQL
H1L = WQL + 4096
STL = WQL + 4608
ONL = WQL + 5120
F_WQ, F_S, F_VI, F_Q, F_P, F_CLR, F_TAG, F_PV, F_V8, F_KL, F_TK, F_W1, F_GO = 0, 32, 48, 64, 68, 76, 88, 96, 112, 128, 72, 16, 80


HEADER = """; Fused decode layer: LN -> q -> sliding-window GQA attention -> wo -> +x -> LN(LN) -> w1/GELU/w2 -> +h
; kernarg: 0 x | 8 K | 16 V | 24 wq | 32 wo | 40 (unused) | 48 w1 | 56 b1 | 64 w2 | 72 b2 | 80 out | 88 debug | 96 ws
;
; One persistent launch, 256 workgroups (one per CU), 9 waves each.  w = workgroup id, g = w&7 (kv head),
;   waves 0-3 (L): stream the wq tile, K and V into LDS (LDS-DMA, sliding window), then P.V
;                  t<14    WO  (o partials x softmax weights x wo tile -> atomic add into h),
;                  t>=25   MLP (LN(LN(h)) @ w1 slice, GELU, @ w2 slice -> partial out),
; Hand-offs through d_ws: every buffer is either tagged with this launch's epoch (epoch word found in d_ws + 1)
; scalar-polled "hint" words only say when a read is worth issuing.  Plain (L2 resident) stores are used only
"""

class G:
    def __init__(self, W=6, WV=None, WE=None, NE=0, prof=False, nt="nt", ntw="nt", pf64=False, ntp="nt", hd=2, qd=0, dly=None, skip='', rot=0, pw='pv', ewp=1, hp=1, pft=0, ww=3, od=2, dx=-1, tkp=8, ps=2, light=False, ewk=4, pwo=0, pw1=0, pw2=99, qg=2, ord=0, hlp='', hb=0, lq='', lc='', lo='', cl=0, W0=0):
        self.W0 = W0
        self.cl = cl
        self.lq, self.lc, self.lo = [(' ' + x) if x else '' for x in (lq, lc, lo)]
        self.hb = hb
        self.hlp = hlp
        self.ord = ord
        self.qg = qg
        self.pfpos = dict(wo=pwo, w1=pw1, w2=pw2)
        self.light = light; self.ewk = ewk
        self.ps = ps
        self.tkp = tkp
        self.dx = dx
        self.ww = ww; self.od = od
        self.pw = pw; self.ewp = ewp; self.hp = hp; self.pft = pft
        self.rot = ['s_mov_b32 s59, 0', 's_mov_b32 s59, s49', 's_lshr_b32 s59, s2, 4', 's_mul_i32 s59, s2, 5', 's_add_u32 s59, s49, s2'][rot]
        self.skip = set(skip.split(','))
        self.dly = dly; self.cur = 'E'
        self.qd = qd
        self.hd = hd
        self.ntp = ntp
        self.WE = WE or WV or W; self.NE = NE; self.pf64 = pf64
        self.stubs = []
        self.L = []; self.W = W; self.WV = WV or W; self.prof = prof; self.nt = nt; self.ntw = ntw; self.uid = 0
    def a(self, s):
        for line in s.split("\n"):
            line = line.strip()
            if line: self.L.append(("" if line.endswith(":") else "    ") + line)
    def c(self, s): self.L.append("    ; " + s)
    def lab(self, p="L"):
        self.uid += 1; return f"{p}_{self.uid}"
    def stamp(self, i):
        if self.dly == f"{self.cur}:{i}":
            self.a("s_memrealtime s[92:93]\ns_waitcnt lgkmcnt(0)\ns_mov_b32 s94, 1")
        if self.prof and (not self.light or (self.cur == 'L' and i == 6)):
            self.a(f"s_memrealtime s[90:91]\ns_waitcnt lgkmcnt(0)\nv_writelane_b32 v167, s90, {i}")
    def srd(self, r, karg, size):
        self.a(f"s_load_dwordx2 s[{r}:{r+1}], s[0:1], {karg}\ns_mov_b32 s{r+2}, {size}\ns_mov_b32 s{r+3}, 0x20000")
    def setflag(self, off, vaddr="v2"):
        self.a(f"ds_write_b32 {vaddr}, v4 offset:{off}")
    def waitflag(self, off, vaddr="v3", n=1, t="v8", sleep=True):
        l = self.lab("WF"); d = self.lab("WD")
        ti = int(t[1:])
        self.a(f"{l}:")
        if not sleep: self.a("s_sub_u32 s88, s88, 1\ns_cbranch_scc1 L_exit")
        if n == 1:
            self.a(f"ds_read_b32 {t}, {vaddr} offset:{off}\ns_waitcnt lgkmcnt(0)")
        else:
            self.a(f"ds_read_b128 v[{ti}:{ti+3}], {vaddr} offset:{off}\ns_waitcnt lgkmcnt(0)")
            self.a(f"v_and_b32 {t}, {t}, v{ti+1}\nv_and_b32 v{ti+2}, v{ti+2}, v{ti+3}\nv_and_b32 {t}, {t}, v{ti+2}")
        if not sleep:
            self.a(f"v_cmp_ne_u32 vcc, 0, {t}\ns_cbranch_vccz {l}")
            return
        self.a(f"v_cmp_ne_u32 vcc, 0, {t}\ns_cbranch_vccnz {d}")
        if sleep: self.a("s_sleep 1")
        self.a(f"s_sub_u32 s88, s88, 1\ns_cbranch_scc0 {l}\ns_branch L_exit\n{d}:")
    def retry(self, l, back=0):
        d = self.lab("RD")
        self.a(f"s_cbranch_vccnz {d}")
        self.stubs.append(f"{d}:\n" + (f"s_sleep {back}\n" if back else "") + f"s_sub_u32 s88, s88, 1\ns_cbranch_scc0 {l}\ns_branch L_exit")
    def flush(self):
        for st in self.stubs: self.a(st)
        self.stubs = []
    def shint(self, n, base="s[64:65]"):
        a = self.a
        l = self.lab("SH"); d = self.lab("SD")
        a(f"{l}:\ns_sub_u32 s88, s88, 1\ns_cbranch_scc1 L_exit")
        if n == 8:
            a(f"s_load_dwordx8 s[72:79], {base}, 0 glc\ns_waitcnt lgkmcnt(0)")
            regs = [72, 74, 76, 78]
        elif n == 16:
            a(f"s_load_dwordx8 s[72:79], {base}, 0 glc\ns_load_dwordx8 s[80:87], {base}, 128 glc\ns_waitcnt lgkmcnt(0)")
            for k in range(4): a(f"s_xor_b64 s[{80+2*k}:{81+2*k}], s[{80+2*k}:{81+2*k}], s[{72+2*k}:{73+2*k}]")
            a("s_or_b64 s[80:81], s[80:81], s[82:83]\ns_or_b64 s[84:85], s[84:85], s[86:87]\ns_or_b64 s[80:81], s[80:81], s[84:85]")
            a(f"s_cbranch_scc1 {l}")
            regs = [72, 74, 76, 78]
        else:
            a(f"s_load_dwordx16 s[72:87], {base}, 0 glc\ns_load_dwordx16 s[28:43], {base}, 64 glc\ns_waitcnt lgkmcnt(0)")
            regs = list(range(72, 88, 2)) + list(range(28, 44, 2))
        for r in regs:
            a(f"s_cmp_lg_u64 s[{r}:{r+1}], s[70:71]\ns_cbranch_scc1 {l}")

    def phint(self, n, base="s[64:65]"):
        a = self.a; l = self.lab("PH"); step = 256 if n == 16 else 128
        def ld():
            a(f"s_load_dwordx8 s[72:79], {base}, s89 glc")
            if n == 16: a(f"s_load_dwordx8 s[80:87], s[68:69], s89 glc")
        if n == 16: a("s_add_u32 s68, s64, 128\ns_addc_u32 s69, s65, 0")
        a("s_mov_b32 s89, 0"); ld(); a("s_waitcnt lgkmcnt(0)")
        a(f"{l}:\ns_sub_u32 s88, s88, 1\ns_cbranch_scc1 L_exit\ns_add_u32 s89, s89, {step}\ns_and_b32 s89, s89, {(2 if 'rep2' in self.skip else 4)*step-1}")
        ld()
        if self.ps == 0: a("s_waitcnt lgkmcnt(0)")
        else:
            a(f"s_sleep {self.ps}")
        for r in range(72, 72 + n, 2):
            a(f"s_cmp_lg_u64 s[{r}:{r+1}], s[70:71]\ns_cbranch_scc1 {l}")

    def build(self):
        a, c = self.a, self.c
        W = self.W; nt = (" " + self.nt) if self.nt else ""; ntw = (" " + self.ntw) if self.ntw else ""
        self.L.append(HEADER + f"; @launch grid=(256,1,1) block=(576,1,1) lds={LDS_TOTAL}")
        self.L.append('.amdgcn_target "amdgcn-amd-amdhsa--gfx950"\n.text')
        self.L.append(f".globl {NAME}_kernel\n.p2align 12\n.fill 832, 4, 0xbf810000\n.p2align 8\n.type {NAME}_kernel,@function\n{NAME}_kernel:")
        if self.prof: a("s_memrealtime s[92:93]")
        if self.dly: a("s_mov_b32 s94, 0"); self.stamp(0)
        a(f"""s_load_dwordx2 s[12:13], s[0:1], 24
        s_load_dwordx2 s[4:5], s[0:1], 8
        v_lshrrev_b32 v1, 6, v0
        v_and_b32 v0, 63, v0
        v_readfirstlane_b32 s3, v1
        s_load_dwordx2 s[20:21], s[0:1], 0
        s_load_dwordx2 s[16:17], s[0:1], 96
        s_load_dwordx2 s[8:9], s[0:1], 16
        s_cmp_ge_u32 s2, 256
        s_cbranch_scc1 L_end
        s_sub_u32 s52, s3, 5
        s_cmp_lt_u32 s52, 3
        {'' if 'sa' in self.skip else 's_cbranch_scc1 L_warm'}
        L_warmdone:
        s_mov_b64 exec, -1
        s_mov_b32 s15, 0x20000
        s_mov_b32 s14, {448*8192}
        s_mov_b32 s7, s15
        s_mov_b32 s6, 0x4000000
        s_mov_b32 s23, s15
        s_movk_i32 s22, 3584
        s_mov_b32 s19, s15
        s_mov_b32 s18, 0x300000
        s_and_b32 s48, s2, 7
        s_lshr_b32 s49, s2, 3
        s_and_b32 s50, s3, 3""")
        c("v5 = swizzled 16B chunk offset inside a 128B row; v6 = row (l>>3); v7 = g4")
        a("""v_and_b32 v5, 7, v0
        v_lshrrev_b32 v7, 4, v0
        v_lshlrev_b32 v5, 4, v5
        v_lshlrev_b32 v6, 5, v7
        v_xor_b32 v5, v5, v6
        v_lshrrev_b32 v6, 3, v0""")
        if self.prof: a("v_mov_b32 v167, 0")
        if 'sa' in self.skip: a("s_cmp_lt_u32 s3, 4\ns_cbranch_scc0 L_end")
        a("s_cmp_lt_u32 s3, 4\ns_cbranch_scc0 L_other")
        self.lwave()
        if 'nosplit' not in self.skip: self.L = self.Lmain
        self.swave_head()
        self.awave(); self.flush()
        if 'nosplit' not in self.skip: self.L += self.Lpv
        self.swave()
        self.role_wo(); self.flush()
        self.role_mlp(); self.flush()
        mark = len(self.L)
        self.role_fin()
        tail = self.L[mark:]; del self.L[mark:]
        self.flush(); self.L += tail
        a("L_exit:")
        if self.dly:
            if self.dly[0] in "ELAS": a("s_cmp_lt_u32 s2, 224\ns_cbranch_scc1 L_end")
            if self.dx >= 0: a(f"s_and_b32 s90, s2, 7\ns_cmp_lg_u32 s90, {self.dx}\ns_cbranch_scc1 L_end")
            a("""s_cmp_eq_u32 s94, 0
            s_cbranch_scc1 L_end
            L_dly:
            s_memrealtime s[90:91]
            s_waitcnt lgkmcnt(0)
            s_sub_u32 s90, s90, s92
            s_cmp_lt_u32 s90, 3000
            s_cbranch_scc1 L_dly""")
        if self.prof:
            a(f"""s_waitcnt lgkmcnt(0)
            s_mov_b64 exec, -1
            v_writelane_b32 v167, s92, 0
            s_memrealtime s[90:91]
            s_waitcnt lgkmcnt(0)
            v_writelane_b32 v167, s90, 63
            v_writelane_b32 v167, s88, 62
            s_lshl_b32 s90, s2, 4
            s_add_u32 s90, s90, s3
            s_lshl_b32 s90, s90, 8
            s_add_u32 s90, s90, {PROF}
            v_lshlrev_b32 v166, 2, v0
            buffer_store_dword v167, v166, s[16:19], s90 offen""")
        a("L_end:\ns_endpgm")
        self.L.append(f""".section .rodata,"a"
.p2align 6
.amdhsa_kernel {NAME}_kernel
  .amdhsa_next_free_vgpr 168
  .amdhsa_next_free_sgpr 96
  .amdhsa_accum_offset 168
  .amdhsa_group_segment_fixed_size 0
  .amdhsa_kernarg_size 104
  .amdhsa_user_sgpr_count 2
  .amdhsa_user_sgpr_kernarg_segment_ptr 1
  .amdhsa_system_sgpr_workgroup_id_x 1
.end_amdhsa_kernel""")
        return "\n".join(self.L) + "\n"

    def tr_addr(self, r, sbase, tmp):
        a = self.a
        a(f"""v_lshrrev_b32 v{tmp}, 2, v0
        v_lshlrev_b32 v{r}, 7, v{tmp}
        v_and_b32 v{tmp+1}, 3, v0
        v_lshl_add_u32 v{r}, v{tmp+1}, 3, v{r}
        v_bfe_u32 v{tmp}, v0, 3, 2
        v_lshl_add_u32 v{r}, v{tmp}, 5, v{r}
        v_add_u32 v{r}, {sbase}, v{r}
        v_xor_b32 v{r+1}, 32, v{r}
        v_xor_b32 v{r+2}, 64, v{r}
        v_xor_b32 v{r+3}, 0x60, v{r}""")

    def lwave(self):
        self.cur = 'L'
        a, c = self.a, self.c; W = self.W; nt = (" " + self.nt) if self.nt else ""
        c("================= L-wave: stream wq tile, K, V into LDS; PV =================")
        a(f"""v_lshl_add_u32 v10, v6, 13, v5
        s_lshr_b32 s52, s49, 3
        s_lshl_b32 s52, s52, 2
        s_add_u32 s52, s52, s50
        s_lshl_b32 s52, s52, 18
        s_lshl_b32 s53, s48, 10
        s_add_u32 s52, s52, s53
        s_and_b32 s53, s49, 7
        s_lshl_b32 s53, s53, 7
        s_add_u32 s52, s52, s53
        s_lshl_b32 s56, s50, 12
        s_add_u32 m0, s56, {WQL}
        v_lshrrev_b32 v12, 5, v0
        v_xor_b32 v12, v12, v0
        v_lshlrev_b32 v12, 4, v12
        s_lshl_b32 s57, s50, 5
        v_xor_b32 v12, s57, v12
        v_xor_b32 v13, 0x80, v12
        s_and_b32 s53, s2, 31
        s_lshl_b32 s53, s53, 5
        s_lshr_b32 s54, s2, 5
        s_add_u32 s53, s53, s54
        s_add_u32 s53, s53, {3072*512 >> 16}
        s_lshl_b32 s53, s53, 16
        s_lshl_b32 s58, s50, 10
        s_add_u32 s54, s53, s58
        s_lshl_b32 s59, s49, 12
        s_waitcnt lgkmcnt(0)""")
        if 'nowq' in self.skip: a("s_mov_b32 s52, 0x1000000")
        if 'wqlin' in self.skip: a("v_lshlrev_b32 v10, 4, v0\ns_mul_i32 s52, s2, 14336\ns_add_u32 s52, s52, s58")
        if 'wq256' in self.skip:
            a("v_lshlrev_b32 v10, 13, v7\nv_and_b32 v14, 15, v0\nv_lshl_add_u32 v10, v14, 4, v10\ns_lshr_b32 s52, s49, 2\ns_lshl_b32 s52, s52, 2\ns_add_u32 s52, s52, s50\ns_lshl_b32 s52, s52, 17\ns_lshl_b32 s61, s48, 10\ns_add_u32 s52, s52, s61\ns_and_b32 s61, s49, 3\ns_lshl_b32 s61, s61, 8\ns_add_u32 s52, s52, s61")
        if 'pst' in self.skip: self.stamp(11)
        if 'tq' in self.skip: a("s_min_u32 s64, s52, %d\ns_load_dword s64, s[12:13], s64" % (448*8192 - 64))
        if 'tk' in self.skip: a("s_load_dword s61, s[4:5], s54")
        if 'tx' in self.skip: a("s_load_dword s65, s[20:21], 0")
        if 'tw' in self.skip: a("s_load_dword s63, s[16:17], 0")
        if 'tv' in self.skip: a("s_load_dword s62, s[8:9], s54")
        def common2():
            a(f"s_mov_b32 s88, 0x80000\nv_mov_b32 v3, {FL}\ns_lshl_b32 s51, s50, 2\nv_add_u32 v2, s51, v3\nv_mov_b32 v4, 1\ns_mov_b32 s11, s15\ns_mov_b32 s10, s6")
        def heads():
            a("s_branch L_lcont")
            c("instruction-cache warm-up: waves 5..7 hop through the code with EXEC=0")
            a(f"""L_warm:
            s_cmp_eq_u32 s3, 5
            s_cbranch_scc0 L_warm2
            s_getpc_b64 s[24:25]
            L_pc:
            s_mov_b32 s26, L_end-L_pc
            s_mov_b32 s27, 0x20000
            v_lshlrev_b32 v8, 7, v0
            s_movk_i32 s52, 0x2000
            buffer_load_dword v165, v8, s[24:27], 0 offen
            buffer_load_dword v165, v8, s[24:27], s52 offen
            s_mov_b64 exec, 0
            s_branch PADCHAIN_0
            L_warm2:
            s_mov_b64 exec, 0
            s_cmp_eq_u32 s3, 6
            s_cbranch_scc1 PADCHAIN_1
            s_branch PADCHAIN_2
            WB_0:
            s_barrier
            s_branch PADSECOND_0
            WB_1:
            s_barrier
            s_branch PADSECOND_1
            WB_2:
            s_barrier
            s_branch PADSECOND_2
            L_other:""")
            a("v_mov_b32 v8, 0\nv_mov_b32 v9, 0\nv_lshlrev_b32 v10, 3, v0\ns_cmp_eq_u32 s3, 8\ns_cbranch_scc1 L_ahead")
            common2()
            a("s_cmp_eq_u32 s3, 4\ns_cbranch_scc0 L_swave\ns_branch L_shead\nL_ahead:")
            self.ahead()
            a("L_lcont:")
            common2()
            a(f"""v_lshl_add_u32 v11, v6, 9, v5
            s_lshl_b32 s55, s50, 14
            s_lshl_b32 s56, s50, 7
            s_add_u32 s53, s53, s56
            s_barrier""")
            if 'vlin' in self.skip: a("v_lshlrev_b32 v11, 4, v0\ns_mov_b32 s53, s54")
        self.common2 = common2
        WV = self.WV
        ops = [('wq', p) for p in range(4)] + [('K', p) for p in range(16)]
        if self.ord == 1: ops = [('K', 0), ('wq', 0), ('K', 1), ('wq', 1), ('K', 2), ('wq', 2), ('K', 3), ('wq', 3)] + [('K', p) for p in range(4, 16)]
        if self.ord == 2: ops = [('K', p) for p in range(4)] + [('wq', p) for p in range(4)] + [('K', p) for p in range(4, 16)]
        if self.ord == 3: ops = [('wq', 0), ('K', 0), ('K', 1), ('wq', 1), ('K', 2), ('K', 3), ('wq', 2), ('K', 4), ('K', 5), ('wq', 3)] + [('K', p) for p in range(6, 16)]
        for p in range(17):
            for kind in ('wo', 'w1', 'w2'):
                if self.pfpos[kind] == p: ops.append(('pf', kind))
            if p < 16: ops.append(('V', p))
        pos = {o: i for i, o in enumerate(ops)}
        lastV = pos[('V', 15)]
        st = dict(landed=0)
        ntp = " nt" if 'wont' in self.skip else (" " + self.ntp) if self.ntp else ""
        vreg = [32, 48, 132, 148]
        def vread(ks, half):
            for i in range(4):
                r = vreg[ks] + i*4 + half*2
                a(f"ds_read_b64_tr_b16 v[{r}:{r+1}], v{12+i} offset:{ks*4096 + half*2048}")
        def prep(k):
            if k == 0:
                c("PV: address prep (in the shadow of the stream)")
                a(f"s_add_u32 s57, s55, {VL}")
                self.tr_addr(12, "s57", 16)
            if k == 1:
                a(f"""v_bfe_u32 v20, v0, 2, 1
                v_lshlrev_b32 v22, 6, v20
                v_lshl_add_u32 v22, v7, 4, v22
                v_add_u32 v22, {SP}, v22
                v_mov_b32 v21, {ZR}
                v_and_b32 v23, 11, v0""")
                for i in range(4):
                    a(f"v_cmp_eq_u32 vcc, {i}, v23\ns_nop 1\nv_cndmask_b32 v{16+i}, v21, v22, vcc")
            if k == 2:
                a(f"""v_and_b32 v28, 15, v0
                v_lshlrev_b32 v28, 3, v28
                v_lshl_add_u32 v28, v7, 12, v28
                s_lshl_b32 s56, s48, 2
                s_add_u32 s56, s56, s50
                s_lshl_b32 s56, s56, 13
                s_lshr_b32 s57, s49, 4
                s_lshl_b32 s57, s57, 11
                s_add_u32 s56, s56, s57
                s_and_b32 s57, s49, 3
                s_lshl_b32 s57, s57, 9
                s_add_u32 s56, s56, s57
                s_bfe_u32 s57, s49, 0x20002
                s_lshl_b32 s57, s57, 7
                s_add_u32 s56, s56, s57
                s_add_u32 s56, s56, {OP}""")
        done = set()
        for n, (kind, p) in enumerate(ops):
            if (kind, p) == ('V', 0) and 'nosplit' not in self.skip:
                a("s_branch L_pv")
                self.Lmain = self.L; self.L = []; self.Lpv = self.L
                a("L_pv:")
            if kind == 'wq':
                if self.ord: a(f"s_add_u32 m0, s56, {WQL}\ns_nop 0")
                a(f"buffer_load_dwordx4 v10, s[12:15], s52 offen offset:{p*1024}{nt} lds")
                if p < 3: a(f"s_add_u32 s52, s52, {(4096 if 'wqlin' in self.skip else 32768 if 'wq256' in self.skip else 65536)-1024}")
            elif kind == 'K':
                a(f"s_add_u32 m0, s58, {KL + p*4096}\ns_and_b32 s59, s59, 0xf000\ns_add_u32 s60, s54, s59")
                a(f"buffer_load_dwordx4 v{12 + (p & 1)}, s[4:7], s60 offen{nt} lds\ns_addk_i32 s59, 0x1000")
                if p == 7:
                    wofix = "" if 'wonw' not in self.skip else f"s_lshl_b32 s66, s49, 2\ns_add_u32 s66, s66, s50\ns_mul_i32 s66, s66, {50*128}\ns_mul_i32 s69, s48, {512*896}\ns_add_u32 s66, s66, s69\ns_cmp_lt_u32 s49, 18\ns_cselect_b32 s66, s66, 0x7f000000"
                    c("descriptors / offsets for the weight prefetch (one dword per 128B line into L2)")
                    self.srd(28, 32, 4096*896)
                    if self.pfpos['w1'] == 99 and self.pfpos['w2'] == 99:
                        a(f"s_lshl_b32 s66, s48, 5\ns_add_u32 s66, s66, s49\ns_lshl_b32 s66, s66, 2\ns_add_u32 s66, s66, s50\ns_mul_i32 s66, s66, 3584\n{wofix}\nv_lshlrev_b32 v30, 7, v0")
                    else:
                      self.srd(32, 64, 1792*896); self.srd(36, 48, 448*3584)
                      a(f"""s_lshl_b32 s66, s48, 5
                    s_add_u32 s66, s66, s49
                    s_mul_i32 s67, s66, 6272
                    s_mul_i32 s68, s50, {13*128}
                    s_add_u32 s67, s67, s68
                    s_lshl_b32 s66, s66, 2
                    s_add_u32 s66, s66, s50
                    s_mul_i32 s66, s66, 3584
                    {wofix}
                    s_mul_i32 s68, s49, {14*3584}
                    s_mul_i32 s69, s48, 448
                    s_andn2_b32 s69, s69, 127
                    s_add_u32 s68, s68, s69
                    s_mul_i32 s69, s50, 14
                    v_add_u32 v31, s69, v0
                    v_lshrrev_b32 v16, 2, v31
                    v_mul_u32_u24 v16, 3584, v16
                    v_and_b32 v31, 3, v31
                    v_lshl_add_u32 v31, v31, 7, v16
                    v_lshlrev_b32 v30, 7, v0""")
                if p == 11: a("s_waitcnt lgkmcnt(0)")
                if p == 5 and 'tvm' in self.skip: a("s_load_dword s62, s[8:9], s54")
            elif kind == 'V':
                a(f"s_add_u32 m0, s55, {VL + p*1024}\ns_and_b32 s59, s59, 0xf000\ns_add_u32 s60, s53, s59")
                a(f"buffer_load_dwordx4 v11, s[8:11], s60 offen{nt} lds")
                if p < 15: a("s_addk_i32 s59, 0x1000")
                if p == self.tkp: self.setflag(F_V8)
                if p < 3: prep(p)
                for hh in range(8):
                    if hh not in done and pos[('V', 2*hh + 1)] < st["landed"]:
                        vread(hh >> 1, hh & 1); done.add(hh)
            else:
                m, va, srd, so = dict(wo=(0x0fffffff, 30, 28, 66), w1=(0x3fff, 31, 36, 68), w2=(0x1fff, 30, 32, 67))[p]
                if p == 'wo' and 'wonw' in self.skip: a(f"s_mov_b32 exec_hi, 0x3ffff\nbuffer_load_dword v165, v{va}, s[{srd}:{srd+3}], s{so} offen{ntp}\ns_mov_b64 exec, -1")
                else: a(f"s_mov_b64 exec, {hex(m)}\nbuffer_load_dword v165, v{va}, s[{srd}:{srd+3}], s{so} offen{ntp}\ns_mov_b64 exec, -1")
            n += 1
            if n == max(W, self.W0): heads()
            if n < self.W0: continue
            if n == self.W0 and self.W0 > W:
                a(f"s_waitcnt vmcnt({n - 4})"); st["landed"] = 4; self.setflag(F_WQ); self.stamp(1)
            w = W if n < 20 else (WV if n <= lastV - self.NE else self.WE)
            if n <= lastV and n - (w - 1) > st["landed"]:
                a(f"s_waitcnt vmcnt({w-1})")
                old = st["landed"]; st["landed"] = n - (w - 1)
                if 'pst' in self.skip: self.stamp(11 + st["landed"])
                if old < pos[('wq', 3)] + 1 <= st["landed"]: self.setflag(F_WQ); self.stamp(1)
                for u in range(4):
                    if old < pos[('K', 4*u + 3)] + 1 <= st["landed"]: self.setflag(F_KL + 16*u)
                if old < 20 <= st["landed"]: self.stamp(2)
        self.setflag(F_VI); self.stamp(3)
        assert st["landed"] >= 20
        if 'sa' not in self.skip: self.waitflag(F_P, sleep=False)
        a("v_readfirstlane_b32 s57, v8")
        self.stamp(4)
        for ks in range(4):
            for i in range(4):
                r = 64 + (ks*4 + i)*4
                a(f"ds_read_b128 v[{r}:{r+3}], v{16+i} offset:{ks*128}")
        def vwait_read(hh):
            ks, half = hh >> 1, hh & 1
            rem = len(ops) - 1 - pos[('V', 2*hh + 1)]
            if rem < len(ops) - st['landed']: a(f"s_waitcnt vmcnt({rem})")
            if hh == 7: self.stamp(5)
            vread(ks, half); done.add(hh)
        for ks in range(4):
            fresh = [hh for hh in (2*ks, 2*ks + 1) if hh not in done]
            for hh in fresh: vwait_read(hh)
            extra = 0
            if ks == 2 and 6 not in done: vwait_read(6); extra = 4
            for i in range(4):
                if fresh: a(f"s_waitcnt lgkmcnt({3 - i + extra})")
                else: a(f"s_waitcnt lgkmcnt({min(15 - (ks*4 + i), 14)})")
                rb = vreg[ks] + i*4; ra = 64 + (ks*4 + i)*4
                cin = "0" if (ks == 0 and i == 0) else "v[128:131]"
                a(f"v_mfma_f32_16x16x32_bf16 v[128:131], v[{ra}:{ra+3}], v[{rb}:{rb+3}], {cin}")
        a("""s_mov_b32 exec_hi, 0
        s_cmp_eq_u32 s57, 1
        s_nop 5
        v_cvt_pk_bf16_f32 v24, v128, v129
        v_cvt_pk_bf16_f32 v25, v130, v131
        v_min_u32 v24, -2, v24
        s_cbranch_scc0 L_oglob
        buffer_store_dwordx2 v[24:25], v28, s[16:19], s56 offen""" + self.lo + """
        L_odone:
        s_mov_b32 exec_hi, -1""")
        self.setflag(F_PV)
        self.stamp(6)
        for p in ('wo', 'w1', 'w2'):
            if self.pfpos[p] == 17:
                m, va, srd, so = dict(wo=(0x0fffffff, 30, 28, 66), w1=(0x3fff, 31, 36, 68), w2=(0x1fff, 30, 32, 67))[p]
                a(f"s_mov_b64 exec, {hex(m)}\nbuffer_load_dword v165, v{va}, s[{srd}:{srd+3}], s{so} offen{ntp}\ns_mov_b64 exec, -1")
        if self.tkp < 0: a(("s_cmp_lt_u32 s49, 18" if 'rev' in self.skip else "s_cmp_ge_u32 s49, 14") + "\ns_cbranch_scc1 L_exit\ns_barrier")
        a("s_branch L_exit")
        a(f"""L_oglob:
        s_add_u32 s56, s56, {OPG-OP}
        buffer_store_dwordx2 v[24:25], v28, s[16:19], s56 offen sc1
        ds_read_b32 v26, v3 offset:{F_TAG}
        s_lshl_b32 s56, s48, 2
        s_add_u32 s56, s56, s50
        s_lshl_b32 s56, s56, 5
        s_add_u32 s56, s56, s49
        s_lshl_b32 s56, s56, 2
        s_add_u32 s56, s56, {RDY}
        s_mov_b64 exec, 1
        s_waitcnt vmcnt(0) lgkmcnt(0)
        buffer_store_dword v26, v28, s[16:19], s56 offen sc1
        s_mov_b64 exec, -1
        s_branch L_odone""")

    def swave_head(self):
        a, c = self.a, self.c
        c("================= S-wave 0 head: clears =================")
        a(f"""L_shead:
        v_mov_b32 v8, -1
        v_mov_b32 v9, -1
        v_mov_b32 v10, -1
        v_mov_b32 v11, -1
        v_mov_b32 v12, 0
        v_mov_b32 v13, 0
        v_lshlrev_b32 v15, 3, v0
        s_lshl_b32 s52, s48, 5
        s_add_u32 s52, s52, s49
        s_lshl_b32 s52, s52, 10
        s_add_u32 s52, s52, {OP}
        v_lshlrev_b32 v14, 4, v0
        s_lshl_b32 s55, s2, {HS}
        s_add_u32 s55, s55, {HACC}
        """)
        if self.tkp >= 0: a(f"s_lshl_b32 s56, s48, 7\ns_add_u32 s56, s56, {TK}\ns_cmp_eq_u32 s49, 31\ns_cselect_b32 s55, s56, s55")
        a("s_waitcnt lgkmcnt(0)")
        if 'warmpre' in self.skip:
            a("v_lshlrev_b32 v16, 7, v0\ns_mov_b64 exec, 0xff\nbuffer_load_dword v165, v16, s[16:19], s52 offen sc1\ns_mov_b64 exec, -1")
        else: a("buffer_store_dwordx4 v[8:11], v14, s[16:19], s52 offen" + self.lc)
        if 'wst' in self.skip:
            c("allocate the lines this workgroup publishes later (stats, q partial) in L2: contents are not used")
            a(f"""s_lshl_b32 s53, s48, 2
            s_and_b32 s54, s49, 3
            s_add_u32 s53, s53, s54
            s_lshl_b32 s53, s53, 3
            s_lshr_b32 s54, s2, 5
            s_add_u32 s53, s53, s54
            s_lshl_b32 s53, s53, 7
            s_add_u32 s53, s53, {STAT}
            s_mov_b64 exec, 1
            buffer_load_dword v165, v12, s[16:19], s53 offen sc1
            s_mov_b64 exec, -1""")
        if 'wqp' in self.skip:
            a(f"""s_lshr_b32 s53, s49, 3
            s_lshl_b32 s53, s53, 16
            s_lshl_b32 s54, s48, 11
            s_add_u32 s53, s53, s54
            s_and_b32 s54, s49, 7
            s_lshl_b32 s54, s54, 8
            s_add_u32 s53, s53, s54
            s_add_u32 s53, s53, {QPL}
            v_lshrrev_b32 v16, 1, v0
            v_lshlrev_b32 v16, 14, v16
            v_and_b32 v17, 1, v0
            v_lshl_add_u32 v16, v17, 7, v16
            s_mov_b64 exec, 0xff
            buffer_load_dword v165, v16, s[16:19], s53 offen sc1
            s_mov_b64 exec, -1""")
        a(f"""s_sub_u32 s54, s49, 16
        s_cmp_lt_u32 s54, {15 if self.tkp >= 0 else 16}
        s_cbranch_scc1 L_noz
        s_mov_b64 exec, 0xffff
        buffer_store_dwordx2 v[12:13], v15, s[16:19], s55 offen sc1
        s_mov_b64 exec, -1
        L_noz:
        s_barrier
        s_waitcnt vmcnt(0)""")
        if 'warmpre' in self.skip: a("buffer_store_dwordx4 v[8:11], v14, s[16:19], s52 offen\ns_waitcnt vmcnt(0)")
        self.setflag(F_CLR, "v3")
        if 'nowarmpost' not in self.skip:
            c("make the cleared lines readable from L2 (contents unused)")
            a("v_lshlrev_b32 v16, 7, v0\ns_mov_b64 exec, 0xff\nbuffer_load_dword v165, v16, s[16:19], s52 offen sc1\ns_mov_b64 exec, -1")
        a("s_branch L_swave")

    def dpp_allred16(self, op, regs):
        for rot in (8, 4, 2, 1):
            for r in regs:
                self.a(f"{op}_dpp v{r}, v{r}, v{r} row_ror:{rot} row_mask:0xf bank_mask:0xf")
            self.a("s_nop %d" % max(0, 2 - len(regs)))

    def ahead(self):
        a, c = self.a, self.c
        c("A-wave head: x loads first")
        a(f"""{'' if 'noprio' in self.skip else 's_setprio 3'}
        v_and_b32 v12, 15, v0
        v_mul_u32_u24 v13, 896, v7
        v_lshl_add_u32 v14, v12, 3, v13
        v_lshl_add_u32 v13, v12, 4, v13
        s_lshr_b32 s52, s49, 3
        s_lshl_b32 s53, s52, 8
        s_mov_b32 s54, {EPO}
        {'s_barrier' if 'bar1' in self.skip else ''}
        s_waitcnt lgkmcnt(0)
        {'s_load_dword s56, s[20:21], 0' if 'xtouch' in self.skip else ''}
        {'s_load_dword s57, s[16:17], s54' if 'xtouch' in self.skip else ''}
        {'s_sleep 1' if 'x1' in self.skip else ''}
        {'s_sleep 3' if 'x3' in self.skip else ''}
        {'s_waitcnt lgkmcnt(0)' if 'xwait' in self.skip else ''}
        buffer_load_dwordx4 v[16:19], v13, s[20:23], 0 offen
        buffer_load_dwordx4 v[20:23], v13, s[20:23], 0 offen offset:256
        buffer_load_dwordx4 v[24:27], v13, s[20:23], 0 offen offset:512
        buffer_load_dwordx2 v[28:29], v14, s[20:23], 0 offen offset:768
        buffer_load_dwordx4 v[30:33], v13, s[20:23], s53 offen
        {'s_barrier' if 'abar1' in self.skip else ''}
        buffer_load_dword v110, v8, s[16:19], s54 offen sc1
        s_branch L_awave""")

    def awave(self):
        self.cur = 'A'
        a, c = self.a, self.c
        c("================= A-wave: LN1, q partial, q gather, softmax, stats =================")
        a("L_awave:")
        a(f"ds_write_b64 v10, v[8:9] offset:{ZR}\nds_write_b64 v10, v[8:9] offset:{FL}")
        self.common2()
        a("s_waitcnt lgkmcnt(0)\ns_barrier")
        a(f"s_mov_b32 s54, {WQL}")
        self.tr_addr(100, "s54", 104)
        a(f"""v_bfe_u32 v104, v0, 2, 2
        v_lshlrev_b32 v104, 8, v104
        v_lshl_add_u32 v104, v7, 3, v104
        v_add_u32 v104, {XN}, v104
        v_lshlrev_b32 v106, 14, v7
        v_lshl_add_u32 v106, v12, 4, v106
        v_lshlrev_b32 v108, 4, v0
        s_mov_b32 s60, 0xffff0000
        v_mov_b32 v109, 0x3f803f80
        s_waitcnt vmcnt(1)""")
        self.stamp(1)
        c("row sums and sums of squares (16 lanes per batch row), own 8 values -> v64..71")
        for i in range(14):
            a(f"v_dot2_f32_bf16 v72, v{16+i}, v109, {'0' if i == 0 else 'v72'}\nv_dot2_f32_bf16 v73, v{16+i}, v{16+i}, {'0' if i == 0 else 'v73'}")
        for i in range(4):
            a(f"v_lshlrev_b32 v{64+2*i}, 16, v{30+i}\nv_and_b32 v{65+2*i}, s60, v{30+i}")
        self.dpp_allred16("v_add_f32", [72, 73])
        a(f"""v_mul_f32 v72, {hex(f2u(1/448))}, v72
        v_mul_f32 v73, {hex(f2u(1/448))}, v73
        v_fma_f32 v73, -v72, v72, v73
        v_max_f32 v73, 0, v73
        v_cvt_pk_bf16_f32 v74, v72, v73
        v_lshlrev_b32 v72, 16, v74
        v_and_b32 v73, s60, v74
        v_add_f32 v73, {hex(f2u(1e-5))}, v73
        v_cvt_pk_bf16_f32 v73, v73, v73
        v_and_b32 v73, s60, v73
        v_sqrt_f32 v73, v73
        s_nop 0
        v_cvt_pk_bf16_f32 v73, v73, v73
        v_and_b32 v73, s60, v73
        v_rcp_f32 v73, v73""")
        for i in range(4):
            a(f"""v_sub_f32 v{64+2*i}, v{64+2*i}, v72
            v_sub_f32 v{65+2*i}, v{65+2*i}, v72
            v_cvt_pk_bf16_f32 v74, v{64+2*i}, v{65+2*i}
            v_lshlrev_b32 v75, 16, v74
            v_and_b32 v76, s60, v74
            v_mul_f32 v75, v75, v73
            v_mul_f32 v76, v76, v73
            v_cvt_pk_bf16_f32 v{30+i}, v75, v76""")
        a(f"ds_write_b128 v108, v[30:33] offset:{XN}")
        for ks in range(4):
            a(f"ds_read2_b64 v[{16+4*ks}:{19+4*ks}], v104 offset0:{ks*8} offset1:{ks*8+4}")
        self.stamp(2)
        self.waitflag(F_WQ, n=4, t="v96", sleep=False)
        self.stamp(3)
        for ks in range(4):
            for i in range(4):
                for half in range(2):
                    r = 32 + (ks*4 + i)*4 + half*2
                    a(f"ds_read_b64_tr_b16 v[{r}:{r+1}], v{100+i} offset:{ks*4096 + half*2048}")
            if ks & 1:
                a("s_waitcnt lgkmcnt(0)")
                for k2 in (ks-1, ks):
                    for i in range(4):
                        r = 32 + (k2*4 + i)*4; d = 112 + 4*i
                        cin = "0" if k2 == 0 else f"v[{d}:{d+3}]"
                        a(f"v_mfma_f32_16x16x32_bf16 v[{d}:{d+3}], v[{16+4*k2}:{19+4*k2}], v[{r}:{r+3}], {cin}")
        self.waitflag(F_CLR)
        self.stamp(4)
        a(f"""s_waitcnt vmcnt(0)
        v_add_u32 v110, 1, v110
        s_getreg_b32 s62, hwreg(HW_REG_XCC_ID, 0, 4)
        ds_write_b32 v3, v110 offset:{F_TAG}
        s_mov_b32 s58, 0xaaaaaaaa
        s_mov_b32 s59, 0xaaaaaaaa
        v_lshrrev_b32 v125, 4, v110
        v_lshrrev_b32 v126, 8, v110
        v_lshrrev_b32 v127, 16, v110
        v_cndmask_b32 v126, v126, v127, s[58:59]
        v_lshrrev_b32 v127, 12, v110
        v_mov_b32 v113, s62
        v_cndmask_b32 v127, v127, v113, s[58:59]
        v_add_u32 v112, 8, v112
        v_add_u32 v113, 8, v116
        v_add_u32 v114, 8, v120
        v_add_u32 v115, 8, v124
        v_bfi_b32 v112, 15, v110, v112
        v_bfi_b32 v113, 15, v125, v113
        v_bfi_b32 v114, 15, v126, v114
        v_bfi_b32 v115, 15, v127, v115
        s_lshl_b32 s53, s52, 16
        s_lshl_b32 s54, s48, 11
        s_add_u32 s53, s53, s54
        s_and_b32 s55, s49, 7
        s_lshl_b32 s55, s55, 8
        s_add_u32 s53, s53, s55
        s_add_u32 s55, s53, {QPL}
        buffer_store_dwordx4 v[112:115], v106, s[16:19], s55 offen{self.lq}
        s_and_b32 s55, s49, 3
        s_lshl_b32 s55, s55, 14
        s_add_u32 s54, s54, s55
        s_add_u32 s55, s54, 0x10000
        s_add_u32 s56, s54, 0x20000
        s_add_u32 s57, s54, 0x30000""")
        if self.qg < 0:
            a(f"s_waitcnt vmcnt({1 if self.qg == -2 else 0})")
            if self.qd: a(f"s_sleep {self.qd}")
        else:
            c("gather once K is well under way: every member of the group has published by then")
            self.waitflag(F_KL + 16*self.qg)
        self.stamp(9)
        c("q gather")
        tg = [110, 125, 126, 127]
        c("the L2-resident copy is complete only if the whole group sits on this XCD; after three misses publish a")
        c("write-through copy as well and alternate between the two")
        a(f"""v_add_u32 v108, {QPL}, v108
        s_mov_b32 s63, 0
        L_qg:
        s_add_u32 s63, s63, 1
        s_cmp_lt_u32 s63, 4
        s_cbranch_scc1 L_qg2
        v_xor_b32 v108, {QPL}, v108
        s_cmp_lg_u32 s63, 4
        s_cbranch_scc1 L_qg2
        buffer_store_dwordx4 v[112:115], v106, s[16:19], s53 offen sc1
        L_qg2:""")
        for rg in range(4):
            for z in range(2):
                r = 16 + (rg*2 + z)*4
                a(f"buffer_load_dwordx4 v[{r}:{r+3}], v108, s[16:19], s{54+rg} offen offset:{z*1024} sc1")
        a(f"s_waitcnt vmcnt(0)\nv_xor_b32 v8, v16, v110\nv_xor_b32 v119, v19, v127")
        for k in range(1, 32):
            if k == 3: continue
            d = 119 if (k & 3) == 3 else 8
            a(f"v_bitop3_b32 v{d}, v{d}, v{16+k}, v{tg[k & 3]} bitop3:0xf6")
        a("v_cndmask_b32 v9, v119, 0, s[58:59]\nv_or_b32 v8, v8, v9\nv_and_b32 v8, 15, v8\nv_cmp_ne_u32 vcc, 0, v8")
        self.retry("L_qg")
        a("L_qgskip:")
        for k in range(32): a(f"v_and_b32 v{16+k}, -16, v{16+k}")
        for k in range(8):
            a(f"v_add_f32 v{80+k}, v{16+k}, v{24+k}\nv_add_f32 v{88+k}, v{32+k}, v{40+k}")
        self.stamp(5)
        for k in range(8):
            a(f"v_add_f32 v{80+k}, v{80+k}, v{88+k}")
        a(f"v_lshlrev_b32 v9, 7, v7\nv_lshl_add_u32 v9, v12, 1, v9")
        for k in range(4):
            a(f"v_cvt_pk_bf16_f32 v{88+k}, v{80+2*k}, v{81+2*k}")
        for k in range(4):
            z = k >> 1; i = (k & 1)*2
            a(f"ds_write_b16 v9, v{88+k} offset:{QB + z*512 + i*32}\nds_write_b16_d16_hi v9, v{88+k} offset:{QB + z*512 + i*32 + 32}")
        self.setflag(F_Q, "v3")
        a(f"v_and_b32 v119, 15, v119\nv_cmp_ne_u32 vcc, 0, v119\ns_cmp_eq_u64 vcc, 0\ns_cselect_b32 s62, {2 if 'noloc' in self.skip else 1}, 2\nv_mov_b32 v119, s62")
        a("s_cbranch_scc1 L_quni\nbuffer_store_dwordx4 v[112:115], v106, s[16:19], s53 offen sc1\nL_quni:")
        a(f"""s_cmp_lg_u32 s49, 31
        s_cbranch_scc1 L_nogr
        s_lshl_b32 s53, s48, 2
        s_add_u32 s53, s53, {GR}
        s_mov_b64 exec, 1
        buffer_store_dword v110, v10, s[16:19], s53 offen sc1
        s_mov_b64 exec, -1
        L_nogr:""")
        if 'wbl2a' in self.skip: a("s_cmp_lg_u32 s49, 0\ns_cbranch_scc1 L_nowb\nbuffer_wbl2 sc1\nL_nowb:")
        c("softmax over the 128 local keys, 2 heads")
        a(f"""s_lshl_b32 s53, s48, 2
        s_and_b32 s54, s49, 3
        s_add_u32 s53, s53, s54
        s_lshl_b32 s53, s53, 10
        s_add_u32 s53, s53, {STAT}
        s_lshr_b32 s54, s2, 5
        s_lshl_b32 s54, s54, 7
        s_add_u32 s54, s54, s53
        s_mov_b32 s61, {hex(f2u(1.4426950408889634/16))}
        v_add_u32 v30, -4, v0
        v_lshlrev_b32 v30, 4, v30
        """)
        self.waitflag(F_S, n=4, t="v96", sleep=False)
        self.stamp(6)
        a(f"""ds_read_b64 v[16:17], v10 offset:{SP}
        s_waitcnt lgkmcnt(0)
        v_lshlrev_b32 v18, 16, v16
        v_and_b32 v19, s60, v16
        v_lshlrev_b32 v20, 16, v17
        v_and_b32 v21, s60, v17
        v_max_f32 v22, v18, v19
        v_max3_f32 v22, v22, v20, v21""")
        def red8x4(op, r, t):
            a(f"""s_nop 1
            {op}_dpp v{r}, v{r}, v{r} quad_perm:[1,0,3,2] row_mask:0xf bank_mask:0xf
            s_nop 1
            {op}_dpp v{r}, v{r}, v{r} quad_perm:[2,3,0,1] row_mask:0xf bank_mask:0xf
            s_nop 1
            {op}_dpp v{r}, v{r}, v{r} row_half_mirror row_mask:0xf bank_mask:0xf
            v_mov_b32 v{t}, v{r}
            s_nop 1
            v_permlane16_swap_b32 v{r}, v{t}
            {op} v{r}, v{r}, v{t}
            v_mov_b32 v{t}, v{r}
            s_nop 1
            v_permlane32_swap_b32 v{r}, v{t}
            {op} v{r}, v{r}, v{t}""")
        red8x4("v_max_f32", 22, 24)
        for k in range(4):
            a(f"v_sub_f32 v{18+k}, v{18+k}, v22\nv_mul_f32 v{18+k}, s61, v{18+k}\nv_exp_f32 v{18+k}, v{18+k}")
        a(f"""s_nop 0
        v_cvt_pk_bf16_f32 v16, v18, v19
        v_cvt_pk_bf16_f32 v17, v20, v21
        ds_write_b64 v10, v[16:17] offset:{SP}""")
        a(f"ds_write_b32 v3, v119 offset:{F_P}")
        a("v_add_f32 v23, v18, v19\nv_add_f32 v24, v20, v21\nv_add_f32 v23, v23, v24")
        red8x4("v_add_f32", 23, 24)
        a(f"""v_mov_b32 v24, v110
        v_mov_b32 v25, 0
        s_mov_b64 exec, 0xff0
        s_cmp_eq_u32 s62, 1
        s_cbranch_scc1 L_sloc
        buffer_store_dwordx4 v[22:25], v30, s[16:19], s54 offen sc1
        s_branch L_exit
        L_sloc:
        buffer_store_dwordx4 v[22:25], v30, s[16:19], s54 offen{self.lo}
        """)
        self.stamp(7)
        a("s_branch L_exit")

    def swave(self):
        self.cur = 'S'
        a, c = self.a, self.c
        c("================= S-wave: scores =================")
        a("L_swave:")
        a(f"""v_and_b32 v12, 15, v0
        v_xor_b32 v13, v7, v12
        v_lshlrev_b32 v13, 4, v13
        v_lshl_add_u32 v13, v12, 9, v13
        s_lshl_b32 s55, s50, 14
        s_add_u32 s55, s55, {KL}
        v_add_u32 v13, s55, v13
        v_xor_b32 v14, 64, v13
        v_xor_b32 v15, 0x80, v13
        v_xor_b32 v16, 0xc0, v13
        v_and_b32 v17, 1, v0
        v_lshlrev_b32 v18, 9, v17
        v_lshl_add_u32 v18, v7, 4, v18
        v_lshlrev_b32 v17, 6, v17
        v_lshl_add_u32 v17, v7, 4, v17
        s_lshl_b32 s56, s50, 7
        v_add_u32 v17, s56, v17""")
        c("weights prefetch addresses: u=0,1 wo ; u=2 w2 ; u=3 w1")
        self.srd(28, 32, 4096*896)
        self.srd(32, 64, 1792*896)
        self.srd(36, 48, 448*3584)
        self.srd(40, 56, 3584)
        if 'notouch2' not in self.skip:
            a("s_cmp_lg_u32 s50, 1\ns_cbranch_scc1 L_notouch\ns_cmp_lg_u32 s49, 30\ns_cbranch_scc1 L_notouch")
            a("s_load_dwordx4 s[72:75], s[0:1], 72")
            self.waitflag(F_KL, "v2")
            if 'tall' in self.skip:
                a(f"s_mul_i32 s57, s48, {512*896}\ns_load_dword s65, s[28:29], s57\ns_add_u32 s57, s57, {512*896-64}\ns_load_dword s66, s[28:29], s57\ns_load_dword s67, s[36:37], 0")
            a(f"""s_load_dword s62, s[32:33], 0
            s_load_dword s64, s[40:41], 0
            s_load_dword s60, s[72:73], 0
            s_load_dword s61, s[74:75], 0
            L_notouch:""")
        a("s_lshl_b32 s56, s50, 4\nv_add_u32 v19, s56, v3")
        self.waitflag(F_KL, "v19", n=4)
        self.stamp(1)
        for ks in range(8):
            for T in range(2):
                r = 64 + (T*8 + ks)*4
                a(f"ds_read_b128 v[{r}:{r+3}], v{13 + (ks & 3)} offset:{(ks >> 2)*256 + T*8192}")
        if self.tkp == 100:
            a(f"""s_cmp_lg_u32 s50, 0
            s_cbranch_scc1 L_tki""")
            self.waitflag(F_Q)
            a(f"""s_lshl_b32 s56, s48, 7
            s_add_u32 s56, s56, {TK}
            v_mov_b32 v163, 1
            v_mov_b32 v9, 0
            s_mov_b64 exec, 1
            buffer_atomic_add v163, v9, s[16:19], s56 offen sc0 sc1
            s_mov_b64 exec, -1
            L_tki:""")
        self.waitflag(F_Q, sleep=False)
        self.stamp(2)
        a(f"ds_read_b32 v164, v3 offset:{F_TAG}")
        for ks in range(8):
            a(f"ds_read_b128 v[{32+4*ks}:{35+4*ks}], v18 offset:{QB + ks*64}")
        for ks in range(8):
            a(f"s_waitcnt lgkmcnt({7-ks})")
            for T in range(2):
                r = 64 + (T*8 + ks)*4; d = 20 + 4*T
                cin = "0" if ks == 0 else f"v[{d}:{d+3}]"
                a(f"v_mfma_f32_16x16x32_bf16 v[{d}:{d+3}], v[{r}:{r+3}], v[{32+4*ks}:{35+4*ks}], {cin}")
        a("s_nop 7")
        for k in range(4):
            a(f"v_cvt_pk_bf16_f32 v{28+k}, v{20+2*k}, v{21+2*k}")
        a(f"""s_mov_b32 exec_lo, 0x00030003
        s_mov_b32 exec_hi, 0x00030003
        ds_write_b128 v17, v[28:31] offset:{SP}
        s_mov_b64 exec, -1""")
        self.setflag(F_S)
        self.stamp(3)
        if 'roles' in self.skip: a("s_branch L_exit")
        if 'warmlate' in self.skip:
            c("keep this workgroup's share of the cleared o lines in L2 until they are polled")
            a(f"""s_cmp_lg_u32 s50, 1
            s_cbranch_scc1 L_nowm
            s_lshl_b32 s56, s48, 5
            s_add_u32 s56, s56, s49
            s_lshl_b32 s56, s56, 10
            s_add_u32 s56, s56, {OP}
            v_lshlrev_b32 v9, 7, v0
            s_mov_b64 exec, 0xff
            buffer_load_dword v165, v9, s[16:19], s56 offen sc1
            s_mov_b64 exec, -1
            L_nowm:""")
        c("first part of the WO setup")
        a(f"""s_lshr_b32 s68, s50, 1
        s_and_b32 s69, s50, 1
        s_lshl_b32 s54, s48, 1
        s_add_u32 s54, s54, s68
        s_lshl_b32 s54, s54, 2
        s_add_u32 s54, s54, s69
        s_mul_i32 s54, s54, {64*896}
        v_and_b32 v20, 3, v6
        v_lshlrev_b32 v20, 4, v20
        v_lshrrev_b32 v21, 5, v0
        v_lshl_add_u32 v20, v21, 1, v20
        v_mul_u32_u24 v20, 896, v20
        v_add_u32 v20, v20, v5
        v_lshrrev_b32 v15, 1, v0
        v_lshlrev_b32 v15, 7, v15
        s_lshl_b32 s59, s48, 12
        s_lshl_b32 s56, s68, 6
        s_add_u32 s59, s59, s56
        s_add_u32 s59, s59, {STAT}""")
        if self.tkp == 100:
            a(f"""s_cmp_lg_u32 s50, 0
            s_cbranch_scc1 L_tkw
            s_mov_b64 exec, 1
            s_waitcnt vmcnt(0)
            v_add_u32 v8, 1, v163
            ds_write_b32 v3, v8 offset:{F_TK}
            s_mov_b64 exec, -1
            L_tkw:""")
            self.waitflag(F_TK, sleep=False)
            a("v_readfirstlane_b32 s49, v8\ns_nop 0\ns_sub_u32 s49, s49, 1")
            if self.prof: a("v_writelane_b32 v167, s49, 61")
        elif self.tkp >= 0:
            a("s_cmp_lg_u32 s50, 0\ns_cbranch_scc1 L_tkw")
            self.waitflag(F_V8, "v2")
            a(f"""s_lshl_b32 s56, s48, 7
            s_add_u32 s56, s56, {TK}
            v_mov_b32 v8, 1
            v_mov_b32 v9, 0
            s_mov_b64 exec, 1
            buffer_atomic_add v8, v9, s[16:19], s56 offen sc0 sc1
            s_waitcnt vmcnt(0)
            v_add_u32 v8, 1, v8
            ds_write_b32 v3, v8 offset:{F_TK}
            s_mov_b64 exec, -1
            L_tkw:""")
            self.waitflag(F_TK, sleep=False)
            a("v_readfirstlane_b32 s49, v8\ns_nop 0\ns_sub_u32 s49, s49, 1")
            if self.prof: a("v_writelane_b32 v167, s49, 61")
        if 'rev' in self.skip: a("s_sub_u32 s49, 31, s49")
        if 'rev' in self.skip and self.prof: a("v_writelane_b32 v167, s49, 61")
        a("""v_readfirstlane_b32 s70, v164
        s_cmp_lt_u32 s49, 14
        s_cbranch_scc1 L_wo
        s_mov_b32 s71, s70""")
        if self.hlp:
            if 'B' in self.hlp:
                a("s_cmp_ge_u32 s49, 28\ns_cbranch_scc1 L_exit\ns_cmp_lt_u32 s49, 21\ns_cselect_b32 s56, 7, -7\ns_add_u32 s49, s49, s56")
            elif 'C' in self.hlp:
                a("s_cmp_ge_u32 s49, 30\ns_cbranch_scc1 L_exit\ns_cmp_lt_u32 s49, 23\ns_cselect_b32 s56, 7, -9\ns_add_u32 s49, s49, s56")
            else:
                a("s_cmp_lt_u32 s49, 25\ns_cselect_b32 s56, 7, -11\ns_add_u32 s49, s49, s56")
            if self.prof: a("v_writelane_b32 v167, s49, 61")
        if 'nomlp' in self.skip: a("s_branch L_exit")
        if 'nomlpwg' in self.skip: a("s_cmp_lt_u32 s49, 21\ns_cbranch_scc1 L_exit")
        a("""s_cmp_lt_u32 s49, 21
        s_cbranch_scc1 L_mlp""")
        if self.hlp:
            c("helpers: pull this XCD's share of w1 / w2 into L2")
            ntp = (" " + self.ntp) if self.ntp else ""
            n1, n2 = (64, 56) if 'B' in self.hlp else (50, 44) if 'C' in self.hlp else (41, 36)
            a(f"""s_sub_u32 s56, s49, 21
            s_lshl_b32 s56, s56, 2
            s_add_u32 s56, s56, s50
            s_mul_i32 s57, s56, {n1}
            v_add_u32 v9, s57, v0
            v_lshrrev_b32 v10, 2, v9
            v_mul_u32_u24 v10, 3584, v10
            v_and_b32 v9, 3, v9
            v_lshl_add_u32 v14, v9, 7, v10
            s_mul_i32 s57, s48, 448
            s_andn2_b32 s57, s57, 127
            v_lshlrev_b32 v13, 7, v0
            s_mul_i32 s56, s56, {n2*128}
            s_mul_i32 s58, s48, {224*896}
            s_add_u32 s56, s56, s58""")
            if 'o' in self.hlp: self.waitflag(F_PV, "v2", sleep=False)
            else: self.waitflag(F_PV if 'p' in self.hlp else F_VI, n=4, t="v8", sleep=False)
            if '1' in self.hlp: a(f"s_mov_b32 exec_hi, {hex((1 << (n1 - 32)) - 1)}\nbuffer_load_dword v165, v14, s[36:39], s57 offen{ntp}")
            if 'x' in self.hlp:
                a("s_mov_b32 exec_hi, -1"); self.waitflag(F_PV, n=4, t="v8", sleep=False)
            if '2' in self.hlp: a(f"s_mov_b32 exec_hi, {hex((1 << (n2 - 32)) - 1)}\nbuffer_load_dword v165, v13, s[32:35], s56 offen{ntp}")
            a("s_mov_b32 exec_hi, -1")
        if 'nofin' in self.skip: a("s_branch L_exit")
        a("""s_cmp_lt_u32 s49, 28
        s_cbranch_scc0 L_exit
        s_cmp_ge_u32 s50, 2
        s_cbranch_scc1 L_fin
        s_branch L_exit""")

    def role_wo(self):
        self.cur = 'WO'
        a, c = self.a, self.c; ntw = (" " + self.ntw) if self.ntw else ""
        c("================= role WO =================")
        a("L_wo:")
        a(f"""s_cmp_ge_u32 s49, 7
        s_cselect_b32 s52, 1, 0
        s_mul_i32 s53, s52, 7
        s_sub_u32 s53, s49, s53
        s_mul_i32 s56, s52, {128*896}
        s_add_u32 s54, s54, s56
        s_lshl_b32 s56, s53, 7
        s_add_u32 s54, s54, s56""")
        self.stamp(10)
        early = 'tearly' in self.skip
        if not early:
            self.waitflag(F_VI, n=4, t="v8", sleep=False)
            a("buffer_load_dwordx3 v[16:18], v15, s[16:19], s59 offen sc1")
        for p in range(8):
            rows = 4*(p & 1) + ((p >> 1) & 1) + 8*(p >> 2)
            a(f"s_add_u32 m0, s55, {p*1024}\ns_add_u32 s56, s54, {rows*896}")
            a(f"buffer_load_dwordx4 v20, s[28:31], s56 offen{ntw} lds")
            if early and p + 1 >= self.ww and p < 7: a(f"s_waitcnt vmcnt({self.ww - 1})")
        a(f"""v_lshlrev_b32 v23, 2, v0
        v_and_b32 v29, 28, v23
        s_mov_b32 s61, {GR}""")
        if not early: a("buffer_load_dword v31, v29, s[16:19], s61 offen sc1")
        self.tr_addr(160, "s55", 21)
        a(f"""v_xor_b32 v21, v0, v6
        v_lshlrev_b32 v21, 4, v21
        v_and_b32 v22, 7, v0
        v_xor_b32 v12, v7, v22
        v_lshlrev_b32 v12, 4, v12
        v_and_b32 v22, 15, v0
        v_lshl_add_u32 v12, v22, 7, v12
        s_add_u32 s72, s55, 8192
        v_add_u32 v12, s72, v12
        v_xor_b32 v13, 64, v12
        v_and_b32 v22, 3, v0
        s_lshl_b32 s57, s48, 2
        s_lshl_b32 s56, s52, 1
        s_add_u32 s57, s57, s56
        s_add_u32 s57, s57, s69
        s_lshl_b32 s57, s57, 1
        s_add_u32 s57, s57, s68
        s_lshl_b32 s57, s57, 12
        s_add_u32 s57, s57, {OP}
        s_mov_b32 s69, {hex(f2u(1.4426950408889634/16))}
        s_lshl_b32 s56, s50, 10
        v_add_u32 v24, s56, v23
        v_add_u32 v24, {RED}, v24""")
        a(f"""v_lshrrev_b32 v25, 5, v0
        v_lshlrev_b32 v25, 8, v25
        v_bfe_u32 v26, v0, 2, 3
        v_lshl_add_u32 v25, v26, 3, v25
        v_and_b32 v26, 1, v0
        v_lshl_add_u32 v25, v26, 2, v25
        s_lshl_b32 s56, s50, 6
        s_add_u32 s56, s56, {RED}
        v_add_u32 v25, s56, v25
        v_cmp_eq_u32 vcc, 2, v22
        v_mov_b32 v26, 1.0
        s_lshl_b32 s58, s50, {HS+5}
        v_cndmask_b32 v26, 0, v26, vcc
        s_lshl_b32 s56, s53, {HS+2}
        s_add_u32 s58, s58, s56
        s_add_u32 s58, s58, {HACC}
        v_and_b32 v23, 0x7c, v23
        v_lshrrev_b32 v22, 5, v0
        v_lshl_add_u32 v23, v22, {HS}, v23
        v_mov_b32 v27, v26
        v_lshlrev_b32 v30, 10, v0
        s_lshl_b32 s60, s48, 2
        s_lshl_b32 s62, s52, 7
        s_add_u32 s60, s60, s62
        s_lshl_b32 s62, s53, 13
        s_add_u32 s60, s60, s62
        s_lshl_b32 s62, s50, 8
        s_add_u32 s60, s60, s62
        s_add_u32 s60, s60, {EW}""")
        if 'rep2' in self.skip: a("s_cmp_lt_u32 s50, 2\ns_cselect_b32 s60, s60, 0x7f000000")
        if early:
            self.waitflag(F_VI, n=4, t="v8", sleep=False)
            a("buffer_load_dwordx3 v[16:18], v15, s[16:19], s59 offen sc1\nbuffer_load_dword v31, v29, s[16:19], s61 offen sc1\ns_waitcnt vmcnt(2)")
            for z in range(2):
                for i in range(4):
                    for half in range(2):
                        r = 128 + (z*4 + i)*4 + half*2
                        a(f"ds_read_b64_tr_b16 v[{r}:{r+1}], v{160+i} offset:{z*4096 + half*2048}")
        a(f"s_waitcnt vmcnt({1 if early else 9})\nv_cmp_ne_u32 vcc, v18, v164\ns_cbranch_vccnz L_stwait\nL_stok:")
        c("combine weights w[b][h][j] = exp(m_j - M) / L")
        a("v_mov_b32 v19, v16\ns_nop 1")
        for rot in (8, 4, 2):
            a(f"v_max_f32_dpp v19, v19, v19 row_ror:{rot} row_mask:0xf bank_mask:0xf\ns_nop 1")
        a("v_sub_f32 v16, v16, v19\nv_mul_f32 v16, s69, v16\nv_exp_f32 v16, v16\ns_nop 0\nv_mul_f32 v17, v17, v16\ns_nop 1")
        for rot in (8, 4, 2):
            a(f"v_add_f32_dpp v17, v17, v17 row_ror:{rot} row_mask:0xf bank_mask:0xf\ns_nop 1")
        a("v_rcp_f32 v17, v17\ns_nop 0\nv_mul_f32 v16, v16, v17\ns_nop 1")
        for j in range(8):
            a(f"v_mov_b32_dpp v{96+j}, v16 row_newbcast:{2*j} row_mask:0xf bank_mask:0xf")
        a(f"ds_read_b32 v8, v3 offset:{F_P}\ns_waitcnt lgkmcnt(0)\nv_cmp_ne_u32 vcc, 1, v8\ns_cbranch_vccnz L_wglob\nL_wgok:")
        if 'nopipe' in self.skip: a("s_waitcnt vmcnt(0)")
        else:
            a("s_mov_b32 m0, s72\ns_nop 0")
            for q in range(4): a(f"buffer_load_dwordx4 v21, s[16:19], s57 offen offset:{q*1024} sc1 lds")
            a("s_waitcnt vmcnt(5)")
        self.stamp(4)
        for z in range(0 if early else 2):
            for i in range(4):
                for half in range(2):
                    r = 128 + (z*4 + i)*4 + half*2
                    a(f"ds_read_b64_tr_b16 v[{r}:{r+1}], v{160+i} offset:{z*4096 + half*2048}")
        l = self.lab("OP")
        def osweep():
            for q in range(4):
                a(f"buffer_load_dwordx4 v21, s[16:19], s57 offen offset:{q*1024} sc1 lds")
        if 'nopipe' in self.skip:
            a(f"s_mov_b32 m0, s72\n{l}:\ns_nop 0"); osweep(); a("s_waitcnt vmcnt(0)")
        else:
            a(f"{l}:\ns_xor_b32 m0, m0, 0x1000\ns_nop 0"); osweep(); a("s_waitcnt vmcnt(4)")
        for z in range(2):
            for st_ in range(2):
                r = 32 + (z*2 + st_)*4
                a(f"ds_read_b128 v[{r}:{r+3}], v{12+z} offset:{st_*2048}")
        if 'nopipe' not in self.skip: a("v_xor_b32 v12, 0x1000, v12\nv_xor_b32 v13, 0x1000, v13")
        def ew(k):
            if self.ewp == k:
                a("s_mov_b64 exec, 0xff\nbuffer_store_dword v164, v30, s[16:19], s60 offen sc1")
                if 'ew2x' in self.skip: a("buffer_store_dword v164, v30, s[16:19], s60 offen offset:64 sc1")
                a("s_mov_b64 exec, -1")
        def mf(i, z, st_):
            d = 64 + (i*2 + st_)*4; ra = 32 + (z*2 + st_)*4; rb = 128 + (z*4 + i)*4
            cin = "0" if z == 0 else f"v[{d}:{d+3}]"
            a(f"v_mfma_f32_16x16x32_bf16 v[{d}:{d+3}], v[{ra}:{ra+3}], v[{rb}:{rb+3}], {cin}")
        def fm(i, st_, r):
            d = 64 + (i*2 + st_)*4; acc = 48 + 4*i + st_
            if r == 0: a(f"v_mul_f32 v{acc}, v{d}, v{96+4*st_}")
            else: a(f"v_fmac_f32 v{acc}, v{d+r}, v{96+4*st_+r}")
        c("tile 0 starts speculatively while the sentinels are checked")
        a("s_waitcnt lgkmcnt(3)"); mf(0, 0, 0)
        a("s_waitcnt lgkmcnt(2)"); mf(0, 0, 1)
        a("v_max3_u32 v28, v32, v34, v36\ns_waitcnt lgkmcnt(1)"); mf(0, 1, 0)
        a("v_max3_u32 v14, v38, v40, v42\ns_waitcnt lgkmcnt(0)"); mf(0, 1, 1)
        a("v_max3_u32 v28, v28, v44, v46\nv_max_u32 v28, v28, v14\nv_cmp_eq_u32 vcc, -1, v28")
        mf(1, 0, 0)
        self.retry(l)
        if self.ewp in (0, 4): a("s_barrier")
        ew(0)
        self.stamp(5)
        seq = [(1, 0, 1), (1, 1, 0), (1, 1, 1)] + [(i, z, st_) for i in (2, 3) for z in range(2) for st_ in range(2)]
        fq = [(i, st_, r) for i in range(4) for r in range(4) for st_ in range(2)]
        for k, m in enumerate(seq):
            mf(*m)
            if k >= 1:
                for _ in range(2): fm(*fq.pop(0))
            if k == 5: a("v_add_f32 v48, v48, v49")
            if k == self.ewk: ew(4)
        a("v_add_f32 v52, v52, v53")
        for _ in range(2): fm(*fq.pop(0))
        a("ds_write2st64_b32 v24, v48, v52 offset0:0 offset1:1")
        for _ in range(2): fm(*fq.pop(0))
        a("v_cmp_ne_u32 vcc, v31, v164\nv_add_f32 v56, v56, v57")
        while fq: fm(*fq.pop(0))
        a("v_add_f32 v60, v60, v61")
        a("ds_write2st64_b32 v24, v56, v60 offset0:2 offset1:3")
        a("s_cbranch_vccnz L_grwait\nL_grok:")
        ew(1)
        a("s_waitcnt lgkmcnt(0)\ns_barrier")
        a("""ds_read2st64_b32 v[32:33], v25 offset0:0 offset1:4
        ds_read2st64_b32 v[34:35], v25 offset0:8 offset1:12
        ds_read2st64_b32 v[36:37], v25 offset0:2 offset1:6
        ds_read2st64_b32 v[38:39], v25 offset0:10 offset1:14""")
        ew(2)
        a("""s_mov_b32 exec_lo, 0x33333333
        s_mov_b32 exec_hi, 0x33333333
        s_waitcnt lgkmcnt(2)
        v_add_f32 v32, v32, v33
        v_add_f32 v34, v34, v35
        v_add_f32 v26, v32, v34
        s_waitcnt lgkmcnt(0)
        v_add_f32 v36, v36, v37
        v_add_f32 v38, v38, v39
        v_add_f32 v27, v36, v38
        s_mov_b64 exec, -1
        buffer_atomic_add_f32 v26, v23, s[16:19], s58 offen
        buffer_atomic_add_f32 v27, v23, s[16:19], s58 offen offset:%d""" % (2 << HS))
        ew(3)
        if 'wbl2' in self.skip: a("s_or_b32 s56, s49, s50\ns_cmp_lg_u32 s56, 0\ns_cbranch_scc1 L_exit\nbuffer_wbl2 sc1")
        self.stamp(6)
        a("s_branch L_exit")
        a("L_grwait:\nbuffer_load_dword v31, v29, s[16:19], s61 offen sc1\ns_waitcnt vmcnt(0)\nv_cmp_ne_u32 vcc, v31, v164")
        self.retry("L_grwait")
        a("s_branch L_grok")
        a("L_stwait:\ns_sleep 1\nbuffer_load_dwordx3 v[16:18], v15, s[16:19], s59 offen sc1\ns_waitcnt vmcnt(0)\nv_cmp_ne_u32 vcc, v18, v164")
        self.retry("L_stwait")
        a("s_branch L_stok")
        a(f"""L_wglob:
        s_sub_u32 s56, s57, {OP}
        s_lshr_b32 s56, s56, 13
        s_lshl_b32 s56, s56, 7
        s_add_u32 s56, s56, {RDY}
        s_add_u32 s57, s57, {OPG-OP}
        v_lshlrev_b32 v9, 2, v0
        v_and_b32 v9, 0x7c, v9
        L_wg2:
        buffer_load_dword v8, v9, s[16:19], s56 offen sc1
        s_waitcnt vmcnt(0)
        v_cmp_ne_u32 vcc, v8, v164""")
        self.retry("L_wg2")
        a("s_branch L_wgok")

    def wave_sum2(self, r0, r1, s0, s1):
        a = self.a
        for ctl in ("row_shr:1", "row_shr:2", "row_shr:4", "row_shr:8"):
            a(f"v_add_f32_dpp v{r0}, v{r0}, v{r0} {ctl} row_mask:0xf bank_mask:0xf bound_ctrl:0" if False else
              f"v_add_f32_dpp v{r0}, v{r0}, v{r0} {ctl.replace('shr','ror')} row_mask:0xf bank_mask:0xf")
            a(f"v_add_f32_dpp v{r1}, v{r1}, v{r1} {ctl.replace('shr','ror')} row_mask:0xf bank_mask:0xf\ns_nop 0")
        a(f"v_add_f32_dpp v{r0}, v{r0}, v{r0} row_bcast:15 row_mask:0xa bank_mask:0xf")
        a(f"v_add_f32_dpp v{r1}, v{r1}, v{r1} row_bcast:15 row_mask:0xa bank_mask:0xf\ns_nop 0")
        a(f"v_add_f32_dpp v{r0}, v{r0}, v{r0} row_bcast:31 row_mask:0xc bank_mask:0xf")
        a(f"v_add_f32_dpp v{r1}, v{r1}, v{r1} row_bcast:31 row_mask:0xc bank_mask:0xf")
        a(f"v_readlane_b32 s{s0}, v{r0}, 63\nv_readlane_b32 s{s1}, v{r1}, 63\ns_nop 1")

    def ew_gate(self, va):
        a = self.a
        l = self.lab("EW")
        a(f"v_lshlrev_b32 v{va}, 7, v12\ns_mov_b32 s63, {EW}")
        a(f"{l}:\nbuffer_load_dword v8, v{va}, s[16:19], s63 offen sc1\ns_waitcnt vmcnt(0)\nv_cmp_ne_u32 vcc, v8, v164")
        self.retry(l)

    def role_mlp(self):
        self.cur = 'MLP'
        a, c = self.a, self.c; ntw = (" " + self.ntw) if self.ntw else ""
        c("================= role MLP =================")
        a("L_mlp:")
        a(f"""s_mul_i32 s52, s48, 7
        s_add_u32 s52, s52, s49
        s_sub_u32 s52, s52, 14
        v_and_b32 v22, 3, v0
        v_mul_u32_u24 v21, 896, v6
        v_add_u32 v21, v21, v5
        s_mul_i32 s56, s52, {32*896}
        s_lshl_b32 s57, s50, 7
        s_add_u32 s56, s56, s57
        s_add_u32 s54, s55, {VL - KL}
        v_bfe_u32 v15, v0, 2, 2
        v_lshlrev_b32 v18, 6, v15
        v_lshl_add_u32 v18, v7, 4, v18
        v_add_u32 v18, {H1L}, v18
        v_mov_b32 v19, {ZR}""")
        for i in range(4):
            a(f"v_cmp_eq_u32 vcc, {i}, v22\ns_nop 1\nv_cndmask_b32 v{24+i}, v19, v18, vcc")
        self.tr_addr(160, "s54", 8)
        a(f"""s_mul_i32 s58, s52, 7168
        s_lshl_b32 s59, s50, 10
        s_add_u32 s58, s58, s59
        s_add_u32 s58, s58, {PART}
        s_add_u32 s62, s58, 4096
        v_lshlrev_b32 v23, 4, v0""")
        if 'warmpart' in self.skip:
            c("bring the lines this wave will publish into the memory-side cache")
            a("v_lshlrev_b32 v9, 7, v0\ns_mov_b64 exec, 0xff\nbuffer_load_dword v165, v9, s[16:19], s58 offen\nbuffer_load_dword v165, v9, s[16:19], s62 offen\ns_mov_b64 exec, -1")
        a("s_cmp_ge_u32 s50, 2\ns_cbranch_scc1 L_mlp_b")
        def w2ld(skip3=False):
            for p in range(8):
                if p == 4 and skip3: a("s_cmp_eq_u32 s50, 3\ns_cselect_b32 s56, 0x7f000000, s56")
                a(f"s_add_u32 m0, s54, {p*1024}\ns_add_u32 s53, s56, {(p & 3)*8*896 + (p >> 2)*512}")
                a(f"buffer_load_dwordx4 v21, s[32:35], s53 offen{ntw} lds")
        def w2rd():
            for qq in range(2):
                for i in range(4):
                    for half in range(2):
                        r = 120 + (qq*4 + i)*4 + half*2
                        a(f"ds_read_b64_tr_b16 v[{r}:{r+1}], v{160+i} offset:{qq*4096 + half*2048}")
        c("---- waves 0,1: w1 tile (14 pieces each), then h @ w1 (row 4b+1 of A = ones gives the column sums) ----")
        a(f"""v_lshrrev_b32 v13, 2, v0
        v_mul_u32_u24 v20, 3584, v13
        v_lshl_add_u32 v20, v22, 4, v20
        v_lshlrev_b32 v13, 6, v13
        v_lshl_add_u32 v13, v22, 3, v13
        s_lshl_b32 s57, s50, 5
        s_add_u32 s53, s57, {KL}
        v_add_u32 v13, s53, v13
        s_lshl_b32 s59, s52, 6
        s_add_u32 s57, s57, s59
        s_mul_i32 s53, s50, {14*16*3584}
        s_add_u32 s59, s59, s53
        v_lshlrev_b32 v9, 1, v12
        buffer_load_ushort v28, v9, s[40:43], s57 offen
        v_mul_u32_u24 v16, 896, v15
        v_lshl_add_u32 v16, v7, 4, v16
        v_add_u32 v16, {YL}, v16
        v_cmp_eq_u32 vcc, 1, v22
        v_mov_b32 v9, {ONL}
        v_lshlrev_b32 v17, 6, v7
        v_cndmask_b32 v16, v16, v9, vcc
        v_lshl_add_u32 v17, v15, 4, v17
        v_lshl_add_u32 v17, v22, 1, v17
        s_lshl_b32 s53, s50, 3
        s_add_u32 s53, s53, {H1L}
        v_add_u32 v17, s53, v17
        v_lshlrev_b32 v14, 3, v7
        v_mov_b32 v8, 0x3f803f80
        v_mov_b32 v9, v8
        v_mov_b32 v10, v8
        v_mov_b32 v11, v8
        ds_write_b128 v23, v[8:11] offset:{ONL}""")
        self.waitflag(F_VI if 'w1vi' in self.skip else F_PV, n=4, t="v96", sleep=False)
        for x in range(14):
            a(f"s_add_u32 m0, s55, {x*1024}\ns_add_u32 s53, s59, {x*16*3584}")
            a(f"buffer_load_dwordx4 v20, s[36:39], s53 offen{ntw} lds")
        if 'w1vi' in self.skip: self.waitflag(F_PV, n=4, t="v96", sleep=False)
        w2ld()
        a("s_waitcnt vmcnt(8)")
        self.setflag(F_W1)
        a("v_xor_b32 v9, 4, v2")
        self.waitflag(F_W1, "v9", sleep=False)
        for ks in range(14):
            for half in range(2):
                p = 2*ks + half
                r = 64 + ks*4 + half*2
                a(f"ds_read_b64_tr_b16 v[{r}:{r+1}], v13 offset:{(p//14)*16384 + (p%14)*1024}")
        a("v_lshlrev_b32 v28, 16, v28\ns_waitcnt vmcnt(0)")
        w2rd()
        self.stamp(4)
        a("s_waitcnt lgkmcnt(0)\ns_barrier")
        self.stamp(6)
        regs = [8, 32, 36, 40, 44, 48, 52, 56, 60, 156, 160, 8, 32, 36]
        for ks in range(11):
            a(f"ds_read_b128 v[{regs[ks]}:{regs[ks]+3}], v16 offset:{ks*64}")
        early = 'latest' not in self.skip
        for ks in range(14):
            if not early or ks < 11: a(f"s_waitcnt lgkmcnt({10-ks if ks < 3 else 13-ks})")
            if early and ks == 11: a(f"s_waitcnt lgkmcnt(0)\ns_barrier\nds_read_b64 v[30:31], v14 offset:{STL}")
            r = regs[ks]
            a(f"v_mfma_f32_16x16x32_bf16 v[152:155], v[{r}:{r+3}], v[{64+4*ks}:{67+4*ks}], {'0' if ks == 0 else 'v[152:155]'}")
            if ks == 2:
                for k2 in (11, 12, 13): a(f"ds_read_b128 v[{regs[k2]}:{regs[k2]+3}], v16 offset:{k2*64}")
        k1 = -2*1.4426950408889634*0.7978845608028654
        if not early: a(f"s_barrier\nds_read_b64 v[30:31], v14 offset:{STL}")
        a(f"""s_mov_b32 s64, {hex(f2u(k1*0.044715))}
        v_mov_b32 v9, {hex(f2u(k1))}
        s_nop {4 if early else 2}
        s_waitcnt lgkmcnt(0)
        v_fma_f32 v28, -v31, v153, v28
        v_fmac_f32 v28, v152, v30
        v_mul_f32 v8, v28, v28
        v_fma_f32 v8, v8, s64, v9
        v_mul_f32 v8, v8, v28
        v_exp_f32 v8, v8
        s_nop 0
        v_add_f32 v8, 1.0, v8
        v_rcp_f32 v8, v8
        s_nop 0
        v_mul_f32 v8, v8, v28
        v_cvt_pk_bf16_f32 v8, v8, v8
        ds_write_b16 v17, v8
        s_waitcnt lgkmcnt(0)
        L_mlp2:
        s_barrier""")
        self.stamp(7)
        for i in range(4):
            a(f"ds_read_b128 v[{32+4*i}:{35+4*i}], v{24+i}")
        for i in range(4):
            a(f"s_waitcnt lgkmcnt({3-i})")
            for qq in range(2):
                d = 48 + 4*qq; r = 120 + (qq*4 + i)*4
                cin = "0" if i == 0 else f"v[{d}:{d+3}]"
                a(f"v_mfma_f32_16x16x32_bf16 v[{d}:{d+3}], v[{32+4*i}:{35+4*i}], v[{r}:{r+3}], {cin}")
        a("""v_mov_b32 v58, v164
        v_mov_b32 v59, v164
        v_mov_b32 v62, v164
        v_mov_b32 v63, v164
        s_nop 2
        v_cvt_pk_bf16_f32 v56, v48, v49
        v_cvt_pk_bf16_f32 v57, v50, v51
        buffer_store_dwordx4 v[56:59], v23, s[16:19], s58 offen sc1
        s_cmp_eq_u32 s50, 3
        s_cbranch_scc1 L_exit
        v_cvt_pk_bf16_f32 v60, v52, v53
        v_cvt_pk_bf16_f32 v61, v54, v55
        buffer_store_dwordx4 v[60:63], v23, s[16:19], s62 offen sc1""")
        self.stamp(8)
        a("s_branch L_exit")

        c("---- waves 2,3: rows u and u-2 of h -> LDS and their LayerNorm statistics ----")
        a(f"""L_mlp_b:
        v_lshlrev_b32 v9, 2, v0
        s_mul_i32 s57, s50, 896
        s_sub_u32 s59, s57, 1792
        s_mov_b32 exec_hi, 0x00ffffff""")
        for i in range(4):
            a(f"buffer_load_dword v{36+i}, v9, s[20:23], s57 offen offset:{i*224}")
        for i in range(4):
            a(f"buffer_load_dword v{156+i}, v9, s[20:23], s59 offen offset:{i*224}")
        a(f"s_mov_b32 exec_hi, -1\ns_add_u32 s59, s59, {YL}")
        for i in range(4):
            a(f"""v_add_u32 v8, {56*i}, v0
            v_lshrrev_b32 v9, 4, v8
            v_lshlrev_b32 v9, 6, v9
            v_bfe_u32 v10, v8, 1, 2
            v_lshl_add_u32 v9, v10, 4, v9
            v_and_b32 v10, 8, v8
            v_add_u32 v9, v9, v10
            v_and_b32 v10, 1, v8
            v_lshl_add_u32 v9, v10, 2, v9
            v_add_u32 v{32+i}, s59, v9""")
        a(f"""s_lshl_b32 s53, s50, 3
        v_mov_b32 v15, s53
        s_lshl_b32 s57, s50, {HS+5}
        s_add_u32 s57, s57, {HACC}
        s_sub_u32 s61, s57, {64 << HS}
        v_and_b32 v92, 0x70, v23
        v_lshl_add_u32 v92, v6, {HS}, v92
        v_add_u32 v93, {7 << HS}, v92
        v_add_u32 v94, {14 << HS}, v92
        v_add_u32 v95, {21 << HS}, v92
        v_and_b32 v16, 32, v0
        v_add_u32 v16, v16, v0
        v_lshlrev_b32 v16, {HS}, v16
        s_mov_b32 s66, {HACC}
        s_mov_b32 s67, {HACC + (32 << HS)}
        s_mov_b32 s59, {hex(f2u(16.0))}
        s_lshl_b32 s63, s52, 10
        s_add_u32 s63, s63, {EW}
        s_add_u32 s64, s16, s63
        s_addc_u32 s65, s17, 0
        v_lshrrev_b32 v19, 1, v0
        v_mul_u32_u24 v19, {7*512}, v19
        v_and_b32 v18, 1, v0
        v_lshl_add_u32 v19, v18, 7, v19
        s_sub_u32 s63, s49, 14
        s_lshl_b32 s63, s63, 9
        s_lshl_b32 s53, s48, 2
        s_add_u32 s63, s63, s53
        s_and_b32 s53, s50, 1
        s_lshl_b32 s53, s53, 8
        s_add_u32 s63, s63, s53
        s_add_u32 s63, s63, {FH}
        s_mov_b32 s60, 0xffff0000""")
        if 'rep2' in self.skip: a("s_cmp_eq_u32 s50, 2\ns_cselect_b32 s63, s63, 0x7f000000")
        for i in range(4): a(f"v_mov_b32 v{88+i}, 0")
        if self.cl:
            a("s_sub_u32 s53, s49, 15\ns_lshl_b32 s53, s53, 1\ns_add_u32 s53, s53, s50")
            for n in range(5):
                a(f"""s_lshl_b32 s24, s53, 10
                s_lshl_b32 s25, s48, 15
                s_add_u32 s25, s25, s24
                s_add_u32 s25, s25, {OP}
                s_sub_u32 s26, s53, 32
                s_lshr_b32 s26, s26, 1
                s_lshl_b32 s26, s26, 14
                s_and_b32 s27, s24, 1024
                s_add_u32 s26, s26, s27
                s_lshl_b32 s27, s48, 11
                s_add_u32 s26, s26, s27
                s_add_u32 s26, s26, {QPL}
                s_lshl_b32 s27, s48, 12
                s_add_u32 s27, s27, s24
                s_add_u32 s27, s27, {STAT - 65536}
                s_cmp_lt_u32 s53, 68
                s_cselect_b32 s27, s27, 0x7f000000
                s_cmp_lt_u32 s53, 64
                s_cselect_b32 s26, s26, s27
                s_cmp_lt_u32 s53, 32
                s_cselect_b32 s{44+n if n < 4 else 43}, s25, s26
                s_add_u32 s53, s53, 14""")
        self.waitflag(F_PV, n=4, t="v96", sleep=False)
        w2ld(True)
        a("s_waitcnt vmcnt(8)")
        for i in range(4):
            a(f"v_lshlrev_b32 v{40+2*i}, 16, v{36+i}\nv_and_b32 v{41+2*i}, s60, v{36+i}\nv_lshlrev_b32 v{104+2*i}, 16, v{156+i}\nv_and_b32 v{105+2*i}, s60, v{156+i}")
        def fh(k):
            if self.hp == k:
                a("s_mov_b64 exec, 0xffff\nbuffer_store_dword v164, v19, s[16:19], s63 offen sc1")
                if 'fh2x' in self.skip: a("buffer_store_dword v164, v19, s[16:19], s63 offen offset:64 sc1")
                a("s_mov_b64 exec, -1")
        a("s_cmp_lg_u32 s50, 3\ns_cbranch_scc1 L_gow")
        self.phint(16)
        self.setflag(F_GO, "v3")
        if 'nokick' not in self.skip:
            a("s_mov_b32 exec_lo, 0x0fffffff\ns_mov_b32 exec_hi, 0x0fffffff\nbuffer_load_dword v165, v16, s[16:19], s66 offen sc1")
            if 'kick2' in self.skip: a("buffer_load_dword v165, v16, s[16:19], s67 offen sc1")
            a("s_mov_b32 exec_lo, -1")
        a("s_branch L_hp\nL_gow:")
        self.waitflag(F_GO, sleep=False)
        a("L_hp:")
        if self.prof and not self.light: a("s_memrealtime s[94:95]")
        a("s_mov_b32 exec_hi, 0x00ffffff")
        for i in range(4):
            a(f"buffer_load_dwordx4 v[{48+4*i}:{51+4*i}], v{92+i}, s[16:19], s57 offen sc1")
        for i in range(4):
            a(f"buffer_load_dwordx4 v[{64+4*i}:{67+4*i}], v{92+i}, s[16:19], s61 offen sc1")
        a("s_mov_b32 exec_hi, -1\ns_waitcnt vmcnt(8)")
        w2rd()
        a("s_mov_b32 exec_hi, 0x00ffffff\ns_waitcnt vmcnt(4)")
        for i in range(4):
            a(f"v_pk_add_f32 v[{48+4*i}:{49+4*i}], v[{48+4*i}:{49+4*i}], v[{40+2*i}:{41+2*i}]\nv_cvt_pk_bf16_f32 v{36+i}, v{48+4*i}, v{49+4*i}\nds_write_b32 v{32+i}, v{36+i} offset:1792")
        a("v_min_f32 v8, v50, v54\nv_min3_f32 v8, v8, v58, v62\ns_waitcnt vmcnt(0)")
        for i in range(4):
            a(f"v_pk_add_f32 v[{64+4*i}:{65+4*i}], v[{64+4*i}:{65+4*i}], v[{104+2*i}:{105+2*i}]\nv_cvt_pk_bf16_f32 v{156+i}, v{64+4*i}, v{65+4*i}\nds_write_b32 v{32+i}, v{156+i}")
        a("v_min3_f32 v8, v8, v66, v70\nv_min3_f32 v8, v8, v74, v78\nv_cmp_neq_f32 vcc, s59, v8")
        self.retry("L_hp", self.hb)
        self.stamp(5)
        if self.prof and not self.light: a("v_writelane_b32 v167, s94, 9")
        a("""v_pk_add_f32 v[80:81], v[48:49], v[52:53]
        v_pk_mul_f32 v[82:83], v[48:49], v[48:49]
        v_pk_add_f32 v[84:85], v[64:65], v[68:69]
        v_pk_mul_f32 v[86:87], v[64:65], v[64:65]
        s_waitcnt lgkmcnt(0)
        s_barrier
        v_pk_add_f32 v[80:81], v[80:81], v[56:57]
        v_pk_fma_f32 v[82:83], v[52:53], v[52:53], v[82:83]
        v_pk_add_f32 v[84:85], v[84:85], v[72:73]
        v_pk_fma_f32 v[86:87], v[68:69], v[68:69], v[86:87]
        v_pk_add_f32 v[80:81], v[80:81], v[60:61]
        v_pk_fma_f32 v[82:83], v[56:57], v[56:57], v[82:83]
        v_pk_add_f32 v[84:85], v[84:85], v[76:77]
        v_pk_fma_f32 v[86:87], v[72:73], v[72:73], v[86:87]
        v_pk_fma_f32 v[82:83], v[60:61], v[60:61], v[82:83]
        v_pk_fma_f32 v[86:87], v[76:77], v[76:77], v[86:87]
        v_add_f32 v88, v80, v81
        v_add_f32 v90, v84, v85
        v_add_f32 v89, v82, v83
        v_add_f32 v91, v86, v87
        s_mov_b32 exec_hi, -1""")
        fh(2)
        if self.cl == 2:
            for r in (44, 45, 46, 47, 43): a(f"buffer_store_dwordx4 v[80:83], v23, s[16:19], s{r} offen sc1")
        c("reduce-scatter the four sums over the wave: rows 0..3 end up with S(u), S(u-2), Q(u), Q(u-2)")
        a("""s_nop 0
        v_permlane32_swap_b32 v88, v89
        v_permlane32_swap_b32 v90, v91
        v_add_f32 v8, v88, v89
        v_add_f32 v10, v90, v91
        s_nop 1
        v_permlane16_swap_b32 v8, v10
        v_add_f32 v8, v8, v10
        s_nop 1""")
        fh(6)
        self.dpp_allred16("v_add_f32", [8])
        fh(7)
        c("LN(LN(h)) = (h - m) * rs1 * rs2 : rs1 = rsq(v + eps), second LN sees mean 0 and variance v*rs1^2")
        a(f"""v_mul_f32 v8, {hex(f2u(1/448))}, v8
        v_mov_b32 v9, v8
        s_mov_b32 s64, {hex(f2u(1e-5))}
        v_and_b32 v10, 16, v0
        v_permlane32_swap_b32 v8, v9
        v_fma_f32 v9, -v8, v8, v9
        v_max_f32 v9, 0, v9
        v_add_f32 v11, s64, v9
        v_rsq_f32 v11, v11
        v_xor_b32 v15, v15, v10
        v_mul_f32 v9, v9, v11
        v_fma_f32 v9, v9, v11, s64
        v_rsq_f32 v9, v9
        s_mov_b32 exec_lo, 0x00010001
        s_mov_b32 exec_hi, 0
        v_mul_f32 v30, v9, v11
        v_mul_f32 v31, v30, v8
        ds_write_b64 v15, v[30:31] offset:{STL}
        s_mov_b64 exec, -1""")
        fh(3)
        a("s_waitcnt lgkmcnt(0)\ns_barrier")
        fh(1)
        if self.cl == 1:
            for r in (44, 45, 46, 47, 43): a(f"buffer_store_dwordx4 v[88:91], v23, s[16:19], s{r} offen sc1")
        c("every workgroup has read the epoch by now: advance it for the next launch")
        a(f"""s_lshl_b32 s53, s52, 2
        s_add_u32 s53, s53, s50
        s_cmp_lg_u32 s53, 3
        s_cbranch_scc1 L_mlp2
        s_mov_b32 s53, {EPO}
        s_mov_b64 exec, 1
        buffer_store_dword v164, v23, s[16:19], s53 offen sc1
        s_mov_b64 exec, -1
        s_branch L_mlp2""")

    def role_fin(self):
        self.cur = 'FIN'
        a, c = self.a, self.c
        c("================= role FINAL =================")
        a("L_fin:")
        self.srd(40, 72, 896)
        self.srd(44, 80, 3584)
        a(f"""s_mul_i32 s52, s48, 7
        s_add_u32 s52, s52, s49
        s_lshl_b32 s52, s52, 1
        s_add_u32 s52, s52, s50
        s_sub_u32 s52, s52, 44
        s_lshl_b32 s53, s52, 6
        s_add_u32 s53, s53, {PART}
        s_add_u32 s54, s53, {16*7168}
        s_add_u32 s55, s53, {32*7168}
        s_add_u32 s56, s53, {48*7168}
        v_lshrrev_b32 v20, 2, v0
        v_mul_u32_u24 v20, 7168, v20
        v_and_b32 v22, 3, v0
        v_lshl_add_u32 v20, v22, 4, v20
        s_lshr_b32 s57, s52, 4
        s_lshl_b32 s57, s57, 6
        s_and_b32 s58, s52, 3
        s_lshl_b32 s58, s58, 2
        s_add_u32 s57, s57, s58
        v_and_b32 v23, 16, v0
        v_lshlrev_b32 v23, 1, v23
        v_lshrrev_b32 v24, 5, v0
        v_lshl_add_u32 v23, v24, 4, v23
        v_add3_u32 v23, v23, v22, s57
        v_lshlrev_b32 v24, 1, v23
        v_bfe_u32 v25, v23, 1, 3
        v_lshlrev_b32 v25, 4, v25
        v_lshrrev_b32 v26, 4, v23
        v_lshl_add_u32 v25, v26, {HS}, v25
        s_bfe_u32 s58, s52, 0x20002
        s_mul_i32 s59, s58, 896
        s_lshl_b32 s58, s58, {HS+5}
        s_add_u32 s58, s58, {HACC}
        s_mov_b32 s61, {hex(f2u(16.0))}
        v_mov_b32 v44, 0
        v_mov_b32 v45, 0
        v_mov_b32 v46, v164
        s_mov_b32 s60, 0xffff0000
        s_waitcnt lgkmcnt(0)
        buffer_load_ushort v26, v24, s[20:23], s59 offen
        buffer_load_ushort v27, v24, s[40:43], 0 offen
        buffer_load_ushort v28, v24, s[44:47], s59 offen""")
        a(f"""s_lshr_b32 s63, s52, 1
        s_lshl_b32 s63, s63, 9
        s_add_u32 s63, s63, {FH}
        s_add_u32 s64, s16, s63
        s_addc_u32 s65, s17, 0
        v_and_b32 v8, 1, v0
        v_cmp_eq_u32 s[66:67], 1, v8
        s_waitcnt vmcnt(0)
        v_lshlrev_b32 v26, 16, v26
        v_lshlrev_b32 v27, 16, v27
        v_add_f32 v26, v26, v27""")
        a("s_cmp_lg_u32 s50, 3\ns_cbranch_scc1 L_fhbar")
        self.phint(8)
        a("L_fhbar:\ns_barrier")
        if self.prof and not self.light: a("s_memrealtime s[94:95]")
        l = self.lab("FP")
        a(f"""{l}:
        buffer_load_dwordx4 v[28:31], v25, s[16:19], s58 offen sc1
        buffer_load_dwordx4 v[32:35], v20, s[16:19], s53 offen sc1
        buffer_load_dwordx4 v[36:39], v20, s[16:19], s54 offen sc1
        buffer_load_dwordx4 v[40:43], v20, s[16:19], s55 offen sc1
        s_mov_b32 exec_hi, 0
        buffer_load_dwordx4 v[44:47], v20, s[16:19], s56 offen sc1
        s_mov_b32 exec_hi, -1
        s_waitcnt vmcnt(4)
        v_cndmask_b32 v28, v28, v29, s[66:67]
        v_add_f32 v27, v26, v28
        v_cmp_neq_f32 s[68:69], s61, v30
        s_waitcnt vmcnt(3)
        v_lshlrev_b32 v48, 16, v32
        v_and_b32 v49, s60, v32
        v_lshlrev_b32 v50, 16, v33
        v_and_b32 v51, s60, v33
        v_xor_b32 v8, v34, v164
        s_waitcnt vmcnt(2)
        v_lshlrev_b32 v52, 16, v36
        v_and_b32 v53, s60, v36
        v_lshlrev_b32 v54, 16, v37
        v_and_b32 v55, s60, v37
        v_bitop3_b32 v8, v8, v38, v164 bitop3:0xf6
        v_pk_add_f32 v[48:49], v[48:49], v[52:53]
        v_pk_add_f32 v[50:51], v[50:51], v[54:55]
        s_waitcnt vmcnt(1)
        v_lshlrev_b32 v52, 16, v40
        v_and_b32 v53, s60, v40
        v_lshlrev_b32 v54, 16, v41
        v_and_b32 v55, s60, v41
        v_bitop3_b32 v8, v8, v42, v164 bitop3:0xf6
        v_pk_add_f32 v[48:49], v[48:49], v[52:53]
        v_pk_add_f32 v[50:51], v[50:51], v[54:55]
        s_waitcnt vmcnt(0)
        v_lshlrev_b32 v52, 16, v44
        v_and_b32 v53, s60, v44
        v_lshlrev_b32 v54, 16, v45
        v_and_b32 v55, s60, v45
        v_pk_add_f32 v[32:33], v[48:49], v[52:53]
        v_pk_add_f32 v[34:35], v[50:51], v[54:55]
        v_bitop3_b32 v8, v8, v46, v164 bitop3:0xf6
        v_cmp_ne_u32 vcc, 0, v8
        s_or_b64 vcc, vcc, s[68:69]""")
        self.retry(l)
        self.stamp(6)
        if self.prof and not self.light: a("v_writelane_b32 v167, s94, 5")
        a("""
        v_permlane32_swap_b32 v32, v33
        v_permlane32_swap_b32 v34, v35
        v_add_f32 v32, v32, v33
        v_add_f32 v34, v34, v35
        s_nop 1
        v_permlane16_swap_b32 v32, v34
        v_add_f32 v32, v32, v34
        s_nop 1
        v_add_f32_dpp v32, v32, v32 row_ror:4 row_mask:0xf bank_mask:0xf
        s_nop 1
        v_add_f32_dpp v32, v32, v32 row_ror:8 row_mask:0xf bank_mask:0xf
        v_add_f32 v32, v32, v27
        v_cvt_pk_bf16_f32 v32, v32, v32
        s_mov_b32 exec_lo, 0x000f000f
        s_mov_b32 exec_hi, 0x000f000f
        buffer_store_short v32, v24, s[44:47], s59 offen""" + (' sc1' if 'outsc1' in self.skip else '') + (' nt' if 'outnt' in self.skip else ''))
        self.stamp(7)

def add_pads(text, gap=960, nchain=3):
    import subprocess, re, tempfile, os
    lines = text.split("\n")
    start = next(i for i, l in enumerate(lines) if l.startswith(NAME + "_kernel:"))
    end = next(i for i, l in enumerate(lines) if l.startswith("L_end:"))
    def addrs(ls):
        t = []
        for i, l in enumerate(ls):
            if start < i and l.startswith("    ") and not l.strip().startswith(";") and not l.strip().startswith("."):
                t.append(f"ZZ_{i}:")
            t.append(l)
        src = "\n".join(t)
        for k in range(nchain):
            if f"PADCHAIN_{k}:" not in src: src = src.replace(f"PADCHAIN_{k}", "L_end").replace(f"PADSECOND_{k}", "L_end")
        src = re.sub(r"PADNEXT", "L_end", src)
        with tempfile.TemporaryDirectory() as d:
            open(d + "/a.s", "w").write(src)
            subprocess.check_call(["clang", "-x", "assembler", "-target", "amdgcn-amd-amdhsa", "-mcpu=gfx950", "-c", d + "/a.s", "-o", d + "/a.o"])
            out = subprocess.check_output(["llvm-objdump", "-t", d + "/a.o"], text=True)
        r = {}
        for l in out.splitlines():
            p = l.split()
            if not p: continue
            if p[-1].startswith("ZZ_"): r[int(p[-1][3:])] = int(p[0], 16)
            if p[-1] == NAME + "_kernel": base = int(p[0], 16)
        return {k: v - base for k, v in r.items()}
    ad = addrs(lines)
    pads = []; last = 0; shift = 0; noz = False
    for i in sorted(ad):
        if i >= end: break
        if "NOPAD_ON" in lines[i - 1]: noz = True
        if "NOPAD_OFF" in lines[i - 1]: noz = False
        x = ad[i] + shift
        if not noz and (x - last >= gap or (x >> 12) != (last >> 12)):
            pads.append(i); last = x; shift += 4
    n = len(pads)
    out = []
    for i, l in enumerate(lines):
        if i in pads:
            k = pads.index(i)
            if k < nchain: out.append(f"PADCHAIN_{k}:")
            out.append(f"PAD_{k}:")
            if nchain <= k < 2*nchain: out.append(f"PADSECOND_{k - nchain}:")
            nxt = f"WB_{k}" if k < nchain else f"PAD_{k + nchain}" if k + nchain < n else "L_warmdone"
            out.append(f"    s_cbranch_execz {nxt}")
        out.append(l)
    return "\n".join(out)

if __name__ == "__main__":
    import argparse
    ap = argparse.ArgumentParser()
    ap.add_argument("-o", default="k.s"); ap.add_argument("-W", type=int, default=6); ap.add_argument("--WV", type=int, default=0); ap.add_argument("--WE", type=int, default=0); ap.add_argument("--NE", type=int, default=0); ap.add_argument("--pf64", action="store_true"); ap.add_argument("--ntp", default=""); ap.add_argument("--hd", type=int, default=4); ap.add_argument("--qd", type=int, default=0); ap.add_argument("--dly", default=None); ap.add_argument("--skip", default=""); ap.add_argument("--rot", type=int, default=1); ap.add_argument("--pw", default="1"); ap.add_argument("--ewp", type=int, default=2); ap.add_argument("--hp", type=int, default=2); ap.add_argument("--pft", type=int, default=3); ap.add_argument("--ww", type=int, default=8); ap.add_argument("--od", type=int, default=2); ap.add_argument("--dx", type=int, default=-1); ap.add_argument("--tkp", type=int, default=-1); ap.add_argument("--ps", type=int, default=1); ap.add_argument("--light", action="store_true"); ap.add_argument("--ewk", type=int, default=4); ap.add_argument("--pwo", type=int, default=16); ap.add_argument("--pw1", type=int, default=99); ap.add_argument("--pw2", type=int, default=99); ap.add_argument("--qg", type=int, default=1); ap.add_argument("--ord", type=int, default=0); ap.add_argument("--hlp", default="12p")
    ap.add_argument("--prof", action="store_true"); ap.add_argument("--nt", default="nt"); ap.add_argument("--ntw", default="")
    ap.add_argument('--hb', type=int, default=0)
    ap.add_argument('--lq', default=''); ap.add_argument('--lc', default=''); ap.add_argument('--lo', default='')
    ap.add_argument('--cl', type=int, default=0)
    ap.add_argument('--W0', type=int, default=0)
    ap.add_argument('--hs', type=int, default=10)
    x = ap.parse_args()
    HS = x.hs
    open(x.o, "w").write(add_pads(G(W=x.W, WV=x.WV, WE=x.WE, NE=x.NE, pf64=x.pf64, ntp=x.ntp, hd=x.hd, qd=x.qd, dly=x.dly, skip=x.skip, rot=x.rot, pw=x.pw, ewp=x.ewp, hp=x.hp, pft=x.pft, ww=x.ww, od=x.od, dx=x.dx, tkp=x.tkp, ps=x.ps, light=x.light, ewk=x.ewk, pwo=x.pwo, pw1=x.pw1, pw2=x.pw2, qg=x.qg, ord=x.ord, hlp=x.hlp, hb=x.hb, lq=x.lq, lc=x.lc, lo=x.lo, cl=x.cl, W0=x.W0, prof=x.prof, nt=x.nt, ntw=x.ntw).build()))
```

```python
import sys, struct
NAME = "sequential_preLN__sliding_block_cached__mixer_channel_mlp__decode"

def f2u(x): return struct.unpack("<I", struct.pack("<f", x))[0]

QP   = 0x00000
HACC = 0x160000
HS = 10
STAT = 0x44000
OP   = 0xe0000
EW   = 0x50000
FH   = 0x60000
TK   = 0x70000
GR   = 0x71000
EPO  = 0x71100
PART = 0x72000
QPL  = 0x120000
OPG  = 0x180000
RDY  = 0x4c000
PROF = 0x200000
WQL = 4096; KL = 24576; VL = KL + 65536
XN = 0
QB = XN + 1024
SP = QB + 1024
ZR = SP + 512
FL = ZR + 512
LDS_TOTAL = VL + 65536
RED = WQL
YL = WQL
H1L = WQL + 4096
STL = WQL + 4608
ONL = WQL + 5120
F_WQ, F_S, F_VI, F_Q, F_P, F_CLR, F_TAG, F_PV, F_V8, F_KL, F_TK, F_W1, F_GO = 0, 32, 48, 64, 68, 76, 88, 96, 112, 128, 72, 16, 80


HEADER = """; Fused decode layer: LN -> q -> sliding-window GQA attention -> wo -> +x -> LN(LN) -> w1/GELU/w2 -> +h
; kernarg: 0 x | 8 K | 16 V | 24 wq | 32 wo | 40 (unused) | 48 w1 | 56 b1 | 64 w2 | 72 b2 | 80 out | 88 debug | 96 ws
;
; One persistent launch, 256 workgroups (one per CU), 9 waves each.  w = workgroup id, g = w&7 (kv head),
;   waves 0-3 (L): stream the wq tile, K and V into LDS (LDS-DMA, sliding window), then P.V
;                  t<14    WO  (o partials x softmax weights x wo tile -> atomic add into h),
;                  t>=25   MLP (LN(LN(h)) @ w1 slice, GELU, @ w2 slice -> partial out),
; Hand-offs through d_ws: every buffer is either tagged with this launch's epoch (epoch word found in d_ws + 1)
; scalar-polled "hint" words only say when a read is worth issuing.  Plain (L2 resident) stores are used only
"""

class G:
    def __init__(self, W=6, WV=None, WE=None, NE=0, prof=False, nt="nt", ntw="nt", pf64=False, ntp="nt", hd=2, qd=0, dly=None, skip='', rot=0, pw='pv', ewp=1, hp=1, pft=0, ww=3, od=2, dx=-1, tkp=8, ps=2, light=False, ewk=4, pwo=0, pw1=0, pw2=99, qg=2, ord=0, hlp='', hb=0, lq='', lc='', lo='', cl=0, W0=0, xd=0):
        self.xd = xd
        self.W0 = W0
        self.cl = cl
        self.lq, self.lc, self.lo = [(' ' + x) if x else '' for x in (lq, lc, lo)]
        self.hb = hb
        self.hlp = hlp
        self.ord = ord
        self.qg = qg
        self.pfpos = dict(wo=pwo, w1=pw1, w2=pw2)
        self.light = light; self.ewk = ewk
        self.ps = ps
        self.tkp = tkp
        self.dx = dx
        self.ww = ww; self.od = od
        self.pw = pw; self.ewp = ewp; self.hp = hp; self.pft = pft
        self.rot = ['s_mov_b32 s59, 0', 's_mov_b32 s59, s49', 's_lshr_b32 s59, s2, 4', 's_mul_i32 s59, s2, 5', 's_add_u32 s59, s49, s2'][rot]
        self.skip = set(skip.split(','))
        self.dly = dly; self.cur = 'E'
        self.qd = qd
        self.hd = hd
        self.ntp = ntp
        self.WE = WE or WV or W; self.NE = NE; self.pf64 = pf64
        self.stubs = []
        self.L = []; self.W = W; self.WV = WV or W; self.prof = prof; self.nt = nt; self.ntw = ntw; self.uid = 0
    def a(self, s):
        for line in s.split("\n"):
            line = line.strip()
            if line: self.L.append(("" if line.endswith(":") else "    ") + line)
    def c(self, s): self.L.append("    ; " + s)
    def lab(self, p="L"):
        self.uid += 1; return f"{p}_{self.uid}"
    def stamp(self, i):
        if self.dly == f"{self.cur}:{i}":
            self.a("s_memrealtime s[92:93]\ns_waitcnt lgkmcnt(0)\ns_mov_b32 s94, 1")
        if self.prof and (not self.light or (self.cur == 'L' and i == 6)):
            self.a(f"s_memrealtime s[90:91]\ns_waitcnt lgkmcnt(0)\nv_writelane_b32 v167, s90, {i}")
    def srd(self, r, karg, size):
        self.a(f"s_load_dwordx2 s[{r}:{r+1}], s[0:1], {karg}\ns_mov_b32 s{r+2}, {size}\ns_mov_b32 s{r+3}, 0x20000")
    def setflag(self, off, vaddr="v2"):
        self.a(f"ds_write_b32 {vaddr}, v4 offset:{off}")
    def waitflag(self, off, vaddr="v3", n=1, t="v8", sleep=True):
        l = self.lab("WF"); d = self.lab("WD")
        ti = int(t[1:])
        self.a(f"{l}:")
        if not sleep: self.a("s_sub_u32 s88, s88, 1\ns_cbranch_scc1 L_exit")
        if n == 1:
            self.a(f"ds_read_b32 {t}, {vaddr} offset:{off}\ns_waitcnt lgkmcnt(0)")
        else:
            self.a(f"ds_read_b128 v[{ti}:{ti+3}], {vaddr} offset:{off}\ns_waitcnt lgkmcnt(0)")
            self.a(f"v_and_b32 {t}, {t}, v{ti+1}\nv_and_b32 v{ti+2}, v{ti+2}, v{ti+3}\nv_and_b32 {t}, {t}, v{ti+2}")
        if not sleep:
            self.a(f"v_cmp_ne_u32 vcc, 0, {t}\ns_cbranch_vccz {l}")
            return
        self.a(f"v_cmp_ne_u32 vcc, 0, {t}\ns_cbranch_vccnz {d}")
        if sleep: self.a("s_sleep 1")
        self.a(f"s_sub_u32 s88, s88, 1\ns_cbranch_scc0 {l}\ns_branch L_exit\n{d}:")
    def retry(self, l, back=0):
        d = self.lab("RD")
        self.a(f"s_cbranch_vccnz {d}")
        self.stubs.append(f"{d}:\n" + (f"s_sleep {back}\n" if back else "") + f"s_sub_u32 s88, s88, 1\ns_cbranch_scc0 {l}\ns_branch L_exit")
    def flush(self):
        for st in self.stubs: self.a(st)
        self.stubs = []
    def shint(self, n, base="s[64:65]"):
        a = self.a
        l = self.lab("SH"); d = self.lab("SD")
        a(f"{l}:\ns_sub_u32 s88, s88, 1\ns_cbranch_scc1 L_exit")
        if n == 8:
            a(f"s_load_dwordx8 s[72:79], {base}, 0 glc\ns_waitcnt lgkmcnt(0)")
            regs = [72, 74, 76, 78]
        elif n == 16:
            a(f"s_load_dwordx8 s[72:79], {base}, 0 glc\ns_load_dwordx8 s[80:87], {base}, 128 glc\ns_waitcnt lgkmcnt(0)")
            for k in range(4): a(f"s_xor_b64 s[{80+2*k}:{81+2*k}], s[{80+2*k}:{81+2*k}], s[{72+2*k}:{73+2*k}]")
            a("s_or_b64 s[80:81], s[80:81], s[82:83]\ns_or_b64 s[84:85], s[84:85], s[86:87]\ns_or_b64 s[80:81], s[80:81], s[84:85]")
            a(f"s_cbranch_scc1 {l}")
            regs = [72, 74, 76, 78]
        else:
            a(f"s_load_dwordx16 s[72:87], {base}, 0 glc\ns_load_dwordx16 s[28:43], {base}, 64 glc\ns_waitcnt lgkmcnt(0)")
            regs = list(range(72, 88, 2)) + list(range(28, 44, 2))
        for r in regs:
            a(f"s_cmp_lg_u64 s[{r}:{r+1}], s[70:71]\ns_cbranch_scc1 {l}")

    def phint(self, n, base="s[64:65]"):
        a = self.a; l = self.lab("PH"); step = 256 if n == 16 else 128
        def ld():
            a(f"s_load_dwordx8 s[72:79], {base}, s89 glc")
            if n == 16: a(f"s_load_dwordx8 s[80:87], s[68:69], s89 glc")
        if n == 16: a("s_add_u32 s68, s64, 128\ns_addc_u32 s69, s65, 0")
        a("s_mov_b32 s89, 0"); ld(); a("s_waitcnt lgkmcnt(0)")
        a(f"{l}:\ns_sub_u32 s88, s88, 1\ns_cbranch_scc1 L_exit\ns_add_u32 s89, s89, {step}\ns_and_b32 s89, s89, {(2 if 'rep2' in self.skip else 4)*step-1}")
        ld()
        if self.ps == 0: a("s_waitcnt lgkmcnt(0)")
        else:
            a(f"s_sleep {self.ps}")
        for r in range(72, 72 + n, 2):
            a(f"s_cmp_lg_u64 s[{r}:{r+1}], s[70:71]\ns_cbranch_scc1 {l}")

    def build(self):
        a, c = self.a, self.c
        W = self.W; nt = (" " + self.nt) if self.nt else ""; ntw = (" " + self.ntw) if self.ntw else ""
        self.L.append(HEADER + f"; @launch grid=(256,1,1) block=(576,1,1) lds={LDS_TOTAL}")
        self.L.append('.amdgcn_target "amdgcn-amd-amdhsa--gfx950"\n.text')
        self.L.append(f".globl {NAME}_kernel\n.p2align 12\n.fill 832, 4, 0xbf810000\n.p2align 8\n.type {NAME}_kernel,@function\n{NAME}_kernel:")
        if self.prof: a("s_memrealtime s[92:93]")
        if self.dly: a("s_mov_b32 s94, 0"); self.stamp(0)
        a(f"""s_load_dwordx2 s[12:13], s[0:1], 24
        s_load_dwordx2 s[4:5], s[0:1], 8
        v_lshrrev_b32 v1, 6, v0
        v_and_b32 v0, 63, v0
        v_readfirstlane_b32 s3, v1
        s_load_dwordx2 s[20:21], s[0:1], 0
        s_load_dwordx2 s[16:17], s[0:1], 96
        s_load_dwordx2 s[8:9], s[0:1], 16
        s_cmp_ge_u32 s2, 256
        s_cbranch_scc1 L_end
        s_sub_u32 s52, s3, 5
        s_cmp_lt_u32 s52, 3
        {'' if 'sa' in self.skip else 's_cbranch_scc1 L_warm'}
        L_warmdone:
        s_mov_b64 exec, -1
        s_mov_b32 s15, 0x20000
        s_mov_b32 s14, {448*8192}
        s_mov_b32 s7, s15
        s_mov_b32 s6, 0x4000000
        s_mov_b32 s23, s15
        s_movk_i32 s22, 3584
        s_mov_b32 s19, s15
        s_mov_b32 s18, 0x300000
        s_and_b32 s48, s2, 7
        s_lshr_b32 s49, s2, 3
        s_and_b32 s50, s3, 3""")
        c("v5 = swizzled 16B chunk offset inside a 128B row; v6 = row (l>>3); v7 = g4")
        a("""v_and_b32 v5, 7, v0
        v_lshrrev_b32 v7, 4, v0
        v_lshlrev_b32 v5, 4, v5
        v_lshlrev_b32 v6, 5, v7
        v_xor_b32 v5, v5, v6
        v_lshrrev_b32 v6, 3, v0""")
        if self.prof: a("v_mov_b32 v167, 0")
        if 'sa' in self.skip: a("s_cmp_lt_u32 s3, 4\ns_cbranch_scc0 L_end")
        a("s_cmp_lt_u32 s3, 4\ns_cbranch_scc0 L_other")
        self.lwave()
        if 'nosplit' not in self.skip: self.L = self.Lmain
        self.swave_head()
        self.awave(); self.flush()
        if 'nosplit' not in self.skip: self.L += self.Lpv
        self.swave()
        self.role_wo(); self.flush()
        self.role_mlp(); self.flush()
        mark = len(self.L)
        self.role_fin()
        tail = self.L[mark:]; del self.L[mark:]
        self.flush(); self.L += tail
        a("L_exit:")
        if self.dly:
            if self.dly[0] in "ELAS": a("s_cmp_lt_u32 s2, 224\ns_cbranch_scc1 L_end")
            if self.dx >= 0: a(f"s_and_b32 s90, s2, 7\ns_cmp_lg_u32 s90, {self.dx}\ns_cbranch_scc1 L_end")
            a("""s_cmp_eq_u32 s94, 0
            s_cbranch_scc1 L_end
            L_dly:
            s_memrealtime s[90:91]
            s_waitcnt lgkmcnt(0)
            s_sub_u32 s90, s90, s92
            s_cmp_lt_u32 s90, 3000
            s_cbranch_scc1 L_dly""")
        if self.prof:
            a(f"""s_waitcnt lgkmcnt(0)
            s_mov_b64 exec, -1
            v_writelane_b32 v167, s92, 0
            s_memrealtime s[90:91]
            s_waitcnt lgkmcnt(0)
            v_writelane_b32 v167, s90, 63
            v_writelane_b32 v167, s88, 62
            s_lshl_b32 s90, s2, 4
            s_add_u32 s90, s90, s3
            s_lshl_b32 s90, s90, 8
            s_add_u32 s90, s90, {PROF}
            v_lshlrev_b32 v166, 2, v0
            buffer_store_dword v167, v166, s[16:19], s90 offen""")
        a("L_end:\ns_endpgm")
        self.L.append(f""".section .rodata,"a"
.p2align 6
.amdhsa_kernel {NAME}_kernel
  .amdhsa_next_free_vgpr 168
  .amdhsa_next_free_sgpr 96
  .amdhsa_accum_offset 168
  .amdhsa_group_segment_fixed_size 0
  .amdhsa_kernarg_size 104
  .amdhsa_user_sgpr_count 2
  .amdhsa_user_sgpr_kernarg_segment_ptr 1
  .amdhsa_system_sgpr_workgroup_id_x 1
.end_amdhsa_kernel""")
        return "\n".join(self.L) + "\n"

    def tr_addr(self, r, sbase, tmp):
        a = self.a
        a(f"""v_lshrrev_b32 v{tmp}, 2, v0
        v_lshlrev_b32 v{r}, 7, v{tmp}
        v_and_b32 v{tmp+1}, 3, v0
        v_lshl_add_u32 v{r}, v{tmp+1}, 3, v{r}
        v_bfe_u32 v{tmp}, v0, 3, 2
        v_lshl_add_u32 v{r}, v{tmp}, 5, v{r}
        v_add_u32 v{r}, {sbase}, v{r}
        v_xor_b32 v{r+1}, 32, v{r}
        v_xor_b32 v{r+2}, 64, v{r}
        v_xor_b32 v{r+3}, 0x60, v{r}""")

    def lwave(self):
        self.cur = 'L'
        a, c = self.a, self.c; W = self.W; nt = (" " + self.nt) if self.nt else ""
        c("================= L-wave: stream wq tile, K, V into LDS; PV =================")
        a(f"""v_lshl_add_u32 v10, v6, 13, v5
        s_lshr_b32 s52, s49, 3
        s_lshl_b32 s52, s52, 2
        s_add_u32 s52, s52, s50
        s_lshl_b32 s52, s52, 18
        s_lshl_b32 s53, s48, 10
        s_add_u32 s52, s52, s53
        s_and_b32 s53, s49, 7
        s_lshl_b32 s53, s53, 7
        s_add_u32 s52, s52, s53
        s_lshl_b32 s56, s50, 12
        s_add_u32 m0, s56, {WQL}
        v_lshrrev_b32 v12, 5, v0
        v_xor_b32 v12, v12, v0
        v_lshlrev_b32 v12, 4, v12
        s_lshl_b32 s57, s50, 5
        v_xor_b32 v12, s57, v12
        v_xor_b32 v13, 0x80, v12
        s_and_b32 s53, s2, 31
        s_lshl_b32 s53, s53, 5
        s_lshr_b32 s54, s2, 5
        s_add_u32 s53, s53, s54
        s_add_u32 s53, s53, {3072*512 >> 16}
        s_lshl_b32 s53, s53, 16
        s_lshl_b32 s58, s50, 10
        s_add_u32 s54, s53, s58
        s_lshl_b32 s59, s49, 12
        s_waitcnt lgkmcnt(0)""")
        if 'nowq' in self.skip: a("s_mov_b32 s52, 0x1000000")
        if 'wqlin' in self.skip: a("v_lshlrev_b32 v10, 4, v0\ns_mul_i32 s52, s2, 14336\ns_add_u32 s52, s52, s58")
        if 'wq256' in self.skip:
            a("v_lshlrev_b32 v10, 13, v7\nv_and_b32 v14, 15, v0\nv_lshl_add_u32 v10, v14, 4, v10\ns_lshr_b32 s52, s49, 2\ns_lshl_b32 s52, s52, 2\ns_add_u32 s52, s52, s50\ns_lshl_b32 s52, s52, 17\ns_lshl_b32 s61, s48, 10\ns_add_u32 s52, s52, s61\ns_and_b32 s61, s49, 3\ns_lshl_b32 s61, s61, 8\ns_add_u32 s52, s52, s61")
        if 'pst' in self.skip: self.stamp(11)
        if 'tq' in self.skip: a("s_min_u32 s64, s52, %d\ns_load_dword s64, s[12:13], s64" % (448*8192 - 64))
        if 'tk' in self.skip: a("s_load_dword s61, s[4:5], s54")
        if 'tx' in self.skip: a("s_load_dword s65, s[20:21], 0")
        if 'tw' in self.skip: a("s_load_dword s63, s[16:17], 0")
        if 'tv' in self.skip: a("s_load_dword s62, s[8:9], s54")
        def common2():
            a(f"s_mov_b32 s88, 0x80000\nv_mov_b32 v3, {FL}\ns_lshl_b32 s51, s50, 2\nv_add_u32 v2, s51, v3\nv_mov_b32 v4, 1\ns_mov_b32 s11, s15\ns_mov_b32 s10, s6")
        def heads():
            a("s_branch L_lcont")
            c("instruction-cache warm-up: waves 5..7 hop through the code with EXEC=0")
            a(f"""L_warm:
            s_cmp_eq_u32 s3, 5
            s_cbranch_scc0 L_warm2
            s_getpc_b64 s[24:25]
            L_pc:
            s_mov_b32 s26, L_end-L_pc
            s_mov_b32 s27, 0x20000
            v_lshlrev_b32 v8, 7, v0
            s_movk_i32 s52, 0x2000
            buffer_load_dword v165, v8, s[24:27], 0 offen
            buffer_load_dword v165, v8, s[24:27], s52 offen
            s_mov_b64 exec, 0
            s_branch PADCHAIN_0
            L_warm2:
            s_mov_b64 exec, 0
            s_cmp_eq_u32 s3, 6
            s_cbranch_scc1 PADCHAIN_1
            s_branch PADCHAIN_2
            WB_0:
            s_barrier
            s_branch PADSECOND_0
            WB_1:
            s_barrier
            s_branch PADSECOND_1
            WB_2:
            s_barrier
            s_branch PADSECOND_2
            L_other:""")
            a("v_mov_b32 v8, 0\nv_mov_b32 v9, 0\nv_lshlrev_b32 v10, 3, v0\ns_cmp_eq_u32 s3, 8\ns_cbranch_scc1 L_ahead")
            common2()
            a("s_cmp_eq_u32 s3, 4\ns_cbranch_scc0 L_swave\ns_branch L_shead\nL_ahead:")
            self.ahead()
            a("L_lcont:")
            common2()
            a(f"""v_lshl_add_u32 v11, v6, 9, v5
            s_lshl_b32 s55, s50, 14
            s_lshl_b32 s56, s50, 7
            s_add_u32 s53, s53, s56
            s_barrier""")
            if 'vlin' in self.skip: a("v_lshlrev_b32 v11, 4, v0\ns_mov_b32 s53, s54")
        self.common2 = common2
        WV = self.WV
        ops = [('wq', p) for p in range(4)] + [('K', p) for p in range(16)]
        if self.ord == 1: ops = [('K', 0), ('wq', 0), ('K', 1), ('wq', 1), ('K', 2), ('wq', 2), ('K', 3), ('wq', 3)] + [('K', p) for p in range(4, 16)]
        if self.ord == 2: ops = [('K', p) for p in range(4)] + [('wq', p) for p in range(4)] + [('K', p) for p in range(4, 16)]
        if self.ord == 3: ops = [('wq', 0), ('K', 0), ('K', 1), ('wq', 1), ('K', 2), ('K', 3), ('wq', 2), ('K', 4), ('K', 5), ('wq', 3)] + [('K', p) for p in range(6, 16)]
        for p in range(17):
            for kind in ('wo', 'w1', 'w2'):
                if self.pfpos[kind] == p: ops.append(('pf', kind))
            if p < 16: ops.append(('V', p))
        pos = {o: i for i, o in enumerate(ops)}
        lastV = pos[('V', 15)]
        st = dict(landed=0)
        ntp = " nt" if 'wont' in self.skip else (" " + self.ntp) if self.ntp else ""
        vreg = [32, 48, 132, 148]
        def vread(ks, half):
            for i in range(4):
                r = vreg[ks] + i*4 + half*2
                a(f"ds_read_b64_tr_b16 v[{r}:{r+1}], v{12+i} offset:{ks*4096 + half*2048}")
        def prep(k):
            if k == 0:
                c("PV: address prep (in the shadow of the stream)")
                a(f"s_add_u32 s57, s55, {VL}")
                self.tr_addr(12, "s57", 16)
            if k == 1:
                a(f"""v_bfe_u32 v20, v0, 2, 1
                v_lshlrev_b32 v22, 6, v20
                v_lshl_add_u32 v22, v7, 4, v22
                v_add_u32 v22, {SP}, v22
                v_mov_b32 v21, {ZR}
                v_and_b32 v23, 11, v0""")
                for i in range(4):
                    a(f"v_cmp_eq_u32 vcc, {i}, v23\ns_nop 1\nv_cndmask_b32 v{16+i}, v21, v22, vcc")
            if k == 2:
                a(f"""v_and_b32 v28, 15, v0
                v_lshlrev_b32 v28, 3, v28
                v_lshl_add_u32 v28, v7, 12, v28
                s_lshl_b32 s56, s48, 2
                s_add_u32 s56, s56, s50
                s_lshl_b32 s56, s56, 13
                s_lshr_b32 s57, s49, 4
                s_lshl_b32 s57, s57, 11
                s_add_u32 s56, s56, s57
                s_and_b32 s57, s49, 3
                s_lshl_b32 s57, s57, 9
                s_add_u32 s56, s56, s57
                s_bfe_u32 s57, s49, 0x20002
                s_lshl_b32 s57, s57, 7
                s_add_u32 s56, s56, s57
                s_add_u32 s56, s56, {OP}""")
        done = set()
        for n, (kind, p) in enumerate(ops):
            if (kind, p) == ('V', 0) and 'nosplit' not in self.skip:
                a("s_branch L_pv")
                self.Lmain = self.L; self.L = []; self.Lpv = self.L
                a("L_pv:")
            if kind == 'wq':
                if self.ord: a(f"s_add_u32 m0, s56, {WQL}\ns_nop 0")
                a(f"buffer_load_dwordx4 v10, s[12:15], s52 offen offset:{p*1024}{nt} lds")
                if p < 3: a(f"s_add_u32 s52, s52, {(4096 if 'wqlin' in self.skip else 32768 if 'wq256' in self.skip else 65536)-1024}")
            elif kind == 'K':
                a(f"s_add_u32 m0, s58, {KL + p*4096}\ns_and_b32 s59, s59, 0xf000\ns_add_u32 s60, s54, s59")
                a(f"buffer_load_dwordx4 v{12 + (p & 1)}, s[4:7], s60 offen{nt} lds\ns_addk_i32 s59, 0x1000")
                if p == 7:
                    wofix = "" if 'wonw' not in self.skip else f"s_lshl_b32 s66, s49, 2\ns_add_u32 s66, s66, s50\ns_mul_i32 s66, s66, {50*128}\ns_mul_i32 s69, s48, {512*896}\ns_add_u32 s66, s66, s69\ns_cmp_lt_u32 s49, 18\ns_cselect_b32 s66, s66, 0x7f000000"
                    c("descriptors / offsets for the weight prefetch (one dword per 128B line into L2)")
                    self.srd(28, 32, 4096*896)
                    if self.pfpos['w1'] == 99 and self.pfpos['w2'] == 99:
                        a(f"s_lshl_b32 s66, s48, 5\ns_add_u32 s66, s66, s49\ns_lshl_b32 s66, s66, 2\ns_add_u32 s66, s66, s50\ns_mul_i32 s66, s66, 3584\n{wofix}\nv_lshlrev_b32 v30, 7, v0")
                    else:
                      self.srd(32, 64, 1792*896); self.srd(36, 48, 448*3584)
                      a(f"""s_lshl_b32 s66, s48, 5
                    s_add_u32 s66, s66, s49
                    s_mul_i32 s67, s66, 6272
                    s_mul_i32 s68, s50, {13*128}
                    s_add_u32 s67, s67, s68
                    s_lshl_b32 s66, s66, 2
                    s_add_u32 s66, s66, s50
                    s_mul_i32 s66, s66, 3584
                    {wofix}
                    s_mul_i32 s68, s49, {14*3584}
                    s_mul_i32 s69, s48, 448
                    s_andn2_b32 s69, s69, 127
                    s_add_u32 s68, s68, s69
                    s_mul_i32 s69, s50, 14
                    v_add_u32 v31, s69, v0
                    v_lshrrev_b32 v16, 2, v31
                    v_mul_u32_u24 v16, 3584, v16
                    v_and_b32 v31, 3, v31
                    v_lshl_add_u32 v31, v31, 7, v16
                    v_lshlrev_b32 v30, 7, v0""")
                if p == 11: a("s_waitcnt lgkmcnt(0)")
                if p == 5 and 'tvm' in self.skip: a("s_load_dword s62, s[8:9], s54")
            elif kind == 'V':
                a(f"s_add_u32 m0, s55, {VL + p*1024}\ns_and_b32 s59, s59, 0xf000\ns_add_u32 s60, s53, s59")
                a(f"buffer_load_dwordx4 v11, s[8:11], s60 offen{nt} lds")
                if p < 15: a("s_addk_i32 s59, 0x1000")
                if p == self.tkp: self.setflag(F_V8)
                if p < 3: prep(p)
                for hh in range(8):
                    if hh not in done and pos[('V', 2*hh + 1)] < st["landed"]:
                        vread(hh >> 1, hh & 1); done.add(hh)
            else:
                m, va, srd, so = dict(wo=(0x0fffffff, 30, 28, 66), w1=(0x3fff, 31, 36, 68), w2=(0x1fff, 30, 32, 67))[p]
                if p == 'wo' and 'wonw' in self.skip: a(f"s_mov_b32 exec_hi, 0x3ffff\nbuffer_load_dword v165, v{va}, s[{srd}:{srd+3}], s{so} offen{ntp}\ns_mov_b64 exec, -1")
                else: a(f"s_mov_b64 exec, {hex(m)}\nbuffer_load_dword v165, v{va}, s[{srd}:{srd+3}], s{so} offen{ntp}\ns_mov_b64 exec, -1")
            n += 1
            if n == max(W, self.W0): heads()
            if n < self.W0: continue
            if n == self.W0 and self.W0 > W:
                a(f"s_waitcnt vmcnt({n - 4})"); st["landed"] = 4; self.setflag(F_WQ); self.stamp(1)
            w = W if n < 20 else (WV if n <= lastV - self.NE else self.WE)
            if n <= lastV and n - (w - 1) > st["landed"]:
                a(f"s_waitcnt vmcnt({w-1})")
                old = st["landed"]; st["landed"] = n - (w - 1)
                if 'pst' in self.skip: self.stamp(11 + st["landed"])
                if old < pos[('wq', 3)] + 1 <= st["landed"]: self.setflag(F_WQ); self.stamp(1)
                for u in range(4):
                    if old < pos[('K', 4*u + 3)] + 1 <= st["landed"]: self.setflag(F_KL + 16*u)
                if old < 20 <= st["landed"]: self.stamp(2)
        self.setflag(F_VI); self.stamp(3)
        assert st["landed"] >= 20
        if 'sa' not in self.skip: self.waitflag(F_P, sleep=False)
        a("v_readfirstlane_b32 s57, v8")
        self.stamp(4)
        for ks in range(4):
            for i in range(4):
                r = 64 + (ks*4 + i)*4
                a(f"ds_read_b128 v[{r}:{r+3}], v{16+i} offset:{ks*128}")
        def vwait_read(hh):
            ks, half = hh >> 1, hh & 1
            rem = len(ops) - 1 - pos[('V', 2*hh + 1)]
            if rem < len(ops) - st['landed']: a(f"s_waitcnt vmcnt({rem})")
            if hh == 7: self.stamp(5)
            vread(ks, half); done.add(hh)
        for ks in range(4):
            fresh = [hh for hh in (2*ks, 2*ks + 1) if hh not in done]
            for hh in fresh: vwait_read(hh)
            extra = 0
            if ks == 2 and 6 not in done: vwait_read(6); extra = 4
            for i in range(4):
                if fresh: a(f"s_waitcnt lgkmcnt({3 - i + extra})")
                else: a(f"s_waitcnt lgkmcnt({min(15 - (ks*4 + i), 14)})")
                rb = vreg[ks] + i*4; ra = 64 + (ks*4 + i)*4
                cin = "0" if (ks == 0 and i == 0) else "v[128:131]"
                a(f"v_mfma_f32_16x16x32_bf16 v[128:131], v[{ra}:{ra+3}], v[{rb}:{rb+3}], {cin}")
        a("""s_mov_b32 exec_hi, 0
        s_cmp_eq_u32 s57, 1
        s_nop 5
        v_cvt_pk_bf16_f32 v24, v128, v129
        v_cvt_pk_bf16_f32 v25, v130, v131
        v_min_u32 v24, -2, v24
        s_cbranch_scc0 L_oglob
        buffer_store_dwordx2 v[24:25], v28, s[16:19], s56 offen""" + self.lo + """
        L_odone:
        s_mov_b32 exec_hi, -1""")
        self.setflag(F_PV)
        self.stamp(6)
        for p in ('wo', 'w1', 'w2'):
            if self.pfpos[p] == 17:
                m, va, srd, so = dict(wo=(0x0fffffff, 30, 28, 66), w1=(0x3fff, 31, 36, 68), w2=(0x1fff, 30, 32, 67))[p]
                a(f"s_mov_b64 exec, {hex(m)}\nbuffer_load_dword v165, v{va}, s[{srd}:{srd+3}], s{so} offen{ntp}\ns_mov_b64 exec, -1")
        if self.tkp < 0: a(("s_cmp_lt_u32 s49, 18" if 'rev' in self.skip else "s_cmp_ge_u32 s49, 14") + "\ns_cbranch_scc1 L_exit\ns_barrier")
        a("s_branch L_exit")
        a(f"""L_oglob:
        s_add_u32 s56, s56, {OPG-OP}
        buffer_store_dwordx2 v[24:25], v28, s[16:19], s56 offen sc1
        ds_read_b32 v26, v3 offset:{F_TAG}
        s_lshl_b32 s56, s48, 2
        s_add_u32 s56, s56, s50
        s_lshl_b32 s56, s56, 5
        s_add_u32 s56, s56, s49
        s_lshl_b32 s56, s56, 2
        s_add_u32 s56, s56, {RDY}
        s_mov_b64 exec, 1
        s_waitcnt vmcnt(0) lgkmcnt(0)
        buffer_store_dword v26, v28, s[16:19], s56 offen sc1
        s_mov_b64 exec, -1
        s_branch L_odone""")

    def swave_head(self):
        a, c = self.a, self.c
        c("================= S-wave 0 head: clears =================")
        a(f"""L_shead:
        v_mov_b32 v8, -1
        v_mov_b32 v9, -1
        v_mov_b32 v10, -1
        v_mov_b32 v11, -1
        v_mov_b32 v12, 0
        v_mov_b32 v13, 0
        v_lshlrev_b32 v15, 3, v0
        s_lshl_b32 s52, s48, 5
        s_add_u32 s52, s52, s49
        s_lshl_b32 s52, s52, 10
        s_add_u32 s52, s52, {OP}
        v_lshlrev_b32 v14, 4, v0
        s_lshl_b32 s55, s2, {HS}
        s_add_u32 s55, s55, {HACC}
        """)
        if self.tkp >= 0: a(f"s_lshl_b32 s56, s48, 7\ns_add_u32 s56, s56, {TK}\ns_cmp_eq_u32 s49, 31\ns_cselect_b32 s55, s56, s55")
        a("s_waitcnt lgkmcnt(0)")
        if 'warmpre' in self.skip:
            a("v_lshlrev_b32 v16, 7, v0\ns_mov_b64 exec, 0xff\nbuffer_load_dword v165, v16, s[16:19], s52 offen sc1\ns_mov_b64 exec, -1")
        else: a("buffer_store_dwordx4 v[8:11], v14, s[16:19], s52 offen" + self.lc)
        for kk in range(self.xd):
            a(f"s_add_u32 s53, s52, {0x200000 - OP + kk * 0x40000}\nbuffer_store_dwordx4 v[8:11], v14, s[16:19], s53 offen")
        if 'wst' in self.skip:
            c("allocate the lines this workgroup publishes later (stats, q partial) in L2: contents are not used")
            a(f"""s_lshl_b32 s53, s48, 2
            s_and_b32 s54, s49, 3
            s_add_u32 s53, s53, s54
            s_lshl_b32 s53, s53, 3
            s_lshr_b32 s54, s2, 5
            s_add_u32 s53, s53, s54
            s_lshl_b32 s53, s53, 7
            s_add_u32 s53, s53, {STAT}
            s_mov_b64 exec, 1
            buffer_load_dword v165, v12, s[16:19], s53 offen sc1
            s_mov_b64 exec, -1""")
        if 'wqp' in self.skip:
            a(f"""s_lshr_b32 s53, s49, 3
            s_lshl_b32 s53, s53, 16
            s_lshl_b32 s54, s48, 11
            s_add_u32 s53, s53, s54
            s_and_b32 s54, s49, 7
            s_lshl_b32 s54, s54, 8
            s_add_u32 s53, s53, s54
            s_add_u32 s53, s53, {QPL}
            v_lshrrev_b32 v16, 1, v0
            v_lshlrev_b32 v16, 14, v16
            v_and_b32 v17, 1, v0
            v_lshl_add_u32 v16, v17, 7, v16
            s_mov_b64 exec, 0xff
            buffer_load_dword v165, v16, s[16:19], s53 offen sc1
            s_mov_b64 exec, -1""")
        a(f"""s_sub_u32 s54, s49, 16
        s_cmp_lt_u32 s54, {15 if self.tkp >= 0 else 16}
        s_cbranch_scc1 L_noz
        s_mov_b64 exec, 0xffff
        buffer_store_dwordx2 v[12:13], v15, s[16:19], s55 offen sc1
        s_mov_b64 exec, -1
        L_noz:
        s_barrier
        s_waitcnt vmcnt(0)""")
        if 'warmpre' in self.skip: a("buffer_store_dwordx4 v[8:11], v14, s[16:19], s52 offen\ns_waitcnt vmcnt(0)")
        self.setflag(F_CLR, "v3")
        if 'nowarmpost' not in self.skip:
            c("make the cleared lines readable from L2 (contents unused)")
            a("v_lshlrev_b32 v16, 7, v0\ns_mov_b64 exec, 0xff\nbuffer_load_dword v165, v16, s[16:19], s52 offen sc1\ns_mov_b64 exec, -1")
        a("s_branch L_swave")

    def dpp_allred16(self, op, regs):
        for rot in (8, 4, 2, 1):
            for r in regs:
                self.a(f"{op}_dpp v{r}, v{r}, v{r} row_ror:{rot} row_mask:0xf bank_mask:0xf")
            self.a("s_nop %d" % max(0, 2 - len(regs)))

    def ahead(self):
        a, c = self.a, self.c
        c("A-wave head: x loads first")
        a(f"""{'' if 'noprio' in self.skip else 's_setprio 3'}
        v_and_b32 v12, 15, v0
        v_mul_u32_u24 v13, 896, v7
        v_lshl_add_u32 v14, v12, 3, v13
        v_lshl_add_u32 v13, v12, 4, v13
        s_lshr_b32 s52, s49, 3
        s_lshl_b32 s53, s52, 8
        s_mov_b32 s54, {EPO}
        {'s_barrier' if 'bar1' in self.skip else ''}
        s_waitcnt lgkmcnt(0)
        {'s_load_dword s56, s[20:21], 0' if 'xtouch' in self.skip else ''}
        {'s_load_dword s57, s[16:17], s54' if 'xtouch' in self.skip else ''}
        {'s_sleep 1' if 'x1' in self.skip else ''}
        {'s_sleep 3' if 'x3' in self.skip else ''}
        {'s_waitcnt lgkmcnt(0)' if 'xwait' in self.skip else ''}
        buffer_load_dwordx4 v[16:19], v13, s[20:23], 0 offen
        buffer_load_dwordx4 v[20:23], v13, s[20:23], 0 offen offset:256
        buffer_load_dwordx4 v[24:27], v13, s[20:23], 0 offen offset:512
        buffer_load_dwordx2 v[28:29], v14, s[20:23], 0 offen offset:768
        buffer_load_dwordx4 v[30:33], v13, s[20:23], s53 offen
        {'s_barrier' if 'abar1' in self.skip else ''}
        buffer_load_dword v110, v8, s[16:19], s54 offen sc1
        s_branch L_awave""")

    def awave(self):
        self.cur = 'A'
        a, c = self.a, self.c
        c("================= A-wave: LN1, q partial, q gather, softmax, stats =================")
        a("L_awave:")
        a(f"ds_write_b64 v10, v[8:9] offset:{ZR}\nds_write_b64 v10, v[8:9] offset:{FL}")
        self.common2()
        a("s_waitcnt lgkmcnt(0)\ns_barrier")
        a(f"s_mov_b32 s54, {WQL}")
        self.tr_addr(100, "s54", 104)
        a(f"""v_bfe_u32 v104, v0, 2, 2
        v_lshlrev_b32 v104, 8, v104
        v_lshl_add_u32 v104, v7, 3, v104
        v_add_u32 v104, {XN}, v104
        v_lshlrev_b32 v106, 14, v7
        v_lshl_add_u32 v106, v12, 4, v106
        v_lshlrev_b32 v108, 4, v0
        s_mov_b32 s60, 0xffff0000
        v_mov_b32 v109, 0x3f803f80
        s_waitcnt vmcnt(1)""")
        self.stamp(1)
        c("row sums and sums of squares (16 lanes per batch row), own 8 values -> v64..71")
        for i in range(14):
            a(f"v_dot2_f32_bf16 v72, v{16+i}, v109, {'0' if i == 0 else 'v72'}\nv_dot2_f32_bf16 v73, v{16+i}, v{16+i}, {'0' if i == 0 else 'v73'}")
        for i in range(4):
            a(f"v_lshlrev_b32 v{64+2*i}, 16, v{30+i}\nv_and_b32 v{65+2*i}, s60, v{30+i}")
        self.dpp_allred16("v_add_f32", [72, 73])
        a(f"""v_mul_f32 v72, {hex(f2u(1/448))}, v72
        v_mul_f32 v73, {hex(f2u(1/448))}, v73
        v_fma_f32 v73, -v72, v72, v73
        v_max_f32 v73, 0, v73
        v_cvt_pk_bf16_f32 v74, v72, v73
        v_lshlrev_b32 v72, 16, v74
        v_and_b32 v73, s60, v74
        v_add_f32 v73, {hex(f2u(1e-5))}, v73
        v_cvt_pk_bf16_f32 v73, v73, v73
        v_and_b32 v73, s60, v73
        v_sqrt_f32 v73, v73
        s_nop 0
        v_cvt_pk_bf16_f32 v73, v73, v73
        v_and_b32 v73, s60, v73
        v_rcp_f32 v73, v73""")
        for i in range(4):
            a(f"""v_sub_f32 v{64+2*i}, v{64+2*i}, v72
            v_sub_f32 v{65+2*i}, v{65+2*i}, v72
            v_cvt_pk_bf16_f32 v74, v{64+2*i}, v{65+2*i}
            v_lshlrev_b32 v75, 16, v74
            v_and_b32 v76, s60, v74
            v_mul_f32 v75, v75, v73
            v_mul_f32 v76, v76, v73
            v_cvt_pk_bf16_f32 v{30+i}, v75, v76""")
        a(f"ds_write_b128 v108, v[30:33] offset:{XN}")
        for ks in range(4):
            a(f"ds_read2_b64 v[{16+4*ks}:{19+4*ks}], v104 offset0:{ks*8} offset1:{ks*8+4}")
        self.stamp(2)
        self.waitflag(F_WQ, n=4, t="v96", sleep=False)
        self.stamp(3)
        for ks in range(4):
            for i in range(4):
                for half in range(2):
                    r = 32 + (ks*4 + i)*4 + half*2
                    a(f"ds_read_b64_tr_b16 v[{r}:{r+1}], v{100+i} offset:{ks*4096 + half*2048}")
            if ks & 1:
                a("s_waitcnt lgkmcnt(0)")
                for k2 in (ks-1, ks):
                    for i in range(4):
                        r = 32 + (k2*4 + i)*4; d = 112 + 4*i
                        cin = "0" if k2 == 0 else f"v[{d}:{d+3}]"
                        a(f"v_mfma_f32_16x16x32_bf16 v[{d}:{d+3}], v[{16+4*k2}:{19+4*k2}], v[{r}:{r+3}], {cin}")
        self.waitflag(F_CLR)
        self.stamp(4)
        a(f"""s_waitcnt vmcnt(0)
        v_add_u32 v110, 1, v110
        s_getreg_b32 s62, hwreg(HW_REG_XCC_ID, 0, 4)
        ds_write_b32 v3, v110 offset:{F_TAG}
        s_mov_b32 s58, 0xaaaaaaaa
        s_mov_b32 s59, 0xaaaaaaaa
        v_lshrrev_b32 v125, 4, v110
        v_lshrrev_b32 v126, 8, v110
        v_lshrrev_b32 v127, 16, v110
        v_cndmask_b32 v126, v126, v127, s[58:59]
        v_lshrrev_b32 v127, 12, v110
        v_mov_b32 v113, s62
        v_cndmask_b32 v127, v127, v113, s[58:59]
        v_add_u32 v112, 8, v112
        v_add_u32 v113, 8, v116
        v_add_u32 v114, 8, v120
        v_add_u32 v115, 8, v124
        v_bfi_b32 v112, 15, v110, v112
        v_bfi_b32 v113, 15, v125, v113
        v_bfi_b32 v114, 15, v126, v114
        v_bfi_b32 v115, 15, v127, v115
        s_lshl_b32 s53, s52, 16
        s_lshl_b32 s54, s48, 11
        s_add_u32 s53, s53, s54
        s_and_b32 s55, s49, 7
        s_lshl_b32 s55, s55, 8
        s_add_u32 s53, s53, s55
        s_add_u32 s55, s53, {QPL}
        buffer_store_dwordx4 v[112:115], v106, s[16:19], s55 offen{self.lq}
        s_and_b32 s55, s49, 3
        s_lshl_b32 s55, s55, 14
        s_add_u32 s54, s54, s55
        s_add_u32 s55, s54, 0x10000
        s_add_u32 s56, s54, 0x20000
        s_add_u32 s57, s54, 0x30000""")
        if self.qg < 0:
            a(f"s_waitcnt vmcnt({1 if self.qg == -2 else 0})")
            if self.qd: a(f"s_sleep {self.qd}")
        else:
            c("gather once K is well under way: every member of the group has published by then")
            self.waitflag(F_KL + 16*self.qg)
        self.stamp(9)
        c("q gather")
        tg = [110, 125, 126, 127]
        c("the L2-resident copy is complete only if the whole group sits on this XCD; after three misses publish a")
        c("write-through copy as well and alternate between the two")
        a(f"""v_add_u32 v108, {QPL}, v108
        s_mov_b32 s63, 0
        L_qg:
        s_add_u32 s63, s63, 1
        s_cmp_lt_u32 s63, 4
        s_cbranch_scc1 L_qg2
        v_xor_b32 v108, {QPL}, v108
        s_cmp_lg_u32 s63, 4
        s_cbranch_scc1 L_qg2
        buffer_store_dwordx4 v[112:115], v106, s[16:19], s53 offen sc1
        L_qg2:""")
        for rg in range(4):
            for z in range(2):
                r = 16 + (rg*2 + z)*4
                a(f"buffer_load_dwordx4 v[{r}:{r+3}], v108, s[16:19], s{54+rg} offen offset:{z*1024} sc1")
        a(f"s_waitcnt vmcnt(0)\nv_xor_b32 v8, v16, v110\nv_xor_b32 v119, v19, v127")
        for k in range(1, 32):
            if k == 3: continue
            d = 119 if (k & 3) == 3 else 8
            a(f"v_bitop3_b32 v{d}, v{d}, v{16+k}, v{tg[k & 3]} bitop3:0xf6")
        a("v_cndmask_b32 v9, v119, 0, s[58:59]\nv_or_b32 v8, v8, v9\nv_and_b32 v8, 15, v8\nv_cmp_ne_u32 vcc, 0, v8")
        self.retry("L_qg")
        a("L_qgskip:")
        for k in range(32): a(f"v_and_b32 v{16+k}, -16, v{16+k}")
        for k in range(8):
            a(f"v_add_f32 v{80+k}, v{16+k}, v{24+k}\nv_add_f32 v{88+k}, v{32+k}, v{40+k}")
        self.stamp(5)
        for k in range(8):
            a(f"v_add_f32 v{80+k}, v{80+k}, v{88+k}")
        a(f"v_lshlrev_b32 v9, 7, v7\nv_lshl_add_u32 v9, v12, 1, v9")
        for k in range(4):
            a(f"v_cvt_pk_bf16_f32 v{88+k}, v{80+2*k}, v{81+2*k}")
        for k in range(4):
            z = k >> 1; i = (k & 1)*2
            a(f"ds_write_b16 v9, v{88+k} offset:{QB + z*512 + i*32}\nds_write_b16_d16_hi v9, v{88+k} offset:{QB + z*512 + i*32 + 32}")
        self.setflag(F_Q, "v3")
        a(f"v_and_b32 v119, 15, v119\nv_cmp_ne_u32 vcc, 0, v119\ns_cmp_eq_u64 vcc, 0\ns_cselect_b32 s62, {2 if 'noloc' in self.skip else 1}, 2\nv_mov_b32 v119, s62")
        a("s_cbranch_scc1 L_quni\nbuffer_store_dwordx4 v[112:115], v106, s[16:19], s53 offen sc1\nL_quni:")
        a(f"""s_cmp_lg_u32 s49, 31
        s_cbranch_scc1 L_nogr
        s_lshl_b32 s53, s48, 2
        s_add_u32 s53, s53, {GR}
        s_mov_b64 exec, 1
        buffer_store_dword v110, v10, s[16:19], s53 offen sc1
        s_mov_b64 exec, -1
        L_nogr:""")
        if 'wbl2a' in self.skip: a("s_cmp_lg_u32 s49, 0\ns_cbranch_scc1 L_nowb\nbuffer_wbl2 sc1\nL_nowb:")
        c("softmax over the 128 local keys, 2 heads")
        a(f"""s_lshl_b32 s53, s48, 2
        s_and_b32 s54, s49, 3
        s_add_u32 s53, s53, s54
        s_lshl_b32 s53, s53, 10
        s_add_u32 s53, s53, {STAT}
        s_lshr_b32 s54, s2, 5
        s_lshl_b32 s54, s54, 7
        s_add_u32 s54, s54, s53
        s_mov_b32 s61, {hex(f2u(1.4426950408889634/16))}
        v_add_u32 v30, -4, v0
        v_lshlrev_b32 v30, 4, v30
        """)
        self.waitflag(F_S, n=4, t="v96", sleep=False)
        self.stamp(6)
        a(f"""ds_read_b64 v[16:17], v10 offset:{SP}
        s_waitcnt lgkmcnt(0)
        v_lshlrev_b32 v18, 16, v16
        v_and_b32 v19, s60, v16
        v_lshlrev_b32 v20, 16, v17
        v_and_b32 v21, s60, v17
        v_max_f32 v22, v18, v19
        v_max3_f32 v22, v22, v20, v21""")
        def red8x4(op, r, t):
            a(f"""s_nop 1
            {op}_dpp v{r}, v{r}, v{r} quad_perm:[1,0,3,2] row_mask:0xf bank_mask:0xf
            s_nop 1
            {op}_dpp v{r}, v{r}, v{r} quad_perm:[2,3,0,1] row_mask:0xf bank_mask:0xf
            s_nop 1
            {op}_dpp v{r}, v{r}, v{r} row_half_mirror row_mask:0xf bank_mask:0xf
            v_mov_b32 v{t}, v{r}
            s_nop 1
            v_permlane16_swap_b32 v{r}, v{t}
            {op} v{r}, v{r}, v{t}
            v_mov_b32 v{t}, v{r}
            s_nop 1
            v_permlane32_swap_b32 v{r}, v{t}
            {op} v{r}, v{r}, v{t}""")
        red8x4("v_max_f32", 22, 24)
        for k in range(4):
            a(f"v_sub_f32 v{18+k}, v{18+k}, v22\nv_mul_f32 v{18+k}, s61, v{18+k}\nv_exp_f32 v{18+k}, v{18+k}")
        a(f"""s_nop 0
        v_cvt_pk_bf16_f32 v16, v18, v19
        v_cvt_pk_bf16_f32 v17, v20, v21
        ds_write_b64 v10, v[16:17] offset:{SP}""")
        a(f"ds_write_b32 v3, v119 offset:{F_P}")
        a("v_add_f32 v23, v18, v19\nv_add_f32 v24, v20, v21\nv_add_f32 v23, v23, v24")
        red8x4("v_add_f32", 23, 24)
        a(f"""v_mov_b32 v24, v110
        v_mov_b32 v25, 0
        s_mov_b64 exec, 0xff0
        s_cmp_eq_u32 s62, 1
        s_cbranch_scc1 L_sloc
        buffer_store_dwordx4 v[22:25], v30, s[16:19], s54 offen sc1
        s_branch L_exit
        L_sloc:
        buffer_store_dwordx4 v[22:25], v30, s[16:19], s54 offen{self.lo}
        """)
        self.stamp(7)
        a("s_branch L_exit")

    def swave(self):
        self.cur = 'S'
        a, c = self.a, self.c
        c("================= S-wave: scores =================")
        a("L_swave:")
        a(f"""v_and_b32 v12, 15, v0
        v_xor_b32 v13, v7, v12
        v_lshlrev_b32 v13, 4, v13
        v_lshl_add_u32 v13, v12, 9, v13
        s_lshl_b32 s55, s50, 14
        s_add_u32 s55, s55, {KL}
        v_add_u32 v13, s55, v13
        v_xor_b32 v14, 64, v13
        v_xor_b32 v15, 0x80, v13
        v_xor_b32 v16, 0xc0, v13
        v_and_b32 v17, 1, v0
        v_lshlrev_b32 v18, 9, v17
        v_lshl_add_u32 v18, v7, 4, v18
        v_lshlrev_b32 v17, 6, v17
        v_lshl_add_u32 v17, v7, 4, v17
        s_lshl_b32 s56, s50, 7
        v_add_u32 v17, s56, v17""")
        c("weights prefetch addresses: u=0,1 wo ; u=2 w2 ; u=3 w1")
        self.srd(28, 32, 4096*896)
        self.srd(32, 64, 1792*896)
        self.srd(36, 48, 448*3584)
        self.srd(40, 56, 3584)
        if 'notouch2' not in self.skip:
            a("s_cmp_lg_u32 s50, 1\ns_cbranch_scc1 L_notouch\ns_cmp_lg_u32 s49, 30\ns_cbranch_scc1 L_notouch")
            a("s_load_dwordx4 s[72:75], s[0:1], 72")
            self.waitflag(F_KL, "v2")
            if 'tall' in self.skip:
                a(f"s_mul_i32 s57, s48, {512*896}\ns_load_dword s65, s[28:29], s57\ns_add_u32 s57, s57, {512*896-64}\ns_load_dword s66, s[28:29], s57\ns_load_dword s67, s[36:37], 0")
            a(f"""s_load_dword s62, s[32:33], 0
            s_load_dword s64, s[40:41], 0
            s_load_dword s60, s[72:73], 0
            s_load_dword s61, s[74:75], 0
            L_notouch:""")
        a("s_lshl_b32 s56, s50, 4\nv_add_u32 v19, s56, v3")
        self.waitflag(F_KL, "v19", n=4)
        self.stamp(1)
        for ks in range(8):
            for T in range(2):
                r = 64 + (T*8 + ks)*4
                a(f"ds_read_b128 v[{r}:{r+3}], v{13 + (ks & 3)} offset:{(ks >> 2)*256 + T*8192}")
        if self.tkp == 100:
            a(f"""s_cmp_lg_u32 s50, 0
            s_cbranch_scc1 L_tki""")
            self.waitflag(F_Q)
            a(f"""s_lshl_b32 s56, s48, 7
            s_add_u32 s56, s56, {TK}
            v_mov_b32 v163, 1
            v_mov_b32 v9, 0
            s_mov_b64 exec, 1
            buffer_atomic_add v163, v9, s[16:19], s56 offen sc0 sc1
            s_mov_b64 exec, -1
            L_tki:""")
        self.waitflag(F_Q, sleep=False)
        self.stamp(2)
        a(f"ds_read_b32 v164, v3 offset:{F_TAG}")
        for ks in range(8):
            a(f"ds_read_b128 v[{32+4*ks}:{35+4*ks}], v18 offset:{QB + ks*64}")
        for ks in range(8):
            a(f"s_waitcnt lgkmcnt({7-ks})")
            for T in range(2):
                r = 64 + (T*8 + ks)*4; d = 20 + 4*T
                cin = "0" if ks == 0 else f"v[{d}:{d+3}]"
                a(f"v_mfma_f32_16x16x32_bf16 v[{d}:{d+3}], v[{r}:{r+3}], v[{32+4*ks}:{35+4*ks}], {cin}")
        a("s_nop 7")
        for k in range(4):
            a(f"v_cvt_pk_bf16_f32 v{28+k}, v{20+2*k}, v{21+2*k}")
        a(f"""s_mov_b32 exec_lo, 0x00030003
        s_mov_b32 exec_hi, 0x00030003
        ds_write_b128 v17, v[28:31] offset:{SP}
        s_mov_b64 exec, -1""")
        self.setflag(F_S)
        self.stamp(3)
        if 'roles' in self.skip: a("s_branch L_exit")
        if 'warmlate' in self.skip:
            c("keep this workgroup's share of the cleared o lines in L2 until they are polled")
            a(f"""s_cmp_lg_u32 s50, 1
            s_cbranch_scc1 L_nowm
            s_lshl_b32 s56, s48, 5
            s_add_u32 s56, s56, s49
            s_lshl_b32 s56, s56, 10
            s_add_u32 s56, s56, {OP}
            v_lshlrev_b32 v9, 7, v0
            s_mov_b64 exec, 0xff
            buffer_load_dword v165, v9, s[16:19], s56 offen sc1
            s_mov_b64 exec, -1
            L_nowm:""")
        c("first part of the WO setup")
        a(f"""s_lshr_b32 s68, s50, 1
        s_and_b32 s69, s50, 1
        s_lshl_b32 s54, s48, 1
        s_add_u32 s54, s54, s68
        s_lshl_b32 s54, s54, 2
        s_add_u32 s54, s54, s69
        s_mul_i32 s54, s54, {64*896}
        v_and_b32 v20, 3, v6
        v_lshlrev_b32 v20, 4, v20
        v_lshrrev_b32 v21, 5, v0
        v_lshl_add_u32 v20, v21, 1, v20
        v_mul_u32_u24 v20, 896, v20
        v_add_u32 v20, v20, v5
        v_lshrrev_b32 v15, 1, v0
        v_lshlrev_b32 v15, 7, v15
        s_lshl_b32 s59, s48, 12
        s_lshl_b32 s56, s68, 6
        s_add_u32 s59, s59, s56
        s_add_u32 s59, s59, {STAT}""")
        if self.tkp == 100:
            a(f"""s_cmp_lg_u32 s50, 0
            s_cbranch_scc1 L_tkw
            s_mov_b64 exec, 1
            s_waitcnt vmcnt(0)
            v_add_u32 v8, 1, v163
            ds_write_b32 v3, v8 offset:{F_TK}
            s_mov_b64 exec, -1
            L_tkw:""")
            self.waitflag(F_TK, sleep=False)
            a("v_readfirstlane_b32 s49, v8\ns_nop 0\ns_sub_u32 s49, s49, 1")
            if self.prof: a("v_writelane_b32 v167, s49, 61")
        elif self.tkp >= 0:
            a("s_cmp_lg_u32 s50, 0\ns_cbranch_scc1 L_tkw")
            self.waitflag(F_V8, "v2")
            a(f"""s_lshl_b32 s56, s48, 7
            s_add_u32 s56, s56, {TK}
            v_mov_b32 v8, 1
            v_mov_b32 v9, 0
            s_mov_b64 exec, 1
            buffer_atomic_add v8, v9, s[16:19], s56 offen sc0 sc1
            s_waitcnt vmcnt(0)
            v_add_u32 v8, 1, v8
            ds_write_b32 v3, v8 offset:{F_TK}
            s_mov_b64 exec, -1
            L_tkw:""")
            self.waitflag(F_TK, sleep=False)
            a("v_readfirstlane_b32 s49, v8\ns_nop 0\ns_sub_u32 s49, s49, 1")
            if self.prof: a("v_writelane_b32 v167, s49, 61")
        if 'rev' in self.skip: a("s_sub_u32 s49, 31, s49")
        if 'rev' in self.skip and self.prof: a("v_writelane_b32 v167, s49, 61")
        a("""v_readfirstlane_b32 s70, v164
        s_cmp_lt_u32 s49, 14
        s_cbranch_scc1 L_wo
        s_mov_b32 s71, s70""")
        if self.hlp:
            if 'B' in self.hlp:
                a("s_cmp_ge_u32 s49, 28\ns_cbranch_scc1 L_exit\ns_cmp_lt_u32 s49, 21\ns_cselect_b32 s56, 7, -7\ns_add_u32 s49, s49, s56")
            elif 'C' in self.hlp:
                a("s_cmp_ge_u32 s49, 30\ns_cbranch_scc1 L_exit\ns_cmp_lt_u32 s49, 23\ns_cselect_b32 s56, 7, -9\ns_add_u32 s49, s49, s56")
            else:
                a("s_cmp_lt_u32 s49, 25\ns_cselect_b32 s56, 7, -11\ns_add_u32 s49, s49, s56")
            if self.prof: a("v_writelane_b32 v167, s49, 61")
        if 'nomlp' in self.skip: a("s_branch L_exit")
        if 'nomlpwg' in self.skip: a("s_cmp_lt_u32 s49, 21\ns_cbranch_scc1 L_exit")
        a("""s_cmp_lt_u32 s49, 21
        s_cbranch_scc1 L_mlp""")
        if self.hlp:
            c("helpers: pull this XCD's share of w1 / w2 into L2")
            ntp = (" " + self.ntp) if self.ntp else ""
            n1, n2 = (64, 56) if 'B' in self.hlp else (50, 44) if 'C' in self.hlp else (41, 36)
            a(f"""s_sub_u32 s56, s49, 21
            s_lshl_b32 s56, s56, 2
            s_add_u32 s56, s56, s50
            s_mul_i32 s57, s56, {n1}
            v_add_u32 v9, s57, v0
            v_lshrrev_b32 v10, 2, v9
            v_mul_u32_u24 v10, 3584, v10
            v_and_b32 v9, 3, v9
            v_lshl_add_u32 v14, v9, 7, v10
            s_mul_i32 s57, s48, 448
            s_andn2_b32 s57, s57, 127
            v_lshlrev_b32 v13, 7, v0
            s_mul_i32 s56, s56, {n2*128}
            s_mul_i32 s58, s48, {224*896}
            s_add_u32 s56, s56, s58""")
            if 'o' in self.hlp: self.waitflag(F_PV, "v2", sleep=False)
            else: self.waitflag(F_PV if 'p' in self.hlp else F_VI, n=4, t="v8", sleep=False)
            if '1' in self.hlp: a(f"s_mov_b32 exec_hi, {hex((1 << (n1 - 32)) - 1)}\nbuffer_load_dword v165, v14, s[36:39], s57 offen{ntp}")
            if 'x' in self.hlp:
                a("s_mov_b32 exec_hi, -1"); self.waitflag(F_PV, n=4, t="v8", sleep=False)
            if '2' in self.hlp: a(f"s_mov_b32 exec_hi, {hex((1 << (n2 - 32)) - 1)}\nbuffer_load_dword v165, v13, s[32:35], s56 offen{ntp}")
            a("s_mov_b32 exec_hi, -1")
        if 'nofin' in self.skip: a("s_branch L_exit")
        a("""s_cmp_lt_u32 s49, 28
        s_cbranch_scc0 L_exit
        s_cmp_ge_u32 s50, 2
        s_cbranch_scc1 L_fin
        s_branch L_exit""")

    def role_wo(self):
        self.cur = 'WO'
        a, c = self.a, self.c; ntw = (" " + self.ntw) if self.ntw else ""
        c("================= role WO =================")
        a("L_wo:")
        a(f"""s_cmp_ge_u32 s49, 7
        s_cselect_b32 s52, 1, 0
        s_mul_i32 s53, s52, 7
        s_sub_u32 s53, s49, s53
        s_mul_i32 s56, s52, {128*896}
        s_add_u32 s54, s54, s56
        s_lshl_b32 s56, s53, 7
        s_add_u32 s54, s54, s56""")
        self.stamp(10)
        early = 'tearly' in self.skip
        if not early:
            self.waitflag(F_VI, n=4, t="v8", sleep=False)
            a("buffer_load_dwordx3 v[16:18], v15, s[16:19], s59 offen sc1")
        for p in range(8):
            rows = 4*(p & 1) + ((p >> 1) & 1) + 8*(p >> 2)
            a(f"s_add_u32 m0, s55, {p*1024}\ns_add_u32 s56, s54, {rows*896}")
            a(f"buffer_load_dwordx4 v20, s[28:31], s56 offen{ntw} lds")
            if early and p + 1 >= self.ww and p < 7: a(f"s_waitcnt vmcnt({self.ww - 1})")
        a(f"""v_lshlrev_b32 v23, 2, v0
        v_and_b32 v29, 28, v23
        s_mov_b32 s61, {GR}""")
        if not early: a("buffer_load_dword v31, v29, s[16:19], s61 offen sc1")
        self.tr_addr(160, "s55", 21)
        a(f"""v_xor_b32 v21, v0, v6
        v_lshlrev_b32 v21, 4, v21
        v_and_b32 v22, 7, v0
        v_xor_b32 v12, v7, v22
        v_lshlrev_b32 v12, 4, v12
        v_and_b32 v22, 15, v0
        v_lshl_add_u32 v12, v22, 7, v12
        s_add_u32 s72, s55, 8192
        v_add_u32 v12, s72, v12
        v_xor_b32 v13, 64, v12
        v_and_b32 v22, 3, v0
        s_lshl_b32 s57, s48, 2
        s_lshl_b32 s56, s52, 1
        s_add_u32 s57, s57, s56
        s_add_u32 s57, s57, s69
        s_lshl_b32 s57, s57, 1
        s_add_u32 s57, s57, s68
        s_lshl_b32 s57, s57, 12
        s_add_u32 s57, s57, {OP}
        s_mov_b32 s69, {hex(f2u(1.4426950408889634/16))}
        s_lshl_b32 s56, s50, 10
        v_add_u32 v24, s56, v23
        v_add_u32 v24, {RED}, v24""")
        a(f"""v_lshrrev_b32 v25, 5, v0
        v_lshlrev_b32 v25, 8, v25
        v_bfe_u32 v26, v0, 2, 3
        v_lshl_add_u32 v25, v26, 3, v25
        v_and_b32 v26, 1, v0
        v_lshl_add_u32 v25, v26, 2, v25
        s_lshl_b32 s56, s50, 6
        s_add_u32 s56, s56, {RED}
        v_add_u32 v25, s56, v25
        v_cmp_eq_u32 vcc, 2, v22
        v_mov_b32 v26, 1.0
        s_lshl_b32 s58, s50, {HS+5}
        v_cndmask_b32 v26, 0, v26, vcc
        s_lshl_b32 s56, s53, {HS+2}
        s_add_u32 s58, s58, s56
        s_add_u32 s58, s58, {HACC}
        v_and_b32 v23, 0x7c, v23
        v_lshrrev_b32 v22, 5, v0
        v_lshl_add_u32 v23, v22, {HS}, v23
        v_mov_b32 v27, v26
        v_lshlrev_b32 v30, 10, v0
        s_lshl_b32 s60, s48, 2
        s_lshl_b32 s62, s52, 7
        s_add_u32 s60, s60, s62
        s_lshl_b32 s62, s53, 13
        s_add_u32 s60, s60, s62
        s_lshl_b32 s62, s50, 8
        s_add_u32 s60, s60, s62
        s_add_u32 s60, s60, {EW}""")
        if 'rep2' in self.skip: a("s_cmp_lt_u32 s50, 2\ns_cselect_b32 s60, s60, 0x7f000000")
        if early:
            self.waitflag(F_VI, n=4, t="v8", sleep=False)
            a("buffer_load_dwordx3 v[16:18], v15, s[16:19], s59 offen sc1\nbuffer_load_dword v31, v29, s[16:19], s61 offen sc1\ns_waitcnt vmcnt(2)")
            for z in range(2):
                for i in range(4):
                    for half in range(2):
                        r = 128 + (z*4 + i)*4 + half*2
                        a(f"ds_read_b64_tr_b16 v[{r}:{r+1}], v{160+i} offset:{z*4096 + half*2048}")
        a(f"s_waitcnt vmcnt({1 if early else 9})\nv_cmp_ne_u32 vcc, v18, v164\ns_cbranch_vccnz L_stwait\nL_stok:")
        c("combine weights w[b][h][j] = exp(m_j - M) / L")
        a("v_mov_b32 v19, v16\ns_nop 1")
        for rot in (8, 4, 2):
            a(f"v_max_f32_dpp v19, v19, v19 row_ror:{rot} row_mask:0xf bank_mask:0xf\ns_nop 1")
        a("v_sub_f32 v16, v16, v19\nv_mul_f32 v16, s69, v16\nv_exp_f32 v16, v16\ns_nop 0\nv_mul_f32 v17, v17, v16\ns_nop 1")
        for rot in (8, 4, 2):
            a(f"v_add_f32_dpp v17, v17, v17 row_ror:{rot} row_mask:0xf bank_mask:0xf\ns_nop 1")
        a("v_rcp_f32 v17, v17\ns_nop 0\nv_mul_f32 v16, v16, v17\ns_nop 1")
        for j in range(8):
            a(f"v_mov_b32_dpp v{96+j}, v16 row_newbcast:{2*j} row_mask:0xf bank_mask:0xf")
        a(f"ds_read_b32 v8, v3 offset:{F_P}\ns_waitcnt lgkmcnt(0)\nv_cmp_ne_u32 vcc, 1, v8\ns_cbranch_vccnz L_wglob\nL_wgok:")
        if 'nopipe' in self.skip: a("s_waitcnt vmcnt(0)")
        else:
            a("s_mov_b32 m0, s72\ns_nop 0")
            for q in range(4): a(f"buffer_load_dwordx4 v21, s[16:19], s57 offen offset:{q*1024} sc1 lds")
            a("s_waitcnt vmcnt(5)")
        self.stamp(4)
        for z in range(0 if early else 2):
            for i in range(4):
                for half in range(2):
                    r = 128 + (z*4 + i)*4 + half*2
                    a(f"ds_read_b64_tr_b16 v[{r}:{r+1}], v{160+i} offset:{z*4096 + half*2048}")
        l = self.lab("OP")
        def osweep():
            for q in range(4):
                a(f"buffer_load_dwordx4 v21, s[16:19], s57 offen offset:{q*1024} sc1 lds")
        if 'nopipe' in self.skip:
            a(f"s_mov_b32 m0, s72\n{l}:\ns_nop 0"); osweep(); a("s_waitcnt vmcnt(0)")
        else:
            a(f"{l}:\ns_xor_b32 m0, m0, 0x1000\ns_nop 0"); osweep(); a("s_waitcnt vmcnt(4)")
        for z in range(2):
            for st_ in range(2):
                r = 32 + (z*2 + st_)*4
                a(f"ds_read_b128 v[{r}:{r+3}], v{12+z} offset:{st_*2048}")
        if 'nopipe' not in self.skip: a("v_xor_b32 v12, 0x1000, v12\nv_xor_b32 v13, 0x1000, v13")
        def ew(k):
            if self.ewp == k:
                a("s_mov_b64 exec, 0xff\nbuffer_store_dword v164, v30, s[16:19], s60 offen sc1")
                if 'ew2x' in self.skip: a("buffer_store_dword v164, v30, s[16:19], s60 offen offset:64 sc1")
                a("s_mov_b64 exec, -1")
        def mf(i, z, st_):
            d = 64 + (i*2 + st_)*4; ra = 32 + (z*2 + st_)*4; rb = 128 + (z*4 + i)*4
            cin = "0" if z == 0 else f"v[{d}:{d+3}]"
            a(f"v_mfma_f32_16x16x32_bf16 v[{d}:{d+3}], v[{ra}:{ra+3}], v[{rb}:{rb+3}], {cin}")
        def fm(i, st_, r):
            d = 64 + (i*2 + st_)*4; acc = 48 + 4*i + st_
            if r == 0: a(f"v_mul_f32 v{acc}, v{d}, v{96+4*st_}")
            else: a(f"v_fmac_f32 v{acc}, v{d+r}, v{96+4*st_+r}")
        c("tile 0 starts speculatively while the sentinels are checked")
        a("s_waitcnt lgkmcnt(3)"); mf(0, 0, 0)
        a("s_waitcnt lgkmcnt(2)"); mf(0, 0, 1)
        a("v_max3_u32 v28, v32, v34, v36\ns_waitcnt lgkmcnt(1)"); mf(0, 1, 0)
        a("v_max3_u32 v14, v38, v40, v42\ns_waitcnt lgkmcnt(0)"); mf(0, 1, 1)
        a("v_max3_u32 v28, v28, v44, v46\nv_max_u32 v28, v28, v14\nv_cmp_eq_u32 vcc, -1, v28")
        mf(1, 0, 0)
        self.retry(l)
        if self.ewp in (0, 4): a("s_barrier")
        ew(0)
        self.stamp(5)
        seq = [(1, 0, 1), (1, 1, 0), (1, 1, 1)] + [(i, z, st_) for i in (2, 3) for z in range(2) for st_ in range(2)]
        fq = [(i, st_, r) for i in range(4) for r in range(4) for st_ in range(2)]
        for k, m in enumerate(seq):
            mf(*m)
            if k >= 1:
                for _ in range(2): fm(*fq.pop(0))
            if k == 5: a("v_add_f32 v48, v48, v49")
            if k == self.ewk: ew(4)
        a("v_add_f32 v52, v52, v53")
        for _ in range(2): fm(*fq.pop(0))
        a("ds_write2st64_b32 v24, v48, v52 offset0:0 offset1:1")
        for _ in range(2): fm(*fq.pop(0))
        a("v_cmp_ne_u32 vcc, v31, v164\nv_add_f32 v56, v56, v57")
        while fq: fm(*fq.pop(0))
        a("v_add_f32 v60, v60, v61")
        a("ds_write2st64_b32 v24, v56, v60 offset0:2 offset1:3")
        a("s_cbranch_vccnz L_grwait\nL_grok:")
        ew(1)
        a("s_waitcnt lgkmcnt(0)\ns_barrier")
        a("""ds_read2st64_b32 v[32:33], v25 offset0:0 offset1:4
        ds_read2st64_b32 v[34:35], v25 offset0:8 offset1:12
        ds_read2st64_b32 v[36:37], v25 offset0:2 offset1:6
        ds_read2st64_b32 v[38:39], v25 offset0:10 offset1:14""")
        ew(2)
        a("""s_mov_b32 exec_lo, 0x33333333
        s_mov_b32 exec_hi, 0x33333333
        s_waitcnt lgkmcnt(2)
        v_add_f32 v32, v32, v33
        v_add_f32 v34, v34, v35
        v_add_f32 v26, v32, v34
        s_waitcnt lgkmcnt(0)
        v_add_f32 v36, v36, v37
        v_add_f32 v38, v38, v39
        v_add_f32 v27, v36, v38
        s_mov_b64 exec, -1
        buffer_atomic_add_f32 v26, v23, s[16:19], s58 offen
        buffer_atomic_add_f32 v27, v23, s[16:19], s58 offen offset:%d""" % (2 << HS))
        ew(3)
        if 'wbl2' in self.skip: a("s_or_b32 s56, s49, s50\ns_cmp_lg_u32 s56, 0\ns_cbranch_scc1 L_exit\nbuffer_wbl2 sc1")
        self.stamp(6)
        a("s_branch L_exit")
        a("L_grwait:\nbuffer_load_dword v31, v29, s[16:19], s61 offen sc1\ns_waitcnt vmcnt(0)\nv_cmp_ne_u32 vcc, v31, v164")
        self.retry("L_grwait")
        a("s_branch L_grok")
        a("L_stwait:\ns_sleep 1\nbuffer_load_dwordx3 v[16:18], v15, s[16:19], s59 offen sc1\ns_waitcnt vmcnt(0)\nv_cmp_ne_u32 vcc, v18, v164")
        self.retry("L_stwait")
        a("s_branch L_stok")
        a(f"""L_wglob:
        s_sub_u32 s56, s57, {OP}
        s_lshr_b32 s56, s56, 13
        s_lshl_b32 s56, s56, 7
        s_add_u32 s56, s56, {RDY}
        s_add_u32 s57, s57, {OPG-OP}
        v_lshlrev_b32 v9, 2, v0
        v_and_b32 v9, 0x7c, v9
        L_wg2:
        buffer_load_dword v8, v9, s[16:19], s56 offen sc1
        s_waitcnt vmcnt(0)
        v_cmp_ne_u32 vcc, v8, v164""")
        self.retry("L_wg2")
        a("s_branch L_wgok")

    def wave_sum2(self, r0, r1, s0, s1):
        a = self.a
        for ctl in ("row_shr:1", "row_shr:2", "row_shr:4", "row_shr:8"):
            a(f"v_add_f32_dpp v{r0}, v{r0}, v{r0} {ctl} row_mask:0xf bank_mask:0xf bound_ctrl:0" if False else
              f"v_add_f32_dpp v{r0}, v{r0}, v{r0} {ctl.replace('shr','ror')} row_mask:0xf bank_mask:0xf")
            a(f"v_add_f32_dpp v{r1}, v{r1}, v{r1} {ctl.replace('shr','ror')} row_mask:0xf bank_mask:0xf\ns_nop 0")
        a(f"v_add_f32_dpp v{r0}, v{r0}, v{r0} row_bcast:15 row_mask:0xa bank_mask:0xf")
        a(f"v_add_f32_dpp v{r1}, v{r1}, v{r1} row_bcast:15 row_mask:0xa bank_mask:0xf\ns_nop 0")
        a(f"v_add_f32_dpp v{r0}, v{r0}, v{r0} row_bcast:31 row_mask:0xc bank_mask:0xf")
        a(f"v_add_f32_dpp v{r1}, v{r1}, v{r1} row_bcast:31 row_mask:0xc bank_mask:0xf")
        a(f"v_readlane_b32 s{s0}, v{r0}, 63\nv_readlane_b32 s{s1}, v{r1}, 63\ns_nop 1")

    def ew_gate(self, va):
        a = self.a
        l = self.lab("EW")
        a(f"v_lshlrev_b32 v{va}, 7, v12\ns_mov_b32 s63, {EW}")
        a(f"{l}:\nbuffer_load_dword v8, v{va}, s[16:19], s63 offen sc1\ns_waitcnt vmcnt(0)\nv_cmp_ne_u32 vcc, v8, v164")
        self.retry(l)

    def role_mlp(self):
        self.cur = 'MLP'
        a, c = self.a, self.c; ntw = (" " + self.ntw) if self.ntw else ""
        c("================= role MLP =================")
        a("L_mlp:")
        a(f"""s_mul_i32 s52, s48, 7
        s_add_u32 s52, s52, s49
        s_sub_u32 s52, s52, 14
        v_and_b32 v22, 3, v0
        v_mul_u32_u24 v21, 896, v6
        v_add_u32 v21, v21, v5
        s_mul_i32 s56, s52, {32*896}
        s_lshl_b32 s57, s50, 7
        s_add_u32 s56, s56, s57
        s_add_u32 s54, s55, {VL - KL}
        v_bfe_u32 v15, v0, 2, 2
        v_lshlrev_b32 v18, 6, v15
        v_lshl_add_u32 v18, v7, 4, v18
        v_add_u32 v18, {H1L}, v18
        v_mov_b32 v19, {ZR}""")
        for i in range(4):
            a(f"v_cmp_eq_u32 vcc, {i}, v22\ns_nop 1\nv_cndmask_b32 v{24+i}, v19, v18, vcc")
        self.tr_addr(160, "s54", 8)
        a(f"""s_mul_i32 s58, s52, 7168
        s_lshl_b32 s59, s50, 10
        s_add_u32 s58, s58, s59
        s_add_u32 s58, s58, {PART}
        s_add_u32 s62, s58, 4096
        v_lshlrev_b32 v23, 4, v0""")
        if 'warmpart' in self.skip:
            c("bring the lines this wave will publish into the memory-side cache")
            a("v_lshlrev_b32 v9, 7, v0\ns_mov_b64 exec, 0xff\nbuffer_load_dword v165, v9, s[16:19], s58 offen\nbuffer_load_dword v165, v9, s[16:19], s62 offen\ns_mov_b64 exec, -1")
        a("s_cmp_ge_u32 s50, 2\ns_cbranch_scc1 L_mlp_b")
        def w2ld(skip3=False):
            for p in range(8):
                if p == 4 and skip3: a("s_cmp_eq_u32 s50, 3\ns_cselect_b32 s56, 0x7f000000, s56")
                a(f"s_add_u32 m0, s54, {p*1024}\ns_add_u32 s53, s56, {(p & 3)*8*896 + (p >> 2)*512}")
                a(f"buffer_load_dwordx4 v21, s[32:35], s53 offen{ntw} lds")
        def w2rd():
            for qq in range(2):
                for i in range(4):
                    for half in range(2):
                        r = 120 + (qq*4 + i)*4 + half*2
                        a(f"ds_read_b64_tr_b16 v[{r}:{r+1}], v{160+i} offset:{qq*4096 + half*2048}")
        c("---- waves 0,1: w1 tile (14 pieces each), then h @ w1 (row 4b+1 of A = ones gives the column sums) ----")
        a(f"""v_lshrrev_b32 v13, 2, v0
        v_mul_u32_u24 v20, 3584, v13
        v_lshl_add_u32 v20, v22, 4, v20
        v_lshlrev_b32 v13, 6, v13
        v_lshl_add_u32 v13, v22, 3, v13
        s_lshl_b32 s57, s50, 5
        s_add_u32 s53, s57, {KL}
        v_add_u32 v13, s53, v13
        s_lshl_b32 s59, s52, 6
        s_add_u32 s57, s57, s59
        s_mul_i32 s53, s50, {14*16*3584}
        s_add_u32 s59, s59, s53
        v_lshlrev_b32 v9, 1, v12
        buffer_load_ushort v28, v9, s[40:43], s57 offen
        v_mul_u32_u24 v16, 896, v15
        v_lshl_add_u32 v16, v7, 4, v16
        v_add_u32 v16, {YL}, v16
        v_cmp_eq_u32 vcc, 1, v22
        v_mov_b32 v9, {ONL}
        v_lshlrev_b32 v17, 6, v7
        v_cndmask_b32 v16, v16, v9, vcc
        v_lshl_add_u32 v17, v15, 4, v17
        v_lshl_add_u32 v17, v22, 1, v17
        s_lshl_b32 s53, s50, 3
        s_add_u32 s53, s53, {H1L}
        v_add_u32 v17, s53, v17
        v_lshlrev_b32 v14, 3, v7
        v_mov_b32 v8, 0x3f803f80
        v_mov_b32 v9, v8
        v_mov_b32 v10, v8
        v_mov_b32 v11, v8
        ds_write_b128 v23, v[8:11] offset:{ONL}""")
        self.waitflag(F_VI if 'w1vi' in self.skip else F_PV, n=4, t="v96", sleep=False)
        for x in range(14):
            a(f"s_add_u32 m0, s55, {x*1024}\ns_add_u32 s53, s59, {x*16*3584}")
            a(f"buffer_load_dwordx4 v20, s[36:39], s53 offen{ntw} lds")
        if 'w1vi' in self.skip: self.waitflag(F_PV, n=4, t="v96", sleep=False)
        w2ld()
        a("s_waitcnt vmcnt(8)")
        self.setflag(F_W1)
        a("v_xor_b32 v9, 4, v2")
        self.waitflag(F_W1, "v9", sleep=False)
        for ks in range(14):
            for half in range(2):
                p = 2*ks + half
                r = 64 + ks*4 + half*2
                a(f"ds_read_b64_tr_b16 v[{r}:{r+1}], v13 offset:{(p//14)*16384 + (p%14)*1024}")
        a("v_lshlrev_b32 v28, 16, v28\ns_waitcnt vmcnt(0)")
        w2rd()
        self.stamp(4)
        a("s_waitcnt lgkmcnt(0)\ns_barrier")
        self.stamp(6)
        regs = [8, 32, 36, 40, 44, 48, 52, 56, 60, 156, 160, 8, 32, 36]
        for ks in range(11):
            a(f"ds_read_b128 v[{regs[ks]}:{regs[ks]+3}], v16 offset:{ks*64}")
        early = 'latest' not in self.skip
        for ks in range(14):
            if not early or ks < 11: a(f"s_waitcnt lgkmcnt({10-ks if ks < 3 else 13-ks})")
            if early and ks == 11: a(f"s_waitcnt lgkmcnt(0)\ns_barrier\nds_read_b64 v[30:31], v14 offset:{STL}")
            r = regs[ks]
            a(f"v_mfma_f32_16x16x32_bf16 v[152:155], v[{r}:{r+3}], v[{64+4*ks}:{67+4*ks}], {'0' if ks == 0 else 'v[152:155]'}")
            if ks == 2:
                for k2 in (11, 12, 13): a(f"ds_read_b128 v[{regs[k2]}:{regs[k2]+3}], v16 offset:{k2*64}")
        k1 = -2*1.4426950408889634*0.7978845608028654
        if not early: a(f"s_barrier\nds_read_b64 v[30:31], v14 offset:{STL}")
        a(f"""s_mov_b32 s64, {hex(f2u(k1*0.044715))}
        v_mov_b32 v9, {hex(f2u(k1))}
        s_nop {4 if early else 2}
        s_waitcnt lgkmcnt(0)
        v_fma_f32 v28, -v31, v153, v28
        v_fmac_f32 v28, v152, v30
        v_mul_f32 v8, v28, v28
        v_fma_f32 v8, v8, s64, v9
        v_mul_f32 v8, v8, v28
        v_exp_f32 v8, v8
        s_nop 0
        v_add_f32 v8, 1.0, v8
        v_rcp_f32 v8, v8
        s_nop 0
        v_mul_f32 v8, v8, v28
        v_cvt_pk_bf16_f32 v8, v8, v8
        ds_write_b16 v17, v8
        s_waitcnt lgkmcnt(0)
        L_mlp2:
        s_barrier""")
        self.stamp(7)
        for i in range(4):
            a(f"ds_read_b128 v[{32+4*i}:{35+4*i}], v{24+i}")
        for i in range(4):
            a(f"s_waitcnt lgkmcnt({3-i})")
            for qq in range(2):
                d = 48 + 4*qq; r = 120 + (qq*4 + i)*4
                cin = "0" if i == 0 else f"v[{d}:{d+3}]"
                a(f"v_mfma_f32_16x16x32_bf16 v[{d}:{d+3}], v[{32+4*i}:{35+4*i}], v[{r}:{r+3}], {cin}")
        a("""v_mov_b32 v58, v164
        v_mov_b32 v59, v164
        v_mov_b32 v62, v164
        v_mov_b32 v63, v164
        s_nop 2
        v_cvt_pk_bf16_f32 v56, v48, v49
        v_cvt_pk_bf16_f32 v57, v50, v51
        buffer_store_dwordx4 v[56:59], v23, s[16:19], s58 offen sc1
        s_cmp_eq_u32 s50, 3
        s_cbranch_scc1 L_exit
        v_cvt_pk_bf16_f32 v60, v52, v53
        v_cvt_pk_bf16_f32 v61, v54, v55
        buffer_store_dwordx4 v[60:63], v23, s[16:19], s62 offen sc1""")
        self.stamp(8)
        a("s_branch L_exit")

        c("---- waves 2,3: rows u and u-2 of h -> LDS and their LayerNorm statistics ----")
        a(f"""L_mlp_b:
        v_lshlrev_b32 v9, 2, v0
        s_mul_i32 s57, s50, 896
        s_sub_u32 s59, s57, 1792
        s_mov_b32 exec_hi, 0x00ffffff""")
        for i in range(4):
            a(f"buffer_load_dword v{36+i}, v9, s[20:23], s57 offen offset:{i*224}")
        for i in range(4):
            a(f"buffer_load_dword v{156+i}, v9, s[20:23], s59 offen offset:{i*224}")
        a(f"s_mov_b32 exec_hi, -1\ns_add_u32 s59, s59, {YL}")
        for i in range(4):
            a(f"""v_add_u32 v8, {56*i}, v0
            v_lshrrev_b32 v9, 4, v8
            v_lshlrev_b32 v9, 6, v9
            v_bfe_u32 v10, v8, 1, 2
            v_lshl_add_u32 v9, v10, 4, v9
            v_and_b32 v10, 8, v8
            v_add_u32 v9, v9, v10
            v_and_b32 v10, 1, v8
            v_lshl_add_u32 v9, v10, 2, v9
            v_add_u32 v{32+i}, s59, v9""")
        a(f"""s_lshl_b32 s53, s50, 3
        v_mov_b32 v15, s53
        s_lshl_b32 s57, s50, {HS+5}
        s_add_u32 s57, s57, {HACC}
        s_sub_u32 s61, s57, {64 << HS}
        v_and_b32 v92, 0x70, v23
        v_lshl_add_u32 v92, v6, {HS}, v92
        v_add_u32 v93, {7 << HS}, v92
        v_add_u32 v94, {14 << HS}, v92
        v_add_u32 v95, {21 << HS}, v92
        v_and_b32 v16, 32, v0
        v_add_u32 v16, v16, v0
        v_lshlrev_b32 v16, {HS}, v16
        s_mov_b32 s66, {HACC}
        s_mov_b32 s67, {HACC + (32 << HS)}
        s_mov_b32 s59, {hex(f2u(16.0))}
        s_lshl_b32 s63, s52, 10
        s_add_u32 s63, s63, {EW}
        s_add_u32 s64, s16, s63
        s_addc_u32 s65, s17, 0
        v_lshrrev_b32 v19, 1, v0
        v_mul_u32_u24 v19, {7*512}, v19
        v_and_b32 v18, 1, v0
        v_lshl_add_u32 v19, v18, 7, v19
        s_sub_u32 s63, s49, 14
        s_lshl_b32 s63, s63, 9
        s_lshl_b32 s53, s48, 2
        s_add_u32 s63, s63, s53
        s_and_b32 s53, s50, 1
        s_lshl_b32 s53, s53, 8
        s_add_u32 s63, s63, s53
        s_add_u32 s63, s63, {FH}
        s_mov_b32 s60, 0xffff0000""")
        if 'rep2' in self.skip: a("s_cmp_eq_u32 s50, 2\ns_cselect_b32 s63, s63, 0x7f000000")
        for i in range(4): a(f"v_mov_b32 v{88+i}, 0")
        if self.cl:
            a("s_sub_u32 s53, s49, 15\ns_lshl_b32 s53, s53, 1\ns_add_u32 s53, s53, s50")
            for n in range(5):
                a(f"""s_lshl_b32 s24, s53, 10
                s_lshl_b32 s25, s48, 15
                s_add_u32 s25, s25, s24
                s_add_u32 s25, s25, {OP}
                s_sub_u32 s26, s53, 32
                s_lshr_b32 s26, s26, 1
                s_lshl_b32 s26, s26, 14
                s_and_b32 s27, s24, 1024
                s_add_u32 s26, s26, s27
                s_lshl_b32 s27, s48, 11
                s_add_u32 s26, s26, s27
                s_add_u32 s26, s26, {QPL}
                s_lshl_b32 s27, s48, 12
                s_add_u32 s27, s27, s24
                s_add_u32 s27, s27, {STAT - 65536}
                s_cmp_lt_u32 s53, 68
                s_cselect_b32 s27, s27, 0x7f000000
                s_cmp_lt_u32 s53, 64
                s_cselect_b32 s26, s26, s27
                s_cmp_lt_u32 s53, 32
                s_cselect_b32 s{44+n if n < 4 else 43}, s25, s26
                s_add_u32 s53, s53, 14""")
        self.waitflag(F_PV, n=4, t="v96", sleep=False)
        w2ld(True)
        a("s_waitcnt vmcnt(8)")
        for i in range(4):
            a(f"v_lshlrev_b32 v{40+2*i}, 16, v{36+i}\nv_and_b32 v{41+2*i}, s60, v{36+i}\nv_lshlrev_b32 v{104+2*i}, 16, v{156+i}\nv_and_b32 v{105+2*i}, s60, v{156+i}")
        def fh(k):
            if self.hp == k:
                a("s_mov_b64 exec, 0xffff\nbuffer_store_dword v164, v19, s[16:19], s63 offen sc1")
                if 'fh2x' in self.skip: a("buffer_store_dword v164, v19, s[16:19], s63 offen offset:64 sc1")
                a("s_mov_b64 exec, -1")
        a("s_cmp_lg_u32 s50, 3\ns_cbranch_scc1 L_gow")
        self.phint(16)
        self.setflag(F_GO, "v3")
        if 'nokick' not in self.skip:
            a("s_mov_b32 exec_lo, 0x0fffffff\ns_mov_b32 exec_hi, 0x0fffffff\nbuffer_load_dword v165, v16, s[16:19], s66 offen sc1")
            if 'kick2' in self.skip: a("buffer_load_dword v165, v16, s[16:19], s67 offen sc1")
            a("s_mov_b32 exec_lo, -1")
        a("s_branch L_hp\nL_gow:")
        self.waitflag(F_GO, sleep=False)
        a("L_hp:")
        if self.prof and not self.light: a("s_memrealtime s[94:95]")
        a("s_mov_b32 exec_hi, 0x00ffffff")
        for i in range(4):
            a(f"buffer_load_dwordx4 v[{48+4*i}:{51+4*i}], v{92+i}, s[16:19], s57 offen sc1")
        for i in range(4):
            a(f"buffer_load_dwordx4 v[{64+4*i}:{67+4*i}], v{92+i}, s[16:19], s61 offen sc1")
        a("s_mov_b32 exec_hi, -1\ns_waitcnt vmcnt(8)")
        w2rd()
        a("s_mov_b32 exec_hi, 0x00ffffff\ns_waitcnt vmcnt(4)")
        for i in range(4):
            a(f"v_pk_add_f32 v[{48+4*i}:{49+4*i}], v[{48+4*i}:{49+4*i}], v[{40+2*i}:{41+2*i}]\nv_cvt_pk_bf16_f32 v{36+i}, v{48+4*i}, v{49+4*i}\nds_write_b32 v{32+i}, v{36+i} offset:1792")
        a("v_min_f32 v8, v50, v54\nv_min3_f32 v8, v8, v58, v62\ns_waitcnt vmcnt(0)")
        for i in range(4):
            a(f"v_pk_add_f32 v[{64+4*i}:{65+4*i}], v[{64+4*i}:{65+4*i}], v[{104+2*i}:{105+2*i}]\nv_cvt_pk_bf16_f32 v{156+i}, v{64+4*i}, v{65+4*i}\nds_write_b32 v{32+i}, v{156+i}")
        a("v_min3_f32 v8, v8, v66, v70\nv_min3_f32 v8, v8, v74, v78\nv_cmp_neq_f32 vcc, s59, v8")
        self.retry("L_hp", self.hb)
        self.stamp(5)
        if self.prof and not self.light: a("v_writelane_b32 v167, s94, 9")
        a("""v_pk_add_f32 v[80:81], v[48:49], v[52:53]
        v_pk_mul_f32 v[82:83], v[48:49], v[48:49]
        v_pk_add_f32 v[84:85], v[64:65], v[68:69]
        v_pk_mul_f32 v[86:87], v[64:65], v[64:65]
        s_waitcnt lgkmcnt(0)
        s_barrier
        v_pk_add_f32 v[80:81], v[80:81], v[56:57]
        v_pk_fma_f32 v[82:83], v[52:53], v[52:53], v[82:83]
        v_pk_add_f32 v[84:85], v[84:85], v[72:73]
        v_pk_fma_f32 v[86:87], v[68:69], v[68:69], v[86:87]
        v_pk_add_f32 v[80:81], v[80:81], v[60:61]
        v_pk_fma_f32 v[82:83], v[56:57], v[56:57], v[82:83]
        v_pk_add_f32 v[84:85], v[84:85], v[76:77]
        v_pk_fma_f32 v[86:87], v[72:73], v[72:73], v[86:87]
        v_pk_fma_f32 v[82:83], v[60:61], v[60:61], v[82:83]
        v_pk_fma_f32 v[86:87], v[76:77], v[76:77], v[86:87]
        v_add_f32 v88, v80, v81
        v_add_f32 v90, v84, v85
        v_add_f32 v89, v82, v83
        v_add_f32 v91, v86, v87
        s_mov_b32 exec_hi, -1""")
        fh(2)
        if self.cl == 2:
            for r in (44, 45, 46, 47, 43): a(f"buffer_store_dwordx4 v[80:83], v23, s[16:19], s{r} offen sc1")
        c("reduce-scatter the four sums over the wave: rows 0..3 end up with S(u), S(u-2), Q(u), Q(u-2)")
        a("""s_nop 0
        v_permlane32_swap_b32 v88, v89
        v_permlane32_swap_b32 v90, v91
        v_add_f32 v8, v88, v89
        v_add_f32 v10, v90, v91
        s_nop 1
        v_permlane16_swap_b32 v8, v10
        v_add_f32 v8, v8, v10
        s_nop 1""")
        fh(6)
        self.dpp_allred16("v_add_f32", [8])
        fh(7)
        c("LN(LN(h)) = (h - m) * rs1 * rs2 : rs1 = rsq(v + eps), second LN sees mean 0 and variance v*rs1^2")
        a(f"""v_mul_f32 v8, {hex(f2u(1/448))}, v8
        v_mov_b32 v9, v8
        s_mov_b32 s64, {hex(f2u(1e-5))}
        v_and_b32 v10, 16, v0
        v_permlane32_swap_b32 v8, v9
        v_fma_f32 v9, -v8, v8, v9
        v_max_f32 v9, 0, v9
        v_add_f32 v11, s64, v9
        v_rsq_f32 v11, v11
        v_xor_b32 v15, v15, v10
        v_mul_f32 v9, v9, v11
        v_fma_f32 v9, v9, v11, s64
        v_rsq_f32 v9, v9
        s_mov_b32 exec_lo, 0x00010001
        s_mov_b32 exec_hi, 0
        v_mul_f32 v30, v9, v11
        v_mul_f32 v31, v30, v8
        ds_write_b64 v15, v[30:31] offset:{STL}
        s_mov_b64 exec, -1""")
        fh(3)
        a("s_waitcnt lgkmcnt(0)\ns_barrier")
        fh(1)
        if self.cl == 1:
            for r in (44, 45, 46, 47, 43): a(f"buffer_store_dwordx4 v[88:91], v23, s[16:19], s{r} offen sc1")
        c("every workgroup has read the epoch by now: advance it for the next launch")
        a(f"""s_lshl_b32 s53, s52, 2
        s_add_u32 s53, s53, s50
        s_cmp_lg_u32 s53, 3
        s_cbranch_scc1 L_mlp2
        s_mov_b32 s53, {EPO}
        s_mov_b64 exec, 1
        buffer_store_dword v164, v23, s[16:19], s53 offen sc1
        s_mov_b64 exec, -1
        s_branch L_mlp2""")

    def role_fin(self):
        self.cur = 'FIN'
        a, c = self.a, self.c
        c("================= role FINAL =================")
        a("L_fin:")
        self.srd(40, 72, 896)
        self.srd(44, 80, 3584)
        a(f"""s_mul_i32 s52, s48, 7
        s_add_u32 s52, s52, s49
        s_lshl_b32 s52, s52, 1
        s_add_u32 s52, s52, s50
        s_sub_u32 s52, s52, 44
        s_lshl_b32 s53, s52, 6
        s_add_u32 s53, s53, {PART}
        s_add_u32 s54, s53, {16*7168}
        s_add_u32 s55, s53, {32*7168}
        s_add_u32 s56, s53, {48*7168}
        v_lshrrev_b32 v20, 2, v0
        v_mul_u32_u24 v20, 7168, v20
        v_and_b32 v22, 3, v0
        v_lshl_add_u32 v20, v22, 4, v20
        s_lshr_b32 s57, s52, 4
        s_lshl_b32 s57, s57, 6
        s_and_b32 s58, s52, 3
        s_lshl_b32 s58, s58, 2
        s_add_u32 s57, s57, s58
        v_and_b32 v23, 16, v0
        v_lshlrev_b32 v23, 1, v23
        v_lshrrev_b32 v24, 5, v0
        v_lshl_add_u32 v23, v24, 4, v23
        v_add3_u32 v23, v23, v22, s57
        v_lshlrev_b32 v24, 1, v23
        v_bfe_u32 v25, v23, 1, 3
        v_lshlrev_b32 v25, 4, v25
        v_lshrrev_b32 v26, 4, v23
        v_lshl_add_u32 v25, v26, {HS}, v25
        s_bfe_u32 s58, s52, 0x20002
        s_mul_i32 s59, s58, 896
        s_lshl_b32 s58, s58, {HS+5}
        s_add_u32 s58, s58, {HACC}
        s_mov_b32 s61, {hex(f2u(16.0))}
        v_mov_b32 v44, 0
        v_mov_b32 v45, 0
        v_mov_b32 v46, v164
        s_mov_b32 s60, 0xffff0000
        s_waitcnt lgkmcnt(0)
        buffer_load_ushort v26, v24, s[20:23], s59 offen
        buffer_load_ushort v27, v24, s[40:43], 0 offen
        buffer_load_ushort v28, v24, s[44:47], s59 offen""")
        a(f"""s_lshr_b32 s63, s52, 1
        s_lshl_b32 s63, s63, 9
        s_add_u32 s63, s63, {FH}
        s_add_u32 s64, s16, s63
        s_addc_u32 s65, s17, 0
        v_and_b32 v8, 1, v0
        v_cmp_eq_u32 s[66:67], 1, v8
        s_waitcnt vmcnt(0)
        v_lshlrev_b32 v26, 16, v26
        v_lshlrev_b32 v27, 16, v27
        v_add_f32 v26, v26, v27""")
        a("s_cmp_lg_u32 s50, 3\ns_cbranch_scc1 L_fhbar")
        self.phint(8)
        a("L_fhbar:\ns_barrier")
        if self.prof and not self.light: a("s_memrealtime s[94:95]")
        l = self.lab("FP")
        a(f"""{l}:
        buffer_load_dwordx4 v[28:31], v25, s[16:19], s58 offen sc1
        buffer_load_dwordx4 v[32:35], v20, s[16:19], s53 offen sc1
        buffer_load_dwordx4 v[36:39], v20, s[16:19], s54 offen sc1
        buffer_load_dwordx4 v[40:43], v20, s[16:19], s55 offen sc1
        s_mov_b32 exec_hi, 0
        buffer_load_dwordx4 v[44:47], v20, s[16:19], s56 offen sc1
        s_mov_b32 exec_hi, -1
        s_waitcnt vmcnt(4)
        v_cndmask_b32 v28, v28, v29, s[66:67]
        v_add_f32 v27, v26, v28
        v_cmp_neq_f32 s[68:69], s61, v30
        s_waitcnt vmcnt(3)
        v_lshlrev_b32 v48, 16, v32
        v_and_b32 v49, s60, v32
        v_lshlrev_b32 v50, 16, v33
        v_and_b32 v51, s60, v33
        v_xor_b32 v8, v34, v164
        s_waitcnt vmcnt(2)
        v_lshlrev_b32 v52, 16, v36
        v_and_b32 v53, s60, v36
        v_lshlrev_b32 v54, 16, v37
        v_and_b32 v55, s60, v37
        v_bitop3_b32 v8, v8, v38, v164 bitop3:0xf6
        v_pk_add_f32 v[48:49], v[48:49], v[52:53]
        v_pk_add_f32 v[50:51], v[50:51], v[54:55]
        s_waitcnt vmcnt(1)
        v_lshlrev_b32 v52, 16, v40
        v_and_b32 v53, s60, v40
        v_lshlrev_b32 v54, 16, v41
        v_and_b32 v55, s60, v41
        v_bitop3_b32 v8, v8, v42, v164 bitop3:0xf6
        v_pk_add_f32 v[48:49], v[48:49], v[52:53]
        v_pk_add_f32 v[50:51], v[50:51], v[54:55]
        s_waitcnt vmcnt(0)
        v_lshlrev_b32 v52, 16, v44
        v_and_b32 v53, s60, v44
        v_lshlrev_b32 v54, 16, v45
        v_and_b32 v55, s60, v45
        v_pk_add_f32 v[32:33], v[48:49], v[52:53]
        v_pk_add_f32 v[34:35], v[50:51], v[54:55]
        v_bitop3_b32 v8, v8, v46, v164 bitop3:0xf6
        v_cmp_ne_u32 vcc, 0, v8
        s_or_b64 vcc, vcc, s[68:69]""")
        self.retry(l)
        self.stamp(6)
        if self.prof and not self.light: a("v_writelane_b32 v167, s94, 5")
        a("""
        v_permlane32_swap_b32 v32, v33
        v_permlane32_swap_b32 v34, v35
        v_add_f32 v32, v32, v33
        v_add_f32 v34, v34, v35
        s_nop 1
        v_permlane16_swap_b32 v32, v34
        v_add_f32 v32, v32, v34
        s_nop 1
        v_add_f32_dpp v32, v32, v32 row_ror:4 row_mask:0xf bank_mask:0xf
        s_nop 1
        v_add_f32_dpp v32, v32, v32 row_ror:8 row_mask:0xf bank_mask:0xf
        v_add_f32 v32, v32, v27
        v_cvt_pk_bf16_f32 v32, v32, v32
        s_mov_b32 exec_lo, 0x000f000f
        s_mov_b32 exec_hi, 0x000f000f
        buffer_store_short v32, v24, s[44:47], s59 offen""" + (' sc1' if 'outsc1' in self.skip else '') + (' nt' if 'outnt' in self.skip else ''))
        self.stamp(7)

def add_pads(text, gap=960, nchain=3):
    import subprocess, re, tempfile, os
    lines = text.split("\n")
    start = next(i for i, l in enumerate(lines) if l.startswith(NAME + "_kernel:"))
    end = next(i for i, l in enumerate(lines) if l.startswith("L_end:"))
    def addrs(ls):
        t = []
        for i, l in enumerate(ls):
            if start < i and l.startswith("    ") and not l.strip().startswith(";") and not l.strip().startswith("."):
                t.append(f"ZZ_{i}:")
            t.append(l)
        src = "\n".join(t)
        for k in range(nchain):
            if f"PADCHAIN_{k}:" not in src: src = src.replace(f"PADCHAIN_{k}", "L_end").replace(f"PADSECOND_{k}", "L_end")
        src = re.sub(r"PADNEXT", "L_end", src)
        with tempfile.TemporaryDirectory() as d:
            open(d + "/a.s", "w").write(src)
            subprocess.check_call(["clang", "-x", "assembler", "-target", "amdgcn-amd-amdhsa", "-mcpu=gfx950", "-c", d + "/a.s", "-o", d + "/a.o"])
            out = subprocess.check_output(["llvm-objdump", "-t", d + "/a.o"], text=True)
        r = {}
        for l in out.splitlines():
            p = l.split()
            if not p: continue
            if p[-1].startswith("ZZ_"): r[int(p[-1][3:])] = int(p[0], 16)
            if p[-1] == NAME + "_kernel": base = int(p[0], 16)
        return {k: v - base for k, v in r.items()}
    ad = addrs(lines)
    pads = []; last = 0; shift = 0; noz = False
    for i in sorted(ad):
        if i >= end: break
        if "NOPAD_ON" in lines[i - 1]: noz = True
        if "NOPAD_OFF" in lines[i - 1]: noz = False
        x = ad[i] + shift
        if not noz and (x - last >= gap or (x >> 12) != (last >> 12)):
            pads.append(i); last = x; shift += 4
    n = len(pads)
    out = []
    for i, l in enumerate(lines):
        if i in pads:
            k = pads.index(i)
            if k < nchain: out.append(f"PADCHAIN_{k}:")
            out.append(f"PAD_{k}:")
            if nchain <= k < 2*nchain: out.append(f"PADSECOND_{k - nchain}:")
            nxt = f"WB_{k}" if k < nchain else f"PAD_{k + nchain}" if k + nchain < n else "L_warmdone"
            out.append(f"    s_cbranch_execz {nxt}")
        out.append(l)
    return "\n".join(out)

if __name__ == "__main__":
    import argparse
    ap = argparse.ArgumentParser()
    ap.add_argument("-o", default="k.s"); ap.add_argument("-W", type=int, default=6); ap.add_argument("--WV", type=int, default=0); ap.add_argument("--WE", type=int, default=0); ap.add_argument("--NE", type=int, default=0); ap.add_argument("--pf64", action="store_true"); ap.add_argument("--ntp", default=""); ap.add_argument("--hd", type=int, default=4); ap.add_argument("--qd", type=int, default=0); ap.add_argument("--dly", default=None); ap.add_argument("--skip", default=""); ap.add_argument("--rot", type=int, default=1); ap.add_argument("--pw", default="1"); ap.add_argument("--ewp", type=int, default=2); ap.add_argument("--hp", type=int, default=2); ap.add_argument("--pft", type=int, default=3); ap.add_argument("--ww", type=int, default=8); ap.add_argument("--od", type=int, default=2); ap.add_argument("--dx", type=int, default=-1); ap.add_argument("--tkp", type=int, default=-1); ap.add_argument("--ps", type=int, default=1); ap.add_argument("--light", action="store_true"); ap.add_argument("--ewk", type=int, default=4); ap.add_argument("--pwo", type=int, default=16); ap.add_argument("--pw1", type=int, default=99); ap.add_argument("--pw2", type=int, default=99); ap.add_argument("--qg", type=int, default=1); ap.add_argument("--ord", type=int, default=0); ap.add_argument("--hlp", default="12p")
    ap.add_argument("--prof", action="store_true"); ap.add_argument("--nt", default="nt"); ap.add_argument("--ntw", default="")
    ap.add_argument('--hb', type=int, default=0)
    ap.add_argument('--lq', default=''); ap.add_argument('--lc', default=''); ap.add_argument('--lo', default='')
    ap.add_argument('--cl', type=int, default=0)
    ap.add_argument('--W0', type=int, default=0)
    ap.add_argument('--xd', type=int, default=0)
    ap.add_argument('--hs', type=int, default=10)
    x = ap.parse_args()
    HS = x.hs
    open(x.o, "w").write(add_pads(G(W=x.W, WV=x.WV, WE=x.WE, NE=x.NE, pf64=x.pf64, ntp=x.ntp, hd=x.hd, qd=x.qd, dly=x.dly, skip=x.skip, rot=x.rot, pw=x.pw, ewp=x.ewp, hp=x.hp, pft=x.pft, ww=x.ww, od=x.od, dx=x.dx, tkp=x.tkp, ps=x.ps, light=x.light, ewk=x.ewk, pwo=x.pwo, pw1=x.pw1, pw2=x.pw2, qg=x.qg, ord=x.ord, hlp=x.hlp, hb=x.hb, lq=x.lq, lc=x.lc, lo=x.lo, cl=x.cl, W0=x.W0, xd=x.xd, prof=x.prof, nt=x.nt, ntw=x.ntw).build()))
```
